```python
import torch

def _softmax(x, axis=-1):
    return torch.softmax(x, dim=axis)
def _gelu(x):
    return torch.nn.functional.gelu(x, approximate="tanh")
def _silu(x):
    return torch.nn.functional.silu(x)
def _sigmoid(x):
    return torch.sigmoid(x)
def _layernorm(x, axis=-1, eps=1e-5):
    m = x.mean(dim=axis, keepdim=True)
    v = x.var(dim=axis, keepdim=True, unbiased=False)
    return (x - m) / torch.sqrt(v + eps)
def _scatter_add(tgt, idx, src, axis=0):
    return tgt.clone().index_add_(axis, idx, src)
def _segment_sum(src, seg, n):
    out = torch.zeros((n,) + src.shape[1:], dtype=src.dtype)
    return out.index_add_(0, seg, src)
def _pad(x, pw):
    flat = tuple(v for pair in reversed(pw) for v in pair)
    return torch.nn.functional.pad(x, flat)

kernel_name = 'gated_mix__ssm_conv_s5__dense_activation_silu__prompt'

def setup_inputs():

    _w = (lambda a: (lambda t: t.to(torch.bfloat16) if t.is_floating_point() else t)(torch.as_tensor(a)))
    def _A_setup():
        B, S, D = 1, 2048, 640
        P = D
        Lambda_re = -0.5 * (lambda _x: torch.exp(torch.as_tensor(_x)))((lambda *s: torch.randn(*s, dtype=torch.bfloat16) * 0.2)(P))
        Lambda_im = (lambda *s: torch.randn(*s, dtype=torch.bfloat16) * 0.4)(P) * 1.0
        B_re = (lambda *s: torch.randn(*s, dtype=torch.bfloat16) * 0.2)(P, D) * (D ** -0.5)
        B_im = (lambda *s: torch.randn(*s, dtype=torch.bfloat16) * 0.2)(P, D) * (D ** -0.5)
        C_re = (lambda *s: torch.randn(*s, dtype=torch.bfloat16) * 0.2)(D, P) * (P ** -0.5)
        C_im = (lambda *s: torch.randn(*s, dtype=torch.bfloat16) * 0.2)(D, P) * (P ** -0.5)
        log_dt = (lambda *s: torch.randn(*s, dtype=torch.bfloat16) * 0.2)(P) * 0.3 - 2.0
        Dskip = (lambda *s: torch.randn(*s, dtype=torch.bfloat16) * 0.05)(D)
        return {
            "x": _w((lambda *s: torch.randn(*s, dtype=torch.bfloat16) * 0.05)(B, S, D)),
            "Lambda_re": _w(Lambda_re),
            "Lambda_im": _w(Lambda_im),
            "B_re": _w(B_re),
            "B_im": _w(B_im),
            "C_re": _w(C_re),
            "C_im": _w(C_im),
            "log_dt": _w(log_dt),
            "Dskip": _w(Dskip),
        }
    _A_in = _A_setup()

    def _B_setup():
        B, S, D, F = 1, 2048, 640, 1536
        return {
            "x": _w((lambda *s: torch.randn(*s, dtype=torch.bfloat16) * 0.05)(B, S, D)),
            "w1": _w((lambda *s: torch.randn(*s, dtype=torch.bfloat16) * 3.2)(D, F) * (D ** -0.5)),
            "w2": _w((lambda *s: torch.randn(*s, dtype=torch.bfloat16) * 0.1)(F, D) * (F ** -0.5)),
        }
    _B_in = _B_setup()

    return {
        "A_x": _A_in["x"],
        "A_Lambda_re": _A_in["Lambda_re"],
        "A_Lambda_im": _A_in["Lambda_im"],
        "A_B_re": _A_in["B_re"],
        "A_B_im": _A_in["B_im"],
        "A_C_re": _A_in["C_re"],
        "A_C_im": _A_in["C_im"],
        "A_log_dt": _A_in["log_dt"],
        "A_Dskip": _A_in["Dskip"],
        "B_x": _B_in["x"],
        "B_w1": _B_in["w1"],
        "B_w2": _B_in["w2"],
        "gate_w": _w((lambda *s: torch.randn(*s, dtype=torch.bfloat16) * 0.05)(640) * 16.0),
    }

def reference(A_x, A_Lambda_re, A_Lambda_im, A_B_re, A_B_im, A_C_re, A_C_im, A_log_dt, A_Dskip, B_x, B_w1, B_w2, gate_w):
    def _A_ref(x, Lambda_re, Lambda_im, B_re, B_im, C_re, C_im, log_dt, Dskip):
        Bsz, L, H = x.shape
        Lam = Lambda_re + 1j * Lambda_im
        Bmat = B_re + 1j * B_im
        Cmat = C_re + 1j * C_im
        dt = torch.exp(log_dt)
        Lam_bar = torch.exp(dt * Lam)
        B_bar = ((Lam_bar - 1.0) / Lam)[:, None] * Bmat
        Bu = torch.einsum("bld,pd->blp", x + 0j, B_bar)
        h = torch.zeros_like(Bu[:, 0, :])
        hs = []
        for t in range(L):
            h = Lam_bar[None, :] * h + Bu[:, t, :]
            hs.append(h)
        hseq = torch.stack(hs, 1)
        y = 2.0 * torch.einsum("blp,dp->bld", hseq, Cmat).real + x * Dskip[None, None, :]
        return y

    def _B_ref(x, w1, w2):
        h = torch.einsum("bsd,df->bsf", x, w1)
        h = _silu(h)
        out = torch.einsum("bsf,fd->bsd", h, w2)
        return out

    x = A_x
    g = _sigmoid((x * gate_w).sum(-1, keepdims=True))
    a = _A_ref(x, A_Lambda_re, A_Lambda_im, A_B_re, A_B_im, A_C_re, A_C_im, A_log_dt, A_Dskip)
    b = _B_ref(x, B_w1, B_w2)
    return g * a + (1 - g) * b
```

```python
import re

def expand(tok):
    tok = tok.strip()
    if tok.startswith('-'): tok = tok[1:]
    m = re.fullmatch(r'abs\((.*)\)', tok)
    if m: tok = m.group(1)
    m = re.fullmatch(r'([vas])\[(\d+):(\d+)\]', tok)
    if m: return ['%s%d' % (m.group(1), i) for i in range(int(m.group(2)), int(m.group(3))+1)]
    if re.fullmatch(r'[vas]\d+', tok): return [tok]
    if tok in ('vcc', 'exec', 'm0'): return [tok]
    if tok in ('vcc_lo', 'vcc_hi'): return ['vcc']
    if tok in ('exec_lo', 'exec_hi'): return ['exec']
    return []

TRANS = ('v_exp_f32', 'v_log_f32', 'v_rcp_f32', 'v_rsq_f32', 'v_sqrt_f32', 'v_sin_f32', 'v_cos_f32')

class Ins:
    __slots__ = ('text', 'op', 'kind', 'rd', 'wr', 'ws', 'passes', 'srcC', 'srcAB', 'sdata', 'dpp', 'wide')
    def __init__(self, text):
        self.text = text
        t = text.split(';')[0].strip()
        parts = t.split(None, 1)
        op = parts[0]; self.op = op
        ops = []
        if len(parts) > 1:
            ops = [x.strip() for x in parts[1].split(',')]
        mods = ''
        if ops:
            last = ops[-1].split(None, 1)
            if len(last) > 1: ops[-1] = last[0]; mods = last[1]
        self.rd = []; self.wr = []; self.ws = 1; self.passes = 0; self.srcC = []; self.srcAB = []; self.sdata = []
        self.dpp = ('_dpp' in op) or ('row_' in mods) or ('quad_perm' in mods)
        self.wide = False
        E = expand
        base = re.sub(r'_(e32|e64|dpp|sdwa)$', '', op)
        if op.startswith('v_mfma'):
            self.kind = 'mfma'; self.passes = 8 if '32x32' in op else 4
            self.wr = E(ops[0]); self.srcAB = E(ops[1]) + E(ops[2]); self.srcC = E(ops[3]); self.rd = self.srcAB + self.srcC
        elif op.startswith('v_cmp'):
            self.kind = 'valu'; self.wr = E(ops[0]); self.rd = sum((E(o) for o in ops[1:]), [])
            if op.startswith('v_cmpx'): self.wr = self.wr + ['exec']
        elif base in ('v_readfirstlane_b32', 'v_readlane_b32'):
            self.kind = 'valu'; self.wr = E(ops[0]); self.rd = sum((E(o) for o in ops[1:]), [])
        elif base.startswith('v_permlane'):
            self.kind = 'valu'; self.wr = E(ops[0]) + E(ops[1]); self.rd = list(self.wr)
        elif base in ('v_add_co_u32', 'v_sub_co_u32', 'v_addc_co_u32', 'v_subb_co_u32'):
            self.kind = 'valu'; self.wr = E(ops[0]) + E(ops[1]); self.rd = sum((E(o) for o in ops[2:]), [])
        elif op.startswith('v_'):
            self.kind = 'trans' if base in TRANS else 'valu'
            self.wr = E(ops[0]); self.rd = sum((E(o) for o in ops[1:]), [])
            if base in ('v_fmac_f32', 'v_dot2c_f32_bf16', 'v_pk_fmac_f16', 'v_writelane_b32') or self.dpp: self.rd = self.rd + self.wr
            if op == 'v_nop': self.wr = []; self.rd = []
        elif op.startswith('ds_read'):
            self.kind = 'dsr'; self.wr = E(ops[0]); self.rd = E(ops[1])
        elif op.startswith('ds_write'):
            self.kind = 'dsw'; self.rd = sum((E(o) for o in ops), []); self.sdata = sum((E(o) for o in ops[1:]), [])
        elif op.startswith('buffer_load'):
            if re.search(r'\blds\b', mods):
                self.kind = 'dma'; self.rd = sum((E(o) for o in ops), []) + ['m0']
            else:
                self.kind = 'vload'; self.wr = E(ops[0]); self.rd = sum((E(o) for o in ops[1:]), [])
        elif op.startswith('buffer_store'):
            self.kind = 'vstore'; self.rd = sum((E(o) for o in ops), []); self.sdata = E(ops[0]); self.wide = len(self.sdata) > 2
        elif op.startswith('global_load'):
            self.kind = 'vload'; self.wr = E(ops[0]); self.rd = sum((E(o) for o in ops[1:]), [])
        elif op.startswith('global_store'):
            self.kind = 'vstore'; self.rd = sum((E(o) for o in ops), []); self.sdata = E(ops[1]); self.wide = len(self.sdata) > 2
        elif op.startswith('s_load') or op in ('s_memtime', 's_memrealtime'):
            self.kind = 'smem'; self.wr = E(ops[0]); self.rd = sum((E(o) for o in ops[1:]), [])
        elif op == 's_nop':
            self.kind = 'nop'; self.ws = int(ops[0], 0) + 1
        elif op in ('s_waitcnt', 's_barrier', 's_sleep', 's_endpgm', 's_setprio') or op.startswith('s_cbranch') or op == 's_branch':
            self.kind = 'ctl'
            if op in ('s_cbranch_vccz', 's_cbranch_vccnz'): self.rd = ['vcc']
        elif op.startswith('s_cmp') or op.startswith('s_bitcmp'):
            self.kind = 'salu'; self.rd = sum((E(o) for o in ops), [])
        elif op.startswith('s_'):
            self.kind = 'salu'; self.wr = E(ops[0]); self.rd = sum((E(o) for o in ops[1:]), [])
            if 'saveexec' in op: self.wr = self.wr + ['exec']; self.rd = self.rd + ['exec']
            if op in ('s_addk_i32', 's_mulk_i32'): self.rd = self.rd + self.wr
        else:
            raise ValueError('unknown instr: ' + text)
        if base == 'v_cndmask_b32' and len(ops) == 3: self.rd = self.rd + ['vcc']

def isv(r): return r[0] in 'va' and r != 'vcc'
VALU = ('valu', 'trans')
VMEM = ('vload', 'vstore', 'dma')

def need_ws(p, c):
    n = 0
    pw = set(p.wr); cr = set(c.rd); cw = set(c.wr)
    if p.kind in VALU:
        vw = {r for r in pw if isv(r)}; sw = pw - vw
        if c.kind == 'mfma' and vw & cr: n = max(n, 2)
        if c.kind == 'mfma' and 'exec' in pw: n = max(n, 4)
        if c.kind in VALU and c.dpp and vw & cr: n = max(n, 2)
        if c.kind in VALU and c.dpp and 'exec' in pw: n = max(n, 5)
        if c.op.startswith('v_permlane') and vw & cr: n = max(n, 2)
        if c.op.startswith('v_readfirstlane') or c.op.startswith('v_readlane'):
            if vw & cr: n = max(n, 1)
            if 'exec' in pw: n = max(n, 4)
            if c.op.startswith('v_readlane') and sw & cr: n = max(n, 4)
        if c.kind in VMEM and sw & cr: n = max(n, 5)
        if c.kind in VALU and sw & cr: n = max(n, 2)
        if p.kind == 'trans' and c.kind in ('valu', 'mfma', 'dsw', 'vstore') and vw & cr: n = max(n, 1)
        if 'sdwa' in p.op and c.kind in VALU and vw & (cr | cw): n = max(n, 1)
    if p.op.startswith('v_dot') and pw & (cr | cw):
        if not (c.op == p.op and not (pw & set(c.rd[:2]))): n = max(n, 3)
    if p.kind == 'salu' and 'm0' in pw and c.kind == 'dma': n = max(n, 1)
    if p.kind == 'vstore' and p.wide:
        if set(p.sdata) & cw: n = max(n, 2 if c.kind in VALU else 1)
    if p.kind == 'mfma':
        big = {4: 8, 8: 12}[p.passes]
        if c.kind == 'mfma':
            if pw & set(c.srcAB): n = max(n, big)
            if pw & set(c.srcC):
                if not (list(p.wr) == list(c.srcC) and p.passes == c.passes): n = max(n, {4: 6, 8: 10}[p.passes])
            elif pw & cw:
                n = max(n, {4: 6, 8: 10}[p.passes])
        elif c.kind in VALU:
            if pw & (cr | cw): n = max(n, big)
            if set(p.srcC) & cw: n = max(n, {4: 3, 8: 7}[p.passes])
        elif c.kind in VMEM + ('dsr', 'dsw'):
            if pw & (cr | cw): n = max(n, big)
    return n

class Tok:
    def __init__(self, cls): self.cls = cls; self.done = False

class Gen:
    def __init__(self):
        self.lines = []
        self.vm = []
        self.lg = []
        self.smem = []
        self.hist = [[]]
        self.snap = {}
        self.nlab = 0
        self.stats = {}
        self.nnop = 0
    def state(self): return (list(self.vm), list(self.lg), list(self.smem), [list(h) for h in self.hist])
    def set_state(self, st): self.vm, self.lg, self.smem, self.hist = list(st[0]), list(st[1]), list(st[2]), [list(h) for h in st[3]]
    def raw(self, text): self.lines.append(text)
    def comment(self, text): self.lines.append('; ' + text)
    def newlabel(self, base):
        self.nlab += 1; return 'L_%s_%d' % (base, self.nlab)
    def _push(self, ins):
        self.lines.append('    ' + ins.text)
        self.stats[ins.kind] = self.stats.get(ins.kind, 0) + 1
        for h in self.hist:
            h.append(ins)
            if len(h) > 24: del h[0]
        if len(self.hist) > 1:
            k = min(len(h) for h in self.hist)
            if k >= 22 and all(h[-22:] == self.hist[0][-22:] for h in self.hist): self.hist = [self.hist[0]]
    def _hazard(self, ins):
        need = 0
        for h in self.hist:
            dist = 0
            for p in reversed(h):
                n = need_ws(p, ins)
                if n > dist: need = max(need, n - dist)
                dist += p.ws
                if dist >= 20: break
        while need > 0:
            k = min(need, 16)
            self._push(Ins('s_nop %d' % (k-1))); need -= k; self.nnop += 1
    def waitcnt(self, vm=None, lg=None):
        parts = []
        if vm is not None and vm < len(self.vm):
            assert vm <= 63
            parts.append('vmcnt(%d)' % vm)
            for t, _ in self.vm[:len(self.vm)-vm]: t.done = True
            self.vm = self.vm[len(self.vm)-vm:]
        if lg is not None and (lg < len(self.lg) or (lg == 0 and self.smem)):
            if self.smem: lg = 0
            lg = min(lg, 15)
            parts.append('lgkmcnt(%d)' % lg)
            for t, _ in self.lg[:len(self.lg)-lg]: t.done = True
            self.lg = self.lg[len(self.lg)-lg:] if lg else []
            if lg == 0:
                for t, _ in self.smem: t.done = True
                self.smem = []
        if parts: self._push(Ins('s_waitcnt ' + ' '.join(parts)))
    def wait(self, *toks):
        vm = None; lg = None
        for t in toks:
            if t is None: continue
            for i, (x, _) in enumerate(self.vm):
                if x is t:
                    k = len(self.vm)-1-i; vm = k if vm is None else min(vm, k)
            for i, (x, _) in enumerate(self.lg):
                if x is t:
                    k = len(self.lg)-1-i; lg = k if lg is None else min(lg, k)
            for x, _ in self.smem:
                if x is t: lg = 0
        if vm is not None and vm > 63: vm = 63
        self.waitcnt(vm, lg)
    def waitall(self): self.waitcnt(0, 0)
    def __call__(self, text):
        tok = None
        for line in text.split('\n'):
            line = line.strip()
            if not line: continue
            t = self._emit(line)
            if t is not None: tok = t
        return tok
    def _emit(self, text):
        ins = Ins(text)
        regs = set(ins.rd) | set(ins.wr)
        toks = [t for (t, d) in self.vm + self.lg + self.smem if regs & d]
        if toks: self.wait(*toks)
        if ins.kind in VMEM and len(self.vm) >= 63: self.waitcnt(vm=62)
        self._hazard(ins)
        self._push(ins)
        tok = None
        if ins.kind in VMEM:
            tok = Tok('vm'); self.vm.append((tok, set(ins.wr)))
        elif ins.kind in ('dsr', 'dsw'):
            tok = Tok('lg'); self.lg.append((tok, set(ins.wr)))
        elif ins.kind == 'smem':
            tok = Tok('sm'); self.smem.append((tok, set(ins.wr)))
        if ins.op.startswith('s_cbranch') or ins.op == 's_branch':
            lab = text.split()[1]
            self.snap.setdefault(lab, []).extend([list(h) for h in self.hist])
            if ins.op == 's_branch': self.hist = []
        return tok
    def label(self, lab):
        self.lines.append(lab + ':')
        self.hist = self.hist + self.snap.pop(lab, [])
        if not self.hist: self.hist = [[]]
    def text(self): return '\n'.join(self.lines) + '\n'

def weave(g, mains, side):
    side = sorted(enumerate(side), key=lambda x: (x[1][0], x[0]))
    j = 0
    for i, m in enumerate(mains):
        while j < len(side) and side[j][1][0] <= i:
            side[j][1][1](); j += 1
        m()
    while j < len(side):
        side[j][1][1](); j += 1
```

```python
import sys
from asmgen import Gen, weave

KNAME = 'gated_mix__ssm_conv_s5__dense_activation_silu__prompt_kernel'

WS_EPOCH = 0
WS_PFLAG = 393216
WS_HFLAG = 8192
WS_GATE = 65536
WS_EBUF = 131072
WS_STAMP = 524288
WS_B2 = 1 << 20
WS_H = 5 << 20
WS_SIZE = 16 << 20

F_XR = 0
F_WR = 81920
S_XR = 0
S_BR = 65536
L_PK = 147456
L_EX = 147456
L_SS = 147456 + 10240
L_RED = 0

sX, sW, sWS, sP1, sP2, sPD, sOUT, sB2, sH = 4, 8, 12, 16, 20, 24, 28, 32, 36
pX, pLre, pLim, pBre, pBim, pCre, pCim, pLdt, pDsk, pBx, pW1, pW2, pGate, pOut, pDbg, pWs = range(40, 72, 2)
sWave, sRole, sC1, sJ1, sMh, sJn, sNonce, sRot = range(72, 80)
sKb = list(range(80, 90))
sItem, sMx, sMw, sWo = 90, 91, 92, 93
sPs = [94, 95, 96, 97]
sT0, sT1, sT2, sT3 = 98, 99, 100, 101
sT4 = 3
sKs = [40, 41, 46, 47, 48, 49, 50, 51, 52, 53, 58, 59, 60, 61, 62, 63, 66, 67, 68, 69, 70, 71]

vTid, vLane, vL16, vL16b = 0, 1, 2, 3
vT = list(range(4, 16))
ACC2 = 16
A2R = 96
vStamp = 255
def B2slot(i):
    if i < 4: return ('a', 160 + 20*i)
    if i < 8: return ('v', 160 + 20*(i-4))
    return ('a', 20*(i-8))
aPK = 240

def R(kind, base, n):
    return '%s%d' % (kind, base) if n == 1 else '%s[%d:%d]' % (kind, base, base+n-1)
def V(b, n=1): return R('v', b, n)
def A(b, n=1): return R('a', b, n)
def S(b, n=1): return R('s', b, n)

LOG2E = 0x3fb8aa3b
NLOG2E = 0xbfb8aa3b
INV2PI = 0x3e22f983

class K:
    def __init__(self, cfg):
        self.cfg = cfg
        self.g = Gen()
        self.tail = []
        self.nstamp = 0

    def stamp(self, idx, op='s_memrealtime'):
        if not self.cfg.get('stamps'): return
        g = self.g
        if self.cfg.get('cyc'): op = 's_memtime'
        g(op + ' vcc'); g.waitcnt(lg=0)
        g('v_writelane_b32 %s, vcc_lo, %d' % (V(vStamp), idx))

    def srd(self, d, ptr, nrec):
        g = self.g
        g('s_mov_b32 %s, %s' % (S(d), S(ptr)))
        g('s_mov_b32 %s, %s' % (S(d+1), S(ptr+1)))
        g('s_mov_b32 %s, 0x%x' % (S(d+2), nrec))
        g('s_mov_b32 %s, 0x20000' % S(d+3))

    def poll(self, name, issue, check, pre=None):
        g = self.g
        lr, lo = g.newlabel(name + '_retry'), g.newlabel(name + '_ok')
        check()
        g('s_cbranch_scc0 %s' % lr)
        g.label(lo)
        def retry():
            g.vm, g.lg, g.smem = [], [], []
            g.label(lr)
            g('s_mov_b32 %s, 0x%x' % (S(sT4), self.cfg.get('spin', 1 << 18)))
            ll = g.newlabel(name + '_loop')
            g.label(ll)
            g('s_sub_u32 %s, %s, 1' % (S(sT4), S(sT4)))
            g('s_cmp_eq_u32 %s, 0' % S(sT4))
            g('s_nop 7')
            g('s_cbranch_scc1 %s' % lo)
            g('s_waitcnt vmcnt(0) lgkmcnt(0)')
            issue()
            g.waitall()
            check()
            g('s_nop 7')
            g('s_cbranch_scc1 %s' % lo)
            g('s_branch %s' % ll)
        self.tail.append(retry)

    def check_eq(self, regs, sreg=sNonce):
        g = self.g
        def f():
            if len(regs) == 1:
                g('v_cmp_ne_u32 vcc, %s, %s' % (S(sreg), V(regs[0])))
            else:
                g('v_xor_b32 %s, %s, %s' % (V(vT[0]), S(sreg), V(regs[0])))
                for r in regs[1:]:
                    g('v_xor_b32 %s, %s, %s' % (V(vT[1]), S(sreg), V(r)))
                    g('v_or_b32 %s, %s, %s' % (V(vT[0]), V(vT[0]), V(vT[1])))
                g('v_cmp_ne_u32 vcc, 0, %s' % V(vT[0]))
            g('s_nop 1')
            g('s_cmp_eq_u64 vcc, 0')
        return f

    def b2_loads(self, step, slot):
        g = self.g
        kind, base = B2slot(slot)
        out = []
        def mk(nt):
            def f():
                if nt == 0: g('s_mul_i32 %s, %s, 5' % (S(sT3), S(sKs[step])))
                va, off = (vL16, nt*1024) if nt < 4 else (vL16b, 0)
                g('buffer_load_dwordx4 %s, %s, %s, %s offen offset:%d sc1' % (R(kind, base+4*nt, 4), V(va), S(sB2, 4), S(sT3), off) if self.cfg.get('sc1', 1) else 'buffer_load_dwordx4 %s, %s, %s, %s offen offset:%d' % (R(kind, base+4*nt, 4), V(va), S(sB2, 4), S(sT3), off))
            return f
        return [mk(nt) for nt in range(5)]

    def ks_table(self):
        g = self.g
        out = []
        def first():
            g('s_and_b32 %s, %s, 3' % (S(sT0), S(sMh)))
            g('s_mul_i32 %s, %s, 3' % (S(sT0), S(sT0)))
            g('s_add_u32 %s, %s, %s' % (S(sT0), S(sT0), S(sJn)))
            g('s_sub_u32 %s, %s, 12' % (S(sT1), S(sT0)))
            g('s_cselect_b32 %s, %s, %s' % (S(sKs[0]), S(sT0), S(sT1)))
            g('s_sub_u32 %s, %s, 10' % (S(sT1), S(sT0)))
            g('s_cselect_b32 %s, %s, %s' % (S(sKs[12]), S(sT0), S(sT1)))
        out.append(first)
        def nxt(n, mod):
            def f():
                g('s_add_u32 %s, %s, 1' % (S(sKs[n]), S(sKs[n-1])))
                g('s_cmp_eq_u32 %s, %d' % (S(sKs[n]), mod))
                g('s_cselect_b32 %s, 0, %s' % (S(sKs[n]), S(sKs[n])))
            return f
        for n in range(1, 12): out.append(nxt(n, 12))
        for n in range(13, 22): out.append(nxt(n, 10))
        def fin0():
            g('s_mul_i32 %s, %s, 12' % (S(sT0), S(sWave)))
            g('s_mul_i32 %s, %s, 10' % (S(sT1), S(sWave)))
            g('s_add_u32 %s, %s, 48' % (S(sT1), S(sT1)))
        def fin(n):
            def f():
                g('s_add_u32 %s, %s, %s' % (S(sKs[n]), S(sKs[n]), S(sT0 if n < 12 else sT1)))
                g('s_lshl_b32 %s, %s, 10' % (S(sKs[n]), S(sKs[n])))
            return f
        def allfin():
            fin0()
            for n in range(22): fin(n)()
        out.append(allfin)
        return out

    def prologue(self):
        g = self.g
        g('s_cmp_ge_u32 s2, 256')
        g('s_cbranch_scc1 L_exit')
        g('s_load_dwordx16 s[40:55], s[0:1], 0')
        g('s_load_dwordx16 s[56:71], s[0:1], 64')
        if self.cfg.get('stamps'):
            g('v_mov_b32 %s, 0' % V(vStamp))
        g('v_and_b32 %s, 63, v0' % V(vLane))
        g('v_lshrrev_b32 %s, 6, v0' % V(vT[0]))
        g('v_lshlrev_b32 %s, 4, %s' % (V(vL16), V(vLane)))
        g('v_readfirstlane_b32 %s, %s' % (S(sWave), V(vT[0])))
        g('v_add_u32 %s, 0x1000, %s' % (V(vL16b), V(vL16)))
        g('s_and_b32 %s, s2, 7' % S(sT0))
        g('s_lshr_b32 %s, s2, 3' % S(sT1))
        g('s_and_b32 %s, %s, 3' % (S(sT2), S(sT1)))
        g('s_lshr_b32 %s, %s, 2' % (S(sJn), S(sT1)))
        g('s_lshl_b32 %s, %s, 2' % (S(sMh), S(sT0)))
        g('s_add_u32 %s, %s, %s' % (S(sMh), S(sMh), S(sT2)))
        g('s_lshr_b32 %s, %s, 1' % (S(sT3), S(sT0)))
        g('s_lshl_b32 %s, %s, 2' % (S(sC1), S(sT3)))
        g('s_add_u32 %s, %s, %s' % (S(sC1), S(sC1), S(sT2)))
        g('s_lshr_b32 %s, %s, 2' % (S(sRole), S(sJn)))
        g('s_and_b32 %s, %s, 1' % (S(sT0), S(sT0)))
        g('s_and_b32 %s, %s, 3' % (S(sJ1), S(sJn)))
        g('s_lshl_b32 %s, %s, 2' % (S(sT1), S(sT0)))
        g('s_add_u32 %s, %s, %s' % (S(sJ1), S(sJ1), S(sT1)))
        g('s_mul_i32 %s, %s, 3' % (S(sT2), S(sT2)))
        g('s_mul_i32 %s, %s, 5' % (S(sT0), S(sT0)))
        g('s_add_u32 %s, %s, %s' % (S(sRot), S(sJn), S(sT2)))
        g('s_add_u32 %s, %s, %s' % (S(sRot), S(sRot), S(sT0)))
        g('s_add_u32 %s, %s, %s' % (S(sRot), S(sRot), S(sT3)))
        if self.cfg.get('norot'): g('s_mov_b32 %s, 0' % S(sRot))
        g('s_mul_i32 %s, %s, 205' % (S(sT0), S(sRot)))
        g('s_lshr_b32 %s, %s, 11' % (S(sT0), S(sT0)))
        g('s_mul_i32 %s, %s, 10' % (S(sT0), S(sT0)))
        g('s_sub_u32 %s, %s, %s' % (S(sRot), S(sRot), S(sT0)))
        g('s_lshl_b32 %s, %s, 7' % (S(sKb[0]), S(sRot)))
        for s in range(1, 10):
            g('s_add_u32 %s, %s, 128' % (S(sKb[s]), S(sKb[s-1])))
            g('s_cmp_eq_u32 %s, 1280' % S(sKb[s]))
            g('s_cselect_b32 %s, 0, %s' % (S(sKb[s]), S(sKb[s])))
        g('v_lshrrev_b32 %s, 3, %s' % (V(vT[0]), V(vLane)))
        g('v_and_b32 %s, 7, %s' % (V(vT[1]), V(vLane)))
        g('v_lshrrev_b32 %s, 4, %s' % (V(vT[2]), V(vLane)))
        g.waitcnt(lg=0)
        self.stamp(0)
        self.stamp(30, 's_memtime')
        self.tEpoch = g('s_load_dword %s, %s, 0' % (S(sNonce), S(pWs, 2)))
        self.srd(sX, pX, 2048*1280)
        self.srd(sWS, pWs, WS_SIZE)
        g('s_cmp_eq_u32 %s, 0' % S(sRole))
        g('s_cbranch_scc1 L_ssm')

    def finish_nonce(self):
        g = self.g
        g.waitcnt(lg=0)
        g('s_mul_i32 %s, %s, 1664525' % (S(sNonce), S(sNonce)))
        g('s_add_u32 %s, %s, 1013904223' % (S(sNonce), S(sNonce)))

    def late_srds(self):
        g = self.g
        self.srd(sOUT, pOut, 2048*2560)
        g('s_mul_i32 %s, %s, 450560' % (S(sT0), S(sJn)))
        g('s_add_u32 %s, %s, 0x%x' % (S(sT0), S(sT0), WS_B2))
        g('s_add_u32 %s, %s, %s' % (S(sB2), S(pWs), S(sT0)))
        g('s_addc_u32 %s, %s, 0' % (S(sB2+1), S(pWs+1)))
        g('s_mov_b32 %s, 450560' % S(sB2+2))
        g('s_mov_b32 %s, 0x20000' % S(sB2+3))
        g('s_mul_i32 %s, %s, 360448' % (S(sT0), S(sMh)))
        g('s_add_u32 %s, %s, 0x%x' % (S(sT0), S(sT0), WS_H))
        g('s_add_u32 %s, %s, %s' % (S(sH), S(pWs), S(sT0)))
        g('s_addc_u32 %s, %s, 0' % (S(sH+1), S(pWs+1)))
        g('s_mov_b32 %s, 360448' % S(sH+2))
        g('s_mov_b32 %s, 0x20000' % S(sH+3))

    def pack_issue(self, vPr, vPs, vPp):
        g = self.g
        lc, lj = g.newlabel('pack_c'), g.newlabel('pack_j')
        g('s_lshl_b32 %s, %s, 8' % (S(sItem), S(sWave)))
        g('s_add_u32 %s, %s, s2' % (S(sItem), S(sItem)))
        g('s_mov_b32 %s, %s' % (S(sPD), S(pWs)))
        g('s_mov_b32 %s, %s' % (S(sPD+1), S(pWs+1)))
        g('s_cmp_lt_u32 %s, 880' % S(sItem))
        g('s_cselect_b32 %s, 0x%x, 0' % (S(sPD+2), WS_SIZE))
        g('s_cselect_b32 %s, 819200, 0' % S(sP2+2))
        g('s_mov_b32 %s, 0x20000' % S(sPD+3))
        g('s_mov_b32 %s, 0x20000' % S(sP1+3))
        g('s_mov_b32 %s, 0x20000' % S(sP2+3))
        g('s_mov_b32 %s, %s' % (S(sP2), S(pCim)))
        g('s_mov_b32 %s, %s' % (S(sP2+1), S(pCim+1)))
        g('s_cmp_lt_u32 %s, 480' % S(sItem))
        g('s_cbranch_scc0 %s' % lc)
        st0 = g.state()
        g('s_mov_b32 %s, %s' % (S(sP1), S(pW2)))
        g('s_mov_b32 %s, %s' % (S(sP1+1), S(pW2+1)))
        g('s_mov_b32 %s, %d' % (S(sP1+2), 1536*1280))
        g('s_mul_i32 %s, %s, 6554' % (S(sT0), S(sItem)))
        g('s_lshr_b32 %s, %s, 16' % (S(sT0), S(sT0)))
        g('s_mul_i32 %s, %s, 10' % (S(sT1), S(sT0)))
        g('s_sub_u32 %s, %s, %s' % (S(sT1), S(sItem), S(sT1)))
        g('s_lshl_b32 %s, %s, 12' % (S(sT2), S(sWave)))
        g('s_add_u32 m0, %s, %d' % (S(sT2), L_PK))
        g('v_lshrrev_b32 %s, 3, %s' % (V(vT[4]), V(vLane)))
        g('v_and_b32 %s, 7, %s' % (V(vT[5]), V(vLane)))
        g('v_mul_u32_u24 %s, 1280, %s' % (V(vT[4]), V(vT[4])))
        g('v_lshl_add_u32 %s, %s, 4, %s' % (V(vT[4]), V(vT[5]), V(vT[4])))
        g('s_mul_i32 %s, %s, 40960' % (S(sT2), S(sT0)))
        g('s_lshl_b32 %s, %s, 7' % (S(sT3), S(sT1)))
        g('s_add_u32 %s, %s, %s' % (S(sT2), S(sT2), S(sT3)))
        for q in range(4):
            g('buffer_load_dwordx4 %s, %s, %s offen offset:%d lds' % (V(vT[4]), S(sP1, 4), S(sT2), 1024*q))
            if q < 3: g('s_add_u32 %s, %s, 9216' % (S(sT2), S(sT2)))
        g('s_mul_i32 %s, %s, 5' % (S(sT0), S(sT0)))
        g('s_lshl_b32 %s, %s, 2' % (S(sT1), S(sT1)))
        for i in range(4):
            g('s_add_u32 %s, %s, %d' % (S(sT2), S(sT1), i))
            g('s_mul_i32 %s, %s, 52' % (S(sT3), S(sT2)))
            g('s_lshr_b32 %s, %s, 8' % (S(sT3), S(sT3)))
            g('s_mul_i32 %s, %s, 435' % (S(sT3), S(sT3)))
            g('s_add_u32 %s, %s, %s' % (S(sT2), S(sT2), S(sT3)))
            g('s_add_u32 %s, %s, %s' % (S(sT2), S(sT2), S(sT0)))
            g('s_lshl_b32 %s, %s, 10' % (S(sT2), S(sT2)))
            g('s_add_u32 %s, %s, 0x%x' % (S(sPs[i]), S(sT2), WS_B2))
        g('v_mov_b32 %s, %s' % (V(vPs), V(vL16)))
        g('v_bfe_u32 %s, %s, 4, 1' % (V(vT[4]), V(vLane)))
        g('v_lshlrev_b32 %s, 11, %s' % (V(vT[4]), V(vT[4])))
        g('v_lshrrev_b32 %s, 5, %s' % (V(vT[5]), V(vLane)))
        g('v_lshl_add_u32 %s, %s, 9, %s' % (V(vT[4]), V(vT[5]), V(vT[4])))
        g('v_bfe_u32 %s, %s, 2, 2' % (V(vT[5]), V(vLane)))
        g('v_lshl_add_u32 %s, %s, 7, %s' % (V(vT[4]), V(vT[5]), V(vT[4])))
        g('v_and_b32 %s, 3, %s' % (V(vT[5]), V(vLane)))
        g('v_lshl_add_u32 %s, %s, 3, %s' % (V(vT[4]), V(vT[5]), V(vT[4])))
        g('s_lshl_b32 %s, %s, 12' % (S(sT2), S(sWave)))
        g('s_add_u32 %s, %s, %d' % (S(sT2), S(sT2), L_PK))
        g('v_add_u32 %s, %s, %s' % (V(vPr), S(sT2), V(vT[4])))
        g('s_branch %s' % lj)
        hist_keep = None
        g.vm, g.lg, g.smem = list(st0[0]), list(st0[1]), list(st0[2])
        g.label(lc)
        g('s_mov_b32 %s, %s' % (S(sP1), S(pCre)))
        g('s_mov_b32 %s, %s' % (S(sP1+1), S(pCre+1)))
        g('s_mov_b32 %s, %s' % (S(sP1+2), S(sP2+2)))
        g('s_sub_u32 %s, %s, 480' % (S(sT1), S(sItem)))
        g('s_mul_i32 %s, %s, 6554' % (S(sT0), S(sT1)))
        g('s_lshr_b32 %s, %s, 16' % (S(sT0), S(sT0)))
        g('s_mul_i32 %s, %s, 10' % (S(sT2), S(sT0)))
        g('s_sub_u32 %s, %s, %s' % (S(sT1), S(sT1), S(sT2)))
        g('v_and_b32 %s, 15, %s' % (V(vT[4]), V(vLane)))
        g('v_mul_u32_u24 %s, 1280, %s' % (V(vT[5]), V(vT[4])))
        g('v_lshrrev_b32 %s, 4, %s' % (V(vT[6]), V(vLane)))
        g('v_lshl_add_u32 %s, %s, 4, %s' % (V(vT[5]), V(vT[6]), V(vT[5])))
        g('s_mul_i32 %s, %s, 20480' % (S(sT2), S(sT0)))
        g('s_lshl_b32 %s, %s, 7' % (S(sT3), S(sT1)))
        g('s_add_u32 %s, %s, %s' % (S(sT2), S(sT2), S(sT3)))
        for hf in range(2):
            for part in range(2):
                self.tPack = g('buffer_load_dwordx4 %s, %s, %s, %s offen offset:%d' % (A(aPK+4*(2*hf+part), 4), V(vT[5]), S(sP1 if part == 0 else sP2, 4), S(sT2), 64*hf))
        g('v_lshlrev_b32 %s, 4, %s' % (V(vT[4]), V(vT[4])))
        g('v_and_b32 %s, 1, %s' % (V(vT[6]), V(vT[6])))
        g('v_lshl_add_u32 %s, %s, 8, %s' % (V(vT[4]), V(vT[6]), V(vT[4])))
        g('v_lshrrev_b32 %s, 5, %s' % (V(vT[6]), V(vLane)))
        g('v_mul_u32_u24 %s, 5120, %s' % (V(vT[6]), V(vT[6])))
        g('v_add_u32 %s, %s, %s' % (V(vPs), V(vT[4]), V(vT[6])))
        g('s_mul_i32 %s, %s, 52' % (S(sT3), S(sT0)))
        g('s_lshr_b32 %s, %s, 8' % (S(sT3), S(sT3)))
        g('s_mul_i32 %s, %s, 435' % (S(sT3), S(sT3)))
        g('s_add_u32 %s, %s, %s' % (S(sT0), S(sT0), S(sT3)))
        g('s_mul_i32 %s, %s, 20' % (S(sT1), S(sT1)))
        g('s_add_u32 %s, %s, %s' % (S(sT0), S(sT0), S(sT1)))
        g('s_lshl_b32 %s, %s, 10' % (S(sT0), S(sT0)))
        for hf in range(2):
            for part in range(2):
                g('s_add_u32 %s, %s, 0x%x' % (S(sPs[2*hf+part]), S(sT0), WS_B2 + 5*(48+2*hf)*1024 + 512*part))
        g('v_mov_b32 %s, 0' % V(vPr))
        g.label(lj)
        g('s_mul_i32 %s, %s, 5' % (S(sT0), S(sJn)))
        g('s_lshr_b32 %s, %s, 2' % (S(sT1), S(sT0)))
        g('s_mul_i32 %s, %s, 120' % (S(sT2), S(sWave)))
        g('s_add_u32 %s, %s, %s' % (S(sT1), S(sT1), S(sT2)))
        g('v_lshrrev_b32 %s, 1, %s' % (V(vT[4]), V(vLane)))
        g('v_mul_u32_u24 %s, 10, %s' % (V(vT[4]), V(vT[4])))
        g('v_and_b32 %s, 1, %s' % (V(vT[5]), V(vLane)))
        g('v_add3_u32 %s, %s, %s, %s' % (V(vT[4]), V(vT[4]), V(vT[5]), S(sT1)))
        g('s_mul_i32 %s, %s, 10' % (S(sT0), S(sT0)))
        g('s_mul_i32 %s, %s, 10' % (S(sT2), S(sWave)))
        g('s_lshr_b32 %s, %s, 2' % (S(sT2), S(sT2)))
        g('s_add_u32 %s, %s, %s' % (S(sT0), S(sT0), S(sT2)))
        g('s_add_u32 %s, %s, 480' % (S(sT0), S(sT0)))
        g('v_subrev_u32 %s, 24, %s' % (V(vT[5]), V(vLane)))
        g('v_min_u32 %s, 14, %s' % (V(vT[5]), V(vT[5])))
        g('v_mul_u32_u24 %s, 11, %s' % (V(vT[6]), V(vT[5])))
        g('v_lshrrev_b32 %s, 5, %s' % (V(vT[6]), V(vT[6])))
        g('v_mul_u32_u24 %s, 7, %s' % (V(vT[6]), V(vT[6])))
        g('v_add3_u32 %s, %s, %s, %s' % (V(vT[5]), V(vT[5]), V(vT[6]), S(sT0)))
        g('v_cmp_gt_u32 vcc, 24, %s' % V(vLane))
        g('v_cndmask_b32 %s, %s, %s, vcc' % (V(vT[4]), V(vT[5]), V(vT[4])))
        g('v_and_b32 %s, 255, %s' % (V(vT[5]), V(vT[4])))
        g('v_lshrrev_b32 %s, 8, %s' % (V(vT[4]), V(vT[4])))
        g('v_lshlrev_b32 %s, 7, %s' % (V(vT[5]), V(vT[5])))
        g('v_lshl_add_u32 %s, %s, 2, %s' % (V(vPp), V(vT[4]), V(vT[5])))
        g('v_add_u32 %s, %d, %s' % (V(vPp), WS_PFLAG, V(vPp)))

    def pack_store(self, vPr, vPs):
        g = self.g
        ls = g.newlabel('pack_st')
        g.wait(self.tPack)
        g('s_cmp_lt_u32 %s, 480' % S(sItem))
        g('s_cbranch_scc0 %s' % ls)
        st = g.state()
        for i in range(4):
            for e in range(2):
                g('ds_read_b64_tr_b16 %s, %s offset:%d' % (A(aPK+4*i+2*e, 2), V(vPr), e*1024 + i*32))
        g.waitcnt(lg=0)
        g.vm, g.lg, g.smem = list(st[0]), list(st[1]), list(st[2])
        g.label(ls)
        for i in range(4):
            self.tPackSt = g('buffer_store_dwordx4 %s, %s, %s, %s offen sc1' % (A(aPK+4*i, 4), V(vPs), S(sPD, 4), S(sPs[i])))

    def pack_flag(self):
        g = self.g
        g('s_lshl_b32 %s, s2, 5' % S(sT0))
        g('s_add_u32 %s, %s, %s' % (S(sT0), S(sT0), S(sWave)))
        g('s_lshl_b32 %s, %s, 2' % (S(sT0), S(sT0)))
        g('s_add_u32 %s, %s, %d' % (S(sT0), S(sT0), WS_PFLAG))
        g('v_mov_b32 %s, %s' % (V(vT[8]), S(sT0)))
        g('v_mov_b32 %s, %s' % (V(vT[9]), S(sNonce)))
        g.wait(self.tPackSt)
        g('buffer_store_dword %s, %s, %s, 0 offen sc1' % (V(vT[9]), V(vT[8]), S(sPD, 4)))

    def pack_poll_issue(self, vPp, vD):
        self.g('buffer_load_dword %s, %s, %s, 0 offen sc1' % (V(vD), V(vPp), S(sWS, 4)))
    def pack_poll_check(self, vPp, vD):
        if self.cfg.get('nopoll'): return
        self.poll('pk', lambda: self.pack_poll_issue(vPp, vD), self.check_eq([vD]))

    def h_flag(self, tok):
        g = self.g
        g('s_lshl_b32 %s, %s, 4' % (S(sT0), S(sC1)))
        g('s_lshl_b32 %s, %s, 3' % (S(sT1), S(sRole)))
        g('s_add_u32 %s, %s, %s' % (S(sT0), S(sT0), S(sT1)))
        g('s_add_u32 %s, %s, %s' % (S(sT0), S(sT0), S(sJ1)))
        g('s_lshl_b32 %s, %s, 5' % (S(sT0), S(sT0)))
        g('s_add_u32 %s, %s, %s' % (S(sT0), S(sT0), S(sWave)))
        g('s_lshl_b32 %s, %s, 2' % (S(sT0), S(sT0)))
        g('s_add_u32 %s, %s, %d' % (S(sT0), S(sT0), WS_HFLAG))
        g('v_mov_b32 %s, %s' % (V(vT[8]), S(sT0)))
        g('v_mov_b32 %s, %s' % (V(vT[9]), S(sNonce)))
        g.wait(tok)
        g('buffer_store_dword %s, %s, %s, 0 offen sc1' % (V(vT[9]), V(vT[8]), S(sWS, 4)))

    def x_dma_addr(self, vXd, perm):
        g = self.g
        g('s_lshl_b32 %s, %s, 7' % (S(sT0), S(sC1)))
        g('s_lshl_b32 %s, %s, 5' % (S(sT1), S(sWave)))
        g('s_add_u32 %s, %s, %s' % (S(sT0), S(sT0), S(sT1)))
        g('s_mul_i32 %s, %s, 1280' % (S(sT0), S(sT0)))
        if perm:
            g('v_lshrrev_b32 %s, 5, %s' % (V(vT[3]), V(vLane)))
            g('v_and_b32 %s, 3, %s' % (V(vT[4]), V(vT[0])))
            g('v_lshl_add_u32 %s, %s, 3, %s' % (V(vT[3]), V(vT[3]), V(vT[4])))
            g('v_mul_u32_u24 %s, 1280, %s' % (V(vT[3]), V(vT[3])))
        else:
            g('v_mul_u32_u24 %s, 1280, %s' % (V(vT[3]), V(vT[0])))
        g('v_xor_b32 %s, %s, %s' % (V(vT[4]), V(vT[1]), V(vT[2])))
        g('v_lshlrev_b32 %s, 4, %s' % (V(vT[4]), V(vT[4])))
        g('v_xor_b32 %s, 64, %s' % (V(vT[5]), V(vT[4])))
        g('v_add3_u32 %s, %s, %s, %s' % (V(vT[4]), V(vT[4]), V(vT[3]), S(sT0)))
        g('v_add3_u32 %s, %s, %s, %s' % (V(vT[5]), V(vT[5]), V(vT[3]), S(sT0)))
        for q in range(4):
            rows = (16*(q & 1) + 4*(q >> 1)) if perm else 8*q
            g('v_add_u32 %s, %d, %s' % (V(vXd[q]), rows*1280 - 1024*q, V(vT[4 + (q & 1)])))

    def ffn(self):
        g = self.g; cfg = self.cfg
        ACC = [16, 48]
        WF = 80; NF = 8
        EP = 112
        PKR = 120
        vXd = [144, 145, 146, 147]; vWd = [148, 149]; vXr = [150, 151, 152, 153]; vWr = [154, 155]; vHs = 156
        vPr, vPs, vPp, vPd = 157, 158, 159, 143
        LA = cfg.get('fla', 4)
        self.srd(sW, pW1, 640*3072)
        self.x_dma_addr(vXd, False)
        g('v_and_b32 %s, 1, %s' % (V(vT[3]), V(vT[2])))
        g('v_lshlrev_b32 %s, 2, %s' % (V(vT[3]), V(vT[3])))
        g('v_xor_b32 %s, %s, %s' % (V(vT[3]), V(vT[1]), V(vT[3])))
        g('v_mul_u32_u24 %s, 3072, %s' % (V(vT[4]), V(vT[0])))
        g('v_lshl_add_u32 %s, %s, 4, %s' % (V(vT[3]), V(vT[3]), V(vT[4])))
        g('s_mul_i32 %s, %s, %d' % (S(sT0), S(sWave), 16*3072))
        g('v_add_u32 %s, %s, %s' % (V(vWd[0]), S(sT0), V(vT[3])))
        g('v_add_u32 %s, %d, %s' % (V(vWd[1]), 8*3072 - 1024, V(vWd[0])))
        g('s_mul_i32 %s, %s, 20480' % (S(sMx), S(sWave)))
        g('s_lshl_b32 %s, %s, 11' % (S(sMw), S(sWave)))
        g('s_add_u32 %s, %s, %d' % (S(sMw), S(sMw), F_WR))
        g('s_mul_i32 %s, %s, 384' % (S(sWo), S(sJ1)))
        tokX = {}; tokW = {}
        def dma_x(s):
            out = []
            def mk(q):
                def f():
                    if q == 0: g('s_add_u32 m0, %s, %d' % (S(sMx), (s % 5)*4096))
                    tokX[s] = g('buffer_load_dwordx4 %s, %s, %s offen offset:%d lds' % (V(vXd[q]), S(sX, 4), S(sKb[s]), 1024*q))
                return f
            return [mk(q) for q in range(4)]
        def dma_w(t):
            def f0():
                g('s_add_u32 m0, %s, %d' % (S(sMw), (t % 8)*8192))
                g('s_mul_i32 %s, %s, 1536' % (S(sT0), S(sKb[t % 10])))
                g('s_add_u32 %s, %s, %s' % (S(sT0), S(sT0), S(sWo)))
                if t >= 10: g('s_add_u32 %s, %s, %d' % (S(sT0), S(sT0), 128*(t//10)))
                g('buffer_load_dwordx4 %s, %s, %s offen lds' % (V(vWd[0]), S(sW, 4), S(sT0)))
                tokW[t] = g('buffer_load_dwordx4 %s, %s, %s offen offset:1024 lds' % (V(vWd[1]), S(sW, 4), S(sT0)))
            return [f0]
        for s in range(3):
            for f in dma_x(s) + dma_w(s): f()
        self.pack_issue(vPr, vPs, vPp)
        self.late_srds()
        g('v_and_b32 %s, 31, %s' % (V(vT[3]), V(vLane)))
        g('v_bfe_u32 %s, %s, 1, 3' % (V(vT[4]), V(vLane)))
        g('v_lshrrev_b32 %s, 5, %s' % (V(vT[5]), V(vLane)))
        g('v_xor_b32 %s, %s, %s' % (V(vT[4]), V(vT[4]), V(vT[5])))
        g('v_lshlrev_b32 %s, 4, %s' % (V(vT[4]), V(vT[4])))
        g('v_lshl_add_u32 %s, %s, 7, %s' % (V(vT[4]), V(vT[3]), V(vT[4])))
        g('v_add_u32 %s, %s, %s' % (V(vXr[0]), S(sMx), V(vT[4])))
        for ks in range(1, 4):
            g('v_xor_b32 %s, %d, %s' % (V(vXr[ks]), 32*ks, V(vXr[0])))
        g('v_bfe_u32 %s, %s, 2, 2' % (V(vT[4]), V(vLane)))
        g('v_lshl_add_u32 %s, %s, 3, %s' % (V(vT[6]), V(vT[5]), V(vT[4])))
        g('v_lshlrev_b32 %s, 7, %s' % (V(vT[6]), V(vT[6])))
        g('v_lshrrev_b32 %s, 1, %s' % (V(vT[4]), V(vT[4])))
        g('v_lshl_add_u32 %s, %s, 6, %s' % (V(vT[6]), V(vT[4]), V(vT[6])))
        g('v_bfe_u32 %s, %s, 4, 1' % (V(vT[4]), V(vLane)))
        g('v_lshl_add_u32 %s, %s, 5, %s' % (V(vT[6]), V(vT[4]), V(vT[6])))
        g('v_and_b32 %s, 3, %s' % (V(vT[4]), V(vLane)))
        g('v_lshl_add_u32 %s, %s, 3, %s' % (V(vT[6]), V(vT[4]), V(vT[6])))
        g('v_add_u32 %s, %d, %s' % (V(vWr[0]), F_WR, V(vT[6])))
        g('v_xor_b32 %s, 64, %s' % (V(vWr[1]), V(vWr[0])))
        g('s_lshl_b32 %s, %s, 1' % (S(sT0), S(sC1)))
        g('s_lshr_b32 %s, %s, 1' % (S(sT1), S(sWave)))
        g('s_add_u32 %s, %s, %s' % (S(sT0), S(sT0), S(sT1)))
        g('s_mul_i32 %s, %s, 352' % (S(sT0), S(sT0)))
        g('s_and_b32 %s, %s, 1' % (S(sT1), S(sWave)))
        g('s_lshl_b32 %s, %s, 1' % (S(sT1), S(sT1)))
        g('s_add_u32 %s, %s, %s' % (S(sT0), S(sT0), S(sT1)))
        g('s_mul_i32 %s, %s, 24' % (S(sT1), S(sJ1)))
        g('s_add_u32 %s, %s, %s' % (S(sT0), S(sT0), S(sT1)))
        g('s_lshl_b32 %s, %s, 10' % (S(sT0), S(sT0)))
        g('s_add_u32 %s, %s, 0x%x' % (S(sT0), S(sT0), WS_H))
        g('v_bfe_u32 %s, %s, 4, 1' % (V(vT[4]), V(vLane)))
        g('v_lshlrev_b32 %s, 10, %s' % (V(vT[4]), V(vT[4])))
        g('v_lshl_add_u32 %s, %s, 9, %s' % (V(vT[4]), V(vT[5]), V(vT[4])))
        g('v_and_b32 %s, 15, %s' % (V(vT[6]), V(vLane)))
        g('v_lshl_add_u32 %s, %s, 4, %s' % (V(vT[4]), V(vT[6]), V(vT[4])))
        g('v_add_u32 %s, %s, %s' % (V(vHs), S(sT0), V(vT[4])))
        self.finish_nonce()
        for f in self.ks_table(): f()
        self.stamp(1)

        mains = []; side = []
        tokF = {}
        def rd_w(n):
            sg, ks, u = n // 8, (n % 8)//2, n % 2
            def f():
                if cfg.get('nord') and n >= 90:
                    tokF[n] = None; return
                for e in range(2):
                    tokF[n] = g('ds_read_b64_tr_b16 %s, %s offset:%d' % (V(WF + 4*(n % NF) + 2*e, 2), V(vWr[u]), (sg % 8)*8192 + (16*ks + 4*e)*128))
            return f
        def rd_x(s, ks):
            def f():
                g('ds_read_b128 %s, %s offset:%d' % (A(16*s + 4*ks, 4), V(vXr[ks]), (s % 5)*4096))
            return f
        def bar(sg):
            def f():
                g.wait(tokX.get(sg), tokW.get(sg))
                if not (cfg.get('nobar') and sg > 10): g('s_barrier')
                if sg == 0: self.stamp(2)
                if sg == 10: self.stamp(3)
                if sg == 20: self.stamp(4)
                if cfg.get('stamps') == 2 and sg in (3, 5, 7, 11, 15, 25): self.stamp(20 + (3, 5, 7, 11, 15, 25).index(sg))
            return f
        def mf(n):
            sg, ks, u = n // 8, (n % 8)//2, n % 2
            grp, s = sg // 10, sg % 10
            acc = ACC[grp % 2] + 16*u
            def f():
                if u == 0: g.wait(tokF[n+1])
                c = '0' if (s == 0 and ks == 0) else V(acc, 16)
                g('v_mfma_f32_32x32x16_bf16 %s, %s, %s, %s' % (V(acc, 16), V(WF + 4*(n % NF), 4), A(16*s + 4*ks, 4), c))
            return f
        for n in range(240): mains.append(mf(n))
        wsched = {}
        for sg in range(7): wsched[sg] = [sg+3]
        wsched[7] = [10, 11]; wsched[8] = [12, 13]; wsched[9] = [14, 15]
        for sg in range(10, 24): wsched[sg] = [sg+6]
        for sg in range(30):
            p = 8*sg - LA
            side.append((p - 0.5, bar(sg)))
            d = []
            if sg + 3 <= 9: d += dma_x(sg+3)
            for t in wsched.get(sg, []):
                if not (cfg.get('nodma') and t >= 16): d += dma_w(t)
            for i, f in enumerate(d): side.append((p + 0.6 + i*1.0, f))
        for n in range(0, 240, 2):
            if n < 80: side.append((n - LA, rd_x(n//8, (n % 8)//2)))
            side.append((n - LA, rd_w(n))); side.append((n - LA, rd_w(n+1)))
        side.append((8*3 - LA + 0.3, lambda: self.pack_store(vPr, vPs)))
        side.append((8*5 - LA + 0.3, self.pack_flag))
        side.append((8*9 - LA + 0.3, lambda: self.pack_poll_issue(vPp, vPd)))
        side.append((8*10 - LA + 0.3, lambda: self.pack_poll_check(vPp, vPd)))
        b2 = []
        for sl in range(4): b2 += self.b2_loads(sl, sl)
        if not cfg.get('nob2'):
            for i, f in enumerate(b2): side.append((8*(10+i) + 1.5, f))
        self.tH = None
        def epi(grp):
            ops = []
            for u in range(2):
                acc = ACC[grp % 2] + 16*u
                pk = PKR + 8*u
                seq = []
                for r in range(16):
                    t = V(EP + (r % 4)); a = V(acc + r)
                    seq.append(['v_mul_f32 %s, 0x%x, %s' % (t, NLOG2E, a), 'v_exp_f32 %s, %s' % (t, t), 'v_add_f32 %s, 1.0, %s' % (t, t),
                                'v_rcp_f32 %s, %s' % (t, t), 'v_mul_f32 %s, %s, %s' % (a, a, t)])
                for r0 in range(0, 16, 2):
                    for k in range(5):
                        ops.append(seq[r0][k]); ops.append(seq[r0+1][k])
                    ops.append('v_cvt_pk_bf16_f32 %s, %s, %s' % (V(pk + r0//2), V(acc + r0), V(acc + r0 + 1)))
                    if r0 in (6, 14):
                        e = r0 // 8
                        ops.append(('st', 'buffer_store_dwordx4 %s, %s, %s, %s offen offset:%d sc1' % (V(pk + 4*e, 4), V(vHs), S(sWS, 4), S(sT1), 256*e), (2*grp+u)*4096))
            out = []
            for o in ops:
                if isinstance(o, tuple):
                    def f(o=o):
                        g('s_mov_b32 %s, %d' % (S(sT1), o[2]))
                        self.tH = g(o[1])
                    out.append(f)
                else:
                    out.append(lambda o=o: g(o))
            return out
        for grp in range(2):
            ops = epi(grp)
            if cfg.get('noepi'): ops = []; continue
            p0, p1 = 80*(grp+1) + 2.1, 80*(grp+2) - 1.1
            for i, f in enumerate(ops): side.append((p0 + (p1-p0)*i/len(ops), f))
        weave(g, mains, side)
        self.stamp(5)
        ops = epi(2)
        b2 = []
        for sl in range(4, 16): b2 += self.b2_loads(sl, sl)
        nin = cfg.get('ffn_b2_in_epi', 20)
        side = [((i+1)*len(ops)/(nin+1), b2[i]) for i in range(nin)]
        weave(g, ops, side)
        n2 = cfg.get('ffn_b2_pre_flag', 10)
        for f in b2[nin:nin+n2]: f()
        self.h_flag(self.tH)
        self.stamp(6)
        for f in b2[nin+n2:]: f()
        g('s_branch L_join')

    def cpow(self, dst, a, th, n, t0, t1):
        g = self.g
        if n is None:
            g('v_exp_f32 %s, %s' % (V(t0), V(a)))
            g('v_rndne_f32 %s, %s' % (V(t1), V(th)))
            g('v_sub_f32 %s, %s, %s' % (V(t1), V(th), V(t1)))
        else:
            g('v_mul_f32 %s, %s, %s' % (V(t0), n, V(a)))
            g('v_mul_f32 %s, %s, %s' % (V(dst), n, V(th)))
            g('v_exp_f32 %s, %s' % (V(t0), V(t0)))
            g('v_rndne_f32 %s, %s' % (V(t1), V(dst)))
            g('v_sub_f32 %s, %s, %s' % (V(t1), V(dst), V(t1)))
        g('v_cos_f32 %s, %s' % (V(dst), V(t1)))
        g('v_sin_f32 %s, %s' % (V(dst+1), V(t1)))
        g('v_mul_f32 %s, %s, %s' % (V(dst), V(t0), V(dst)))
        g('v_mul_f32 %s, %s, %s' % (V(dst+1), V(t0), V(dst+1)))

    def ssm(self):
        g = self.g; cfg = self.cfg
        ACC = 16
        def acc(u, part, t): return ACC + 16*u + 8*part + t
        L1 = 96
        CF = 111
        L8S = 126
        L8, L128 = 136, 138
        vXd = [140, 141, 142, 143]; vBd = [144, 145, 146, 147, 148]
        vXr = [149, 150]; vBr = [151, 152, 153, 154]
        vPidx = 155; vHs = 156
        vPr, vPs, vPp, vPd = 157, 158, 159, 240
        BIG = 160
        RAW = 160
        aBF = 0; NF = 8; aXF = 32
        LA = 4
        g.label('L_ssm')
        g('s_cmp_lt_u32 %s, 2' % S(sWave))
        g('s_cselect_b32 %s, %s, %s' % (S(sW), S(pBre), S(pBim)))
        g('s_cselect_b32 %s, %s, %s' % (S(sW+1), S(pBre+1), S(pBim+1)))
        g('s_mov_b32 %s, 819200' % S(sW+2))
        g('s_mov_b32 %s, 0x20000' % S(sW+3))
        self.x_dma_addr(vXd, True)
        g('s_and_b32 %s, %s, 1' % (S(sT1), S(sWave)))
        g('s_mul_i32 %s, %s, 80' % (S(sT0), S(sJ1)))
        g('s_mul_i32 %s, %s, 40' % (S(sT2), S(sT1)))
        g('s_add_u32 %s, %s, %s' % (S(sT0), S(sT0), S(sT2)))
        g('s_mul_i32 %s, %s, 1280' % (S(sT0), S(sT0)))
        g('s_lshl_b32 %s, %s, 6' % (S(sT1), S(sT1)))
        g('v_xor_b32 %s, %s, %s' % (V(vT[4]), V(vT[1]), V(vT[2])))
        g('v_lshlrev_b32 %s, 4, %s' % (V(vT[4]), V(vT[4])))
        g('v_xor_b32 %s, %s, %s' % (V(vT[4]), S(sT1), V(vT[4])))
        g('v_xor_b32 %s, 64, %s' % (V(vT[5]), V(vT[4])))
        g('v_mul_u32_u24 %s, 1280, %s' % (V(vT[3]), V(vT[0])))
        g('v_add3_u32 %s, %s, %s, %s' % (V(vT[4]), V(vT[4]), V(vT[3]), S(sT0)))
        g('v_add3_u32 %s, %s, %s, %s' % (V(vT[5]), V(vT[5]), V(vT[3]), S(sT0)))
        for q in range(5):
            g('v_add_u32 %s, %d, %s' % (V(vBd[q]), 8*q*1280 - 1024*(q & 3), V(vT[4 + (q & 1)])))
        g('s_lshl_b32 %s, %s, 14' % (S(sMx), S(sWave)))
        g('s_mul_i32 %s, %s, 5120' % (S(sMw), S(sWave)))
        g('s_add_u32 %s, %s, %d' % (S(sMw), S(sMw), S_BR))
        tokS = {}
        def dma(s):
            out = []
            def mkx(q):
                def f():
                    if q == 0: g('s_add_u32 m0, %s, %d' % (S(sMx), (s % 4)*4096))
                    g('buffer_load_dwordx4 %s, %s, %s offen offset:%d lds' % (V(vXd[q]), S(sX, 4), S(sKb[s]), 1024*q))
                return f
            def mkb(q):
                def f():
                    if q in (0, 4): g('s_add_u32 m0, %s, %d' % (S(sMw), (s % 4)*20480 + (4096 if q == 4 else 0)))
                    tokS[s] = g('buffer_load_dwordx4 %s, %s, %s offen offset:%d lds' % (V(vBd[q]), S(sW, 4), S(sKb[s]), 1024*(q & 3)))
                return f
            return [mkx(q) for q in range(4)] + [mkb(q) for q in range(5)]
        g('s_mul_i32 %s, %s, 160' % (S(sT0), S(sJ1)))
        g('v_and_b32 %s, 15, %s' % (V(vT[3]), V(vLane)))
        g('v_lshl_add_u32 %s, %s, 1, %s' % (V(vT[3]), V(vT[3]), S(sT0)))
        g('v_min_u32 %s, 19, %s' % (V(vPidx), V(vLane)))
        g('s_mul_i32 %s, %s, 20' % (S(sT1), S(sWave)))
        g('v_add_u32 %s, %s, %s' % (V(vPidx), S(sT1), V(vPidx)))
        g('v_lshl_add_u32 %s, %s, 1, %s' % (V(vT[6]), V(vPidx), S(sT0)))
        for f in dma(0): f()
        for u in range(6):
            for k, p in enumerate((pLre, pLim, pLdt)):
                g('global_load_ushort %s, %s, %s offset:%d' % (V(RAW + 3*u + k), V(vT[3] if u < 5 else vT[6]), S(p, 2), 32*u if u < 5 else 0))
        for f in dma(1): f()
        self.pack_issue(vPr, vPs, vPp)
        self.late_srds()
        g('v_and_b32 %s, 15, %s' % (V(vT[3]), V(vLane)))
        g('v_bfe_u32 %s, %s, 1, 3' % (V(vT[4]), V(vLane)))
        g('v_lshrrev_b32 %s, 4, %s' % (V(vT[5]), V(vLane)))
        g('v_xor_b32 %s, %s, %s' % (V(vT[4]), V(vT[4]), V(vT[5])))
        g('v_lshlrev_b32 %s, 4, %s' % (V(vT[4]), V(vT[4])))
        g('v_lshl_add_u32 %s, %s, 7, %s' % (V(vT[4]), V(vT[3]), V(vT[4])))
        g('v_add_u32 %s, %s, %s' % (V(vXr[0]), S(sMx), V(vT[4])))
        g('v_xor_b32 %s, 64, %s' % (V(vXr[1]), V(vXr[0])))
        g('v_add_u32 %s, %d, %s' % (V(vBr[0]), S_BR, V(vT[4])))
        g('v_xor_b32 %s, 64, %s' % (V(vBr[1]), V(vBr[0])))
        g('v_add_u32 %s, 40960, %s' % (V(vBr[2]), V(vBr[0])))
        g('v_add_u32 %s, 40960, %s' % (V(vBr[3]), V(vBr[1])))
        g('s_lshl_b32 %s, %s, 1' % (S(sT0), S(sC1)))
        g('s_lshr_b32 %s, %s, 1' % (S(sT1), S(sWave)))
        g('s_add_u32 %s, %s, %s' % (S(sT0), S(sT0), S(sT1)))
        g('s_mul_i32 %s, %s, 352' % (S(sT0), S(sT0)))
        g('s_and_b32 %s, %s, 1' % (S(sT1), S(sWave)))
        g('s_lshl_b32 %s, %s, 1' % (S(sT1), S(sT1)))
        g('s_add_u32 %s, %s, %s' % (S(sT0), S(sT0), S(sT1)))
        g('s_mul_i32 %s, %s, 20' % (S(sT1), S(sJ1)))
        g('s_add_u32 %s, %s, %s' % (S(sT0), S(sT0), S(sT1)))
        g('s_lshl_b32 %s, %s, 10' % (S(sT0), S(sT0)))
        g('s_add_u32 %s, %s, 0x%x' % (S(sT0), S(sT0), WS_H + 192*1024))
        g('v_add_u32 %s, %s, %s' % (V(vHs), S(sT0), V(vL16)))
        self.finish_nonce()
        g('s_lshl_b32 %s, %s, 2' % (S(sT0), S(sWave)))
        g('v_add_u32 %s, %s, %s' % (V(vT[7]), S(sT0), V(vT[5])))
        g('v_lshlrev_b32 %s, 3, %s' % (V(vT[7]), V(vT[7])))
        g('v_cvt_f32_u32 %s, %s' % (V(vT[7]), V(vT[7])))
        for u in range(6):
            lr, li, ld = RAW + 3*u, RAW + 3*u + 1, RAW + 3*u + 2
            a, th = vT[8], vT[9]
            g('v_lshlrev_b32 %s, 16, %s' % (V(ld), V(ld)))
            g('v_lshlrev_b32 %s, 16, %s' % (V(lr), V(lr)))
            g('v_mul_f32 %s, 0x%x, %s' % (V(ld), LOG2E, V(ld)))
            g('v_lshlrev_b32 %s, 16, %s' % (V(li), V(li)))
            g('v_exp_f32 %s, %s' % (V(ld), V(ld)))
            g('v_cvt_pk_bf16_f32 %s, %s, %s' % (V(ld), V(ld), V(ld)))
            g('v_lshlrev_b32 %s, 16, %s' % (V(ld), V(ld)))
            g('v_mul_f32 %s, %s, %s' % (V(a), V(ld), V(lr)))
            g('v_mul_f32 %s, %s, %s' % (V(th), V(ld), V(li)))
            g('v_mul_f32 %s, 0x%x, %s' % (V(a), LOG2E, V(a)))
            g('v_mul_f32 %s, 0x%x, %s' % (V(th), INV2PI, V(th)))
            if u < 5:
                l1 = L1 + 3*u; cf = CF + 3*u
                self.cpow(l1, a, th, None, vT[10], vT[11])
                g('v_xor_b32 %s, 0x80000000, %s' % (V(l1+2), V(l1+1)))
                self.cpow(L8S + 2*u, a, th, V(vT[7]), vT[10], vT[11])
                g('v_add_f32 %s, -1.0, %s' % (V(a), V(l1)))
                g('v_mul_f32 %s, %s, %s' % (V(th), V(lr), V(lr)))
                g('v_fmac_f32 %s, %s, %s' % (V(th), V(li), V(li)))
                g('v_rcp_f32 %s, %s' % (V(th), V(th)))
                g('v_mul_f32 %s, %s, %s' % (V(cf), V(a), V(lr)))
                g('v_add_f32 %s, %s, %s' % (V(th), V(th), V(th)))
                g('v_fmac_f32 %s, %s, %s' % (V(cf), V(l1+1), V(li)))
                g('v_mul_f32 %s, %s, %s' % (V(cf+1), V(l1+1), V(lr)))
                g('v_fma_f32 %s, -%s, %s, %s' % (V(cf+1), V(a), V(li), V(cf+1)))
                g('v_mul_f32 %s, %s, %s' % (V(cf), V(cf), V(th)))
                g('v_mul_f32 %s, %s, %s' % (V(cf+1), V(cf+1), V(th)))
                g('v_xor_b32 %s, 0x80000000, %s' % (V(cf+2), V(cf+1)))
            else:
                self.cpow(L8, a, th, '0x41000000', vT[10], vT[11])
                self.cpow(L128, a, th, '0x43000000', vT[10], vT[11])
        for f in self.ks_table(): f()
        self.stamp(1)

        mains = []; side = []
        tokF = {}
        def rd_b(f_):
            sg, s, up = f_ // 20, (f_ % 20)//10, f_ % 10
            u, part = up // 2, up % 2
            def f():
                tokF[f_] = g('ds_read_b128 %s, %s offset:%d' % (A(aBF + 4*(f_ % NF), 4), V(vBr[2*((sg % 4)//2) + s]), (sg % 2)*20480 + (part*80 + 16*u)*128))
            return f
        def rd_x(kk):
            sg, s = kk // 2, kk % 2
            def f():
                for m in range(2):
                    g('ds_read_b128 %s, %s offset:%d' % (A(aXF + 8*(kk % 2) + 4*m, 4), V(vXr[s]), (sg % 4)*4096 + 2048*m))
            return f
        def bar(sg):
            def f():
                g.wait(tokS[sg])
                g('s_barrier')
                if sg == 0: self.stamp(2)
                if cfg.get('stamps') == 2 and sg in (2, 4, 6, 8, 9): self.stamp(20 + (2, 4, 6, 8, 9).index(sg))
            return f
        def mf(n):
            f_, m = n // 2, n % 2
            kk, up = f_ // 10, f_ % 10
            u, part = up // 2, up % 2
            d = acc(u, part, 4*m)
            def f():
                c = '0' if kk == 0 else V(d, 4)
                g('v_mfma_f32_16x16x32_bf16 %s, %s, %s, %s' % (V(d, 4), A(aXF + 8*(kk % 2) + 4*m, 4), A(aBF + 4*(f_ % NF), 4), c))
            return f
        for n in range(400): mains.append(mf(n))
        for sg in range(10):
            p = 40*sg - 2*LA
            side.append((p - 0.5, bar(sg)))
            if sg + 2 <= 9:
                for i, f in enumerate(dma(sg+2)): side.append((p + 1.6 + 3*i, f))
        for f_ in range(200):
            if f_ % 10 == 0: side.append((2*(f_ - LA), rd_x(f_//10)))
            side.append((2*(f_ - LA), rd_b(f_)))
        side.append((40*2 - 2*LA + 0.3, lambda: self.pack_store(vPr, vPs)))
        side.append((40*4 - 2*LA + 0.3, self.pack_flag))
        side.append((40*8 - 2*LA + 0.3, lambda: self.pack_poll_issue(vPp, vPd)))
        side.append((40*9 - 2*LA + 0.3, lambda: self.pack_poll_check(vPp, vPd)))
        weave(g, mains, side)
        self.stamp(3)

        order = [0, 1, 2, 3] + list(range(8, 16))
        b2 = []
        for sl in order: b2 += self.b2_loads(sl, sl)
        nb = [cfg.get('ssm_b2_a', 10), cfg.get('ssm_b2_b', 25)]
        E = BIG
        ops = []
        for t in range(1, 8):
            src = lambda u, part: (acc(u, part, 0) if t == 1 else E + 10*((t-1) % 2) + 2*u + part)
            dst = lambda u, part: E + 10*(t % 2) + 2*u + part
            for u in range(5):
                ops.append('v_fma_f32 %s, %s, %s, %s' % (V(dst(u, 0)), V(L1+3*u), V(src(u, 0)), V(acc(u, 0, t))))
                ops.append('v_fma_f32 %s, %s, %s, %s' % (V(dst(u, 1)), V(L1+3*u), V(src(u, 1)), V(acc(u, 1, t))))
            for u in range(5):
                ops.append('v_fmac_f32 %s, %s, %s' % (V(dst(u, 0)), V(L1+3*u+2), V(src(u, 1))))
                ops.append('v_fmac_f32 %s, %s, %s' % (V(dst(u, 1)), V(L1+3*u+1), V(src(u, 0))))
        pre = ['s_lshl_b32 %s, %s, 2' % (S(sT0), S(sWave)),
               'v_lshrrev_b32 %s, 4, %s' % (V(vT[2]), V(vLane)),
               'v_add_u32 %s, %s, %s' % (V(vT[2]), S(sT0), V(vT[2])),
               'v_mul_u32_u24 %s, 640, %s' % (V(vT[2]), V(vT[2])),
               'v_and_b32 %s, 15, %s' % (V(vT[3]), V(vLane)),
               'v_lshlrev_b32 %s, 3, %s' % (V(vT[3]), V(vT[3])),
               'v_add_u32 %s, %d, %s' % (V(vT[3]), L_EX, V(vT[3])),
               'v_add_u32 %s, %s, %s' % (V(vT[2]), V(vT[2]), V(vT[3])),
               'v_lshlrev_b32 %s, 3, %s' % (V(vT[4]), V(vPidx)),
               'v_add_u32 %s, %d, %s' % (V(vT[4]), L_EX, V(vT[4])),
               's_mul_i32 %s, %s, 20480' % (S(sT0), S(sJ1)),
               's_add_u32 %s, %s, %d' % (S(sT0), S(sT0), WS_EBUF),
               'v_lshlrev_b32 %s, 4, %s' % (V(vT[5]), V(vPidx)),
               'v_add_u32 %s, %s, %s' % (V(vT[5]), S(sT0), V(vT[5])),
               's_mul_i32 %s, %s, 1280' % (S(sT2), S(sC1))]
        for o in pre: g(o)
        mains = [lambda o=o: g(o) for o in ops]
        weave(g, mains, [((i+1)*len(ops)/(nb[0]+1), b2[i]) for i in range(nb[0])])
        for u in range(5):
            g('ds_write_b64 %s, %s offset:%d' % (V(vT[2]), V(E + 10 + 2*u, 2), 128*u))
        g.waitcnt(lg=0)
        g('s_barrier')
        P = BIG + 20
        for s in range(16):
            g('ds_read_b64 %s, %s offset:%d' % (V(P + 2*s, 2), V(vT[4]), 640*s))
        g('v_xor_b32 %s, 0x80000000, %s' % (V(vT[6]), V(L8+1)))
        g('v_xor_b32 %s, 0x80000000, %s' % (V(vT[7]), V(L128+1)))
        for s in range(1, 16):
            a, b = P + 2*s, P + 2*(s-1)
            g('v_fmac_f32 %s, %s, %s' % (V(a), V(L8), V(b)))
            g('v_fmac_f32 %s, %s, %s' % (V(a+1), V(L8), V(b+1)))
            g('v_fmac_f32 %s, %s, %s' % (V(a), V(vT[6]), V(b+1)))
            g('v_fmac_f32 %s, %s, %s' % (V(a+1), V(L8+1), V(b)))
        g('v_mov_b32 %s, %s' % (V(P+32), S(sNonce)))
        g('v_mov_b32 %s, %s' % (V(P+33), S(sNonce)))
        g('s_mov_b64 exec, 0xfffff')
        g('buffer_store_dwordx4 %s, %s, %s, %s offen sc1' % (V(P+30, 4), V(vT[5]), S(sWS, 4), S(sT2)))
        g('s_mov_b64 exec, -1')
        self.stamp(4)
        GX, GW = BIG + 56, 241
        g('s_lshl_b32 %s, %s, 3' % (S(sT0), S(sC1)))
        g('s_add_u32 %s, %s, %s' % (S(sT0), S(sT0), S(sJ1)))
        g('s_lshl_b32 %s, %s, 4' % (S(sT0), S(sT0)))
        g('v_lshrrev_b32 %s, 4, v0' % V(vT[8]))
        g('v_add_u32 %s, %s, %s' % (V(vT[8]), S(sT0), V(vT[8])))
        g('v_and_b32 %s, 15, %s' % (V(vT[9]), V(vLane)))
        g('v_lshlrev_b32 %s, 4, %s' % (V(vT[9]), V(vT[9])))
        g('v_mul_u32_u24 %s, 1280, %s' % (V(vT[10]), V(vT[8])))
        g('v_add_u32 %s, %s, %s' % (V(vT[10]), V(vT[10]), V(vT[9])))
        for i in range(5):
            g('buffer_load_dwordx4 %s, %s, %s, 0 offen offset:%d' % (V(GX + 4*i, 4), V(vT[10]), S(sX, 4), 256*i))
        g('v_mov_b32 %s, 0' % V(E)); g('v_mov_b32 %s, 0' % V(E+1))
        g('ds_write_b64 %s, %s' % (V(vT[4]), V(E, 2)))
        for s in range(1, 16):
            g('ds_write_b64 %s, %s offset:%d' % (V(vT[4]), V(P + 2*(s-1), 2), 640*s))
        g.waitcnt(lg=0)
        GW = BIG
        for i in range(5):
            g('global_load_dwordx4 %s, %s, %s offset:%d' % (V(GW + 4*i, 4), V(vT[9]), S(pGate, 2), 256*i))
        ops = []
        TT = BIG + 20
        for u in range(5):
            cf = CF + 3*u
            for t0 in range(0, 8, 4):
                for t in range(t0, t0+4): ops.append('v_mul_f32 %s, %s, %s' % (V(TT + t % 4), V(cf+1), V(acc(u, 0, t))))
                for t in range(t0, t0+4): ops.append('v_mul_f32 %s, %s, %s' % (V(acc(u, 0, t)), V(cf), V(acc(u, 0, t))))
                for t in range(t0, t0+4): ops.append('v_fmac_f32 %s, %s, %s' % (V(acc(u, 0, t)), V(cf+2), V(acc(u, 1, t))))
                for t in range(t0, t0+4): ops.append('v_fma_f32 %s, %s, %s, %s' % (V(acc(u, 1, t)), V(cf), V(acc(u, 1, t)), V(TT + t % 4)))
        Z = TT + 8; ONE = TT + 9
        ops.append('v_mov_b32 %s, 0' % V(Z))
        ops.append('v_mov_b32 %s, 0x3f803f80' % V(ONE))
        for i in range(20):
            x, w = V(GX + i), V(GW + i)
            a, b, c, d = (V(TT + k + 4*(i % 2)) for k in range(4))
            ops += ['v_lshlrev_b32 %s, 16, %s' % (a, x), 'v_and_b32 %s, 0xffff0000, %s' % (b, x),
                    'v_lshlrev_b32 %s, 16, %s' % (c, w), 'v_and_b32 %s, 0xffff0000, %s' % (d, w),
                    'v_mul_f32 %s, %s, %s' % (a, a, c), 'v_mul_f32 %s, %s, %s' % (b, b, d),
                    'v_cvt_pk_bf16_f32 %s, %s, %s' % (a, a, b),
                    'v_dot2_f32_bf16 %s, %s, %s, %s' % (V(Z), a, V(ONE), V(Z))]
        for k in (8, 4, 2, 1):
            ops.append('v_add_f32_dpp %s, %s, %s row_ror:%d row_mask:0xf bank_mask:0xf' % (V(Z), V(Z), V(Z), k))
        G4 = TT + 12
        ops += ['v_cvt_pk_bf16_f32 %s, %s, %s' % (V(Z), V(Z), V(Z)), 'v_lshlrev_b32 %s, 16, %s' % (V(Z), V(Z)),
                'v_mul_f32 %s, 0x%x, %s' % (V(Z), NLOG2E, V(Z)), 'v_exp_f32 %s, %s' % (V(Z), V(Z)),
                'v_add_f32 %s, 1.0, %s' % (V(Z), V(Z)), 'v_rcp_f32 %s, %s' % (V(Z), V(Z)),
                'v_cvt_pk_bf16_f32 %s, %s, %s' % (V(Z), V(Z), V(Z)), 'v_lshlrev_b32 %s, 16, %s' % (V(Z), V(Z)),
                'v_sub_f32 %s, 1.0, %s' % (V(ONE), V(Z)), 'v_max_f32 %s, 0x21800000, %s' % (V(G4), V(Z)),
                'v_cvt_pk_bf16_f32 %s, %s, %s' % (V(ONE), V(ONE), V(ONE)), 'v_rcp_f32 %s, %s' % (V(G4+1), V(G4)),
                'v_lshlrev_b32 %s, 16, %s' % (V(ONE), V(ONE)), 'v_mul_f32 %s, %s, %s' % (V(G4+1), V(G4+1), V(ONE)),
                'v_mov_b32 %s, %s' % (V(G4+2), S(sNonce)), 'v_mov_b32 %s, %s' % (V(G4+3), S(sNonce)),
                'v_lshlrev_b32 %s, 4, %s' % (V(vT[8]), V(vT[8])), 'v_add_u32 %s, %d, %s' % (V(vT[8]), WS_GATE, V(vT[8]))]
        mains = [lambda o=o: g(o) for o in ops]
        weave(g, mains, [((i+1)*len(ops)/(nb[1]+1), b2[nb[0]+i]) for i in range(nb[1])])
        g('s_mov_b32 %s, 0x00010001' % S(sT0))
        g('s_mov_b32 exec_lo, %s' % S(sT0))
        g('s_mov_b32 exec_hi, %s' % S(sT0))
        g('buffer_store_dwordx4 %s, %s, %s, 0 offen sc1' % (V(G4, 4), V(vT[8]), S(sWS, 4)))
        self.stamp(5)
        GR = BIG
        g('s_mov_b64 exec, 0xfffff')
        def gather():
            for d in range(1, 16):
                r = GR + 4*(d-1)
                g('s_sub_u32 %s, %s, %d' % (S(sT0), S(sT2), 1280*d))
                g('s_cselect_b32 %s, 0x7f000000, %s' % (S(sT0), S(sT0)))
                g('v_add_u32 %s, %s, %s' % (V(r), S(sT0), V(vT[5])))
                g('buffer_load_dwordx4 %s, %s, %s, 0 offen sc1' % (V(r, 4), V(r), S(sWS, 4)))
        def gcheck():
            for d in range(1, 16):
                r = GR + 4*(d-1)
                g('s_cmp_ge_u32 %s, %d' % (S(sC1), d))
                g('s_cselect_b32 %s, %s, 0' % (S(sT0), S(sNonce)))
                if d == 1: g('v_xor_b32 %s, %s, %s' % (V(vT[0]), S(sT0), V(r+2)))
                else:
                    g('v_xor_b32 %s, %s, %s' % (V(vT[1]), S(sT0), V(r+2)))
                    g('v_or_b32 %s, %s, %s' % (V(vT[0]), V(vT[0]), V(vT[1])))
            g('v_cmp_ne_u32 vcc, 0, %s' % V(vT[0]))
            g('s_nop 1')
            g('s_cmp_eq_u64 vcc, 0')
        gather()
        self.poll('carry', gather, gcheck)
        self.stamp(6)
        for d in range(14, 0, -1):
            a, b = GR + 4*(d-1), GR + 4*d
            g('v_fmac_f32 %s, %s, %s' % (V(a), V(L128), V(b)))
            g('v_fmac_f32 %s, %s, %s' % (V(a+1), V(L128), V(b+1)))
            g('v_fmac_f32 %s, %s, %s' % (V(a), V(vT[7]), V(b+1)))
            g('v_fmac_f32 %s, %s, %s' % (V(a+1), V(L128+1), V(b)))
        g('ds_write_b64 %s, %s offset:10240' % (V(vT[4]), V(GR, 2)))
        g('s_mov_b64 exec, -1')
        g.waitcnt(lg=0)
        g('s_barrier')
        SS, PP, II = BIG, BIG + 10, BIG + 20
        for u in range(5):
            g('ds_read_b64 %s, %s offset:%d' % (V(SS + 2*u, 2), V(vT[3]), 10240 + 128*u))
            g('ds_read_b64 %s, %s offset:%d' % (V(PP + 2*u, 2), V(vT[2]), 128*u))
        g('v_and_b32 %s, 15, %s' % (V(vT[6]), V(vLane)))
        g('v_mul_u32_u24 %s, 80, %s' % (V(vT[6]), V(vT[6])))
        g('v_lshrrev_b32 %s, 4, %s' % (V(vT[7]), V(vLane)))
        g('v_lshl_add_u32 %s, %s, 4, %s' % (V(vT[6]), V(vT[7]), V(vT[6])))
        g('v_add_u32 %s, %s, %s' % (V(vT[6]), S(sMx), V(vT[6])))
        g('v_bfe_u32 %s, %s, 2, 2' % (V(vT[8]), V(vLane)))
        g('v_lshl_add_u32 %s, %s, 3, %s' % (V(vT[7]), V(vT[7]), V(vT[8])))
        g('v_mul_u32_u24 %s, 80, %s' % (V(vT[7]), V(vT[7])))
        g('v_and_b32 %s, 3, %s' % (V(vT[8]), V(vLane)))
        g('v_lshl_add_u32 %s, %s, 3, %s' % (V(vT[7]), V(vT[8]), V(vT[7])))
        g('v_add_u32 %s, %s, %s' % (V(vT[7]), S(sMx), V(vT[7])))
        for u in range(5):
            g('v_fmac_f32 %s, %s, %s' % (V(PP+2*u), V(L8S+2*u), V(SS+2*u)))
            g('v_fmac_f32 %s, %s, %s' % (V(PP+2*u+1), V(L8S+2*u), V(SS+2*u+1)))
        for u in range(5):
            g('v_fma_f32 %s, -%s, %s, %s' % (V(PP+2*u), V(L8S+2*u+1), V(SS+2*u+1), V(PP+2*u)))
            g('v_fmac_f32 %s, %s, %s' % (V(PP+2*u+1), V(L8S+2*u+1), V(SS+2*u)))
        for u in range(5):
            g('v_mul_f32 %s, %s, %s' % (V(II+2*u), V(CF+3*u), V(PP+2*u)))
            g('v_mul_f32 %s, %s, %s' % (V(II+2*u+1), V(CF+3*u), V(PP+2*u+1)))
        for u in range(5):
            g('v_fmac_f32 %s, %s, %s' % (V(II+2*u), V(CF+3*u+2), V(PP+2*u+1)))
            g('v_fmac_f32 %s, %s, %s' % (V(II+2*u+1), V(CF+3*u+1), V(PP+2*u)))
        PKB = BIG + 32
        FRB = BIG + 48
        ops = []
        def scan_ops(us):
            o = []
            for t in range(8):
                pr = lambda u, part: (II + 2*u + part if t == 0 else acc(u, part, t-1))
                for u in us:
                    o.append('v_fmac_f32 %s, %s, %s' % (V(acc(u, 0, t)), V(L1+3*u), V(pr(u, 0))))
                    o.append('v_fmac_f32 %s, %s, %s' % (V(acc(u, 1, t)), V(L1+3*u), V(pr(u, 1))))
                for u in us:
                    o.append('v_fmac_f32 %s, %s, %s' % (V(acc(u, 0, t)), V(L1+3*u+2), V(pr(u, 1))))
                    o.append('v_fmac_f32 %s, %s, %s' % (V(acc(u, 1, t)), V(L1+3*u+1), V(pr(u, 0))))
            return o
        def out_a(u):
            o = []
            pk = PKB + 8*(u % 2)
            for i in range(4): o.append('v_cvt_pk_bf16_f32 %s, %s, %s' % (V(pk+i), V(acc(u, 0, 2*i)), V(acc(u, 0, 2*i+1))))
            o.append('ds_write_b128 %s, %s offset:%d' % (V(vT[6]), V(pk, 4), 2560*u))
            for i in range(4): o.append('v_cvt_pk_bf16_f32 %s, -%s, -%s' % (V(pk+4+i), V(acc(u, 1, 2*i)), V(acc(u, 1, 2*i+1))))
            o.append('ds_write_b128 %s, %s offset:%d' % (V(vT[6]), V(pk+4, 4), 2560*u + 1280))
            fr = FRB + 8*(u % 2)
            for m in range(2):
                for e in range(2):
                    o.append('ds_read_b64_tr_b16 %s, %s offset:%d' % (V(fr + 4*m + 2*e, 2), V(vT[7]), 2560*u + 320*e + 32*m))
            return o
        def out_b(u):
            fr = FRB + 8*(u % 2)
            def f():
                g('s_mov_b32 %s, %d' % (S(sT1), 4096*u))
                for m in range(2):
                    self.tH = g('buffer_store_dwordx4 %s, %s, %s, %s offen offset:%d sc1' % (V(fr + 4*m, 4), V(vHs), S(sWS, 4), S(sT1), 1024*m))
            return f
        L = lambda o: (lambda: g(o))
        s01 = scan_ops([0, 1]); s234 = scan_ops([2, 3, 4])
        for o in s01: g(o)
        sideops = [L(o) for o in out_a(0)] + [L(o) for o in out_a(1)] + [out_b(0), out_b(1)]
        weave(g, [L(o) for o in s234], [(4 + i*(len(s234)-4)/len(sideops), f) for i, f in enumerate(sideops)])
        for o in out_a(2) + out_a(3): g(o)
        out_b(2)()
        for o in out_a(4): g(o)
        out_b(3)(); out_b(4)()
        rest = b2[nb[0]+nb[1]:]
        for sl in range(4, 8): rest += self.b2_loads(sl, sl)
        n2 = cfg.get('ssm_b2_pre_flag', 10)
        for f in rest[:n2]: f()
        self.h_flag(self.tH)
        self.stamp(7)
        for f in rest[n2:]: f()

    def phase2(self):
        g = self.g; cfg = self.cfg
        vHp, vHd, vGa = 4, 5, 6
        GG = 240
        g.label('L_join')
        g.vm, g.lg, g.smem = [], [], []
        g('s_lshr_b32 %s, %s, 1' % (S(sT0), S(sMh)))
        g('s_lshl_b32 %s, %s, 4' % (S(sT0), S(sT0)))
        g('s_lshl_b32 %s, %s, 1' % (S(sT1), S(sWave)))
        g('s_add_u32 %s, %s, %s' % (S(sT0), S(sT0), S(sT1)))
        g('s_lshl_b32 %s, %s, 7' % (S(sT0), S(sT0)))
        g('s_and_b32 %s, %s, 1' % (S(sT1), S(sMh)))
        g('s_lshl_b32 %s, %s, 3' % (S(sT1), S(sT1)))
        g('s_add_u32 %s, %s, %s' % (S(sT0), S(sT0), S(sT1)))
        g('s_add_u32 %s, %s, %d' % (S(sT0), S(sT0), WS_HFLAG))
        g('v_bfe_u32 %s, %s, 1, 1' % (V(vHp), V(vLane)))
        g('v_lshlrev_b32 %s, 7, %s' % (V(vHp), V(vHp)))
        g('v_and_b32 %s, 1, %s' % (V(vHd), V(vLane)))
        g('v_lshl_add_u32 %s, %s, 2, %s' % (V(vHp), V(vHd), V(vHp)))
        g('v_add_u32 %s, %s, %s' % (V(vHp), S(sT0), V(vHp)))
        lup, lupd = 'L_upd', 'L_upd_done'
        g('s_lshl_b32 %s, %s, 8' % (S(sT0), S(sWave)))
        g('s_add_u32 %s, %s, s2' % (S(sT0), S(sT0)))
        g('s_cmp_eq_u32 %s, 0' % S(sT0))
        g('s_cbranch_scc1 %s' % lup)
        g.label(lupd)
        def upd():
            g.vm, g.lg, g.smem = [], [], []
            g.label(lup)
            g('s_mov_b32 %s, 0x%x' % (S(sT4), cfg.get('spin', 1 << 18)))
            g.label('L_upd_loop')
            g('s_sub_u32 %s, %s, 1' % (S(sT4), S(sT4)))
            g('s_cmp_eq_u32 %s, 0' % S(sT4))
            g('s_cbranch_scc1 L_upd_go')
            g('v_lshlrev_b32 v8, 3, %s' % V(vL16))
            for i in range(4):
                g('s_mov_b32 %s, %d' % (S(sT0), WS_PFLAG + 8192*i))
                g('buffer_load_dword %s, v8, %s, %s offen sc1' % (V(GG+i), S(sWS, 4), S(sT0)))
            g('s_waitcnt vmcnt(0)'); g.vm = []
            g('v_xor_b32 v8, %s, %s' % (S(sNonce), V(GG)))
            for i in range(1, 4):
                g('v_xor_b32 v9, %s, %s' % (S(sNonce), V(GG+i)))
                g('v_or_b32 v8, v8, v9')
            g('v_cmp_ne_u32 vcc, 0, v8')
            g('s_nop 1')
            g('s_cmp_eq_u64 vcc, 0')
            g('s_nop 7')
            g('s_cbranch_scc0 L_upd_loop')
            g.label('L_upd_go')
            g('v_mov_b32 v8, 0')
            g('v_mov_b32 v9, %s' % S(sNonce))
            g('buffer_store_dword v9, v8, %s, 0 offen sc1' % S(sWS, 4))
            g('s_waitcnt vmcnt(0)'); g.vm = []
            g('s_nop 7')
            g('s_branch %s' % lupd)
        self.tail.append(upd)
        g('s_barrier')
        def hp(off):
            return lambda: g('buffer_load_dword %s, %s, %s, 0 offen offset:%d sc1' % (V(vHd), V(vHp), S(sWS, 4), off))
        def chk(regs):
            def f():
                if len(regs) == 1:
                    g('v_cmp_ne_u32 vcc, %s, %s' % (S(sNonce), V(regs[0])))
                else:
                    g('v_xor_b32 v8, %s, %s' % (S(sNonce), V(regs[0])))
                    for r in regs[1:]:
                        g('v_xor_b32 v9, %s, %s' % (S(sNonce), V(r)))
                        g('v_or_b32 v8, v8, v9')
                    g('v_cmp_ne_u32 vcc, 0, v8')
                g('s_nop 1')
                g('s_cmp_eq_u64 vcc, 0')
            return f
        hp(1024)()
        g('s_lshl_b32 %s, %s, 10' % (S(sT0), S(sMh)))
        g('s_add_u32 %s, %s, %d' % (S(sT0), S(sT0), WS_GATE))
        g('v_and_b32 %s, 15, %s' % (V(vGa), V(vLane)))
        g('v_lshlrev_b32 %s, 4, %s' % (V(vGa), V(vGa)))
        g('v_add_u32 %s, %s, %s' % (V(vGa), S(sT0), V(vGa)))
        g('s_waitcnt vmcnt(0)'); g.vm = []
        self.poll('hf', hp(1024), chk([vHd]))
        self.stamp(8)
        if cfg.get('stop') == 1:
            return
        def a2(n):
            out = []
            def mk(rt):
                def f():
                    if rt == 0: g('s_lshl_b32 %s, %s, 2' % (S(sT2), S(sKs[n])))
                    g('buffer_load_dwordx4 %s, %s, %s, %s offen offset:%d%s' % (V(A2R + 16*(n % 4) + 4*rt, 4), V(vL16), S(sH, 4), S(sT2), 1024*rt, ' sc1' if cfg.get('sc1', 1) else ''))
                return f
            return [mk(rt) for rt in range(4)]
        for n in range(3):
            for f in a2(n): f()
        mains = []; side = []
        def tile(rt, nt): return ACC2 + 4*(rt*5 + nt)
        def mf(n, rt, nt):
            kind, base = B2slot(n % 16)
            def f():
                c = '0' if n == 0 else V(tile(rt, nt), 4)
                g('v_mfma_f32_16x16x32_bf16 %s, %s, %s, %s' % (V(tile(rt, nt), 4), R(kind, base + 4*nt, 4), V(A2R + 16*(n % 4) + 4*rt, 4), c))
            return f
        for n in range(22):
            for rt in range(4):
                for nt in range(5): mains.append(mf(n, rt, nt))
        for n in range(22):
            if n + 3 < 22:
                for i, f in enumerate(a2(n+3)): side.append((20*n + 1 + 2*i, f))
            if 1 <= n <= 6:
                for i, f in enumerate(self.b2_loads(15+n, n-1)): side.append((20*n + 9 + 2*i, f))
        if cfg.get('stamps') == 2:
            for k, n in enumerate((1, 4, 7, 9, 11, 12, 13, 16, 19)): side.append((20*n - 0.1, lambda k=k: self.stamp(11+k)))
        side.append((20*7 + 0.5, hp(0)))
        side.append((20*9 - 0.5, lambda: self.poll('hs', hp(0), chk([vHd]))))
        def gissue():
            for rt in range(4):
                g('buffer_load_dwordx3 %s, %s, %s, 0 offen offset:%d sc1' % (V(GG + 4*rt, 3), V(vGa), S(sWS, 4), 256*rt))
        side.append((20*9 + 10, gissue))
        side.append((20*11 - 0.5, lambda: self.poll('gt', gissue, chk([GG + 4*rt + 2 for rt in range(4)]))))
        for rt in range(4):
            for nt in range(5):
                for r in range(4):
                    side.append((220 + rt*5 + nt + 4 + 0.1*r, lambda rt=rt, nt=nt, r=r: g('v_mul_f32 %s, %s, %s' % (V(tile(rt, nt) + r), V(GG + 4*rt + 1), V(tile(rt, nt) + r)))))
        XD = 200; RX = 220; vRd = [7, 8, 9, 10, 11]; vOa = [12, 13, 14, 15, 4]; GF = 230; T = 235
        DS = GG
        ops = []
        ops.append('s_lshl_b32 %s, %s, 6' % (S(sT0), S(sMh)))
        ops.append('s_lshl_b32 %s, %s, 4' % (S(sT1), S(sWave)))
        ops.append('s_add_u32 %s, %s, %s' % (S(sItem), S(sT0), S(sT1)))
        ops.append('s_mul_i32 %s, %s, 160' % (S(sMx), S(sJn)))
        ops.append('s_mul_i32 %s, %s, 5440' % (S(sMw), S(sWave)))
        for q in range(5):
            e, row, ch, t3 = V(T), V(T+1), V(T+2), V(T+3)
            ops += ['v_add_u32 %s, %d, %s' % (e, 64*q, V(vLane)),
                    'v_mul_u32_u24 %s, 3277, %s' % (row, e), 'v_lshrrev_b32 %s, 16, %s' % (row, row),
                    'v_mul_u32_u24 %s, 20, %s' % (ch, row), 'v_sub_u32 %s, %s, %s' % (ch, e, ch),
                    'v_lshrrev_b32 %s, 2, %s' % (t3, ch), 'v_mul_u32_u24 %s, 1088, %s' % (V(vRd[q]), t3),
                    'v_and_b32 %s, 3, %s' % (t3, ch), 'v_mul_u32_u24 %s, 272, %s' % (t3, t3),
                    'v_add3_u32 %s, %s, %s, %s' % (V(vRd[q]), V(vRd[q]), t3, S(sMw)),
                    'v_lshl_add_u32 %s, %s, 4, %s' % (V(vRd[q]), row, V(vRd[q])),
                    'v_add_u32 %s, %s, %s' % (row, S(sItem), row),
                    'v_lshl_add_u32 %s, %s, 3, %s' % (ch, ch, S(sMx)),
                    'global_load_dwordx2 %s, %s, %s' % (V(DS + 2*q, 2), ch, S(pDsk, 2)),
                    'v_mul_u32_u24 %s, 1280, %s' % (e, row), 'v_add_u32 %s, %s, %s' % (e, e, ch),
                    'buffer_load_dwordx2 %s, %s, %s, 0 offen' % (V(RX + 2*q, 2), e, S(sX, 4)),
                    'v_lshlrev_b32 %s, 1, %s' % (V(vOa[q]), e),
                    'v_lshlrev_b32 %s, 4, %s' % (row, row), 'v_add_u32 %s, %d, %s' % (row, WS_GATE, row),
                    'buffer_load_dword %s, %s, %s, 0 offen sc1' % (V(GF + q), row, S(sWS, 4))]
        for i, o in enumerate(ops): side.append((20*13 + 5 + i*70/len(ops), lambda o=o: g(o)))
        ops = []
        for q in range(5):
            for h in range(2):
                x, d = V(RX + 2*q + h), V(DS + 2*q + h)
                a, b, c, dd = V(T), V(T+1), V(T+2), V(T+3)
                ops += ['v_lshlrev_b32 %s, 16, %s' % (a, x), 'v_and_b32 %s, 0xffff0000, %s' % (b, x),
                        'v_lshlrev_b32 %s, 16, %s' % (c, d), 'v_and_b32 %s, 0xffff0000, %s' % (dd, d),
                        'v_mul_f32 %s, %s, %s' % (a, a, c), 'v_mul_f32 %s, %s, %s' % (b, b, dd),
                        'v_cvt_pk_bf16_f32 %s, %s, %s' % (a, a, b),
                        'v_lshlrev_b32 %s, 16, %s' % (V(XD + 4*q + 2*h), a), 'v_and_b32 %s, 0xffff0000, %s' % (V(XD + 4*q + 2*h + 1), a)]
        ops += ['s_mul_i32 %s, %s, 21760' % (S(sT0), S(sWave)),
                'v_lshrrev_b32 %s, 4, %s' % (V(T), V(vLane)), 'v_mul_u32_u24 %s, 272, %s' % (V(T), V(T)),
                'v_and_b32 %s, 15, %s' % (V(T+1), V(vLane)), 'v_lshl_add_u32 %s, %s, 4, %s' % (V(T), V(T+1), V(T)),
                'v_add_u32 %s, %s, %s' % (V(T), S(sT0), V(T))]
        for i, o in enumerate(ops): side.append((20*19 + i*40/len(ops), lambda o=o: g(o)))
        for j in range(20):
            side.append((420 + j + 4, lambda j=j: g('ds_write_b128 %s, %s offset:%d' % (V(T), V(ACC2 + 4*j, 4), 1088*j))))
        weave(g, mains, side)
        self.stamp(9)
        g.waitcnt(lg=0)
        g('s_barrier')
        for q in range(5):
            for src in range(4):
                g('ds_read_b128 %s, %s offset:%d' % (V(ACC2 + 16*q + 4*src, 4), V(vRd[q]), 21760*src))
        for q in range(5):
            for src in range(4):
                for r in range(4):
                    g('v_add_f32 %s, %s, %s' % (V(XD + 4*q + r), V(XD + 4*q + r), V(ACC2 + 16*q + 4*src + r)))
            for r in range(4):
                g('v_mul_f32 %s, %s, %s' % (V(XD + 4*q + r), V(GF + q), V(XD + 4*q + r)))
            g('buffer_store_dwordx4 %s, %s, %s, 0 offen' % (V(XD + 4*q, 4), V(vOa[q]), S(sOUT, 4)))

    def build(self):
        g = self.g
        self.prologue()
        st = g.state()
        self.ffn()
        g.vm, g.lg, g.smem = list(st[0]), list(st[1]), list(st[2])
        self.ssm()
        self.phase2()
        if self.cfg.get('stamps'):
            g.waitall()
            self.stamp(10)
            self.stamp(31, 's_memtime')
            g('s_lshl_b32 %s, s2, 2' % S(sT0))
            g('s_add_u32 %s, %s, %s' % (S(sT0), S(sT0), S(sWave)))
            g('s_lshl_b32 %s, %s, 7' % (S(sT0), S(sT0)))
            g('s_add_u32 %s, %s, %d' % (S(sT0), S(sT0), WS_STAMP))
            g('v_lshlrev_b32 v4, 2, %s' % V(vLane))
            g('s_mov_b32 exec_hi, 0')
            g('buffer_store_dword %s, v4, %s, %s offen' % (V(vStamp), S(sWS, 4), S(sT0)))
        g.label('L_exit')
        g('s_endpgm')
        for f in self.tail: f()
        hdr = open('gated_mix__ssm_conv_s5__dense_activation_silu__prompt.s.ref').read()
        top = hdr[:hdr.index('; Override launch geometry')]
        txt = top + '; Generated by a hand-written generator script (straight-line schedule, one fused launch).\n'
        txt += '; @launch grid=(256,1,1) block=(256,1,1) lds=163840\n'
        txt += '.amdgcn_target "amdgcn-amd-amdhsa--gfx950"\n.text\n.globl %s\n.p2align 8\n.type %s,@function\n%s:\n' % (KNAME, KNAME, KNAME)
        txt += g.text()
        txt += '''.section .rodata,"a"
.p2align 6
.amdhsa_kernel %s
  .amdhsa_next_free_vgpr 512
  .amdhsa_next_free_sgpr 102
  .amdhsa_accum_offset 256
  .amdhsa_group_segment_fixed_size 0
  .amdhsa_kernarg_size 128
  .amdhsa_user_sgpr_count 2
  .amdhsa_user_sgpr_kernarg_segment_ptr 1
  .amdhsa_system_sgpr_workgroup_id_x 1
.end_amdhsa_kernel
''' % KNAME
        return txt

def make(cfg=None):
    k = K(cfg or {})
    return k.build(), k

if __name__ == '__main__':
    import json
    cfg = json.loads(sys.argv[2]) if len(sys.argv) > 2 else {}
    txt, k = make(cfg)
    open(sys.argv[1], 'w').write(txt)
    print(k.g.stats, 'nops', k.g.nnop, 'bytes', len(txt))
```

```python
import re

def expand(tok):
    tok = tok.strip()
    if tok.startswith('-'): tok = tok[1:]
    m = re.fullmatch(r'abs\((.*)\)', tok)
    if m: tok = m.group(1)
    m = re.fullmatch(r'([vas])\[(\d+):(\d+)\]', tok)
    if m: return ['%s%d' % (m.group(1), i) for i in range(int(m.group(2)), int(m.group(3))+1)]
    if re.fullmatch(r'[vas]\d+', tok): return [tok]
    if tok in ('vcc', 'exec', 'm0'): return [tok]
    if tok in ('vcc_lo', 'vcc_hi'): return ['vcc']
    if tok in ('exec_lo', 'exec_hi'): return ['exec']
    return []

TRANS = ('v_exp_f32', 'v_log_f32', 'v_rcp_f32', 'v_rsq_f32', 'v_sqrt_f32', 'v_sin_f32', 'v_cos_f32')

class Ins:
    __slots__ = ('text', 'op', 'kind', 'rd', 'wr', 'ws', 'passes', 'srcC', 'srcAB', 'sdata', 'dpp', 'wide')
    def __init__(self, text):
        self.text = text
        t = text.split(';')[0].strip()
        parts = t.split(None, 1)
        op = parts[0]; self.op = op
        ops = []
        if len(parts) > 1:
            ops = [x.strip() for x in parts[1].split(',')]
        mods = ''
        if ops:
            last = ops[-1].split(None, 1)
            if len(last) > 1: ops[-1] = last[0]; mods = last[1]
        self.rd = []; self.wr = []; self.ws = 1; self.passes = 0; self.srcC = []; self.srcAB = []; self.sdata = []
        self.dpp = ('_dpp' in op) or ('row_' in mods) or ('quad_perm' in mods)
        self.wide = False
        E = expand
        base = re.sub(r'_(e32|e64|dpp|sdwa)$', '', op)
        if op.startswith('v_mfma'):
            self.kind = 'mfma'; self.passes = 8 if '32x32' in op else 4
            self.wr = E(ops[0]); self.srcAB = E(ops[1]) + E(ops[2]); self.srcC = E(ops[3]); self.rd = self.srcAB + self.srcC
        elif op.startswith('v_cmp'):
            self.kind = 'valu'; self.wr = E(ops[0]); self.rd = sum((E(o) for o in ops[1:]), [])
            if op.startswith('v_cmpx'): self.wr = self.wr + ['exec']
        elif base in ('v_readfirstlane_b32', 'v_readlane_b32'):
            self.kind = 'valu'; self.wr = E(ops[0]); self.rd = sum((E(o) for o in ops[1:]), [])
        elif base.startswith('v_permlane'):
            self.kind = 'valu'; self.wr = E(ops[0]) + E(ops[1]); self.rd = list(self.wr)
        elif base in ('v_add_co_u32', 'v_sub_co_u32', 'v_addc_co_u32', 'v_subb_co_u32'):
            self.kind = 'valu'; self.wr = E(ops[0]) + E(ops[1]); self.rd = sum((E(o) for o in ops[2:]), [])
        elif op.startswith('v_'):
            self.kind = 'trans' if base in TRANS else 'valu'
            self.wr = E(ops[0]); self.rd = sum((E(o) for o in ops[1:]), [])
            if base in ('v_fmac_f32', 'v_dot2c_f32_bf16', 'v_pk_fmac_f16', 'v_writelane_b32') or self.dpp: self.rd = self.rd + self.wr
            if op == 'v_nop': self.wr = []; self.rd = []
        elif op.startswith('ds_read'):
            self.kind = 'dsr'; self.wr = E(ops[0]); self.rd = E(ops[1])
        elif op.startswith('ds_write'):
            self.kind = 'dsw'; self.rd = sum((E(o) for o in ops), []); self.sdata = sum((E(o) for o in ops[1:]), [])
        elif op.startswith('buffer_load'):
            if re.search(r'\blds\b', mods):
                self.kind = 'dma'; self.rd = sum((E(o) for o in ops), []) + ['m0']
            else:
                self.kind = 'vload'; self.wr = E(ops[0]); self.rd = sum((E(o) for o in ops[1:]), [])
        elif op.startswith('buffer_store'):
            self.kind = 'vstore'; self.rd = sum((E(o) for o in ops), []); self.sdata = E(ops[0]); self.wide = len(self.sdata) > 2
        elif op.startswith('global_load'):
            self.kind = 'vload'; self.wr = E(ops[0]); self.rd = sum((E(o) for o in ops[1:]), [])
        elif op.startswith('global_store'):
            self.kind = 'vstore'; self.rd = sum((E(o) for o in ops), []); self.sdata = E(ops[1]); self.wide = len(self.sdata) > 2
        elif op.startswith('s_load') or op in ('s_memtime', 's_memrealtime'):
            self.kind = 'smem'; self.wr = E(ops[0]); self.rd = sum((E(o) for o in ops[1:]), [])
        elif op == 's_nop':
            self.kind = 'nop'; self.ws = int(ops[0], 0) + 1
        elif op in ('s_waitcnt', 's_barrier', 's_sleep', 's_endpgm', 's_setprio') or op.startswith('s_cbranch') or op == 's_branch':
            self.kind = 'ctl'
            if op in ('s_cbranch_vccz', 's_cbranch_vccnz'): self.rd = ['vcc']
        elif op.startswith('s_cmp') or op.startswith('s_bitcmp'):
            self.kind = 'salu'; self.rd = sum((E(o) for o in ops), [])
        elif op.startswith('s_'):
            self.kind = 'salu'; self.wr = E(ops[0]); self.rd = sum((E(o) for o in ops[1:]), [])
            if 'saveexec' in op: self.wr = self.wr + ['exec']; self.rd = self.rd + ['exec']
            if op in ('s_addk_i32', 's_mulk_i32'): self.rd = self.rd + self.wr
        else:
            raise ValueError('unknown instr: ' + text)
        if base == 'v_cndmask_b32' and len(ops) == 3: self.rd = self.rd + ['vcc']

def isv(r): return r[0] in 'va' and r != 'vcc'
VALU = ('valu', 'trans')
VMEM = ('vload', 'vstore', 'dma')

def need_ws(p, c):
    n = 0
    pw = set(p.wr); cr = set(c.rd); cw = set(c.wr)
    if p.kind in VALU:
        vw = {r for r in pw if isv(r)}; sw = pw - vw
        if c.kind == 'mfma' and vw & cr: n = max(n, 2)
        if c.kind == 'mfma' and 'exec' in pw: n = max(n, 4)
        if c.kind in VALU and c.dpp and vw & cr: n = max(n, 2)
        if c.kind in VALU and c.dpp and 'exec' in pw: n = max(n, 5)
        if c.op.startswith('v_permlane') and vw & cr: n = max(n, 2)
        if c.op.startswith('v_readfirstlane') or c.op.startswith('v_readlane'):
            if vw & cr: n = max(n, 1)
            if 'exec' in pw: n = max(n, 4)
            if c.op.startswith('v_readlane') and sw & cr: n = max(n, 4)
        if c.kind in VMEM and sw & cr: n = max(n, 5)
        if c.kind in VALU and sw & cr: n = max(n, 2)
        if p.kind == 'trans' and c.kind in ('valu', 'mfma', 'dsw', 'vstore') and vw & cr: n = max(n, 1)
        if 'sdwa' in p.op and c.kind in VALU and vw & (cr | cw): n = max(n, 1)
    if p.op.startswith('v_dot') and pw & (cr | cw):
        if not (c.op == p.op and not (pw & set(c.rd[:2]))): n = max(n, 3)
    if p.kind == 'salu' and 'm0' in pw and c.kind == 'dma': n = max(n, 1)
    if p.kind == 'vstore' and p.wide:
        if set(p.sdata) & cw: n = max(n, 2 if c.kind in VALU else 1)
    if p.kind == 'mfma':
        big = {4: 8, 8: 12}[p.passes]
        if c.kind == 'mfma':
            if pw & set(c.srcAB): n = max(n, big)
            if pw & set(c.srcC):
                if not (list(p.wr) == list(c.srcC) and p.passes == c.passes): n = max(n, {4: 6, 8: 10}[p.passes])
            elif pw & cw:
                n = max(n, {4: 6, 8: 10}[p.passes])
        elif c.kind in VALU:
            if pw & (cr | cw): n = max(n, big)
            if set(p.srcC) & cw: n = max(n, {4: 3, 8: 7}[p.passes])
        elif c.kind in VMEM + ('dsr', 'dsw'):
            if pw & (cr | cw): n = max(n, big)
    return n

VOP3ONLY = ('v_fma_f32', 'v_cvt_pk_bf16_f32', 'v_lshl_add_u32', 'v_add3_u32', 'v_bfe_u32', 'v_mul_lo_u32', 'v_dot2_f32_bf16',
            'v_mad_u32_u24', 'v_or3_b32', 'v_and_or_b32', 'v_add_lshl_u32', 'v_writelane_b32', 'v_readlane_b32', 'v_med3_f32', 'v_bfi_b32', 'v_perm_b32', 'v_lshl_or_b32')
def icost(ins):
    if ins.kind == 'mfma': return 8
    if ins.kind == 'trans': return 8
    if ins.kind == 'nop': return 4*ins.ws if ins.ws < 2 else 4 + (ins.ws-1)
    if ins.kind == 'valu':
        t = ins.text
        if ins.op in VOP3ONLY or ins.dpp or '_e64' in ins.op or ', -v' in t: return 5
        m = re.search(r', (0x[0-9a-f]+|\d+),', t)
        if m:
            v = int(m.group(1), 0)
            if v > 64 and v not in (0x3f800000, 0x40000000): return 5
    return 4
def cost(item):
    if isinstance(item, str): return sum(icost(Ins(l.strip())) for l in item.split('\n') if l.strip())
    if isinstance(item, (list, tuple)): return sum(cost(x) for x in item)
    return getattr(item, 'cost', 4)

class Tok:
    def __init__(self, cls): self.cls = cls; self.done = False

class Gen:
    def __init__(self):
        self.lines = []
        self.vm = []
        self.lg = []
        self.smem = []
        self.hist = [[]]
        self.snap = {}
        self.nlab = 0
        self.stats = {}
        self.nnop = 0
        self.cyc = 0
    def state(self): return (list(self.vm), list(self.lg), list(self.smem), [list(h) for h in self.hist])
    def set_state(self, st): self.vm, self.lg, self.smem, self.hist = list(st[0]), list(st[1]), list(st[2]), [list(h) for h in st[3]]
    def raw(self, text): self.lines.append(text)
    def comment(self, text): self.lines.append('; ' + text)
    def newlabel(self, base):
        self.nlab += 1; return 'L_%s_%d' % (base, self.nlab)
    def _push(self, ins):
        self.lines.append('    ' + ins.text)
        self.cyc += icost(ins)
        self.stats[ins.kind] = self.stats.get(ins.kind, 0) + 1
        for h in self.hist:
            h.append(ins)
            if len(h) > 24: del h[0]
        if len(self.hist) > 1:
            k = min(len(h) for h in self.hist)
            if k >= 22 and all(h[-22:] == self.hist[0][-22:] for h in self.hist): self.hist = [self.hist[0]]
    def _hazard(self, ins):
        need = 0
        for h in self.hist:
            dist = 0
            for p in reversed(h):
                n = need_ws(p, ins)
                if n > dist: need = max(need, n - dist)
                dist += p.ws
                if dist >= 20: break
        while need > 0:
            k = min(need, 16)
            self._push(Ins('s_nop %d' % (k-1))); need -= k; self.nnop += 1
    def waitcnt(self, vm=None, lg=None):
        parts = []
        if vm is not None and vm < len(self.vm):
            assert vm <= 63
            parts.append('vmcnt(%d)' % vm)
            for t, _ in self.vm[:len(self.vm)-vm]: t.done = True
            self.vm = self.vm[len(self.vm)-vm:]
        if lg is not None and (lg < len(self.lg) or (lg == 0 and self.smem)):
            if self.smem: lg = 0
            lg = min(lg, 15)
            parts.append('lgkmcnt(%d)' % lg)
            for t, _ in self.lg[:len(self.lg)-lg]: t.done = True
            self.lg = self.lg[len(self.lg)-lg:] if lg else []
            if lg == 0:
                for t, _ in self.smem: t.done = True
                self.smem = []
        if parts: self._push(Ins('s_waitcnt ' + ' '.join(parts)))
    def wait(self, *toks):
        vm = None; lg = None
        for t in toks:
            if t is None: continue
            for i, (x, _) in enumerate(self.vm):
                if x is t:
                    k = len(self.vm)-1-i; vm = k if vm is None else min(vm, k)
            for i, (x, _) in enumerate(self.lg):
                if x is t:
                    k = len(self.lg)-1-i; lg = k if lg is None else min(lg, k)
            for x, _ in self.smem:
                if x is t: lg = 0
        if vm is not None and vm > 63: vm = 63
        self.waitcnt(vm, lg)
    def waitall(self): self.waitcnt(0, 0)
    def __call__(self, text):
        tok = None
        for line in text.split('\n'):
            line = line.strip()
            if not line: continue
            t = self._emit(line)
            if t is not None: tok = t
        return tok
    def _emit(self, text):
        ins = Ins(text)
        regs = set(ins.rd) | set(ins.wr)
        toks = [t for (t, d) in self.vm + self.lg + self.smem if regs & d]
        if toks: self.wait(*toks)
        if ins.kind in VMEM and len(self.vm) >= 63: self.waitcnt(vm=62)
        self._hazard(ins)
        self._push(ins)
        tok = None
        if ins.kind in VMEM:
            tok = Tok('vm'); self.vm.append((tok, set(ins.wr)))
        elif ins.kind in ('dsr', 'dsw'):
            tok = Tok('lg'); self.lg.append((tok, set(ins.wr)))
        elif ins.kind == 'smem':
            tok = Tok('sm'); self.smem.append((tok, set(ins.wr)))
        if ins.op.startswith('s_cbranch') or ins.op == 's_branch':
            lab = text.split()[1]
            self.snap.setdefault(lab, []).extend([list(h) for h in self.hist])
            if ins.op == 's_branch': self.hist = []
        return tok
    def needs_wait(self, text):
        ins = Ins(text)
        regs = set(ins.rd) | set(ins.wr)
        return any(regs & d for (t, d) in self.vm + self.lg + self.smem)
    def pending(self, toks):
        ids = [id(t) for t in toks if t is not None]
        return any(id(t) in ids for (t, d) in self.vm + self.lg + self.smem)
    def do(self, item):
        if isinstance(item, str): return self(item)
        if isinstance(item, (list, tuple)):
            r = None
            for x in item: r = self.do(x)
            return r
        return item()
    def label(self, lab):
        self.lines.append(lab + ':')
        self.hist = self.hist + self.snap.pop(lab, [])
        if not self.hist: self.hist = [[]]
    def text(self): return '\n'.join(self.lines) + '\n'

def weave(g, mains, side):
    side = sorted(enumerate(side), key=lambda x: (x[1][0], x[0]))
    j = 0
    for i, m in enumerate(mains):
        while j < len(side) and side[j][1][0] <= i:
            side[j][1][1](); j += 1
        m()
    while j < len(side):
        side[j][1][1](); j += 1

class F:
    def __init__(self, fn, cost=4): self.fn = fn; self.cost = cost
    def __call__(self): return self.fn()

class Stream:
    def __init__(self, items, start, end, paced=False, slack=16):
        self.items = list(items); self.start = start; self.end = end; self.paced = paced; self.slack = slack
        self.total = sum(cost(x) for x in self.items); self.done = 0; self.i = 0
    def flush(self, g):
        while self.i < len(self.items):
            g.do(self.items[self.i]); self.done += cost(self.items[self.i]); self.i += 1

def sched(g, mains, cap, fixed, streams=(), report=None):
    fixed = sorted(enumerate(fixed), key=lambda x: (x[1][0], x[0]))
    j = 0; over = 0
    for i, (text, tokfn) in enumerate(mains):
        t0 = g.cyc
        while j < len(fixed) and fixed[j][1][0] <= i:
            g.do(fixed[j][1][1]); j += 1
        toks = tokfn() if tokfn else []
        res = 4 if (g.pending(toks) or g.needs_wait(text)) else 0
        for st in streams:
            if i < st.start: continue
            while st.i < len(st.items):
                c = cost(st.items[st.i])
                tgt = st.total*min(1.0, (i - st.start + 1)/(st.end - st.start + 1))
                fits = g.cyc - t0 + c + res <= cap
                if st.paced and st.done + 0.5*c > tgt: break
                if not fits and not (st.done < tgt - st.slack or i >= st.end): break
                g.do(st.items[st.i]); st.i += 1; st.done += c
        g.wait(*toks)
        g(text)
        if i > 0: over += max(0, g.cyc - t0 - 8 - cap)
    while j < len(fixed):
        g.do(fixed[j][1][1]); j += 1
    for st in streams:
        while st.i < len(st.items):
            g.do(st.items[st.i]); st.i += 1
    if report: print('%s: mains %d, est. overflow %d cycles' % (report, len(mains), over))

def mix(g, ops, loads, every=72, lead=0):
    loads = list(loads); nxt = g.cyc + lead
    for o in ops:
        if loads and g.cyc >= nxt:
            g.do(loads.pop(0)); nxt = g.cyc + every - 4
        g.do(o)
    return loads
```

```python
import sys
from asmgen import Gen, weave, sched, Stream, F, mix, cost

KNAME = 'gated_mix__ssm_conv_s5__dense_activation_silu__prompt_kernel'

WS_EPOCH = 0
WS_HFLAG = 8192
WS_GATE = 65536
WS_EBUF = 131072
WS_PFLAG = 393216
WS_STAMP = 524288
WS_B2 = 1 << 20
WS_H = 5 << 20
WS_SIZE = 20 << 20
KST = 5120
MST = 88*KST

F_WR = 81920
S_BR = 65536
L_PK = 147456
L_EX = 147456

sX, sW, sWS, sP1, sP2, sPD, sOUT, sB2, sH = 4, 8, 12, 16, 20, 24, 28, 32, 36
pX, pLre, pLim, pBre, pBim, pCre, pCim, pLdt, pDsk, pBx, pW1, pW2, pGate, pOut, pDbg, pWs = range(40, 72, 2)
sWave, sRole, sC1, sJ1, sMh, sJn, sNonce, sRot = range(72, 80)
sKb = list(range(80, 90))
sItem, sMx, sMw, sWo = 90, 91, 92, 93
sPs = [94, 95, 96, 97]
sT0, sT1, sT2, sT3 = 98, 99, 100, 101
sT4 = 3
sKt = 79
sNl = 42
sKs = [40, 41, 46, 47, 48, 49, 50, 51, 52, 53, 58, 59, 60, 61, 62, 63, 66, 67, 68, 69, 70, 71]

vTid, vLane, vL16, vL16b = 0, 1, 2, 3
vT = list(range(4, 16))
vFa, vFd = 14, 15
ACC2 = 16
A2R = 96
vStamp = 255
def B2slot(i):
    if i < 4: return ('a', 160 + 20*i)
    if i < 8: return ('v', 160 + 20*(i-4))
    return ('a', 20*(i-8))
aPK = 240

def R(kind, base, n):
    return '%s%d' % (kind, base) if n == 1 else '%s[%d:%d]' % (kind, base, base+n-1)
def V(b, n=1): return R('v', b, n)
def A(b, n=1): return R('a', b, n)
def S(b, n=1): return R('s', b, n)

LOG2E = 0x3fb8aa3b
NLOG2E = 0xbfb8aa3b
INV2PI = 0x3e22f983

class K:
    def __init__(self, cfg):
        self.cfg = cfg
        self.g = Gen()
        self.tail = []
        self.rep = cfg.get('report')

    def stamp(self, idx, op='s_memrealtime', lvl=1):
        if self.cfg.get('stamps', 0) < lvl: return
        g = self.g
        if self.cfg.get('cyc'): op = 's_memtime'
        g(op + ' vcc'); g.waitcnt(lg=0)
        g('v_writelane_b32 %s, vcc_lo, %d' % (V(vStamp), idx))

    def srd_ptr(self, d, ptr): return ['s_mov_b32 %s, %s' % (S(d), S(ptr)), 's_mov_b32 %s, %s' % (S(d+1), S(ptr+1))]
    def srd_cst(self, d, nrec): return ['s_mov_b32 %s, 0x%x' % (S(d+2), nrec), 's_mov_b32 %s, 0x20000' % S(d+3)]

    def poll(self, name, issue, check):
        g = self.g
        lr, lo = g.newlabel(name + '_retry'), g.newlabel(name + '_ok')
        check()
        g('s_cbranch_scc0 %s' % lr)
        g.label(lo)
        def retry():
            g.vm, g.lg, g.smem = [], [], []
            g.label(lr)
            g('s_mov_b32 %s, 0x%x' % (S(sT4), self.cfg.get('spin', 1 << 18)))
            ll = g.newlabel(name + '_loop')
            g.label(ll)
            g('s_sub_u32 %s, %s, 1' % (S(sT4), S(sT4)))
            g('s_cmp_eq_u32 %s, 0' % S(sT4))
            g('s_nop 7')
            g('s_cbranch_scc1 %s' % lo)
            g('s_waitcnt vmcnt(0) lgkmcnt(0)')
            issue()
            g.waitall()
            check()
            g('s_nop 7')
            g('s_cbranch_scc1 %s' % lo)
            g('s_branch %s' % ll)
        self.tail.append(retry)

    def check_eq(self, regs, t0=None, t1=None):
        g = self.g
        def f():
            if len(regs) == 1:
                g('v_cmp_ne_u32 vcc, %s, %s' % (S(sNonce), V(regs[0])))
            else:
                g('v_xor_b32 %s, %s, %s' % (V(t0), S(sNonce), V(regs[0])))
                for r in regs[1:]:
                    g('v_xor_b32 %s, %s, %s' % (V(t1), S(sNonce), V(r)))
                    g('v_or_b32 %s, %s, %s' % (V(t0), V(t0), V(t1)))
                g('v_cmp_ne_u32 vcc, 0, %s' % V(t0))
            g('s_nop 0')
            g('s_cmp_eq_u64 vcc, 0')
        return f

    def b2_loads(self, step, slot):
        kind, base = B2slot(slot)
        sc = ' sc1' if self.cfg.get('sc1', 1) else ''
        out = []
        for nt in range(5):
            va, off = (vL16, nt*1024) if nt < 4 else (vL16b, 0)
            out.append('buffer_load_dwordx4 %s, %s, %s, %s offen offset:%d%s' % (R(kind, base+4*nt, 4), V(va), S(sB2, 4), S(sKs[step]), off, sc))
        return out

    def ks_table(self):
        o = []
        a, b = sKs[11], sKs[21]
        four, eight = (sMh, sJn) if self.cfg.get('map2', 0) == 0 else (sJn, sMh)
        o += ['s_and_b32 %s, %s, 3' % (S(sKt), S(four)), 's_mul_i32 %s, %s, 3' % (S(sKt), S(sKt)),
              's_and_b32 %s, %s, 7' % (S(a), S(eight)), 's_add_u32 %s, %s, %s' % (S(sKt), S(sKt), S(a)),
              's_sub_u32 %s, %s, 12' % (S(a), S(sKt)), 's_min_u32 %s, %s, %s' % (S(a), S(a), S(sKt)),
              's_sub_u32 %s, %s, 10' % (S(b), S(sKt)), 's_min_u32 %s, %s, %s' % (S(b), S(b), S(sKt)),
              's_mul_i32 %s, %s, %d' % (S(a), S(a), KST), 's_mul_i32 %s, %s, %d' % (S(b), S(b), KST)]
        for n in range(22):
            r, k, mod = (a, n, 12) if n < 12 else (b, n-12, 10)
            if k == 0: o.append('s_mov_b32 %s, %s' % (S(sKs[n]), S(r)))
            else:
                o += ['s_sub_u32 %s, %s, %d' % (S(sKt), S(r), (mod-k)*KST), 's_add_u32 %s, %s, %d' % (S(sKs[n]), S(r), k*KST),
                      's_min_u32 %s, %s, %s' % (S(sKs[n]), S(sKs[n]), S(sKt))]
        o.append('s_mul_i32 %s, %s, %d' % (S(sKt), S(sWave), 12*KST))
        for n in range(12): o.append('s_add_u32 %s, %s, %s' % (S(sKs[n]), S(sKs[n]), S(sKt)))
        o += ['s_mul_i32 %s, %s, %d' % (S(sKt), S(sWave), 10*KST), 's_add_u32 %s, %s, %d' % (S(sKt), S(sKt), 48*KST)]
        for n in range(12, 22): o.append('s_add_u32 %s, %s, %s' % (S(sKs[n]), S(sKs[n]), S(sKt)))
        return o

    def late_setup(self, t0, t1, vPp):
        o = ['s_mul_i32 %s, %s, 1664525' % (S(sNonce), S(sNonce)), 's_add_u32 %s, %s, 1013904223' % (S(sNonce), S(sNonce))]
        o += self.srd_ptr(sOUT, pOut) + self.srd_cst(sOUT, 2048*2560)
        for d, idx, base in ((sB2, sJn, WS_B2), (sH, sMh, WS_H)):
            o += ['s_mul_i32 %s, %s, %d' % (S(sKt), S(idx), MST), 's_add_u32 %s, %s, 0x%x' % (S(sKt), S(sKt), base),
                  ['s_add_u32 %s, %s, %s' % (S(d), S(pWs), S(sKt)), 's_addc_u32 %s, %s, 0' % (S(d+1), S(pWs+1))]]
            o += self.srd_cst(d, MST)
        o += ['s_mul_i32 %s, %s, 5' % (S(sKt), S(sJn)), 's_lshr_b32 %s, %s, 2' % (S(sKt), S(sKt)),
              'v_lshrrev_b32 %s, 1, %s' % (V(t0), V(vLane)), 'v_mul_u32_u24 %s, 10, %s' % (V(t0), V(t0)),
              'v_and_b32 %s, 1, %s' % (V(t1), V(vLane)), 'v_add3_u32 %s, %s, %s, %s' % (V(t0), V(t0), V(t1), S(sKt)),
              's_mul_i32 %s, %s, 120' % (S(sKt), S(sWave)), 'v_add_u32 %s, %s, %s' % (V(t0), S(sKt), V(t0)),
              'v_subrev_u32 %s, 24, %s' % (V(t1), V(vLane)), 'v_min_u32 %s, 14, %s' % (V(t1), V(t1)),
              'v_mul_u32_u24 %s, 11, %s' % (V(vPp), V(t1)), 'v_lshrrev_b32 %s, 5, %s' % (V(vPp), V(vPp)),
              'v_mul_u32_u24 %s, 7, %s' % (V(vPp), V(vPp)),
              's_mul_i32 %s, %s, 50' % (S(sKt), S(sJn)), 'v_add3_u32 %s, %s, %s, %s' % (V(t1), V(t1), V(vPp), S(sKt)),
              's_mul_i32 %s, %s, 10' % (S(sKt), S(sWave)), 's_lshr_b32 %s, %s, 2' % (S(sKt), S(sKt)),
              's_add_u32 %s, %s, 480' % (S(sKt), S(sKt)), 'v_add_u32 %s, %s, %s' % (V(t1), S(sKt), V(t1)),
              ['v_cmp_gt_u32 vcc, 24, %s' % V(vLane), 'v_cndmask_b32 %s, %s, %s, vcc' % (V(t0), V(t1), V(t0))],
              'v_and_b32 %s, 255, %s' % (V(t1), V(t0)), 'v_lshrrev_b32 %s, 8, %s' % (V(t0), V(t0)),
              'v_lshlrev_b32 %s, 7, %s' % (V(t1), V(t1)), 'v_lshl_add_u32 %s, %s, 2, %s' % (V(vPp), V(t0), V(t1)),
              'v_add_u32 %s, %d, %s' % (V(vPp), WS_PFLAG, V(vPp)),
              's_lshl_b32 %s, s2, 5' % S(sKt), 's_add_u32 %s, %s, %s' % (S(sKt), S(sKt), S(sWave)),
              's_lshl_b32 %s, %s, 2' % (S(sKt), S(sKt)), 's_add_u32 %s, %s, %d' % (S(sKt), S(sKt), WS_PFLAG),
              'v_mov_b32 %s, %s' % (V(vFa), S(sKt)), 'v_mov_b32 %s, %s' % (V(vFd), S(sNonce))]
        return o

    def hbase(self, kmul, extra):
        return ['s_lshl_b32 %s, %s, 1' % (S(sKt), S(sC1)), 's_lshr_b32 %s, %s, 1' % (S(sT3), S(sWave)),
                's_add_u32 %s, %s, %s' % (S(sKt), S(sKt), S(sT3)), 's_mul_i32 %s, %s, %d' % (S(sKt), S(sKt), MST),
                's_and_b32 %s, %s, 1' % (S(sT3), S(sWave)), 's_lshl_b32 %s, %s, 11' % (S(sT3), S(sT3)),
                's_add_u32 %s, %s, %s' % (S(sKt), S(sKt), S(sT3)), 's_mul_i32 %s, %s, %d' % (S(sT3), S(sJ1), kmul*KST),
                's_add_u32 %s, %s, %s' % (S(sKt), S(sKt), S(sT3)), 's_add_u32 %s, %s, 0x%x' % (S(sKt), S(sKt), WS_H + extra)]

    def hflag_addr(self):
        return ['s_lshl_b32 %s, %s, 1' % (S(sKt), S(sC1)), 's_add_u32 %s, %s, %s' % (S(sKt), S(sKt), S(sRole)),
                's_lshl_b32 %s, %s, 3' % (S(sKt), S(sKt)), 's_add_u32 %s, %s, %s' % (S(sKt), S(sKt), S(sJ1)),
                's_lshl_b32 %s, %s, 5' % (S(sKt), S(sKt)), 's_add_u32 %s, %s, %s' % (S(sKt), S(sKt), S(sWave)),
                's_lshl_b32 %s, %s, 2' % (S(sKt), S(sKt)), 's_add_u32 %s, %s, %d' % (S(sKt), S(sKt), WS_HFLAG),
                'v_mov_b32 %s, %s' % (V(vFa), S(sKt))]

    def flag_store(self, tok, srd):
        self.g.wait(tok)
        self.g('buffer_store_dword %s, %s, %s, 0 offen sc1' % (V(vFd), V(vFa), S(srd, 4)))

    def prologue(self):
        g = self.g
        g('s_cmp_ge_u32 s2, 256')
        g('s_cbranch_scc1 L_exit')
        g('s_load_dwordx16 s[40:55], s[0:1], 0')
        g('s_load_dwordx16 s[56:71], s[0:1], 64')
        g('v_lshrrev_b32 %s, 6, v0' % V(vT[0]))
        g('v_and_b32 %s, 63, v0' % V(vLane))
        g('v_readfirstlane_b32 %s, %s' % (S(sWave), V(vT[0])))
        g('v_lshlrev_b32 %s, 4, %s' % (V(vL16), V(vLane)))
        g('s_lshr_b32 %s, s2, 3' % S(sT1))
        if self.cfg.get('preload', 1):
            g.raw('    s_getpc_b64 s[28:29]\nL_pc:')
            g('s_lshl_b32 %s, %s, 2' % (S(sT0), S(sT1)))
            g('s_add_u32 %s, %s, %s' % (S(sT0), S(sT0), S(sWave)))
            g('s_and_b32 %s, %s, 63' % (S(sT0), S(sT0)))
            g.raw('    s_min_u32 %s, %s, ((L_codeend-L_pc)>>10)-1' % (S(sT0), S(sT0)))
            g('s_lshl_b32 %s, %s, 10' % (S(sT0), S(sT0)))
            g('s_add_u32 s28, s28, %s' % S(sT0))
            g('s_addc_u32 s29, s29, 0')
            g('global_load_dwordx4 v[244:247], %s, s[28:29]' % V(vL16))
        if self.cfg.get('stamps'):
            g('v_mov_b32 %s, 0' % V(vStamp))
        g('v_add_u32 %s, 0x1000, %s' % (V(vL16b), V(vL16)))
        g('s_and_b32 %s, s2, 7' % S(sT0))
        g('s_and_b32 %s, %s, 3' % (S(sT2), S(sT1)))
        g('s_lshr_b32 %s, %s, 2' % (S(sRot), S(sT1)))
        if self.cfg.get('map2', 0) == 0:
            g('s_mov_b32 %s, %s' % (S(sJn), S(sRot)))
            g('s_lshl_b32 %s, %s, 2' % (S(sMh), S(sT0)))
            g('s_add_u32 %s, %s, %s' % (S(sMh), S(sMh), S(sT2)))
        else:
            g('s_and_b32 %s, %s, 1' % (S(sJn), S(sT0)))
            g('s_lshl_b32 %s, %s, 2' % (S(sJn), S(sJn)))
            g('s_add_u32 %s, %s, %s' % (S(sJn), S(sJn), S(sT2)))
            g('s_and_b32 %s, %s, 6' % (S(sMh), S(sT0)))
            g('s_lshl_b32 %s, %s, 2' % (S(sMh), S(sMh)))
            g('s_add_u32 %s, %s, %s' % (S(sMh), S(sMh), S(sRot)))
        if self.cfg.get('map1', 0) == 0:
            g('s_lshr_b32 %s, %s, 1' % (S(sT3), S(sT0)))
            g('s_lshl_b32 %s, %s, 2' % (S(sC1), S(sT3)))
            g('s_add_u32 %s, %s, %s' % (S(sC1), S(sC1), S(sT2)))
            g('s_lshr_b32 %s, %s, 2' % (S(sRole), S(sRot)))
            g('s_and_b32 %s, %s, 1' % (S(sT0), S(sT0)))
            g('s_and_b32 %s, %s, 3' % (S(sJ1), S(sRot)))
            g('s_lshl_b32 %s, %s, 2' % (S(sT1), S(sT0)))
            g('s_add_u32 %s, %s, %s' % (S(sJ1), S(sJ1), S(sT1)))
        else:
            g('s_lshr_b32 %s, %s, 1' % (S(sT3), S(sT0)))
            g('s_and_b32 %s, %s, 1' % (S(sT0), S(sT0)))
            g('s_lshl_b32 %s, %s, 3' % (S(sC1), S(sT0)))
            g('s_add_u32 %s, %s, %s' % (S(sC1), S(sC1), S(sRot)))
            g('s_lshr_b32 %s, %s, 1' % (S(sRole), S(sT2)))
            g('s_and_b32 %s, %s, 1' % (S(sJ1), S(sT2)))
            g('s_lshl_b32 %s, %s, 1' % (S(sT1), S(sT3)))
            g('s_add_u32 %s, %s, %s' % (S(sJ1), S(sJ1), S(sT1)))
        g('s_mul_i32 %s, %s, 3' % (S(sT2), S(sT2)))
        g('s_mul_i32 %s, %s, 5' % (S(sT0), S(sT0)))
        g('s_add_u32 %s, %s, %s' % (S(sRot), S(sRot), S(sT2)))
        g('s_add_u32 %s, %s, %s' % (S(sRot), S(sRot), S(sT0)))
        g('s_add_u32 %s, %s, %s' % (S(sRot), S(sRot), S(sT3)))
        if self.cfg.get('norot'): g('s_mov_b32 %s, 0' % S(sRot))
        for k in range(2):
            g('s_sub_u32 %s, %s, 10' % (S(sT0), S(sRot)))
            g('s_min_u32 %s, %s, %s' % (S(sRot), S(sRot), S(sT0)))
        g('s_lshl_b32 %s, %s, 7' % (S(sKb[0]), S(sRot)))
        g('v_lshrrev_b32 %s, 3, %s' % (V(vT[0]), V(vLane)))
        g('v_and_b32 %s, 7, %s' % (V(vT[1]), V(vLane)))
        g('v_lshrrev_b32 %s, 4, %s' % (V(vT[2]), V(vLane)))
        g.do(self.srd_cst(sX, 2048*1280))
        g.do(self.srd_cst(sWS, WS_SIZE))
        g('s_cmp_eq_u32 %s, 0' % S(sRole))
        g('s_cbranch_scc1 L_ssm')

    def kb(self, s):
        return ['s_sub_u32 %s, %s, %d' % (S(sT0), S(sKb[0]), 128*(10-s)), 's_add_u32 %s, %s, %d' % (S(sKb[s]), S(sKb[0]), 128*s),
                's_min_u32 %s, %s, %s' % (S(sKb[s]), S(sKb[s]), S(sT0))]

    def ptrs_ready(self):
        g = self.g
        g.waitcnt(lg=0)
        self.stamp(0)
        self.stamp(30, 's_memtime')
        g.do(self.srd_ptr(sX, pX))

    def pack_issue(self, vPr, vPs):
        g = self.g
        lc, lj = g.newlabel('pack_c'), g.newlabel('pack_j')
        g('s_lshl_b32 %s, %s, 8' % (S(sItem), S(sWave)))
        g('s_add_u32 %s, %s, s2' % (S(sItem), S(sItem)))
        g.do(self.srd_ptr(sPD, pWs))
        g('s_cmp_lt_u32 %s, 880' % S(sItem))
        g('s_cselect_b32 %s, 0x%x, 0' % (S(sPD+2), WS_SIZE))
        g('s_cselect_b32 %s, 819200, 0' % S(sP2+2))
        g('s_mov_b32 %s, 0x20000' % S(sPD+3))
        g('s_mov_b32 %s, 0x20000' % S(sP1+3))
        g('s_mov_b32 %s, 0x20000' % S(sP2+3))
        g.do(self.srd_ptr(sP2, pCim))
        g('s_cmp_lt_u32 %s, 480' % S(sItem))
        g('s_cbranch_scc0 %s' % lc)
        st0 = g.state()
        g.do(self.srd_ptr(sP1, pW2))
        g('s_mov_b32 %s, %d' % (S(sP1+2), 1536*1280))
        g('s_mul_i32 %s, %s, 6554' % (S(sT0), S(sItem)))
        g('s_lshr_b32 %s, %s, 16' % (S(sT0), S(sT0)))
        g('s_mul_i32 %s, %s, 10' % (S(sT1), S(sT0)))
        g('s_sub_u32 %s, %s, %s' % (S(sT1), S(sItem), S(sT1)))
        g('s_lshl_b32 %s, %s, 12' % (S(sT2), S(sWave)))
        g('s_add_u32 m0, %s, %d' % (S(sT2), L_PK))
        g('v_lshrrev_b32 %s, 3, %s' % (V(vT[4]), V(vLane)))
        g('v_and_b32 %s, 7, %s' % (V(vT[5]), V(vLane)))
        g('v_mul_u32_u24 %s, 1280, %s' % (V(vT[4]), V(vT[4])))
        g('v_lshl_add_u32 %s, %s, 4, %s' % (V(vT[4]), V(vT[5]), V(vT[4])))
        g('s_mul_i32 %s, %s, 40960' % (S(sT2), S(sT0)))
        g('s_lshl_b32 %s, %s, 7' % (S(sT3), S(sT1)))
        g('s_add_u32 %s, %s, %s' % (S(sT2), S(sT2), S(sT3)))
        for q in range(4):
            g('buffer_load_dwordx4 %s, %s, %s offen offset:%d lds' % (V(vT[4]), S(sP1, 4), S(sT2), 1024*q))
            if q < 3: g('s_add_u32 %s, %s, 9216' % (S(sT2), S(sT2)))
        g('s_mul_i32 %s, %s, 5' % (S(sT0), S(sT0)))
        g('s_lshl_b32 %s, %s, 2' % (S(sT1), S(sT1)))
        for i in range(4):
            g('s_add_u32 %s, %s, %d' % (S(sT2), S(sT1), i))
            g('s_mul_i32 %s, %s, 52' % (S(sT3), S(sT2)))
            g('s_lshr_b32 %s, %s, 8' % (S(sT3), S(sT3)))
            g('s_mul_i32 %s, %s, 435' % (S(sT3), S(sT3)))
            g('s_add_u32 %s, %s, %s' % (S(sT2), S(sT2), S(sT3)))
            g('s_add_u32 %s, %s, %s' % (S(sT2), S(sT2), S(sT0)))
            g('s_lshl_b32 %s, %s, 10' % (S(sT2), S(sT2)))
            g('s_add_u32 %s, %s, 0x%x' % (S(sPs[i]), S(sT2), WS_B2))
        g('v_mov_b32 %s, %s' % (V(vPs), V(vL16)))
        g('v_bfe_u32 %s, %s, 4, 1' % (V(vT[4]), V(vLane)))
        g('v_lshlrev_b32 %s, 11, %s' % (V(vT[4]), V(vT[4])))
        g('v_lshrrev_b32 %s, 5, %s' % (V(vT[5]), V(vLane)))
        g('v_lshl_add_u32 %s, %s, 9, %s' % (V(vT[4]), V(vT[5]), V(vT[4])))
        g('v_bfe_u32 %s, %s, 2, 2' % (V(vT[5]), V(vLane)))
        g('v_lshl_add_u32 %s, %s, 7, %s' % (V(vT[4]), V(vT[5]), V(vT[4])))
        g('v_and_b32 %s, 3, %s' % (V(vT[5]), V(vLane)))
        g('v_lshl_add_u32 %s, %s, 3, %s' % (V(vT[4]), V(vT[5]), V(vT[4])))
        g('s_lshl_b32 %s, %s, 12' % (S(sT2), S(sWave)))
        g('s_add_u32 %s, %s, %d' % (S(sT2), S(sT2), L_PK))
        g('v_add_u32 %s, %s, %s' % (V(vPr), S(sT2), V(vT[4])))
        g('s_branch %s' % lj)
        g.vm, g.lg, g.smem = list(st0[0]), list(st0[1]), list(st0[2])
        g.label(lc)
        g.do(self.srd_ptr(sP1, pCre))
        g('s_mov_b32 %s, %s' % (S(sP1+2), S(sP2+2)))
        g('s_sub_u32 %s, %s, 480' % (S(sT1), S(sItem)))
        g('s_mul_i32 %s, %s, 6554' % (S(sT0), S(sT1)))
        g('s_lshr_b32 %s, %s, 16' % (S(sT0), S(sT0)))
        g('s_mul_i32 %s, %s, 10' % (S(sT2), S(sT0)))
        g('s_sub_u32 %s, %s, %s' % (S(sT1), S(sT1), S(sT2)))
        g('v_and_b32 %s, 15, %s' % (V(vT[4]), V(vLane)))
        g('v_mul_u32_u24 %s, 1280, %s' % (V(vT[5]), V(vT[4])))
        g('v_lshrrev_b32 %s, 4, %s' % (V(vT[6]), V(vLane)))
        g('v_lshl_add_u32 %s, %s, 4, %s' % (V(vT[5]), V(vT[6]), V(vT[5])))
        g('s_mul_i32 %s, %s, 20480' % (S(sT2), S(sT0)))
        g('s_lshl_b32 %s, %s, 7' % (S(sT3), S(sT1)))
        g('s_add_u32 %s, %s, %s' % (S(sT2), S(sT2), S(sT3)))
        for hf in range(2):
            for part in range(2):
                self.tPack = g('buffer_load_dwordx4 %s, %s, %s, %s offen offset:%d' % (A(aPK+4*(2*hf+part), 4), V(vT[5]), S(sP1 if part == 0 else sP2, 4), S(sT2), 64*hf))
        g('v_lshlrev_b32 %s, 4, %s' % (V(vT[4]), V(vT[4])))
        g('v_and_b32 %s, 1, %s' % (V(vT[6]), V(vT[6])))
        g('v_lshl_add_u32 %s, %s, 8, %s' % (V(vT[4]), V(vT[6]), V(vT[4])))
        g('v_lshrrev_b32 %s, 5, %s' % (V(vT[6]), V(vLane)))
        g('v_mul_u32_u24 %s, 5120, %s' % (V(vT[6]), V(vT[6])))
        g('v_add_u32 %s, %s, %s' % (V(vPs), V(vT[4]), V(vT[6])))
        g('s_mul_i32 %s, %s, 52' % (S(sT3), S(sT0)))
        g('s_lshr_b32 %s, %s, 8' % (S(sT3), S(sT3)))
        g('s_mul_i32 %s, %s, 435' % (S(sT3), S(sT3)))
        g('s_add_u32 %s, %s, %s' % (S(sT0), S(sT0), S(sT3)))
        g('s_mul_i32 %s, %s, 20' % (S(sT1), S(sT1)))
        g('s_add_u32 %s, %s, %s' % (S(sT0), S(sT0), S(sT1)))
        g('s_lshl_b32 %s, %s, 10' % (S(sT0), S(sT0)))
        for hf in range(2):
            for part in range(2):
                g('s_add_u32 %s, %s, 0x%x' % (S(sPs[2*hf+part]), S(sT0), WS_B2 + 5*(48+2*hf)*1024 + 512*part))
        g('v_mov_b32 %s, 0' % V(vPr))
        g.label(lj)

    def pack_store(self, vPr, vPs):
        g = self.g
        ls = g.newlabel('pack_st')
        g.wait(self.tPack)
        g('s_cmp_lt_u32 %s, 480' % S(sItem))
        g('s_cbranch_scc0 %s' % ls)
        st = g.state()
        for i in range(4):
            for e in range(2):
                g('ds_read_b64_tr_b16 %s, %s offset:%d' % (A(aPK+4*i+2*e, 2), V(vPr), e*1024 + i*32))
        g.waitcnt(lg=0)
        g.vm, g.lg, g.smem = list(st[0]), list(st[1]), list(st[2])
        g.label(ls)
        for i in range(4):
            self.tPackSt = g('buffer_store_dwordx4 %s, %s, %s, %s offen sc1' % (A(aPK+4*i, 4), V(vPs), S(sPD, 4), S(sPs[i])))

    def pack_poll_issue(self, vPp, vD):
        self.g('buffer_load_dword %s, %s, %s, 0 offen sc1' % (V(vD), V(vPp), S(sWS, 4)))
    def pack_poll_check(self, vPp, vD):
        if self.cfg.get('nopoll'): return
        self.poll('pk', lambda: self.pack_poll_issue(vPp, vD), self.check_eq([vD]))

    def x_dma_addr(self, vXd, perm):
        g = self.g
        g('s_lshl_b32 %s, %s, 2' % (S(sT0), S(sC1)))
        g('s_add_u32 %s, %s, %s' % (S(sT0), S(sT0), S(sWave)))
        g('s_mul_i32 %s, %s, %d' % (S(sT0), S(sT0), 32*1280))
        if perm:
            g('v_lshrrev_b32 %s, 5, %s' % (V(vT[3]), V(vLane)))
            g('v_and_b32 %s, 3, %s' % (V(vT[4]), V(vT[0])))
            g('v_lshl_add_u32 %s, %s, 3, %s' % (V(vT[3]), V(vT[3]), V(vT[4])))
            g('v_mul_u32_u24 %s, 1280, %s' % (V(vT[3]), V(vT[3])))
        else:
            g('v_mul_u32_u24 %s, 1280, %s' % (V(vT[3]), V(vT[0])))
        g('v_xor_b32 %s, %s, %s' % (V(vT[4]), V(vT[1]), V(vT[2])))
        g('v_lshlrev_b32 %s, 4, %s' % (V(vT[4]), V(vT[4])))
        g('v_xor_b32 %s, 64, %s' % (V(vT[5]), V(vT[4])))
        g('v_add3_u32 %s, %s, %s, %s' % (V(vXd[0]), V(vT[4]), V(vT[3]), S(sT0)))
        g('v_add3_u32 %s, %s, %s, %s' % (V(vT[5]), V(vT[5]), V(vT[3]), S(sT0)))
        for q in range(1, 4):
            rows = (16*(q & 1) + 4*(q >> 1)) if perm else 8*q
            g('v_add_u32 %s, %d, %s' % (V(vXd[q]), rows*1280 - 1024*q, V(vT[5] if q & 1 else vXd[0])))

    def ffn(self):
        g = self.g; cfg = self.cfg
        ACC = [16, 48]
        WF = 80; NF = 10
        EP = 120
        PKR = 128
        vXd = [144, 145, 146, 147]; vWd = [148, 149]; vXr = [150, 151, 152, 153]; vWr = [154, 155]; vHs = 156
        vPr, vPs, vPp, vPd = 157, 158, 159, 13
        LA = cfg.get('fla', 7); WE = cfg.get('fwe', 4)
        self.x_dma_addr(vXd, False)
        g('v_and_b32 %s, 1, %s' % (V(vT[3]), V(vT[2])))
        g('v_lshlrev_b32 %s, 2, %s' % (V(vT[3]), V(vT[3])))
        g('v_xor_b32 %s, %s, %s' % (V(vT[3]), V(vT[1]), V(vT[3])))
        g('v_mul_u32_u24 %s, 3072, %s' % (V(vT[4]), V(vT[0])))
        g('v_lshl_add_u32 %s, %s, 4, %s' % (V(vT[3]), V(vT[3]), V(vT[4])))
        g('s_mul_i32 %s, %s, %d' % (S(sT0), S(sWave), 16*3072))
        g('v_add_u32 %s, %s, %s' % (V(vWd[0]), S(sT0), V(vT[3])))
        g('v_add_u32 %s, %d, %s' % (V(vWd[1]), 8*3072 - 1024, V(vWd[0])))
        g('s_mul_i32 %s, %s, 20480' % (S(sMx), S(sWave)))
        g('s_lshl_b32 %s, %s, 11' % (S(sMw), S(sWave)))
        g('s_add_u32 %s, %s, %d' % (S(sMw), S(sMw), F_WR))
        g('s_mul_i32 %s, %s, 384' % (S(sWo), S(sJ1)))
        g.do(self.srd_cst(sW, 640*3072))
        for s in range(1, 10): g.do(self.kb(s))
        tokX = {}; tokW = {}
        def dma_x(s):
            def mk(q):
                def f():
                    tokX[s] = g('buffer_load_dwordx4 %s, %s, %s offen offset:%d lds' % (V(vXd[q]), S(sX, 4), S(sKb[s]), 1024*q))
                return F(f)
            return ['s_add_u32 m0, %s, %d' % (S(sMx), (s % 5)*4096)] + [mk(q) for q in range(4)]
        def dma_w(t):
            o = ['s_add_u32 m0, %s, %d' % (S(sMw), (t % 8)*8192)]
            k = sKb[t % 10]
            if t < 10: o += ['s_mul_i32 %s, %s, 1536' % (S(k), S(k)), 's_add_u32 %s, %s, %s' % (S(k), S(k), S(sWo))]
            if t in (10, 20): o += ['v_add_u32 %s, 128, %s' % (V(r), V(r)) for r in vWd]
            o.append('buffer_load_dwordx4 %s, %s, %s offen lds' % (V(vWd[0]), S(sW, 4), S(k)))
            def f():
                tokW[t] = g('buffer_load_dwordx4 %s, %s, %s offen offset:1024 lds' % (V(vWd[1]), S(sW, 4), S(k)))
            return o + [F(f)]
        self.ptrs_ready()
        g.do(self.srd_ptr(sW, pW1))
        g.do(dma_x(0) + dma_w(0))
        early = cfg.get('pk_early', 1)
        if early: self.pack_issue(vPr, vPs)
        g.do(dma_x(1) + dma_w(1))
        g.do(self.srd_ptr(sWS, pWs))
        g('s_load_dword %s, %s, 0' % (S(sNonce), S(pWs, 2)))
        g('v_and_b32 %s, 31, %s' % (V(vT[3]), V(vLane)))
        g('v_bfe_u32 %s, %s, 1, 3' % (V(vT[4]), V(vLane)))
        g('v_lshrrev_b32 %s, 5, %s' % (V(vT[7]), V(vLane)))
        g('v_xor_b32 %s, %s, %s' % (V(vT[4]), V(vT[4]), V(vT[7])))
        g('v_lshlrev_b32 %s, 4, %s' % (V(vT[4]), V(vT[4])))
        g('v_lshl_add_u32 %s, %s, 7, %s' % (V(vT[4]), V(vT[3]), V(vT[4])))
        g('v_add_u32 %s, %s, %s' % (V(vXr[0]), S(sMx), V(vT[4])))
        for ks in range(1, 4):
            g('v_xor_b32 %s, %d, %s' % (V(vXr[ks]), 32*ks, V(vXr[0])))
        g('v_bfe_u32 %s, %s, 2, 2' % (V(vT[4]), V(vLane)))
        g('v_lshl_add_u32 %s, %s, 3, %s' % (V(vT[6]), V(vT[7]), V(vT[4])))
        g('v_lshlrev_b32 %s, 7, %s' % (V(vT[6]), V(vT[6])))
        g('v_lshrrev_b32 %s, 1, %s' % (V(vT[4]), V(vT[4])))
        g('v_lshl_add_u32 %s, %s, 6, %s' % (V(vT[6]), V(vT[4]), V(vT[6])))
        g('v_bfe_u32 %s, %s, 4, 1' % (V(vT[4]), V(vLane)))
        g('v_lshl_add_u32 %s, %s, 5, %s' % (V(vT[6]), V(vT[4]), V(vT[6])))
        g('v_and_b32 %s, 3, %s' % (V(vT[4]), V(vLane)))
        g('v_lshl_add_u32 %s, %s, 3, %s' % (V(vT[6]), V(vT[4]), V(vT[6])))
        g('v_add_u32 %s, %d, %s' % (V(vWr[0]), F_WR, V(vT[6])))
        g('v_xor_b32 %s, 64, %s' % (V(vWr[1]), V(vWr[0])))
        g.do(dma_x(2) + dma_w(2))
        if not early: self.pack_issue(vPr, vPs)
        self.stamp(1)
        setup = self.late_setup(vT[0], vT[1], vPp)
        n_late = len(setup)
        setup += self.hbase(6, 0) + [
            'v_bfe_u32 %s, %s, 4, 1' % (V(vT[0]), V(vLane)), 'v_lshlrev_b32 %s, 10, %s' % (V(vT[0]), V(vT[0])),
            'v_lshl_add_u32 %s, %s, 9, %s' % (V(vT[0]), V(vT[7]), V(vT[0])), 'v_and_b32 %s, 15, %s' % (V(vT[1]), V(vLane)),
            'v_lshl_add_u32 %s, %s, 4, %s' % (V(vT[0]), V(vT[1]), V(vT[0])), 'v_add_u32 %s, %s, %s' % (V(vHs), S(sKt), V(vT[0])),
            's_mov_b32 %s, 0x%x' % (S(sNl), NLOG2E)]
        setup += self.ks_table()

        mains = []; fixed = []
        tokF = {}
        def rd_w(n, e):
            sg, ks, u = n // 8, (n % 8)//2, n % 2
            def f():
                tokF[n] = g('ds_read_b64_tr_b16 %s, %s offset:%d' % (V(WF + 4*(n % NF) + 2*e, 2), V(vWr[u]), (sg % 8)*8192 + (16*ks + 4*e)*128))
            return F(f)
        def bar(sg, both):
            def f():
                g.wait(tokX.get(sg), tokW[sg+1 if both else sg])
                g('s_barrier')
                if sg == 0: self.stamp(2)
                if sg == 10: self.stamp(3)
                if sg == 20: self.stamp(4)
                if sg in (3, 5, 7, 12, 16, 26): self.stamp(20 + (3, 5, 7, 12, 16, 26).index(sg), lvl=2)
            return F(f, 8)
        for n in range(240):
            sg, ks, u = n // 8, (n % 8)//2, n % 2
            grp, s = sg // 10, sg % 10
            acc = ACC[grp % 2] + 16*u
            c = '0' if (s == 0 and ks == 0) else V(acc, 16)
            mains.append(('v_mfma_f32_32x32x16_bf16 %s, %s, %s, %s' % (V(acc, 16), V(WF + 4*(n % NF), 4), A(16*s + 4*ks, 4), c),
                          (lambda n=n: [tokF[min(n+WE-1, 239)]]) if n % WE == 0 else None))
        wsched = {}
        for sg in range(7): wsched[sg] = [sg+3]
        wsched[7] = [10, 11]; wsched[8] = [12, 13]; wsched[9] = [14]
        for sg in range(10, 26, 2): wsched[sg] = [t for t in (sg+5, sg+6) if t < 30]
        endb = {}
        for sg in range(30):
            if sg >= 10 and sg % 2: continue
            p = 8*sg - LA
            fixed.append((p - 0.5, bar(sg, sg >= 10)))
            d = []
            if sg + 3 <= 9: d += dma_x(sg+3)
            for t in wsched.get(sg, []): d += dma_w(t)
            stp = 0.5 if sg < 10 else 2.0
            for i, f in enumerate(d): fixed.append((p + 0.6 + i*stp, f))
            endb[sg] = p + 0.6 + len(d)*stp
        for n in range(240):
            if n < 80 and n % 2 == 0:
                s, ks = n//8, (n % 8)//2
                fixed.append((n - LA, 'ds_read_b128 %s, %s offset:%d' % (A(16*s + 4*ks, 4), V(vXr[ks]), (s % 5)*4096)))
            fixed.append((n - LA, rd_w(n, 0))); fixed.append((n - LA, rd_w(n, 1)))
        ps, pf, pp = cfg.get('f_ps', 0), cfg.get('f_pf', 3), cfg.get('f_pp', 10)
        fixed.append((endb[ps], F(lambda: self.pack_store(vPr, vPs), 60)))
        fixed.append((endb[pf], F(lambda: self.flag_store(self.tPackSt, sPD), 8)))
        fixed.append((8*(pp-1) - LA + 0.3, F(lambda: self.pack_poll_issue(vPp, vPd))))
        fixed.append((8*pp - LA + 0.3, F(lambda: self.pack_poll_check(vPp, vPd), 20)))
        nb_in = cfg.get('f_b2in', 20)
        b2 = []
        for sl in range(16): b2 += self.b2_loads(sl, sl)
        def epi(grp):
            ops = []
            for u in range(2):
                acc = ACC[grp % 2] + 16*u
                pk = PKR + 8*u
                def stage(r, k):
                    t = V(EP + (r % 8)); a = V(acc + r)
                    return ['v_mul_f32 %s, %s, %s' % (t, S(sNl), a), 'v_exp_f32 %s, %s' % (t, t), 'v_add_f32 %s, 1.0, %s' % (t, t),
                            'v_rcp_f32 %s, %s' % (t, t), 'v_mul_f32 %s, %s, %s' % (a, a, t)][k]
                for tm in range(16 + 6):
                    for k in (4, 3, 2, 1, 0):
                        r = tm - k
                        if 0 <= r < 16: ops.append(stage(r, k))
                    r = tm - 5
                    if 0 <= r < 16 and r % 2 == 1:
                        ops.append('v_cvt_pk_bf16_f32 %s, %s, %s' % (V(pk + r//2), V(acc + r - 1), V(acc + r)))
                        if r in (7, 15):
                            e = r // 8
                            def st(e=e, pk=pk):
                                self.tH = g('buffer_store_dwordx4 %s, %s, %s, 0 offen offset:%d sc1' % (V(pk + 4*e, 4), V(vHs), S(sWS, 4), 256*e))
                            ops.append(F(st))
                ops.append('v_add_u32 %s, %d, %s' % (V(vHs), KST, V(vHs)))
            return ops
        sA = Stream(setup[:n_late], 0, min(22, endb[pf] - 2))
        fixed.append((min(23.9, endb[pf] - 0.1), F(lambda: sA.flush(g), 0)))
        streams = [sA, Stream(setup[n_late:], 24, 70),
                   Stream(b2[:nb_in], 8*pp, 236, paced=True, slack=4),
                   Stream(epi(0), 82, 158), Stream(epi(1) + self.hflag_addr(), 162, 238)]
        if cfg.get('noepi'): streams = streams[:3]
        sched(g, mains, 24, fixed, streams, report=self.rep and 'ffn')
        self.stamp(5)
        rest = mix(g, epi(2), b2[nb_in:], every=cfg.get('pace', 72))
        n2 = cfg.get('f_b2pre', 10)
        g.do(rest[:n2])
        self.flag_store(self.tH, sWS)
        self.stamp(6)
        g.do(rest[n2:])
        g('s_branch L_join')

    def cpow(self, dst, a, th, n, t0, t1):
        if n is None:
            o = ['v_exp_f32 %s, %s' % (V(t0), V(a)), 'v_rndne_f32 %s, %s' % (V(t1), V(th)), 'v_sub_f32 %s, %s, %s' % (V(t1), V(th), V(t1))]
        else:
            o = ['v_mul_f32 %s, %s, %s' % (V(t0), n, V(a)), 'v_mul_f32 %s, %s, %s' % (V(dst), n, V(th)), 'v_exp_f32 %s, %s' % (V(t0), V(t0)),
                 'v_rndne_f32 %s, %s' % (V(t1), V(dst)), 'v_sub_f32 %s, %s, %s' % (V(t1), V(dst), V(t1))]
        return o + ['v_cos_f32 %s, %s' % (V(dst), V(t1)), 'v_sin_f32 %s, %s' % (V(dst+1), V(t1)),
                    'v_mul_f32 %s, %s, %s' % (V(dst), V(t0), V(dst)), 'v_mul_f32 %s, %s, %s' % (V(dst+1), V(t0), V(dst+1))]

    def ssm(self):
        g = self.g; cfg = self.cfg
        ACC = 16
        def acc(u, part, t): return ACC + 16*u + 8*part + t
        L1 = 96
        CF = 111
        L8S = 126
        L8, L128 = 136, 240
        vXd = [140, 141, 142, 143]; vBd = [144, 145, 146, 147, 148]
        vXr = [149, 150]; vBr = [151, 152, 153, 154]
        vPidx = 155; vHs = 156
        vPr, vPs, vPp, vPd = 157, 158, 159, 13
        BIG = 160
        RAW = 160
        aBF = 0; NF = 8; aXF = 32
        LA = cfg.get('sla', 5); WE = cfg.get('swe', 2)
        g.label('L_ssm')
        self.x_dma_addr(vXd, True)
        g('s_and_b32 %s, %s, 1' % (S(sT1), S(sWave)))
        g('s_lshl_b32 %s, %s, 1' % (S(sT0), S(sJ1)))
        g('s_add_u32 %s, %s, %s' % (S(sT0), S(sT0), S(sT1)))
        g('s_mul_i32 %s, %s, %d' % (S(sT0), S(sT0), 40*1280))
        g('s_lshl_b32 %s, %s, 6' % (S(sT1), S(sT1)))
        g('v_xor_b32 %s, %s, %s' % (V(vT[4]), S(sT1), V(vT[4])))
        g('v_xor_b32 %s, 64, %s' % (V(vT[5]), V(vT[4])))
        g('v_mul_u32_u24 %s, 1280, %s' % (V(vT[3]), V(vT[0])))
        g('v_add3_u32 %s, %s, %s, %s' % (V(vBd[0]), V(vT[4]), V(vT[3]), S(sT0)))
        g('v_add3_u32 %s, %s, %s, %s' % (V(vT[5]), V(vT[5]), V(vT[3]), S(sT0)))
        for q in range(1, 5):
            g('v_add_u32 %s, %d, %s' % (V(vBd[q]), 8*q*1280 - 1024*(q & 3), V(vT[5] if q & 1 else vBd[0])))
        g('s_lshl_b32 %s, %s, 14' % (S(sMx), S(sWave)))
        g('s_mul_i32 %s, %s, 5120' % (S(sMw), S(sWave)))
        g('s_add_u32 %s, %s, %d' % (S(sMw), S(sMw), S_BR))
        g.do(self.srd_cst(sW, 819200))
        for s in range(1, 10): g.do(self.kb(s))
        tokS = {}
        def dma(s):
            o = ['s_add_u32 m0, %s, %d' % (S(sMx), (s % 4)*4096)]
            for q in range(4): o.append('buffer_load_dwordx4 %s, %s, %s offen offset:%d lds' % (V(vXd[q]), S(sX, 4), S(sKb[s]), 1024*q))
            o.append('s_add_u32 m0, %s, %d' % (S(sMw), (s % 4)*20480))
            for q in range(4): o.append('buffer_load_dwordx4 %s, %s, %s offen offset:%d lds' % (V(vBd[q]), S(sW, 4), S(sKb[s]), 1024*q))
            o.append('s_add_u32 m0, %s, %d' % (S(sMw), (s % 4)*20480 + 4096))
            def f(): tokS[s] = g('buffer_load_dwordx4 %s, %s, %s offen lds' % (V(vBd[4]), S(sW, 4), S(sKb[s])))
            return o + [F(f)]
        self.ptrs_ready()
        g('s_cmp_lt_u32 %s, 2' % S(sWave))
        g('s_cselect_b32 %s, %s, %s' % (S(sW), S(pBre), S(pBim)))
        g('s_cselect_b32 %s, %s, %s' % (S(sW+1), S(pBre+1), S(pBim+1)))
        g.do(dma(0))
        early = cfg.get('pk_early', 1)
        if early: self.pack_issue(vPr, vPs)
        g.do(self.srd_ptr(sWS, pWs))
        g('s_load_dword %s, %s, 0' % (S(sNonce), S(pWs, 2)))
        g('v_and_b32 %s, 15, %s' % (V(vT[3]), V(vLane)))
        g('v_bfe_u32 %s, %s, 1, 3' % (V(vT[4]), V(vLane)))
        g('v_xor_b32 %s, %s, %s' % (V(vT[4]), V(vT[4]), V(vT[2])))
        g('v_lshlrev_b32 %s, 4, %s' % (V(vT[4]), V(vT[4])))
        g('v_lshl_add_u32 %s, %s, 7, %s' % (V(vT[4]), V(vT[3]), V(vT[4])))
        g('v_add_u32 %s, %s, %s' % (V(vXr[0]), S(sMx), V(vT[4])))
        g('v_xor_b32 %s, 64, %s' % (V(vXr[1]), V(vXr[0])))
        g('v_add_u32 %s, %d, %s' % (V(vBr[0]), S_BR, V(vT[4])))
        g('v_xor_b32 %s, 64, %s' % (V(vBr[1]), V(vBr[0])))
        g('v_add_u32 %s, 40960, %s' % (V(vBr[2]), V(vBr[0])))
        g('v_add_u32 %s, 40960, %s' % (V(vBr[3]), V(vBr[1])))
        g('s_mul_i32 %s, %s, 160' % (S(sT0), S(sJ1)))
        g('v_lshl_add_u32 %s, %s, 1, %s' % (V(vT[3]), V(vT[3]), S(sT0)))
        g('v_min_u32 %s, 19, %s' % (V(vPidx), V(vLane)))
        g('s_mul_i32 %s, %s, 20' % (S(sT1), S(sWave)))
        g('v_add_u32 %s, %s, %s' % (V(vPidx), S(sT1), V(vPidx)))
        g('v_lshl_add_u32 %s, %s, 1, %s' % (V(vT[6]), V(vPidx), S(sT0)))
        g.do(dma(1))
        for u in range(6):
            for k, p in enumerate((pLre, pLim, pLdt)):
                g('global_load_ushort %s, %s, %s offset:%d' % (V(RAW + 3*u + k), V(vT[3] if u < 5 else vT[6]), S(p, 2), 32*u if u < 5 else 0))
        if not early: self.pack_issue(vPr, vPs)
        self.stamp(1)
        setup = self.late_setup(vT[0], vT[1], vPp)
        n_late = len(setup)
        setup += self.hbase(5, 48*KST) + ['v_add_u32 %s, %s, %s' % (V(vHs), S(sKt), V(vL16))]
        setup += self.ks_table()
        PT = BIG + 20
        par = ['s_lshl_b32 %s, %s, 2' % (S(sT2), S(sWave)), 'v_add_u32 %s, %s, %s' % (V(vT[2]), S(sT2), V(vT[2])),
               'v_lshlrev_b32 %s, 3, %s' % (V(PT), V(vT[2])), 'v_cvt_f32_u32 %s, %s' % (V(PT), V(PT)),
               'v_mul_u32_u24 %s, 640, %s' % (V(vT[2]), V(vT[2])), 'v_and_b32 %s, 15, %s' % (V(vT[3]), V(vLane)),
               'v_lshlrev_b32 %s, 3, %s' % (V(vT[3]), V(vT[3])), 'v_add_u32 %s, %d, %s' % (V(vT[3]), L_EX, V(vT[3])),
               'v_add_u32 %s, %s, %s' % (V(vT[2]), V(vT[2]), V(vT[3])),
               'v_lshlrev_b32 %s, 3, %s' % (V(vT[4]), V(vPidx)), 'v_add_u32 %s, %d, %s' % (V(vT[4]), L_EX, V(vT[4])),
               's_mul_i32 %s, %s, 20480' % (S(sT2), S(sJ1)), 's_add_u32 %s, %s, %d' % (S(sT2), S(sT2), WS_EBUF),
               'v_lshlrev_b32 %s, 4, %s' % (V(vT[5]), V(vPidx)), 'v_add_u32 %s, %s, %s' % (V(vT[5]), S(sT2), V(vT[5])),
               's_mul_i32 %s, %s, 1280' % (S(sT2), S(sC1))]
        for u in range(6):
            lr, li, ld = RAW + 3*u, RAW + 3*u + 1, RAW + 3*u + 2
            a, th, t0, t1 = PT+1, PT+2, PT+3, PT+4
            par += ['v_lshlrev_b32 %s, 16, %s' % (V(ld), V(ld)), 'v_mul_f32 %s, 0x%x, %s' % (V(ld), LOG2E, V(ld)),
                    'v_exp_f32 %s, %s' % (V(ld), V(ld)), 'v_lshlrev_b32 %s, 16, %s' % (V(lr), V(lr)),
                    'v_cvt_pk_bf16_f32 %s, %s, %s' % (V(ld), V(ld), V(ld)), 'v_lshlrev_b32 %s, 16, %s' % (V(li), V(li)),
                    'v_lshlrev_b32 %s, 16, %s' % (V(ld), V(ld)),
                    'v_mul_f32 %s, %s, %s' % (V(a), V(ld), V(lr)), 'v_mul_f32 %s, %s, %s' % (V(th), V(ld), V(li)),
                    'v_mul_f32 %s, 0x%x, %s' % (V(a), LOG2E, V(a)), 'v_mul_f32 %s, 0.15915494, %s' % (V(th), V(th))]
            if u < 5:
                l1 = L1 + 3*u; cf = CF + 3*u
                par += self.cpow(l1, a, th, None, t0, t1)
                par += self.cpow(L8S + 2*u, a, th, V(PT), t0, t1)
                par += ['v_mul_f32 %s, %s, %s' % (V(th), V(lr), V(lr)), 'v_fmac_f32 %s, %s, %s' % (V(th), V(li), V(li)),
                        'v_rcp_f32 %s, %s' % (V(th), V(th)), 'v_add_f32 %s, -1.0, %s' % (V(a), V(l1)),
                        'v_sub_f32 %s, 0, %s' % (V(l1+2), V(l1+1)),
                        'v_mul_f32 %s, %s, %s' % (V(cf), V(a), V(lr)), 'v_add_f32 %s, %s, %s' % (V(th), V(th), V(th)),
                        'v_fmac_f32 %s, %s, %s' % (V(cf), V(l1+1), V(li)), 'v_mul_f32 %s, %s, %s' % (V(cf+2), V(a), V(li)),
                        'v_fmac_f32 %s, %s, %s' % (V(cf+2), V(l1+2), V(lr)),
                        'v_mul_f32 %s, %s, %s' % (V(cf), V(cf), V(th)), 'v_mul_f32 %s, %s, %s' % (V(cf+2), V(cf+2), V(th)),
                        'v_sub_f32 %s, 0, %s' % (V(cf+1), V(cf+2))]
            else:
                par += self.cpow(L8, a, th, '0x41000000', t0, t1) + self.cpow(L128, a, th, '0x43000000', t0, t1)
                par += ['v_sub_f32 %s, 0, %s' % (V(L8+2), V(L8+1)), 'v_sub_f32 %s, 0, %s' % (V(L128+2), V(L128+1))]

        mains = []; fixed = []
        tokF = {}
        def rd_b(f_):
            sg, s, up = f_ // 20, (f_ % 20)//10, f_ % 10
            u, part = up // 2, up % 2
            def f():
                tokF[f_] = g('ds_read_b128 %s, %s offset:%d' % (A(aBF + 4*(f_ % NF), 4), V(vBr[2*((sg % 4)//2) + s]), (sg % 2)*20480 + (part*80 + 16*u)*128))
            return F(f)
        def bar(sg):
            def f():
                g.wait(tokS[sg])
                g('s_barrier')
                if sg == 0: self.stamp(2)
                if sg in (2, 4, 6, 8, 9): self.stamp(20 + (2, 4, 6, 8, 9).index(sg), lvl=2)
            return F(f, 8)
        for n in range(400):
            f_, m = n // 2, n % 2
            kk, up = f_ // 10, f_ % 10
            u, part = up // 2, up % 2
            d = acc(u, part, 4*m)
            c = '0' if kk == 0 else V(d, 4)
            mains.append(('v_mfma_f32_16x16x32_bf16 %s, %s, %s, %s' % (V(d, 4), A(aXF + 8*(kk % 2) + 4*m, 4), A(aBF + 4*(f_ % NF), 4), c),
                          (lambda f_=f_: [tokF[min(f_+WE-1, 199)]]) if (m == 0 and f_ % WE == 0) else None))
        endb = {}
        for sg in range(10):
            p = 40*sg - 2*LA
            fixed.append((p - 1.5, bar(sg)))
            if sg + 2 <= 9:
                d = dma(sg+2)
                for i, f in enumerate(d): fixed.append((p + 1 + 2*i, f))
                endb[sg] = p + 1 + 2*len(d)
        for f_ in range(200):
            if f_ % 10 == 0:
                kk = f_//10; sg, s = kk // 2, kk % 2
                for m in range(2):
                    fixed.append((2*(f_ - LA) - 1 + 0.1*m, 'ds_read_b128 %s, %s offset:%d' % (A(aXF + 8*(kk % 2) + 4*m, 4), V(vXr[s]), (sg % 4)*4096 + 2048*m)))
            fixed.append((2*(f_ - LA), rd_b(f_)))
        ps, pf = cfg.get('s_ps', 0), cfg.get('s_pf', 2)
        fixed.append((endb[ps], F(lambda: self.pack_store(vPr, vPs), 60)))
        fixed.append((40*pf - 2*LA - 1.4, F(lambda: self.flag_store(self.tPackSt, sPD), 8)))
        fixed.append((40*8, F(lambda: self.pack_poll_issue(vPp, vPd))))
        fixed.append((40*9 + 20, F(lambda: self.pack_poll_check(vPp, vPd), 20)))
        sA = Stream(setup[:n_late], 0, 40*pf - 2*LA - 4)
        fixed.append((40*pf - 2*LA - 1.45, F(lambda: sA.flush(g), 0)))
        streams = [sA, Stream(par, 40, 390), Stream(setup[n_late:] + self.hflag_addr(), 40*pf, 390)]
        sched(g, mains, 8, fixed, streams, report=self.rep and 'ssm')
        self.stamp(3)

        pace = cfg.get('pace', 72)
        b2 = []
        for sl in [0, 1, 2, 3] + list(range(8, 16)): b2 += self.b2_loads(sl, sl)
        b2v = []
        for sl in range(4, 8): b2v += self.b2_loads(sl, sl)
        E = BIG
        ops = []
        for t in range(1, 8):
            src = lambda u, part: (acc(u, part, 0) if t == 1 else E + 10*((t-1) % 2) + 2*u + part)
            dst = lambda u, part: E + 10*(t % 2) + 2*u + part
            for u in range(5):
                ops.append('v_fma_f32 %s, %s, %s, %s' % (V(dst(u, 0)), V(L1+3*u), V(src(u, 0)), V(acc(u, 0, t))))
                ops.append('v_fma_f32 %s, %s, %s, %s' % (V(dst(u, 1)), V(L1+3*u), V(src(u, 1)), V(acc(u, 1, t))))
            for u in range(5):
                ops.append('v_fmac_f32 %s, %s, %s' % (V(dst(u, 0)), V(L1+3*u+2), V(src(u, 1))))
                ops.append('v_fmac_f32 %s, %s, %s' % (V(dst(u, 1)), V(L1+3*u+1), V(src(u, 0))))
        for u in range(5): ops.append('ds_write_b64 %s, %s offset:%d' % (V(vT[2]), V(E + 10 + 2*u, 2), 128*u))
        ops.append(F(lambda: (g.waitcnt(lg=0), g('s_barrier'))))
        P = BIG + 20
        for s in range(16): ops.append('ds_read_b64 %s, %s offset:%d' % (V(P + 2*s, 2), V(vT[4]), 640*s))
        ops += ['v_mov_b32 %s, %s' % (V(P+32), S(sNonce)), 'v_mov_b32 %s, %s' % (V(P+33), S(sNonce))]
        for s in range(1, 16):
            a, b = P + 2*s, P + 2*(s-1)
            ops += ['v_fmac_f32 %s, %s, %s' % (V(a), V(L8), V(b)), 'v_fmac_f32 %s, %s, %s' % (V(a+1), V(L8), V(b+1)),
                    'v_fmac_f32 %s, %s, %s' % (V(a), V(L8+2), V(b+1)), 'v_fmac_f32 %s, %s, %s' % (V(a+1), V(L8+1), V(b))]
        ops.append('buffer_store_dwordx4 %s, %s, %s, %s offen sc1' % (V(P+30, 4), V(vT[5]), S(sWS, 4), S(sT2)))
        b2 = mix(g, ops, b2, every=pace)
        self.stamp(4)
        GX, GW = BIG + 56, BIG
        ops = ['s_lshl_b32 %s, %s, 3' % (S(sT0), S(sC1)), 's_add_u32 %s, %s, %s' % (S(sT0), S(sT0), S(sJ1)),
               's_lshl_b32 %s, %s, 4' % (S(sT0), S(sT0)),
               'v_lshrrev_b32 %s, 4, v0' % V(vT[8]), 'v_add_u32 %s, %s, %s' % (V(vT[8]), S(sT0), V(vT[8])),
               'v_and_b32 %s, 15, %s' % (V(vT[0]), V(vLane)), 'v_lshlrev_b32 %s, 4, %s' % (V(vT[0]), V(vT[0])),
               'v_mul_u32_u24 %s, 1280, %s' % (V(vT[1]), V(vT[8])), 'v_add_u32 %s, %s, %s' % (V(vT[1]), V(vT[1]), V(vT[0]))]
        for i in range(5):
            ops.append('buffer_load_dwordx4 %s, %s, %s, 0 offen offset:%d' % (V(GX + 4*i, 4), V(vT[1]), S(sX, 4), 256*i))
            ops.append('global_load_dwordx4 %s, %s, %s offset:%d' % (V(GW + 4*i, 4), V(vT[0]), S(pGate, 2), 256*i))
        ops += ['v_mov_b32 %s, 0' % V(vT[6]), 'v_mov_b32 %s, 0' % V(vT[7]), 'ds_write_b64 %s, %s' % (V(vT[4]), V(vT[6], 2))]
        for s in range(1, 16): ops.append('ds_write_b64 %s, %s offset:%d' % (V(vT[4]), V(P + 2*(s-1), 2), 640*s))
        g.do(ops)
        ops = []
        TT = 140
        for u in range(5):
            cf = CF + 3*u
            for t0 in range(0, 8, 4):
                for t in range(t0, t0+4): ops.append('v_mul_f32 %s, %s, %s' % (V(TT + t % 4), V(cf+1), V(acc(u, 0, t))))
                for t in range(t0, t0+4): ops.append('v_mul_f32 %s, %s, %s' % (V(acc(u, 0, t)), V(cf), V(acc(u, 0, t))))
                for t in range(t0, t0+4): ops.append('v_fmac_f32 %s, %s, %s' % (V(acc(u, 0, t)), V(cf+2), V(acc(u, 1, t))))
                for t in range(t0, t0+4): ops.append('v_fma_f32 %s, %s, %s, %s' % (V(acc(u, 1, t)), V(cf), V(acc(u, 1, t)), V(TT + t % 4)))
        Z = TT + 8; ONE = TT + 9
        ops += ['v_mov_b32 %s, 0' % V(Z), 'v_mov_b32 %s, 0x3f803f80' % V(ONE), 's_mov_b32 %s, 0xffff0000' % S(sT1)]
        for i in range(20):
            x, w = V(GX + i), V(GW + i)
            a, b, c, d = (V(TT + k + 4*(i % 2)) for k in range(4))
            ops += ['v_lshlrev_b32 %s, 16, %s' % (a, x), 'v_and_b32 %s, %s, %s' % (b, S(sT1), x),
                    'v_lshlrev_b32 %s, 16, %s' % (c, w), 'v_and_b32 %s, %s, %s' % (d, S(sT1), w),
                    'v_mul_f32 %s, %s, %s' % (a, a, c), 'v_mul_f32 %s, %s, %s' % (b, b, d),
                    'v_cvt_pk_bf16_f32 %s, %s, %s' % (a, a, b),
                    'v_dot2_f32_bf16 %s, %s, %s, %s' % (V(Z), a, V(ONE), V(Z))]
        for k in (8, 4, 2, 1):
            ops.append('v_add_f32_dpp %s, %s, %s row_ror:%d row_mask:0xf bank_mask:0xf' % (V(Z), V(Z), V(Z), k))
        G4 = TT + 10
        ops += ['v_cvt_pk_bf16_f32 %s, %s, %s' % (V(Z), V(Z), V(Z)), 'v_lshlrev_b32 %s, 16, %s' % (V(Z), V(Z)),
                'v_mul_f32 %s, 0x%x, %s' % (V(Z), NLOG2E, V(Z)), 'v_exp_f32 %s, %s' % (V(Z), V(Z)),
                'v_mov_b32 %s, %s' % (V(G4+2), S(sNonce)),
                'v_add_f32 %s, 1.0, %s' % (V(Z), V(Z)), 'v_rcp_f32 %s, %s' % (V(Z), V(Z)),
                'v_mov_b32 %s, %s' % (V(G4+3), S(sNonce)),
                'v_cvt_pk_bf16_f32 %s, %s, %s' % (V(Z), V(Z), V(Z)), 'v_lshlrev_b32 %s, 16, %s' % (V(Z), V(Z)),
                'v_sub_f32 %s, 1.0, %s' % (V(ONE), V(Z)), 'v_max_f32 %s, 0x21800000, %s' % (V(G4), V(Z)),
                'v_cvt_pk_bf16_f32 %s, %s, %s' % (V(ONE), V(ONE), V(ONE)), 'v_rcp_f32 %s, %s' % (V(G4+1), V(G4)),
                'v_lshlrev_b32 %s, 16, %s' % (V(ONE), V(ONE)), 'v_mul_f32 %s, %s, %s' % (V(G4+1), V(G4+1), V(ONE)),
                'v_lshlrev_b32 %s, 4, %s' % (V(vT[8]), V(vT[8])), 'v_add_u32 %s, %d, %s' % (V(vT[8]), WS_GATE, V(vT[8])),
                'buffer_store_dwordx4 %s, %s, %s, 0 offen sc1' % (V(G4, 4), V(vT[8]), S(sWS, 4))]
        b2 = mix(g, ops, b2, every=pace, lead=cfg.get('s_lead', 300))
        self.stamp(5)
        GR = BIG
        def gather():
            for d in range(1, 16):
                r = GR + 4*(d-1)
                g('s_sub_u32 %s, %s, %d' % (S(sT0), S(sT2), 1280*d))
                g('s_cselect_b32 %s, 0x7f000000, %s' % (S(sT0), S(sT0)))
                g('v_add_u32 %s, %s, %s' % (V(r), S(sT0), V(vT[5])))
                g('buffer_load_dwordx3 %s, %s, %s, 0 offen sc1' % (V(r, 3), V(r), S(sWS, 4)))
        def gcheck():
            for d in range(15, 0, -1):
                r = GR + 4*(d-1)
                g('s_cmp_ge_u32 %s, %d' % (S(sC1), d))
                g('s_cselect_b32 %s, %s, 0' % (S(sT0), S(sNonce)))
                if d == 15: g('v_xor_b32 %s, %s, %s' % (V(vT[0]), S(sT0), V(r+2)))
                else:
                    g('v_xor_b32 %s, %s, %s' % (V(vT[1]), S(sT0), V(r+2)))
                    g('v_or_b32 %s, %s, %s' % (V(vT[0]), V(vT[0]), V(vT[1])))
            g('v_cmp_ne_u32 vcc, 0, %s' % V(vT[0]))
            g('s_nop 0')
            g('s_cmp_eq_u64 vcc, 0')
        gather()
        ng = cfg.get('s_b2g', 8)
        g.do(b2[:ng]); b2 = b2[ng:]
        g('v_and_b32 %s, 15, %s' % (V(vT[6]), V(vLane)))
        g('v_mul_u32_u24 %s, 80, %s' % (V(vT[6]), V(vT[6])))
        g('v_lshrrev_b32 %s, 4, %s' % (V(vT[7]), V(vLane)))
        g('v_lshl_add_u32 %s, %s, 4, %s' % (V(vT[6]), V(vT[7]), V(vT[6])))
        g('v_add_u32 %s, %s, %s' % (V(vT[6]), S(sMx), V(vT[6])))
        g('v_bfe_u32 %s, %s, 2, 2' % (V(vT[8]), V(vLane)))
        g('v_lshl_add_u32 %s, %s, 3, %s' % (V(vT[7]), V(vT[7]), V(vT[8])))
        g('v_mul_u32_u24 %s, 80, %s' % (V(vT[7]), V(vT[7])))
        g('v_and_b32 %s, 3, %s' % (V(vT[8]), V(vLane)))
        g('v_lshl_add_u32 %s, %s, 3, %s' % (V(vT[7]), V(vT[8]), V(vT[7])))
        g('v_add_u32 %s, %s, %s' % (V(vT[7]), S(sMx), V(vT[7])))
        self.poll('carry', gather, gcheck)
        self.stamp(6)
        ops = []
        for d in range(14, 0, -1):
            a, b = GR + 4*(d-1), GR + 4*d
            ops += ['v_fmac_f32 %s, %s, %s' % (V(a), V(L128), V(b)), 'v_fmac_f32 %s, %s, %s' % (V(a+1), V(L128), V(b+1)),
                    'v_fmac_f32 %s, %s, %s' % (V(a), V(L128+2), V(b+1)), 'v_fmac_f32 %s, %s, %s' % (V(a+1), V(L128+1), V(b))]
        ops.append('ds_write_b64 %s, %s offset:10240' % (V(vT[4]), V(GR, 2)))
        ops.append(F(lambda: (g.waitcnt(lg=0), g('s_barrier'))))
        SS, PP, II = 140, 242, 126
        for u in range(5):
            ops.append('ds_read_b64 %s, %s offset:%d' % (V(SS + 2*u, 2), V(vT[3]), 10240 + 128*u))
            ops.append('ds_read_b64 %s, %s offset:%d' % (V(PP + 2*u, 2), V(vT[2]), 128*u))
        b2 = mix(g, ops, b2, every=pace) + b2v
        ops = []
        for u in range(5):
            ops += ['v_fmac_f32 %s, %s, %s' % (V(PP+2*u), V(L8S+2*u), V(SS+2*u)), 'v_fmac_f32 %s, %s, %s' % (V(PP+2*u+1), V(L8S+2*u), V(SS+2*u+1))]
        for u in range(5):
            ops += ['v_fma_f32 %s, -%s, %s, %s' % (V(PP+2*u), V(L8S+2*u+1), V(SS+2*u+1), V(PP+2*u)), 'v_fmac_f32 %s, %s, %s' % (V(PP+2*u+1), V(L8S+2*u+1), V(SS+2*u))]
        for u in range(5):
            ops += ['v_mul_f32 %s, %s, %s' % (V(II+2*u), V(CF+3*u), V(PP+2*u)), 'v_mul_f32 %s, %s, %s' % (V(II+2*u+1), V(CF+3*u), V(PP+2*u+1))]
        for u in range(5):
            ops += ['v_fmac_f32 %s, %s, %s' % (V(II+2*u), V(CF+3*u+2), V(PP+2*u+1)), 'v_fmac_f32 %s, %s, %s' % (V(II+2*u+1), V(CF+3*u+1), V(PP+2*u))]
        PKB = [112, 140]
        FRB = [148, 240]
        def scan_ops(us):
            o = []
            for t in range(8):
                pr = lambda u, part: (II + 2*u + part if t == 0 else acc(u, part, t-1))
                for u in us:
                    o.append('v_fmac_f32 %s, %s, %s' % (V(acc(u, 0, t)), V(L1+3*u), V(pr(u, 0))))
                    o.append('v_fmac_f32 %s, %s, %s' % (V(acc(u, 1, t)), V(L1+3*u), V(pr(u, 1))))
                for u in us:
                    o.append('v_fmac_f32 %s, %s, %s' % (V(acc(u, 0, t)), V(L1+3*u+2), V(pr(u, 1))))
                    o.append('v_fmac_f32 %s, %s, %s' % (V(acc(u, 1, t)), V(L1+3*u+1), V(pr(u, 0))))
            return o
        def out_a(u):
            o = []
            pk = PKB[u % 2]
            for i in range(4): o.append('v_cvt_pk_bf16_f32 %s, %s, %s' % (V(pk+i), V(acc(u, 0, 2*i)), V(acc(u, 0, 2*i+1))))
            o.append('ds_write_b128 %s, %s offset:%d' % (V(vT[6]), V(pk, 4), 2560*u))
            for i in range(4): o.append('v_cvt_pk_bf16_f32 %s, -%s, -%s' % (V(pk+4+i), V(acc(u, 1, 2*i)), V(acc(u, 1, 2*i+1))))
            o.append('ds_write_b128 %s, %s offset:%d' % (V(vT[6]), V(pk+4, 4), 2560*u + 1280))
            fr = FRB[u % 2]
            for m in range(2):
                for e in range(2):
                    o.append('ds_read_b64_tr_b16 %s, %s offset:%d' % (V(fr + 4*m + 2*e, 2), V(vT[7]), 2560*u + 320*e + 32*m))
            return o
        def out_b(u):
            fr = FRB[u % 2]
            def f():
                for m in range(2):
                    self.tH = g('buffer_store_dwordx4 %s, %s, %s, 0 offen offset:%d sc1' % (V(fr + 4*m, 4), V(vHs), S(sWS, 4), 1024*m))
                g('v_add_u32 %s, %d, %s' % (V(vHs), KST, V(vHs)))
            return F(f, 12)
        def ilv(a, b):
            o = []; k = 0
            for i, x in enumerate(a):
                o.append(x)
                while k < len(b) and k*len(a) < (i+1)*len(b): o.append(b[k]); k += 1
            return o
        ops += scan_ops([0]) + ilv(scan_ops([1]), out_a(0)) + ilv(scan_ops([2]), out_a(1) + [out_b(0)]) \
            + ilv(scan_ops([3]), out_a(2) + [out_b(1)]) + ilv(scan_ops([4]), out_a(3) + [out_b(2)]) + out_a(4) + [out_b(3), out_b(4)]
        rest = mix(g, ops, b2, every=pace)
        n2 = cfg.get('s_b2pre', 8)
        g.do(rest[:n2])
        self.flag_store(self.tH, sWS)
        self.stamp(7)
        g.do(rest[n2:])

    def phase2(self):
        g = self.g; cfg = self.cfg
        vHp, vHd, vGa = 4, 5, 6
        GG = 240
        sc = ' sc1' if cfg.get('sc1', 1) else ''
        g.label('L_join')
        g.vm, g.lg, g.smem = [], [], []
        g('s_lshr_b32 %s, %s, 1' % (S(sT0), S(sMh)))
        g('s_lshl_b32 %s, %s, 4' % (S(sT0), S(sT0)))
        g('s_lshl_b32 %s, %s, 1' % (S(sT1), S(sWave)))
        g('s_add_u32 %s, %s, %s' % (S(sT0), S(sT0), S(sT1)))
        g('s_lshl_b32 %s, %s, 7' % (S(sT0), S(sT0)))
        g('s_and_b32 %s, %s, 1' % (S(sT1), S(sMh)))
        g('s_lshl_b32 %s, %s, 3' % (S(sT1), S(sT1)))
        g('s_add_u32 %s, %s, %s' % (S(sT0), S(sT0), S(sT1)))
        g('s_add_u32 %s, %s, %d' % (S(sT0), S(sT0), WS_HFLAG))
        g('v_bfe_u32 %s, %s, 1, 1' % (V(vHp), V(vLane)))
        g('v_lshlrev_b32 %s, 7, %s' % (V(vHp), V(vHp)))
        g('v_and_b32 %s, 1, %s' % (V(vHd), V(vLane)))
        g('v_lshl_add_u32 %s, %s, 2, %s' % (V(vHp), V(vHd), V(vHp)))
        g('v_add_u32 %s, %s, %s' % (V(vHp), S(sT0), V(vHp)))
        def hp(off):
            return lambda: g('buffer_load_dword %s, %s, %s, 0 offen offset:%d sc1' % (V(vHd), V(vHp), S(sWS, 4), off))
        hp(1024)()
        lup, lupd = 'L_upd', 'L_upd_done'
        g('s_lshl_b32 %s, %s, 8' % (S(sT0), S(sWave)))
        g('s_add_u32 %s, %s, s2' % (S(sT0), S(sT0)))
        g('s_cmp_eq_u32 %s, 0' % S(sT0))
        g('s_cbranch_scc1 %s' % lup)
        g.label(lupd)
        def upd():
            g.vm, g.lg, g.smem = [], [], []
            g.label(lup)
            g('s_mov_b32 %s, 0x%x' % (S(sT4), cfg.get('spin', 1 << 18)))
            g.label('L_upd_loop')
            g('s_sub_u32 %s, %s, 1' % (S(sT4), S(sT4)))
            g('s_cmp_eq_u32 %s, 0' % S(sT4))
            g('s_cbranch_scc1 L_upd_go')
            g('v_lshlrev_b32 v8, 3, %s' % V(vL16))
            for i in range(4):
                g('s_mov_b32 %s, %d' % (S(sT0), WS_PFLAG + 8192*i))
                g('buffer_load_dword %s, v8, %s, %s offen sc1' % (V(10+i), S(sWS, 4), S(sT0)))
            g('s_waitcnt vmcnt(0)'); g.vm = []
            self.check_eq([10, 11, 12, 13], 8, 9)()
            g('s_nop 7')
            g('s_cbranch_scc0 L_upd_loop')
            g.label('L_upd_go')
            g('v_mov_b32 v8, 0')
            g('v_mov_b32 v9, %s' % S(sNonce))
            g('buffer_store_dword v9, v8, %s, 0 offen sc1' % S(sWS, 4))
            g('s_nop 7')
            g('s_branch %s' % lupd)
        self.tail.append(upd)
        g('s_barrier')
        g('s_lshl_b32 %s, %s, 10' % (S(sT0), S(sMh)))
        g('s_add_u32 %s, %s, %d' % (S(sT0), S(sT0), WS_GATE))
        g('v_and_b32 %s, 15, %s' % (V(vGa), V(vLane)))
        g('v_lshlrev_b32 %s, 4, %s' % (V(vGa), V(vGa)))
        g('v_add_u32 %s, %s, %s' % (V(vGa), S(sT0), V(vGa)))
        g('s_waitcnt vmcnt(0)'); g.vm = []
        self.poll('hf', hp(1024), self.check_eq([vHd]))
        self.stamp(8)
        def a2(n):
            return ['buffer_load_dwordx4 %s, %s, %s, %s offen offset:%d%s' % (V(A2R + 16*(n % 4) + 4*rt, 4), V(vL16), S(sH, 4), S(sKs[n]), 1024*rt, sc) for rt in range(4)]
        for n in range(3): g.do(a2(n))
        mains = []; fixed = []
        def tile(rt, nt): return ACC2 + 4*(rt*5 + nt)
        for n in range(22):
            kind, base = B2slot(n % 16)
            for rt in range(4):
                for nt in range(5):
                    c = '0' if n == 0 else V(tile(rt, nt), 4)
                    mains.append(('v_mfma_f32_16x16x32_bf16 %s, %s, %s, %s' % (V(tile(rt, nt), 4), R(kind, base + 4*nt, 4), V(A2R + 16*(n % 4) + 4*rt, 4), c), None))
        for n in range(22):
            if n + 3 < 22:
                for i, f in enumerate(a2(n+3)): fixed.append((20*n + 1 + 5*i, f))
        rf = []
        for k in range(6): rf += self.b2_loads(16+k, k)
        span = cfg.get('rf_span', 15)
        for i, f in enumerate(rf):
            p = 20 + i*(20.0*span/30)
            p = int(p/5)*5 + 3
            assert p >= 20*(i//5 + 1) and p < 20*(16 + i//5) - 40, (i, p)
            fixed.append((p, f))
        for k, n in enumerate((1, 4, 7, 9, 11, 12, 13, 16, 19)): fixed.append((20*n - 0.1, F(lambda k=k: self.stamp(11+k, lvl=2), 0)))
        fixed.append((20*7 + 4, F(hp(0))))
        fixed.append((20*9 - 0.5, F(lambda: self.poll('hs', hp(0), self.check_eq([vHd])), 20)))
        def gissue():
            for rt in range(4):
                g('buffer_load_dwordx3 %s, %s, %s, 0 offen offset:%d sc1' % (V(GG + 4*rt, 3), V(vGa), S(sWS, 4), 256*rt))
        fixed.append((20*9 + 4, F(gissue, 16)))
        fixed.append((20*11 - 0.5, F(lambda: self.poll('gt', gissue, self.check_eq([GG + 4*rt + 2 for rt in range(4)], 8, 9)), 48)))
        for rt in range(4):
            for nt in range(5):
                for r in range(4):
                    fixed.append((223 + (4*(rt*5 + nt) + r)*35/80, 'v_mul_f32 %s, %s, %s' % (V(tile(rt, nt) + r), V(GG + 4*rt + 1), V(tile(rt, nt) + r))))
        XD = 200; RX = 220; vRd = [7, 8, 9, 10, 11]; vOa = [12, 13, 14, 15, 4]; GF = 230; T = 235
        DS = GG
        ops = ['s_lshl_b32 %s, %s, 6' % (S(sT0), S(sMh)), 's_lshl_b32 %s, %s, 4' % (S(sT1), S(sWave)),
               's_add_u32 %s, %s, %s' % (S(sItem), S(sT0), S(sT1)),
               's_mul_i32 %s, %s, 160' % (S(sMx), S(sJn)), 's_mul_i32 %s, %s, 5440' % (S(sMw), S(sWave)),
               's_mov_b32 %s, 0xffff0000' % S(sT1)]
        for q in range(5):
            e, row, ch, t3 = V(T), V(T+1), V(T+2), V(T+3)
            ops += ['v_add_u32 %s, %d, %s' % (e, 64*q, V(vLane)),
                    'v_mul_u32_u24 %s, 3277, %s' % (row, e), 'v_lshrrev_b32 %s, 16, %s' % (row, row),
                    'v_mul_u32_u24 %s, 20, %s' % (ch, row), 'v_sub_u32 %s, %s, %s' % (ch, e, ch),
                    'v_lshrrev_b32 %s, 2, %s' % (t3, ch), 'v_mul_u32_u24 %s, 1088, %s' % (V(vRd[q]), t3),
                    'v_and_b32 %s, 3, %s' % (t3, ch), 'v_mul_u32_u24 %s, 272, %s' % (t3, t3),
                    'v_add3_u32 %s, %s, %s, %s' % (V(vRd[q]), V(vRd[q]), t3, S(sMw)),
                    'v_lshl_add_u32 %s, %s, 4, %s' % (V(vRd[q]), row, V(vRd[q])),
                    'v_add_u32 %s, %s, %s' % (row, S(sItem), row),
                    'v_lshl_add_u32 %s, %s, 3, %s' % (ch, ch, S(sMx)),
                    'global_load_dwordx2 %s, %s, %s' % (V(DS + 2*q, 2), ch, S(pDsk, 2)),
                    'v_mul_u32_u24 %s, 1280, %s' % (e, row), 'v_add_u32 %s, %s, %s' % (e, e, ch),
                    'buffer_load_dwordx2 %s, %s, %s, 0 offen' % (V(RX + 2*q, 2), e, S(sX, 4)),
                    'v_lshlrev_b32 %s, 1, %s' % (V(vOa[q]), e),
                    'v_lshlrev_b32 %s, 4, %s' % (row, row), 'v_add_u32 %s, %d, %s' % (row, WS_GATE, row),
                    'buffer_load_dword %s, %s, %s, 0 offen sc1' % (V(GF + q), row, S(sWS, 4))]
        ops2 = []
        for q in range(5):
            for h in range(2):
                x, d = V(RX + 2*q + h), V(DS + 2*q + h)
                a, b, c, dd = V(T), V(T+1), V(T+2), V(T+3)
                ops2 += ['v_lshlrev_b32 %s, 16, %s' % (a, x), 'v_and_b32 %s, %s, %s' % (b, S(sT1), x),
                         'v_lshlrev_b32 %s, 16, %s' % (c, d), 'v_and_b32 %s, %s, %s' % (dd, S(sT1), d),
                         'v_mul_f32 %s, %s, %s' % (a, a, c), 'v_mul_f32 %s, %s, %s' % (b, b, dd),
                         'v_cvt_pk_bf16_f32 %s, %s, %s' % (a, a, b),
                         'v_lshlrev_b32 %s, 16, %s' % (V(XD + 4*q + 2*h), a), 'v_and_b32 %s, %s, %s' % (V(XD + 4*q + 2*h + 1), S(sT1), a)]
        ops2 += ['s_mul_i32 %s, %s, 21760' % (S(sT0), S(sWave)),
                 'v_lshrrev_b32 %s, 4, %s' % (V(T), V(vLane)), 'v_mul_u32_u24 %s, 272, %s' % (V(T), V(T)),
                 'v_and_b32 %s, 15, %s' % (V(T+1), V(vLane)), 'v_lshl_add_u32 %s, %s, 4, %s' % (V(T), V(T+1), V(T)),
                 'v_add_u32 %s, %s, %s' % (V(T), S(sT0), V(T))]
        for j in range(20):
            fixed.append((420 + j + 5, 'ds_write_b128 %s, %s offset:%d' % (V(T), V(ACC2 + 4*j, 4), 1088*j)))
        streams = [Stream(ops, 262, 340), Stream(ops2, 360, 420)]
        sched(g, mains, 8, fixed, streams, report=self.rep and 'p2')
        self.stamp(9)
        g.waitcnt(lg=0)
        g('s_barrier')
        for q in range(5):
            for src in range(4):
                g('ds_read_b128 %s, %s offset:%d' % (V(ACC2 + 16*q + 4*src, 4), V(vRd[q]), 21760*src))
        osc = cfg.get('osc', '')
        for q in range(5):
            for src in range(4):
                for r in range(4):
                    g('v_add_f32 %s, %s, %s' % (V(XD + 4*q + r), V(XD + 4*q + r), V(ACC2 + 16*q + 4*src + r)))
            for r in range(4):
                g('v_mul_f32 %s, %s, %s' % (V(XD + 4*q + r), V(GF + q), V(XD + 4*q + r)))
            g('buffer_store_dwordx4 %s, %s, %s, 0 offen%s' % (V(XD + 4*q, 4), V(vOa[q]), S(sOUT, 4), osc))

    def build(self):
        g = self.g
        self.prologue()
        st = g.state()
        self.ffn()
        g.vm, g.lg, g.smem = list(st[0]), list(st[1]), list(st[2])
        self.ssm()
        self.phase2()
        if self.cfg.get('stamps'):
            g.waitall()
            self.stamp(10)
            self.stamp(31, 's_memtime')
            g('s_lshl_b32 %s, s2, 2' % S(sT0))
            g('s_add_u32 %s, %s, %s' % (S(sT0), S(sT0), S(sWave)))
            g('s_lshl_b32 %s, %s, 7' % (S(sT0), S(sT0)))
            g('s_add_u32 %s, %s, %d' % (S(sT0), S(sT0), WS_STAMP))
            g('v_lshlrev_b32 v4, 2, %s' % V(vLane))
            g('s_mov_b32 exec_hi, 0')
            g('buffer_store_dword %s, v4, %s, %s offen' % (V(vStamp), S(sWS, 4), S(sT0)))
        g.label('L_exit')
        g('s_endpgm')
        g.raw('L_codeend:')
        for f in self.tail: f()
        hdr = open('gated_mix__ssm_conv_s5__dense_activation_silu__prompt.s.ref').read()
        top = hdr[:hdr.index('; Override launch geometry')]
        txt = top + '; Generated by a hand-written generator script (straight-line schedule, one fused launch).\n'
        txt += '; @launch grid=(256,1,1) block=(256,1,1) lds=163840\n'
        txt += '.amdgcn_target "amdgcn-amd-amdhsa--gfx950"\n.text\n.globl %s\n.p2align 8\n.type %s,@function\n%s:\n' % (KNAME, KNAME, KNAME)
        txt += g.text()
        txt += '''.section .rodata,"a"
.p2align 6
.amdhsa_kernel %s
  .amdhsa_next_free_vgpr 512
  .amdhsa_next_free_sgpr 102
  .amdhsa_accum_offset 256
  .amdhsa_group_segment_fixed_size 0
  .amdhsa_kernarg_size 128
  .amdhsa_user_sgpr_count 2
  .amdhsa_user_sgpr_kernarg_segment_ptr 1
  .amdhsa_system_sgpr_workgroup_id_x 1
.end_amdhsa_kernel
''' % KNAME
        return txt

def make(cfg=None):
    k = K(cfg or {})
    return k.build(), k

if __name__ == '__main__':
    import json
    cfg = json.loads(sys.argv[2]) if len(sys.argv) > 2 else {}
    cfg['report'] = 1
    txt, k = make(cfg)
    open(sys.argv[1], 'w').write(txt)
    print(k.g.stats, 'nops', k.g.nnop, 'bytes', len(txt))
```

```python
import sys
from asmgen import Gen, weave, sched, Stream, F, mix, cost

KNAME = 'gated_mix__ssm_conv_s5__dense_activation_silu__prompt_kernel'

WS_EPOCH = 0
WS_HFLAG = 8192
WS_GATE = 65536
WS_EBUF = 131072
WS_PFLAG = 393216
WS_XFLAG = 425984
WS_STAMP = 524288
WS_B2 = 1 << 20
WS_H = 5 << 20
WS_X = 16 << 20
WS_SIZE = 22 << 20
KST = 5120
MST = 88*KST
HKS = 8192
HMS = 88*HKS

F_WR = 81920
S_BR = 65536
L_PK = 147456
L_EX = 147456

sX, sW, sWS, sP1, sP2, sPD, sOUT, sB2, sH = 4, 8, 12, 16, 20, 24, 28, 32, 36
pX, pLre, pLim, pBre, pBim, pCre, pCim, pLdt, pDsk, pBx, pW1, pW2, pGate, pOut, pDbg, pWs = range(40, 72, 2)
sWave, sRole, sC1, sJ1, sIdx, sCo, sNonce, sRot = range(72, 80)
sKb = list(range(80, 90))
sItem, sMx, sMw, sWo = 90, 91, 92, 93
sPs = [94, 95, 96, 97]
sT0, sT1, sT2, sT3 = 98, 99, 100, 101
sT4 = 3
sKt = 79
sNl = 42
sCs, sCd, sWs2 = 43, 56, 57
sKs = [40, 41, 46, 47, 48, 49, 50, 51, 52, 53, 58, 59, 60, 61, 62, 63, 66, 67, 68, 69, 70, 71]

vTid, vLane, vL16, vL16b = 0, 1, 2, 3
vT = list(range(4, 16))
vFa, vFd = 14, 15
ACC2 = 16
A2R = 96
vStamp = 255
def B2slot(role, i):
    if i < 4: return 160 + 20*i
    if role == 1: return 20*(i-4)
    return 80 + 20*(i-4) if i < 8 else 20*(i-8)
def tabs(role):
    if role == 1: return sKs[:12], sKs[12:] + [44, 45]
    return sKs[:10], sKs[10:20]
aPK = 240

def R(kind, base, n):
    return '%s%d' % (kind, base) if n == 1 else '%s[%d:%d]' % (kind, base, base+n-1)
def V(b, n=1): return R('v', b, n)
def A(b, n=1): return R('a', b, n)
def S(b, n=1): return R('s', b, n)

LOG2E = 0x3fb8aa3b
NLOG2E = 0xbfb8aa3b
INV2PI = 0x3e22f983

class K:
    def __init__(self, cfg):
        self.cfg = cfg
        self.g = Gen()
        self.tail = []
        self.rep = cfg.get('report')

    def stamp(self, idx, op='s_memrealtime', lvl=2):
        if idx in (0, 10, 30, 31): lvl = 1
        if self.cfg.get('stamps', 0) < lvl: return
        g = self.g
        if self.cfg.get('cyc'): op = 's_memtime'
        g(op + ' vcc'); g.waitcnt(lg=0)
        g('v_writelane_b32 %s, vcc_lo, %d' % (V(vStamp), idx))

    def srd_ptr(self, d, ptr): return ['s_mov_b32 %s, %s' % (S(d), S(ptr)), 's_mov_b32 %s, %s' % (S(d+1), S(ptr+1))]
    def srd_cst(self, d, nrec): return ['s_mov_b32 %s, 0x%x' % (S(d+2), nrec), 's_mov_b32 %s, 0x20000' % S(d+3)]

    def poll(self, name, issue, check):
        g = self.g
        lr, lo = g.newlabel(name + '_retry'), g.newlabel(name + '_ok')
        check()
        g('s_cbranch_scc0 %s' % lr)
        g.label(lo)
        def retry():
            g.vm, g.lg, g.smem = [], [], []
            g.label(lr)
            g('s_mov_b32 %s, 0x%x' % (S(sT4), self.cfg.get('spin', 1 << 18)))
            ll = g.newlabel(name + '_loop')
            g.label(ll)
            g('s_sub_u32 %s, %s, 1' % (S(sT4), S(sT4)))
            g('s_cmp_eq_u32 %s, 0' % S(sT4))
            g('s_nop 7')
            g('s_cbranch_scc1 %s' % lo)
            g('s_waitcnt vmcnt(0) lgkmcnt(0)')
            issue()
            g.waitall()
            check()
            g('s_nop 7')
            g('s_cbranch_scc1 %s' % lo)
            g('s_branch %s' % ll)
        self.tail.append(retry)

    def check_eq(self, regs, t0=None, t1=None):
        g = self.g
        def f():
            if len(regs) == 1:
                g('v_cmp_ne_u32 vcc, %s, %s' % (S(sNonce), V(regs[0])))
            else:
                g('v_xor_b32 %s, %s, %s' % (V(t0), S(sNonce), V(regs[0])))
                for r in regs[1:]:
                    g('v_xor_b32 %s, %s, %s' % (V(t1), S(sNonce), V(r)))
                    g('v_or_b32 %s, %s, %s' % (V(t0), V(t0), V(t1)))
                g('v_cmp_ne_u32 vcc, 0, %s' % V(t0))
            g('s_nop 0')
            g('s_cmp_eq_u64 vcc, 0')
        return f

    def b2_loads(self, role, steps):
        out = []
        for step in steps:
            base = B2slot(role, step)
            for nt in range(5):
                va, off = (vL16, nt*1024) if nt < 4 else (vL16b, 0)
                out.append('buffer_load_dwordx4 %s, %s, %s, %s offen offset:%d sc1' % (A(base+4*nt, 4), V(va), S(sB2, 4), S(tabs(role)[0][step]), off))
        return out

    def ks_table(self, role):
        tb, ta = tabs(role); ns = len(tb)
        r, bs = ta[ns-1], tb[ns-1]
        o = ['s_and_b32 %s, %s, 3' % (S(sKt), S(sC1)), 's_mul_i32 %s, %s, 3' % (S(sKt), S(sKt)),
             's_add_u32 %s, %s, %s' % (S(sKt), S(sKt), S(sJ1)),
             's_sub_u32 %s, %s, %d' % (S(r), S(sKt), ns), 's_min_u32 %s, %s, %s' % (S(r), S(r), S(sKt)),
             's_mul_i32 %s, %s, %d' % (S(bs), S(sWave), ns)]
        if role == 0: o.append('s_add_u32 %s, %s, 48' % (S(bs), S(bs)))
        for n in range(ns):
            if n == 0: o.append('s_add_u32 %s, %s, %s' % (S(ta[n]), S(r), S(bs)))
            else:
                o += ['s_sub_u32 %s, %s, %d' % (S(sKt), S(r), ns-n), 's_add_u32 %s, %s, %d' % (S(ta[n]), S(r), n),
                      's_min_u32 %s, %s, %s' % (S(ta[n]), S(ta[n]), S(sKt)), 's_add_u32 %s, %s, %s' % (S(ta[n]), S(ta[n]), S(bs))]
            o += ['s_mul_i32 %s, %s, %d' % (S(tb[n]), S(ta[n]), KST), 's_lshl_b32 %s, %s, 13' % (S(ta[n]), S(ta[n]))]
        return o

    def line_addr(self, base, dst):
        return ['s_lshl_b32 %s, %s, 7' % (S(sKt), S(sRole)), 's_add_u32 %s, %s, %s' % (S(sKt), S(sKt), S(sIdx)),
                's_lshl_b32 %s, %s, 5' % (S(sKt), S(sKt)), 's_add_u32 %s, %s, %s' % (S(sKt), S(sKt), S(sWave)),
                's_lshl_b32 %s, %s, 2' % (S(sKt), S(sKt)), 's_add_u32 %s, %s, %d' % (S(sKt), S(sKt), base),
                'v_mov_b32 %s, %s' % (V(dst), S(sKt))]

    def late_setup(self, role, t0, t1, vPp):
        o = ['s_mul_i32 %s, %s, 1664525' % (S(sNonce), S(sNonce)), 's_add_u32 %s, %s, 1013904223' % (S(sNonce), S(sNonce))]
        o += self.srd_ptr(sOUT, pOut) + self.srd_cst(sOUT, 2048*2560)
        for d, idx, base, st in ((sB2, sJ1, WS_B2, MST), (sH, sC1, WS_H, HMS)):
            o += ['s_mul_i32 %s, %s, %d' % (S(sKt), S(idx), st), 's_add_u32 %s, %s, 0x%x' % (S(sKt), S(sKt), base),
                  ['s_add_u32 %s, %s, %s' % (S(d), S(pWs), S(sKt)), 's_addc_u32 %s, %s, 0' % (S(d+1), S(pWs+1))]]
            o += self.srd_cst(d, st)
        if role == 1:
            o += ['s_mul_i32 %s, %s, 5' % (S(sKt), S(sJ1)), 's_lshr_b32 %s, %s, 2' % (S(sKt), S(sKt)),
                  'v_min_u32 %s, 23, %s' % (V(t1), V(vLane)),
                  'v_lshrrev_b32 %s, 1, %s' % (V(t0), V(t1)), 'v_mul_u32_u24 %s, 10, %s' % (V(t0), V(t0)),
                  'v_and_b32 %s, 1, %s' % (V(t1), V(t1)), 'v_add3_u32 %s, %s, %s, %s' % (V(t0), V(t0), V(t1), S(sKt)),
                  's_mul_i32 %s, %s, 120' % (S(sKt), S(sWave)), 'v_add_u32 %s, %s, %s' % (V(t0), S(sKt), V(t0))]
        else:
            o += ['v_min_u32 %s, 14, %s' % (V(t1), V(vLane)),
                  'v_mul_u32_u24 %s, 11, %s' % (V(t0), V(t1)), 'v_lshrrev_b32 %s, 5, %s' % (V(t0), V(t0)),
                  'v_mul_u32_u24 %s, 7, %s' % (V(t0), V(t0)),
                  's_mul_i32 %s, %s, 50' % (S(sKt), S(sJ1)), 'v_add3_u32 %s, %s, %s, %s' % (V(t0), V(t1), V(t0), S(sKt)),
                  's_mul_i32 %s, %s, 10' % (S(sKt), S(sWave)), 's_lshr_b32 %s, %s, 2' % (S(sKt), S(sKt)),
                  'v_add_u32 %s, %s, %s' % (V(t0), S(sKt), V(t0))]
        o += ['v_and_b32 %s, 127, %s' % (V(t1), V(t0)), 'v_lshrrev_b32 %s, 7, %s' % (V(t0), V(t0)),
              'v_lshlrev_b32 %s, 7, %s' % (V(t1), V(t1)), 'v_lshl_add_u32 %s, %s, 2, %s' % (V(vPp), V(t0), V(t1)),
              'v_add_u32 %s, %d, %s' % (V(vPp), WS_PFLAG + 16384, V(vPp))]
        if role: o += self.line_addr(WS_PFLAG, vFa)
        o.append('v_mov_b32 %s, %s' % (V(vFd), S(sNonce)))
        return o

    def hbase(self, kmul, extra):
        return ['s_lshl_b32 %s, %s, 11' % (S(sKt), S(sWave)), 's_mul_i32 %s, %s, %d' % (S(sT3), S(sJ1), kmul*HKS),
                's_add_u32 %s, %s, %s' % (S(sKt), S(sKt), S(sT3)), 's_add_u32 %s, %s, 0x%x' % (S(sKt), S(sKt), extra)]

    def flag_store(self, tok, srd):
        self.g.wait(tok)
        self.g('buffer_store_dword %s, %s, %s, 0 offen%s' % (V(vFd), V(vFa), S(srd, 4), self.cfg.get('hst', ' sc1') if srd == sWS else ' sc1'))

    def prologue(self):
        g = self.g
        g('s_cmp_ge_u32 s2, 256')
        g('s_cbranch_scc1 L_exit')
        g('s_load_dwordx16 s[40:55], s[0:1], 0')
        g('s_load_dwordx16 s[56:71], s[0:1], 64')
        g('v_lshrrev_b32 %s, 6, v0' % V(vT[0]))
        g('v_and_b32 %s, 63, v0' % V(vLane))
        g('v_readfirstlane_b32 %s, %s' % (S(sWave), V(vT[0])))
        g('v_lshlrev_b32 %s, 4, %s' % (V(vL16), V(vLane)))
        g('s_lshr_b32 %s, s2, 3' % S(sT1))
        if self.cfg.get('preload', 1):
            g.raw('    s_getpc_b64 s[28:29]\nL_pc:')
            g('s_lshl_b32 %s, %s, 2' % (S(sT0), S(sT1)))
            g('s_add_u32 %s, %s, %s' % (S(sT0), S(sT0), S(sWave)))
            g('s_and_b32 %s, %s, 63' % (S(sT0), S(sT0)))
            g.raw('    s_min_u32 %s, %s, ((L_codeend-L_pc)>>10)-1' % (S(sT0), S(sT0)))
            g('s_lshl_b32 %s, %s, 10' % (S(sT0), S(sT0)))
            g('s_add_u32 s28, s28, %s' % S(sT0))
            g('s_addc_u32 s29, s29, 0')
            g('global_load_dwordx4 v[244:247], %s, s[28:29]' % V(vL16))
        if self.cfg.get('stamps'):
            g('v_mov_b32 %s, 0' % V(vStamp))
        g('v_add_u32 %s, 0x1000, %s' % (V(vL16b), V(vL16)))
        g('s_and_b32 %s, s2, 1' % S(sRole))
        g('s_bfe_u32 %s, s2, 0x20001' % S(sT3))
        g('s_and_b32 %s, %s, 3' % (S(sT2), S(sT1)))
        g('s_lshr_b32 %s, %s, 2' % (S(sJ1), S(sT1)))
        g('s_lshl_b32 %s, %s, 2' % (S(sC1), S(sT3)))
        g('s_add_u32 %s, %s, %s' % (S(sC1), S(sC1), S(sT2)))
        g('s_lshl_b32 %s, %s, 5' % (S(sIdx), S(sT3)))
        g('s_add_u32 %s, %s, %s' % (S(sIdx), S(sIdx), S(sT1)))
        g('s_mul_i32 %s, %s, 3' % (S(sT2), S(sT2)))
        g('s_mul_i32 %s, %s, 5' % (S(sT0), S(sRole)))
        g('s_add_u32 %s, %s, %s' % (S(sRot), S(sJ1), S(sT2)))
        g('s_add_u32 %s, %s, %s' % (S(sRot), S(sRot), S(sT0)))
        g('s_add_u32 %s, %s, %s' % (S(sRot), S(sRot), S(sT3)))
        if self.cfg.get('norot'): g('s_mov_b32 %s, 0' % S(sRot))
        for k in range(2):
            g('s_sub_u32 %s, %s, 10' % (S(sT0), S(sRot)))
            g('s_min_u32 %s, %s, %s' % (S(sRot), S(sRot), S(sT0)))
        if self.cfg.get('rotg') == 2:
            g('s_and_b32 %s, %s, 1' % (S(sRot), S(sRot)))
            g('s_mul_i32 %s, %s, 5' % (S(sRot), S(sRot)))
        if self.cfg.get('rotg') == 5:
            g('s_and_b32 %s, %s, 14' % (S(sRot), S(sRot)))
        if self.cfg.get('rotg') == 3:
            g('s_mul_i32 %s, %s, 11' % (S(sT0), S(sRot)))
            g('s_lshr_b32 %s, %s, 5' % (S(sT0), S(sT0)))
            g('s_mul_i32 %s, %s, 3' % (S(sT0), S(sT0)))
            g('s_sub_u32 %s, %s, %s' % (S(sRot), S(sRot), S(sT0)))
            g('s_mul_i32 %s, %s, 7' % (S(sRot), S(sRot)))
            g('s_lshr_b32 %s, %s, 1' % (S(sRot), S(sRot)))
        g('s_lshl_b32 %s, %s, 7' % (S(sKb[0]), S(sRot)))
        g('v_lshrrev_b32 %s, 3, %s' % (V(vT[0]), V(vLane)))
        g('v_and_b32 %s, 7, %s' % (V(vT[1]), V(vLane)))
        g('v_lshrrev_b32 %s, 4, %s' % (V(vT[2]), V(vLane)))
        g.do(self.srd_cst(sX, 2048*1280))
        g.do(self.srd_cst(sWS, WS_SIZE))
        g('s_cmp_eq_u32 %s, 0' % S(sRole))
        g('s_cbranch_scc1 L_ssm')

    def kb(self, s):
        if self.cfg.get('same'): return ['s_mov_b32 %s, %s' % (S(sKb[s]), S(sKb[0]))]
        return ['s_sub_u32 %s, %s, %d' % (S(sT0), S(sKb[0]), 128*(10-s)), 's_add_u32 %s, %s, %d' % (S(sKb[s]), S(sKb[0]), 128*s),
                's_min_u32 %s, %s, %s' % (S(sKb[s]), S(sKb[s]), S(sT0))]

    def ptrs_ready(self):
        g = self.g
        g.waitcnt(lg=0)
        self.stamp(0)
        self.stamp(30, 's_memtime')
        g.do(self.srd_ptr(sX, pX))

    def pack_addr(self, vPl, vPr, vPc):
        o = ['s_lshl_b32 %s, %s, 7' % (S(sItem), S(sWave)), 's_add_u32 %s, %s, %s' % (S(sItem), S(sItem), S(sIdx))]
        o += self.srd_ptr(sPD, pWs) + self.srd_ptr(sP1, pCre) + self.srd_ptr(sP2, pCim) + self.srd_ptr(54, pW2)
        o += [['s_cmp_lt_u32 %s, 400' % S(sItem), 's_cselect_b32 %s, 0x%x, 0' % (S(sPD+2), WS_SIZE), 's_cselect_b32 %s, 819200, 0' % S(sP1+2)],
              's_mov_b32 %s, %s' % (S(sP2+2), S(sP1+2)),
              's_mov_b32 %s, 0x20000' % S(sPD+3), 's_mov_b32 %s, 0x20000' % S(sP1+3), 's_mov_b32 %s, 0x20000' % S(sP2+3),
              's_mul_i32 %s, %s, 6554' % (S(sT1), S(sItem)), 's_lshr_b32 %s, %s, 16' % (S(sT1), S(sT1)),
              's_mul_i32 %s, %s, 10' % (S(sT2), S(sT1)), 's_sub_u32 %s, %s, %s' % (S(sT2), S(sItem), S(sT2)),
              's_lshl_b32 %s, %s, 7' % (S(sT3), S(sT2)),
              's_mul_i32 %s, %s, 20480' % (S(sCs), S(sT1)), 's_add_u32 %s, %s, %s' % (S(sCs), S(sCs), S(sT3)),
              's_mul_i32 %s, %s, 40960' % (S(sWs2), S(sT1)), 's_add_u32 %s, %s, %s' % (S(sWs2), S(sWs2), S(sT3)),
              's_mul_i32 %s, %s, 52' % (S(sT3), S(sT1)), 's_lshr_b32 %s, %s, 8' % (S(sT3), S(sT3)),
              's_mul_i32 %s, %s, 435' % (S(sT3), S(sT3)), 's_add_u32 %s, %s, %s' % (S(sCd), S(sT1), S(sT3)),
              's_mul_i32 %s, %s, 20' % (S(sT3), S(sT2)), 's_add_u32 %s, %s, %s' % (S(sCd), S(sCd), S(sT3)),
              's_lshl_b32 %s, %s, 10' % (S(sCd), S(sCd)), 's_add_u32 %s, %s, 0x%x' % (S(sCd), S(sCd), WS_B2 + 240*1024),
              's_mul_i32 %s, %s, 5' % (S(sT1), S(sT1)), 's_lshl_b32 %s, %s, 2' % (S(sT2), S(sT2))]
        for i in range(4):
            o += ['s_add_u32 %s, %s, %d' % (S(sPs[i]), S(sT2), i),
                  's_mul_i32 %s, %s, 52' % (S(sT3), S(sPs[i])), 's_lshr_b32 %s, %s, 8' % (S(sT3), S(sT3)),
                  's_mul_i32 %s, %s, 435' % (S(sT3), S(sT3)), 's_add_u32 %s, %s, %s' % (S(sPs[i]), S(sPs[i]), S(sT3)),
                  's_add_u32 %s, %s, %s' % (S(sPs[i]), S(sPs[i]), S(sT1)), 's_lshl_b32 %s, %s, 10' % (S(sPs[i]), S(sPs[i])),
                  's_add_u32 %s, %s, 0x%x' % (S(sPs[i]), S(sPs[i]), WS_B2)]
        t0, t1 = V(vT[4]), V(vT[5]); L = V(vLane)
        o += ['v_lshrrev_b32 %s, 3, %s' % (t0, L), 'v_and_b32 %s, 7, %s' % (t1, L), 'v_mul_u32_u24 %s, 1280, %s' % (t0, t0),
              'v_lshl_add_u32 %s, %s, 4, %s' % (V(vPl), t1, t0),
              's_lshl_b32 %s, %s, 12' % (S(sCo), S(sWave)), 's_add_u32 %s, %s, %d' % (S(sCo), S(sCo), L_PK),
              'v_bfe_u32 %s, %s, 4, 1' % (t0, L), 'v_lshlrev_b32 %s, 11, %s' % (t0, t0), 'v_lshrrev_b32 %s, 5, %s' % (t1, L),
              'v_lshl_add_u32 %s, %s, 9, %s' % (t0, t1, t0), 'v_bfe_u32 %s, %s, 2, 2' % (t1, L), 'v_lshl_add_u32 %s, %s, 7, %s' % (t0, t1, t0),
              'v_and_b32 %s, 3, %s' % (t1, L), 'v_lshl_add_u32 %s, %s, 3, %s' % (t0, t1, t0), 'v_add_u32 %s, %s, %s' % (V(vPr), S(sCo), t0),
              'v_lshrrev_b32 %s, 5, %s' % (t0, L), 'v_lshlrev_b32 %s, 11, %s' % (t0, t0), 'v_and_b32 %s, 15, %s' % (t1, L),
              'v_lshl_add_u32 %s, %s, 7, %s' % (t0, t1, t0), 'v_bfe_u32 %s, %s, 4, 1' % (t1, L), 'v_lshl_add_u32 %s, %s, 4, %s' % (t0, t1, t0),
              'v_add_u32 %s, %s, %s' % (V(vPc), S(sCo), t0), 'v_add_u32 %s, %s, %s' % (V(vPc+1), S(sCo), V(vL16))]
        return o

    def pack_load(self, vPl, PV):
        nt = self.cfg.get('pknt', ' nt')
        o = ['s_add_u32 %s, %s, 10240' % (S(sT0), S(sCs))]
        for part in range(2):
            for h in range(2):
                o.append('buffer_load_dwordx4 %s, %s, %s, %s offen%s' % (V(PV + 8*part + 4*h, 4), V(vPl), S(sP2 if part else sP1, 4), S(sT0 if h else sCs), nt))
        o += self.srd_ptr(sP1, 54) + ['s_cmp_lt_u32 %s, 480' % S(sItem), 's_cselect_b32 %s, %d, 0' % (S(sP1+2), 1536*1280)]
        for q in range(4):
            if q: o.append('s_add_u32 %s, %s, 10240' % (S(sWs2), S(sWs2)))
            o.append('buffer_load_dwordx4 %s, %s, %s, %s offen%s' % (V(PV + 16 + 4*q, 4), V(vPl), S(sP1, 4), S(sWs2), nt))
        return o
    def pack_proc(self, vPw, vPr, vPc, PV):
        g = self.g
        a = ['ds_write_b128 %s, %s offset:%d' % (V(vPw), V(PV + 4*i, 4), 1024*i) for i in range(4)]
        a += ['ds_read_b128 %s, %s offset:%d' % (A(aPK+4*i, 4), V(vPc), 32*i) for i in range(4)]
        a += ['ds_write_b128 %s, %s offset:%d' % (V(vPw), V(PV + 16 + 4*i, 4), 1024*i) for i in range(4)]
        a += ['ds_read_b64_tr_b16 %s, %s offset:%d' % (V(PV+4*i+2*e, 2), V(vPr), e*1024 + i*32) for i in range(4) for e in range(2)]
        b = []
        for i in range(4):
            if i: b.append('s_add_u32 %s, %s, %d' % (S(sCd), S(sCd), KST))
            b.append('buffer_store_dwordx4 %s, %s, %s, %s offen sc1' % (A(aPK+4*i, 4), V(vL16), S(sPD, 4), S(sCd)))
        b.append(['s_cmp_lt_u32 %s, 480' % S(sItem), 's_cselect_b32 %s, 0x%x, 0' % (S(sPD+2), WS_SIZE)])
        for i in range(4):
            def f(i=i): self.tPackSt = g('buffer_store_dwordx4 %s, %s, %s, %s offen sc1' % (V(PV+4*i, 4), V(vL16), S(sPD, 4), S(sPs[i])))
            b.append(F(f))
        return a, b

    def touch_addr(self):
        if not self.cfg.get('touch', 0): return
        g = self.g
        g('s_mov_b32 %s, 0x50000' % S(sT0))
        g('s_cmp_lt_u32 %s, 2' % S(sWave))
        g('s_cselect_b32 %s, 0xa0000, %s' % (S(sT0), S(sT0)))
        g('s_cmp_eq_u32 %s, 3' % S(sWave))
        g('s_cselect_b32 %s, 64, %s' % (S(sT0), S(sT0)))
        g('v_lshrrev_b32 v248, 2, %s' % V(vLane))
        g('v_mul_u32_u24 v248, %s, v248' % S(sT0))
        g('s_cmp_eq_u32 %s, 1' % S(sWave))
        g('s_cselect_b32 %s, 0xa00000, 0' % S(sT0))
        g('v_add_u32 v248, %s, v248' % S(sT0))
    def touch(self):
        if not self.cfg.get('touch', 0): return
        g = self.g
        g('s_cmp_lt_u32 %s, 2' % S(sWave))
        g('s_cselect_b32 s30, %s, %s' % (S(pWs), S(pOut)))
        g('s_cselect_b32 s31, %s, %s' % (S(pWs+1), S(pOut+1)))
        g('s_cmp_eq_u32 %s, 3' % S(sWave))
        g('s_cselect_b32 s30, %s, s30' % S(pDsk))
        g('s_cselect_b32 s31, %s, s31' % S(pDsk+1))
        g('global_load_dword v249, v248, s[30:31] sc1')

    def pack_poll_issue(self, vPp, vD):
        self.g('buffer_load_dword %s, %s, %s, 0 offen sc1' % (V(vD), V(vPp), S(sWS, 4)))
    def pack_poll_check(self, vPp, vD):
        if self.cfg.get('nopoll'): return
        self.poll('pk', lambda: self.pack_poll_issue(vPp, vD), self.check_eq([vD]))

    def x_dma_addr(self, vXd, perm):
        g = self.g
        g('s_lshl_b32 %s, %s, 2' % (S(sT0), S(sC1)))
        g('s_add_u32 %s, %s, %s' % (S(sT0), S(sT0), S(sWave)))
        g('s_mul_i32 %s, %s, %d' % (S(sT0), S(sT0), 32*1280))
        if perm:
            g('v_lshrrev_b32 %s, 5, %s' % (V(vT[3]), V(vLane)))
            g('v_and_b32 %s, 3, %s' % (V(vT[4]), V(vT[0])))
            g('v_lshl_add_u32 %s, %s, 3, %s' % (V(vT[3]), V(vT[3]), V(vT[4])))
            g('v_mul_u32_u24 %s, 1280, %s' % (V(vT[3]), V(vT[3])))
        else:
            g('v_mul_u32_u24 %s, 1280, %s' % (V(vT[3]), V(vT[0])))
        g('v_xor_b32 %s, %s, %s' % (V(vT[4]), V(vT[1]), V(vT[2])))
        g('v_lshlrev_b32 %s, 4, %s' % (V(vT[4]), V(vT[4])))
        g('v_xor_b32 %s, 64, %s' % (V(vT[5]), V(vT[4])))
        g('v_add3_u32 %s, %s, %s, %s' % (V(vXd[0]), V(vT[4]), V(vT[3]), S(sT0)))
        g('v_add3_u32 %s, %s, %s, %s' % (V(vT[5]), V(vT[5]), V(vT[3]), S(sT0)))
        for q in range(1, 4):
            rows = (16*(q & 1) + 4*(q >> 1)) if perm else 8*q
            g('v_add_u32 %s, %d, %s' % (V(vXd[q]), rows*1280 - 1024*q, V(vT[5] if q & 1 else vXd[0])))

    def ffn(self):
        g = self.g; cfg = self.cfg
        ACC = [16, 48]
        WF = 80; NF = 10
        EP = 120
        PKR = 128
        vXd = [144, 145, 146, 147]; vWd = [148, 149]; vXr = [150, 151, 152, 153]; vWr = [154, 155]; vHs = 156
        vPr, vPs, vPp, vPd = 157, 158, 159, 13
        vWrB = [150, 151]
        def wslot(t):
            if t < 16: return F_WR + (t % 8)*8192
            if t < 24: return (t-16)*8192
            return F_WR + (t-24)*8192
        LA = cfg.get('fla', 7); WE = cfg.get('fwe', 4)
        self.x_dma_addr(vXd, False)
        g('v_and_b32 %s, 1, %s' % (V(vT[3]), V(vT[2])))
        g('v_lshlrev_b32 %s, 2, %s' % (V(vT[3]), V(vT[3])))
        g('v_xor_b32 %s, %s, %s' % (V(vT[3]), V(vT[1]), V(vT[3])))
        g('v_mul_u32_u24 %s, 3072, %s' % (V(vT[4]), V(vT[0])))
        g('v_lshl_add_u32 %s, %s, 4, %s' % (V(vT[3]), V(vT[3]), V(vT[4])))
        g('s_mul_i32 %s, %s, %d' % (S(sT0), S(sWave), 16*3072))
        g('v_add_u32 %s, %s, %s' % (V(vWd[0]), S(sT0), V(vT[3])))
        g('v_add_u32 %s, %d, %s' % (V(vWd[1]), 8*3072 - 1024, V(vWd[0])))
        g('s_mul_i32 %s, %s, 20480' % (S(sMx), S(sWave)))
        g('s_lshl_b32 %s, %s, 11' % (S(sMw), S(sWave)))
        g('s_mul_i32 %s, %s, 384' % (S(sWo), S(sJ1)))
        g.do(self.srd_cst(sW, 640*3072))
        for s in range(1, 10): g.do(self.kb(s))
        tokX = {}; tokW = {}
        def dma_x(s):
            def mk(q):
                def f():
                    tokX[s] = g('buffer_load_dwordx4 %s, %s, %s offen offset:%d%s lds' % (V(vXd[q]), S(sX, 4), S(sKb[s]), 1024*q, (' nt' if s < cfg.get('nt0', 0) else '')))
                return F(f)
            return ['s_add_u32 m0, %s, %d' % (S(sMx), (s % 5)*4096)] + [mk(q) for q in range(4)]
        def dma_w(t):
            o = ['s_add_u32 m0, %s, %d' % (S(sMw), wslot(t))]
            k = sKb[t % 10]
            if t < 10: o += ['s_mul_i32 %s, %s, 1536' % (S(k), S(k)), 's_add_u32 %s, %s, %s' % (S(k), S(k), S(sWo))]
            if t in (10, 20): o += ['v_add_u32 %s, 128, %s' % (V(r), V(r)) for r in vWd]
            nt = ' nt' if t < cfg.get('nt0', 0) else ''
            o.append('buffer_load_dwordx4 %s, %s, %s offen%s lds' % (V(vWd[0]), S(sW, 4), S(k), nt))
            def f():
                tokW[t] = g('buffer_load_dwordx4 %s, %s, %s offen offset:1024%s lds' % (V(vWd[1]), S(sW, 4), S(k), nt))
            return o + [F(f)]
        self.touch_addr()
        self.ptrs_ready()
        g.do(self.srd_ptr(sW, pW1))
        g.do(dma_x(0) + dma_w(0))
        self.touch()
        g.do(dma_x(1) + dma_w(1))
        g.do(self.srd_ptr(sWS, pWs))
        g('s_load_dword %s, %s, 0' % (S(sNonce), S(pWs, 2)))
        g('v_and_b32 %s, 31, %s' % (V(vT[3]), V(vLane)))
        g('v_bfe_u32 %s, %s, 1, 3' % (V(vT[4]), V(vLane)))
        g('v_lshrrev_b32 %s, 5, %s' % (V(vT[7]), V(vLane)))
        g('v_xor_b32 %s, %s, %s' % (V(vT[4]), V(vT[4]), V(vT[7])))
        g('v_lshlrev_b32 %s, 4, %s' % (V(vT[4]), V(vT[4])))
        g('v_lshl_add_u32 %s, %s, 7, %s' % (V(vT[4]), V(vT[3]), V(vT[4])))
        g('v_add_u32 %s, %s, %s' % (V(vXr[0]), S(sMx), V(vT[4])))
        for ks in range(1, 4):
            g('v_xor_b32 %s, %d, %s' % (V(vXr[ks]), 32*ks, V(vXr[0])))
        g('v_bfe_u32 %s, %s, 2, 2' % (V(vT[4]), V(vLane)))
        g('v_lshl_add_u32 %s, %s, 3, %s' % (V(vT[6]), V(vT[7]), V(vT[4])))
        g('v_lshlrev_b32 %s, 7, %s' % (V(vT[6]), V(vT[6])))
        g('v_lshrrev_b32 %s, 1, %s' % (V(vT[4]), V(vT[4])))
        g('v_lshl_add_u32 %s, %s, 6, %s' % (V(vT[6]), V(vT[4]), V(vT[6])))
        g('v_bfe_u32 %s, %s, 4, 1' % (V(vT[4]), V(vLane)))
        g('v_lshl_add_u32 %s, %s, 5, %s' % (V(vT[6]), V(vT[4]), V(vT[6])))
        g('v_and_b32 %s, 3, %s' % (V(vT[4]), V(vLane)))
        g('v_lshl_add_u32 %s, %s, 3, %s' % (V(vT[6]), V(vT[4]), V(vT[6])))
        g('v_add_u32 %s, %d, %s' % (V(vWr[0]), F_WR, V(vT[6])))
        g('v_xor_b32 %s, 64, %s' % (V(vWr[1]), V(vWr[0])))
        vPc = 160
        pk0 = cfg.get('pk', (2,))[0] < 2
        if pk0: g.do(self.pack_addr(vPs, vPr, vPc))
        if cfg.get('pk', (2,))[0] < 0: g.do(self.pack_load(vPs, 164))
        g.do(dma_x(2) + dma_w(2))
        XL = cfg.get('f_xl', 4)
        if XL == 4: g.do(dma_x(3) + dma_w(3))
        self.stamp(1)
        setup = ([] if pk0 else self.pack_addr(vPs, vPr, vPc)) + self.late_setup(1, vT[0], vT[1], vPp)
        n_late = len(setup)
        setup += self.hbase(6, 0) + [
            'v_bfe_u32 %s, %s, 4, 1' % (V(vT[0]), V(vLane)), 'v_lshlrev_b32 %s, 10, %s' % (V(vT[0]), V(vT[0])),
            'v_lshl_add_u32 %s, %s, 9, %s' % (V(vT[0]), V(vT[7]), V(vT[0])), 'v_and_b32 %s, 15, %s' % (V(vT[1]), V(vLane)),
            'v_lshl_add_u32 %s, %s, 4, %s' % (V(vT[0]), V(vT[1]), V(vT[0])), 'v_add_u32 %s, %s, %s' % (V(vHs), S(sKt), V(vT[0])),
            's_mov_b32 %s, 0x%x' % (S(sNl), NLOG2E)]
        setup += self.ks_table(1)

        mains = []; fixed = []
        tokF = {}; tokXr = {}
        def rd_x(s, ks):
            def f(): tokXr[s] = g('ds_read_b128 %s, %s offset:%d' % (A(16*s + 4*ks, 4), V(vXr[ks]), (s % 5)*4096))
            return F(f)
        def rd_w(n, e):
            sg, ks, u = n // 8, (n % 8)//2, n % 2
            def f():
                tokF[n] = g('ds_read_b64_tr_b16 %s, %s offset:%d' % (V(WF + 4*(n % NF) + 2*e, 2), V(vWrB[u] if 16 <= sg < 24 else vWr[u]), wslot(sg) % F_WR + (16*ks + 4*e)*128))
            return F(f)
        def bar(sg, both):
            def f():
                g.wait(tokX.get(sg), tokW[sg+1 if both else sg], tokXr.get(sg-1) if XL == 4 else None)
                g('s_barrier')
                if sg == 0: self.stamp(2)
                if sg == 10: self.stamp(3)
                if sg == 20: self.stamp(4)
                if sg in (3, 5, 7, 12, 16, 26): self.stamp(20 + (3, 5, 7, 12, 16, 26).index(sg), lvl=3)
            return F(f, 8)
        for n in range(240):
            sg, ks, u = n // 8, (n % 8)//2, n % 2
            grp, s = sg // 10, sg % 10
            acc = ACC[grp % 2] + 16*u
            c = '0' if (s == 0 and ks == 0) else V(acc, 16)
            mains.append(('v_mfma_f32_32x32x16_bf16 %s, %s, %s, %s' % (V(acc, 16), V(WF + 4*(n % NF), 4), A(16*s + 4*ks, 4), c),
                          (lambda n=n: [tokF[min(n+WE-1, 239)]]) if n % WE == 0 else None))
        wsched = {}
        if XL == 3:
            for sg in range(7): wsched[sg] = [sg+3]
            wsched[7] = [10, 11]; wsched[8] = [12, 13]; wsched[9] = [14]; wsched[10] = [15]
        else:
            for sg in range(6): wsched[sg] = [sg+4]
            wsched[6] = [10, 11]; wsched[7] = [12, 13]; wsched[8] = [14]; wsched[9] = [15]
        wsched[12] = [16, 17, 18, 19]; wsched[14] = [20, 21, 22]; wsched[16] = [23, 24, 25]; wsched[18] = [26, 27]; wsched[20] = [28, 29]
        endb = {}
        for sg in range(30):
            if sg >= 10 and sg % 2: continue
            p = 8*sg - LA
            fixed.append((p - 0.5, bar(sg, sg >= 10)))
            d = []
            if sg + XL <= 9: d += dma_x(sg+XL)
            for t in wsched.get(sg, []): d += dma_w(t)
            stp = 0.5 if sg < 10 else 15.0/max(len(d), 1)
            for i, f in enumerate(d): fixed.append((p + 0.6 + i*stp, f))
            endb[sg] = p + 0.6 + len(d)*stp
        for u in range(2): fixed.append((90 + u, 'v_subrev_u32 %s, %d, %s' % (V(vWrB[u]), F_WR, V(vWr[u]))))
        if cfg.get('w1warm', 0):
            fixed.append((endb[cfg.get('w1warm_at', 1)], ['s_lshl_b32 %s, %s, 2' % (S(sT0), S(sC1)), 's_add_u32 %s, %s, %s' % (S(sT0), S(sT0), S(sWave)),
                 's_mul_i32 %s, %s, %d' % (S(sT0), S(sT0), 10*3072), 's_add_u32 %s, %s, %s' % (S(sT0), S(sT0), S(sWo)),
                 'v_min_u32 %s, 19, %s' % (V(vT[8]), V(vLane)), 'v_lshrrev_b32 %s, 1, %s' % (V(vPd), V(vT[8])),
                 'v_mul_u32_u24 %s, 3072, %s' % (V(vPd), V(vPd)), 'v_and_b32 %s, 1, %s' % (V(vT[8]), V(vT[8])),
                 'v_lshl_add_u32 %s, %s, 7, %s' % (V(vPd), V(vT[8]), V(vPd)),
                 'buffer_load_dword %s, %s, %s, %s offen offset:128 sc1' % (V(vT[8]), V(vPd), S(sW, 4), S(sT0))]))
        for n in range(240):
            if n < 80 and n % 2 == 0:
                s, ks = n//8, (n % 8)//2
                fixed.append((8*s - LA + ks if XL == 4 else n - LA, rd_x(s, ks)))
            fixed.append((n - LA, rd_w(n, 0))); fixed.append((n - LA, rd_w(n, 1)))
        cl, cr, cf, pp = cfg.get('pk', (2, 6, 10, 20))
        at = lambda sg: endb[sg] if sg < 10 else 8*sg - LA + 0.2
        PV = 164
        if cl >= 0: fixed.append((at(cl), self.pack_load(vPs, PV)))
        pa_, pb_ = self.pack_proc(vPc+1, vPr, vPc, PV)
        for i, f in enumerate(pa_): fixed.append((at(cr) + 0.5*i, f))
        for i, f in enumerate(pb_): fixed.append((at(cr) + 9 + 0.5*i, f))
        fixed.append((at(cf), F(lambda: self.flag_store(self.tPackSt, sPD), 8)))
        if pp < 30:
            fixed.append((at(pp-2), F(lambda: self.pack_poll_issue(vPp, vPd))))
            fixed.append((at(pp), F(lambda: self.pack_poll_check(vPp, vPd), 20)))
        else:
            fixed.append((228, F(lambda: self.pack_poll_issue(vPp, vPd))))
        nb_in = cfg.get('f_b2in', 20) if pp < 30 else 0
        b2 = self.b2_loads(1, range(12))
        def epi(grp):
            ops = []
            for u in range(2):
                acc = ACC[grp % 2] + 16*u
                pk = PKR + 8*u
                def stage(r, k):
                    t = V(EP + (r % 8)); a = V(acc + r)
                    return ['v_mul_f32 %s, %s, %s' % (t, S(sNl), a), 'v_exp_f32 %s, %s' % (t, t), 'v_add_f32 %s, 1.0, %s' % (t, t),
                            'v_rcp_f32 %s, %s' % (t, t), 'v_mul_f32 %s, %s, %s' % (a, a, t)][k]
                for tm in range(16 + 6):
                    for k in (4, 3, 2, 1, 0):
                        r = tm - k
                        if 0 <= r < 16: ops.append(stage(r, k))
                    r = tm - 5
                    if 0 <= r < 16 and r % 2 == 1:
                        ops.append('v_cvt_pk_bf16_f32 %s, %s, %s' % (V(pk + r//2), V(acc + r - 1), V(acc + r)))
                        if r in (7, 15):
                            e = r // 8
                            def st(e=e, pk=pk):
                                self.tH = g('buffer_store_dwordx4 %s, %s, %s, 0 offen offset:%d%s' % (V(pk + 4*e, 4), V(vHs), S(sH, 4), 256*e, cfg.get('hst', ' sc1')))
                            ops.append(F(st))
                ops.append('v_add_u32 %s, %d, %s' % (V(vHs), HKS, V(vHs)))
            return ops
        pa = 24 if pk0 else min(40, int(at(cl)) - 1)
        sA = Stream(setup[:n_late], 0, pa - 1)
        fixed.append((pa - 0.1, F(lambda: sA.flush(g), 0)))
        streams = [sA, Stream(setup[n_late:], pa, 78),
                   Stream(b2[:nb_in], max(8*pp, cfg.get('f_b2s', 0)), 236, paced=True, slack=4),
                   Stream(epi(0), 82, 158), Stream(epi(1), 162, 238)]
        if cfg.get('noepi'): streams = streams[:3]
        sched(g, mains, 24, fixed, streams, report=self.rep and 'ffn')
        self.stamp(5)
        if pp >= 30: self.pack_poll_check(vPp, vPd)
        rest = mix(g, self.line_addr(WS_HFLAG, vFa) + epi(2), b2[nb_in:], every=cfg.get('f_pace', 72))
        n2 = cfg.get('f_b2pre', 10)
        g.do(rest[:n2])
        self.flag_store(self.tH, sWS)
        self.stamp(6)
        g.do(rest[n2:])
        self.phase2(1)

    def cpow(self, dst, a, th, n, t0, t1):
        if n is None:
            o = ['v_exp_f32 %s, %s' % (V(t0), V(a)), 'v_rndne_f32 %s, %s' % (V(t1), V(th)), 'v_sub_f32 %s, %s, %s' % (V(t1), V(th), V(t1))]
        else:
            o = ['v_mul_f32 %s, %s, %s' % (V(t0), n, V(a)), 'v_mul_f32 %s, %s, %s' % (V(dst), n, V(th)), 'v_exp_f32 %s, %s' % (V(t0), V(t0)),
                 'v_rndne_f32 %s, %s' % (V(t1), V(dst)), 'v_sub_f32 %s, %s, %s' % (V(t1), V(dst), V(t1))]
        return o + ['v_cos_f32 %s, %s' % (V(dst), V(t1)), 'v_sin_f32 %s, %s' % (V(dst+1), V(t1)),
                    'v_mul_f32 %s, %s, %s' % (V(dst), V(t0), V(dst)), 'v_mul_f32 %s, %s, %s' % (V(dst+1), V(t0), V(dst+1))]

    def ssm(self):
        g = self.g; cfg = self.cfg
        ACC = 16
        def acc(u, part, t): return ACC + 16*u + 8*part + t
        L1 = 96
        CF = 111
        L8S = 126
        L8, L128 = 136, 240
        vXd = [140, 141, 142, 143]; vBd = [144, 145, 146, 147, 148]
        vXr = [149, 150]; vBr = [151, 152, 153, 154]
        vPidx = 155; vHs = 156
        vPr, vPs, vPp, vPd = 157, 158, 159, 13
        BIG = 160
        RAW = 160
        aBF = 0; NF = 12; aXF = 48
        LA = cfg.get('sla', 4); WE = cfg.get('swe', 2); SL = cfg.get('s_sl', 3); RS = 1.4 if SL == 3 else 2.0
        g.label('L_ssm')
        self.x_dma_addr(vXd, True)
        g('s_and_b32 %s, %s, 1' % (S(sT1), S(sWave)))
        g('s_lshl_b32 %s, %s, 1' % (S(sT0), S(sJ1)))
        g('s_add_u32 %s, %s, %s' % (S(sT0), S(sT0), S(sT1)))
        g('s_mul_i32 %s, %s, %d' % (S(sT0), S(sT0), 40*1280))
        g('s_lshl_b32 %s, %s, 6' % (S(sT1), S(sT1)))
        g('v_xor_b32 %s, %s, %s' % (V(vT[4]), S(sT1), V(vT[4])))
        g('v_xor_b32 %s, 64, %s' % (V(vT[5]), V(vT[4])))
        g('v_mul_u32_u24 %s, 1280, %s' % (V(vT[3]), V(vT[0])))
        g('v_add3_u32 %s, %s, %s, %s' % (V(vBd[0]), V(vT[4]), V(vT[3]), S(sT0)))
        g('v_add3_u32 %s, %s, %s, %s' % (V(vT[5]), V(vT[5]), V(vT[3]), S(sT0)))
        for q in range(1, 5):
            g('v_add_u32 %s, %d, %s' % (V(vBd[q]), 8*q*1280 - 1024*(q & 3), V(vT[5] if q & 1 else vBd[0])))
        g('s_lshl_b32 %s, %s, 14' % (S(sMx), S(sWave)))
        g('s_mul_i32 %s, %s, 5120' % (S(sMw), S(sWave)))
        g('s_add_u32 %s, %s, %d' % (S(sMw), S(sMw), S_BR))
        g.do(self.srd_cst(sW, 819200))
        for s in range(1, 10): g.do(self.kb(s))
        tokS = {}
        def dma(s):
            o = ['s_add_u32 m0, %s, %d' % (S(sMx), (s % 4)*4096)]
            for q in range(4): o.append('buffer_load_dwordx4 %s, %s, %s offen offset:%d%s lds' % (V(vXd[q]), S(sX, 4), S(sKb[s]), 1024*q, (' nt' if s < cfg.get('nt0', 0) else '')))
            o.append('s_add_u32 m0, %s, %d' % (S(sMw), (s % 4)*20480))
            nt = ' nt' if s < cfg.get('nt0', 0) else ''
            for q in range(4): o.append('buffer_load_dwordx4 %s, %s, %s offen offset:%d%s lds' % (V(vBd[q]), S(sW, 4), S(sKb[s]), 1024*q, nt))
            o.append('s_add_u32 m0, %s, %d' % (S(sMw), (s % 4)*20480 + 4096))
            def f(): tokS[s] = g('buffer_load_dwordx4 %s, %s, %s offen%s lds' % (V(vBd[4]), S(sW, 4), S(sKb[s]), nt))
            return o + [F(f)]
        self.touch_addr()
        self.ptrs_ready()
        g('s_cmp_lt_u32 %s, 2' % S(sWave))
        g('s_cselect_b32 %s, %s, %s' % (S(sW), S(pBre), S(pBim)))
        g('s_cselect_b32 %s, %s, %s' % (S(sW+1), S(pBre+1), S(pBim+1)))
        g.do(dma(0))
        self.touch()
        g.do(self.srd_ptr(sWS, pWs))
        g('s_load_dword %s, %s, 0' % (S(sNonce), S(pWs, 2)))
        g('v_and_b32 %s, 15, %s' % (V(vT[3]), V(vLane)))
        g('v_bfe_u32 %s, %s, 1, 3' % (V(vT[4]), V(vLane)))
        g('v_xor_b32 %s, %s, %s' % (V(vT[4]), V(vT[4]), V(vT[2])))
        g('v_lshlrev_b32 %s, 4, %s' % (V(vT[4]), V(vT[4])))
        g('v_lshl_add_u32 %s, %s, 7, %s' % (V(vT[4]), V(vT[3]), V(vT[4])))
        g('v_add_u32 %s, %s, %s' % (V(vXr[0]), S(sMx), V(vT[4])))
        g('v_xor_b32 %s, 64, %s' % (V(vXr[1]), V(vXr[0])))
        g('v_add_u32 %s, %d, %s' % (V(vBr[0]), S_BR, V(vT[4])))
        g('v_xor_b32 %s, 64, %s' % (V(vBr[1]), V(vBr[0])))
        g('v_add_u32 %s, 40960, %s' % (V(vBr[2]), V(vBr[0])))
        g('v_add_u32 %s, 40960, %s' % (V(vBr[3]), V(vBr[1])))
        g('s_mul_i32 %s, %s, 160' % (S(sT0), S(sJ1)))
        g('v_lshl_add_u32 %s, %s, 1, %s' % (V(vT[7]), V(vT[3]), S(sT0)))
        g('v_min_u32 %s, 19, %s' % (V(vPidx), V(vLane)))
        g('s_mul_i32 %s, %s, 20' % (S(sT1), S(sWave)))
        g('v_add_u32 %s, %s, %s' % (V(vPidx), S(sT1), V(vPidx)))
        g('v_lshl_add_u32 %s, %s, 1, %s' % (V(vT[6]), V(vPidx), S(sT0)))
        g.do(dma(1))
        parld = []
        for u in range(6):
            for k, p in enumerate((pLre, pLim, pLdt)):
                parld.append('global_load_ushort %s, %s, %s offset:%d' % (V(RAW + 3*u + k), V(vT[7] if u < 5 else vT[6]), S(p, 2), 32*u if u < 5 else 0))
        UP = cfg.get('s_up', 2)
        if UP == 3: g.do(dma(2))
        self.stamp(1)
        setup = self.late_setup(0, vT[0], vT[1], vPp)
        n_late = len(setup)
        setup += self.hbase(5, 48*HKS) + ['v_add_u32 %s, %s, %s' % (V(vHs), S(sKt), V(vL16))]
        setup += self.ks_table(0)
        PT = BIG + 20
        par = ['s_lshl_b32 %s, %s, 2' % (S(sT2), S(sWave)), 'v_add_u32 %s, %s, %s' % (V(vT[2]), S(sT2), V(vT[2])),
               'v_lshlrev_b32 %s, 3, %s' % (V(PT), V(vT[2])), 'v_cvt_f32_u32 %s, %s' % (V(PT), V(PT)),
               'v_mul_u32_u24 %s, 640, %s' % (V(vT[2]), V(vT[2])), 'v_and_b32 %s, 15, %s' % (V(vT[3]), V(vLane)),
               'v_lshlrev_b32 %s, 3, %s' % (V(vT[3]), V(vT[3])), 'v_add_u32 %s, %d, %s' % (V(vT[3]), L_EX, V(vT[3])),
               'v_add_u32 %s, %s, %s' % (V(vT[2]), V(vT[2]), V(vT[3])),
               'v_lshlrev_b32 %s, 3, %s' % (V(vT[4]), V(vPidx)), 'v_add_u32 %s, %d, %s' % (V(vT[4]), L_EX, V(vT[4])),
               's_mul_i32 %s, %s, 20480' % (S(sT2), S(sJ1)), 's_add_u32 %s, %s, %d' % (S(sT2), S(sT2), WS_EBUF),
               'v_lshlrev_b32 %s, 4, %s' % (V(vT[5]), V(vPidx)), 'v_add_u32 %s, %s, %s' % (V(vT[5]), S(sT2), V(vT[5])),
               's_mul_i32 %s, %s, 1280' % (S(sCo), S(sC1))]
        for u in range(6):
            lr, li, ld = RAW + 3*u, RAW + 3*u + 1, RAW + 3*u + 2
            a, th, t0, t1 = PT+1, PT+2, PT+3, PT+4
            par += ['v_lshlrev_b32 %s, 16, %s' % (V(ld), V(ld)), 'v_mul_f32 %s, 0x%x, %s' % (V(ld), LOG2E, V(ld)),
                    'v_exp_f32 %s, %s' % (V(ld), V(ld)), 'v_lshlrev_b32 %s, 16, %s' % (V(lr), V(lr)),
                    'v_cvt_pk_bf16_f32 %s, %s, %s' % (V(ld), V(ld), V(ld)), 'v_lshlrev_b32 %s, 16, %s' % (V(li), V(li)),
                    'v_lshlrev_b32 %s, 16, %s' % (V(ld), V(ld)),
                    'v_mul_f32 %s, %s, %s' % (V(a), V(ld), V(lr)), 'v_mul_f32 %s, %s, %s' % (V(th), V(ld), V(li)),
                    'v_mul_f32 %s, 0x%x, %s' % (V(a), LOG2E, V(a)), 'v_mul_f32 %s, 0.15915494, %s' % (V(th), V(th))]
            if u < 5:
                l1 = L1 + 3*u; cf = CF + 3*u
                par += self.cpow(l1, a, th, None, t0, t1)
                par += self.cpow(L8S + 2*u, a, th, V(PT), t0, t1)
                par += ['v_mul_f32 %s, %s, %s' % (V(th), V(lr), V(lr)), 'v_fmac_f32 %s, %s, %s' % (V(th), V(li), V(li)),
                        'v_rcp_f32 %s, %s' % (V(th), V(th)), 'v_add_f32 %s, -1.0, %s' % (V(a), V(l1)),
                        'v_sub_f32 %s, 0, %s' % (V(l1+2), V(l1+1)),
                        'v_mul_f32 %s, %s, %s' % (V(cf), V(a), V(lr)), 'v_add_f32 %s, %s, %s' % (V(th), V(th), V(th)),
                        'v_fmac_f32 %s, %s, %s' % (V(cf), V(l1+1), V(li)), 'v_mul_f32 %s, %s, %s' % (V(cf+2), V(a), V(li)),
                        'v_fmac_f32 %s, %s, %s' % (V(cf+2), V(l1+2), V(lr)),
                        'v_mul_f32 %s, %s, %s' % (V(cf), V(cf), V(th)), 'v_mul_f32 %s, %s, %s' % (V(cf+2), V(cf+2), V(th)),
                        'v_sub_f32 %s, 0, %s' % (V(cf+1), V(cf+2))]
            else:
                par += self.cpow(L8, a, th, '0x41000000', t0, t1) + self.cpow(L128, a, th, '0x43000000', t0, t1)
                par += ['v_sub_f32 %s, 0, %s' % (V(L8+2), V(L8+1)), 'v_sub_f32 %s, 0, %s' % (V(L128+2), V(L128+1))]

        mains = []; fixed = []
        tokF = {}
        def rd_b(f_):
            sg, s, up = f_ // 20, (f_ % 20)//10, f_ % 10
            u, part = up // 2, up % 2
            def f():
                if cfg.get('s_nord'): tokF[f_] = None; return
                tokF[f_] = g('ds_read_b128 %s, %s offset:%d' % (A(aBF + 4*(f_ % NF), 4), V(vBr[2*((sg % 4)//2) + s]), (sg % 2)*20480 + (part*80 + 16*u)*128))
            return F(f)
        def bar(sg):
            def f():
                g.wait(tokS[sg], tokF.get(20*sg-1) if (SL == 3 and sg + SL <= 9) else None)
                g('s_barrier')
                if sg == 0: self.stamp(2)
                if sg in (2, 4, 6, 8, 9): self.stamp(20 + (2, 4, 6, 8, 9).index(sg), lvl=3)
                if cfg.get('allbar') and sg > 0: self.stamp(19 + sg)
            return F(f, 8)
        for n in range(400):
            f_, m = n // 2, n % 2
            kk, up = f_ // 10, f_ % 10
            u, part = up // 2, up % 2
            d = acc(u, part, 4*m)
            c = '0' if kk == 0 else V(d, 4)
            mains.append(('v_mfma_f32_16x16x32_bf16 %s, %s, %s, %s' % (V(d, 4), A(aXF + 8*(kk % 2) + 4*m, 4), A(aBF + 4*(f_ % NF), 4), c),
                          (lambda f_=f_: [tokF[min(f_+WE-1, 199)]]) if (m == 0 and f_ % WE == 0) else None))
        endb = {}
        for sg in range(10):
            p = 40*sg - 2*LA
            fixed.append((p - 1.5, bar(sg)))
            if sg + SL <= 9:
                d = dma(sg+SL)
                if sg == 0 and UP < SL: d = dma(2) + d
                stp = 36.0/len(d) if len(d) > 12 else 2
                for i, f in enumerate(d): fixed.append((p + 1 + stp*i, f))
                endb[sg] = p + 1 + stp*len(d)
        for f_ in range(200):
            pos = 40*(f_//20) - 2*LA + RS*(f_ % 20)
            if f_ % 10 == 0:
                kk = f_//10; sg, s = kk // 2, kk % 2
                for m in range(2):
                    fixed.append((max(pos - 1, 20*kk - 19) + 0.1*m, 'ds_read_b128 %s, %s offset:%d' % (A(aXF + 8*(kk % 2) + 4*m, 4), V(vXr[s]), (sg % 4)*4096 + 2048*m)))
            fixed.append((pos, rd_b(f_)))
        pla = cfg.get('s_pla', 1)
        for i, f in enumerate(parld): fixed.append((endb[pla] + 0.5*i, f))
        streams = [Stream(setup, 40, 200), Stream(par, 40*(pla+3), 392)]
        if cfg.get('s_nomf'): mains = [('s_nop 0', None)]*400; fixed = [f for f in fixed if not (isinstance(f[1], str) and 'ds_read' in f[1])]
        if cfg.get('s_nostream'): streams = [streams[0]]
        sched(g, mains, 8, fixed, streams, report=self.rep and 'ssm')
        self.stamp(3)

        pace = cfg.get('s_pace', 72)
        b2 = self.b2_loads(0, range(10))
        self.pack_poll_issue(vPp, vPd)
        E = BIG
        ops = []
        for t in range(1, 8):
            src = lambda u, part: (acc(u, part, 0) if t == 1 else E + 10*((t-1) % 2) + 2*u + part)
            dst = lambda u, part: E + 10*(t % 2) + 2*u + part
            for u in range(5):
                ops.append('v_fma_f32 %s, %s, %s, %s' % (V(dst(u, 0)), V(L1+3*u), V(src(u, 0)), V(acc(u, 0, t))))
                ops.append('v_fma_f32 %s, %s, %s, %s' % (V(dst(u, 1)), V(L1+3*u), V(src(u, 1)), V(acc(u, 1, t))))
            for u in range(5):
                ops.append('v_fmac_f32 %s, %s, %s' % (V(dst(u, 0)), V(L1+3*u+2), V(src(u, 1))))
                ops.append('v_fmac_f32 %s, %s, %s' % (V(dst(u, 1)), V(L1+3*u+1), V(src(u, 0))))
        for u in range(5): ops.append('ds_write_b64 %s, %s offset:%d' % (V(vT[2]), V(E + 10 + 2*u, 2), 128*u))
        ops.append(F(lambda: (g.waitcnt(lg=0), g('s_barrier'))))
        P = BIG + 20
        for s in range(16): ops.append('ds_read_b64 %s, %s offset:%d' % (V(P + 2*s, 2), V(vT[4]), 640*s))
        ops += ['v_mov_b32 %s, %s' % (V(P+32), S(sNonce)), 'v_mov_b32 %s, %s' % (V(P+33), S(sNonce))]
        for s in range(1, 16):
            a, b = P + 2*s, P + 2*(s-1)
            ops += ['v_fmac_f32 %s, %s, %s' % (V(a), V(L8), V(b)), 'v_fmac_f32 %s, %s, %s' % (V(a+1), V(L8), V(b+1)),
                    'v_fmac_f32 %s, %s, %s' % (V(a), V(L8+2), V(b+1)), 'v_fmac_f32 %s, %s, %s' % (V(a+1), V(L8+1), V(b))]
        ops.append('buffer_store_dwordx4 %s, %s, %s, %s offen sc1' % (V(P+30, 4), V(vT[5]), S(sWS, 4), S(sCo)))
        g.do(ops)
        self.stamp(4)
        GX, GW = BIG + 56, BIG
        ops = ['s_lshl_b32 %s, %s, 3' % (S(sT0), S(sC1)), 's_add_u32 %s, %s, %s' % (S(sT0), S(sT0), S(sJ1)),
               's_lshl_b32 %s, %s, 4' % (S(sT0), S(sT0)),
               'v_lshrrev_b32 %s, 4, v0' % V(vT[8]), 'v_add_u32 %s, %s, %s' % (V(vT[8]), S(sT0), V(vT[8])),
               'v_and_b32 %s, 15, %s' % (V(vT[0]), V(vLane)), 'v_lshlrev_b32 %s, 4, %s' % (V(vT[0]), V(vT[0])),
               'v_mul_u32_u24 %s, 1280, %s' % (V(vT[1]), V(vT[8])), 'v_add_u32 %s, %s, %s' % (V(vT[1]), V(vT[1]), V(vT[0]))]
        for i in range(5):
            ops.append('buffer_load_dwordx4 %s, %s, %s, 0 offen offset:%d' % (V(GX + 4*i, 4), V(vT[1]), S(sX, 4), 256*i))
            ops.append('global_load_dwordx4 %s, %s, %s offset:%d' % (V(GW + 4*i, 4), V(vT[0]), S(pGate, 2), 256*i))
        ops += ['v_mov_b32 %s, 0' % V(vT[6]), 'v_mov_b32 %s, 0' % V(vT[7]), 'ds_write_b64 %s, %s' % (V(vT[4]), V(vT[6], 2))]
        for s in range(1, 16): ops.append('ds_write_b64 %s, %s offset:%d' % (V(vT[4]), V(P + 2*(s-1), 2), 640*s))
        g.do(ops + self.line_addr(WS_HFLAG, vFa))
        self.pack_poll_check(vPp, vPd)
        ops = []
        TT = 140
        for u in range(5):
            cf = CF + 3*u
            for t0 in range(0, 8, 4):
                for t in range(t0, t0+4): ops.append('v_mul_f32 %s, %s, %s' % (V(TT + t % 4), V(cf+1), V(acc(u, 0, t))))
                for t in range(t0, t0+4): ops.append('v_mul_f32 %s, %s, %s' % (V(acc(u, 0, t)), V(cf), V(acc(u, 0, t))))
                for t in range(t0, t0+4): ops.append('v_fmac_f32 %s, %s, %s' % (V(acc(u, 0, t)), V(cf+2), V(acc(u, 1, t))))
                for t in range(t0, t0+4): ops.append('v_fma_f32 %s, %s, %s, %s' % (V(acc(u, 1, t)), V(cf), V(acc(u, 1, t)), V(TT + t % 4)))
        Z = TT + 8; ONE = TT + 9
        ops += ['v_mov_b32 %s, 0' % V(Z), 'v_mov_b32 %s, 0x3f803f80' % V(ONE), 's_mov_b32 %s, 0xffff0000' % S(sT1)]
        for i in range(20):
            x, w = V(GX + i), V(GW + i)
            a, b, c, d = (V(TT + k + 4*(i % 2)) for k in range(4))
            ops += ['v_lshlrev_b32 %s, 16, %s' % (a, x), 'v_and_b32 %s, %s, %s' % (b, S(sT1), x),
                    'v_lshlrev_b32 %s, 16, %s' % (c, w), 'v_and_b32 %s, %s, %s' % (d, S(sT1), w),
                    'v_mul_f32 %s, %s, %s' % (a, a, c), 'v_mul_f32 %s, %s, %s' % (b, b, d),
                    'v_cvt_pk_bf16_f32 %s, %s, %s' % (a, a, b),
                    'v_dot2_f32_bf16 %s, %s, %s, %s' % (V(Z), a, V(ONE), V(Z))]
        for k in (8, 4, 2, 1):
            ops.append('v_add_f32_dpp %s, %s, %s row_ror:%d row_mask:0xf bank_mask:0xf' % (V(Z), V(Z), V(Z), k))
        G4 = TT + 10
        ops += ['v_cvt_pk_bf16_f32 %s, %s, %s' % (V(Z), V(Z), V(Z)), 'v_lshlrev_b32 %s, 16, %s' % (V(Z), V(Z)),
                'v_mul_f32 %s, 0x%x, %s' % (V(Z), NLOG2E, V(Z)), 'v_exp_f32 %s, %s' % (V(Z), V(Z)),
                'v_mov_b32 %s, %s' % (V(G4+1), S(sNonce)),
                'v_add_f32 %s, 1.0, %s' % (V(Z), V(Z)), 'v_rcp_f32 %s, %s' % (V(Z), V(Z)),
                'v_mov_b32 %s, %s' % (V(G4+3), S(sNonce)),
                'v_cvt_pk_bf16_f32 %s, %s, %s' % (V(Z), V(Z), V(Z)), 'v_lshlrev_b32 %s, 16, %s' % (V(G4), V(Z)),
                'v_sub_f32 %s, 1.0, %s' % (V(ONE), V(G4)),
                'v_cvt_pk_bf16_f32 %s, %s, %s' % (V(ONE), V(ONE), V(ONE)), 'v_lshlrev_b32 %s, 16, %s' % (V(G4+2), V(ONE)),
                'v_lshlrev_b32 %s, 4, %s' % (V(vT[8]), V(vT[8])), 'v_add_u32 %s, %d, %s' % (V(vT[8]), WS_GATE, V(vT[8])),
                'buffer_store_dwordx4 %s, %s, %s, 0 offen sc1' % (V(G4, 4), V(vT[8]), S(sWS, 4))]
        b2 = mix(g, ops, b2, every=pace, lead=cfg.get('s_lead', 0))
        self.stamp(5)
        GR = BIG
        def gather():
            for d in range(1, 16):
                r = GR + 4*(d-1)
                g('s_sub_u32 %s, %s, %d' % (S(sT0), S(sCo), 1280*d))
                g('s_cselect_b32 %s, 0x7f000000, %s' % (S(sT0), S(sT0)))
                g('v_add_u32 %s, %s, %s' % (V(r), S(sT0), V(vT[5])))
                g('buffer_load_dwordx3 %s, %s, %s, 0 offen sc1' % (V(r, 3), V(r), S(sWS, 4)))
        def gcheck():
            for d in range(15, 0, -1):
                r = GR + 4*(d-1)
                g('s_cmp_ge_u32 %s, %d' % (S(sC1), d))
                g('s_cselect_b32 %s, %s, 0' % (S(sT0), S(sNonce)))
                if d == 15: g('v_xor_b32 %s, %s, %s' % (V(vT[0]), S(sT0), V(r+2)))
                else:
                    g('v_xor_b32 %s, %s, %s' % (V(vT[1]), S(sT0), V(r+2)))
                    g('v_or_b32 %s, %s, %s' % (V(vT[0]), V(vT[0]), V(vT[1])))
            g('v_cmp_ne_u32 vcc, 0, %s' % V(vT[0]))
            g('s_nop 0')
            g('s_cmp_eq_u64 vcc, 0')
        gather()
        ng = cfg.get('s_b2g', 8)
        g.do(b2[:ng]); b2 = b2[ng:]
        g('v_and_b32 %s, 15, %s' % (V(vT[6]), V(vLane)))
        g('v_mul_u32_u24 %s, 80, %s' % (V(vT[6]), V(vT[6])))
        g('v_lshrrev_b32 %s, 4, %s' % (V(vT[7]), V(vLane)))
        g('v_lshl_add_u32 %s, %s, 4, %s' % (V(vT[6]), V(vT[7]), V(vT[6])))
        g('v_add_u32 %s, %s, %s' % (V(vT[6]), S(sMx), V(vT[6])))
        g('v_bfe_u32 %s, %s, 2, 2' % (V(vT[8]), V(vLane)))
        g('v_lshl_add_u32 %s, %s, 3, %s' % (V(vT[7]), V(vT[7]), V(vT[8])))
        g('v_mul_u32_u24 %s, 80, %s' % (V(vT[7]), V(vT[7])))
        g('v_and_b32 %s, 3, %s' % (V(vT[8]), V(vLane)))
        g('v_lshl_add_u32 %s, %s, 3, %s' % (V(vT[7]), V(vT[8]), V(vT[7])))
        g('v_add_u32 %s, %s, %s' % (V(vT[7]), S(sMx), V(vT[7])))
        self.poll('carry', gather, gcheck)
        self.stamp(6)
        ops = []
        for d in range(14, 0, -1):
            a, b = GR + 4*(d-1), GR + 4*d
            ops += ['v_fmac_f32 %s, %s, %s' % (V(a), V(L128), V(b)), 'v_fmac_f32 %s, %s, %s' % (V(a+1), V(L128), V(b+1)),
                    'v_fmac_f32 %s, %s, %s' % (V(a), V(L128+2), V(b+1)), 'v_fmac_f32 %s, %s, %s' % (V(a+1), V(L128+1), V(b))]
        ops.append('ds_write_b64 %s, %s offset:10240' % (V(vT[4]), V(GR, 2)))
        ops.append(F(lambda: (g.waitcnt(lg=0), g('s_barrier'))))
        SS, PP, II = 140, 242, 126
        for u in range(5):
            ops.append('ds_read_b64 %s, %s offset:%d' % (V(SS + 2*u, 2), V(vT[3]), 10240 + 128*u))
            ops.append('ds_read_b64 %s, %s offset:%d' % (V(PP + 2*u, 2), V(vT[2]), 128*u))
        b2 = mix(g, ops, b2, every=pace)
        ops = []
        for u in range(5):
            ops += ['v_fmac_f32 %s, %s, %s' % (V(PP+2*u), V(L8S+2*u), V(SS+2*u)), 'v_fmac_f32 %s, %s, %s' % (V(PP+2*u+1), V(L8S+2*u), V(SS+2*u+1))]
        for u in range(5):
            ops += ['v_fma_f32 %s, -%s, %s, %s' % (V(PP+2*u), V(L8S+2*u+1), V(SS+2*u+1), V(PP+2*u)), 'v_fmac_f32 %s, %s, %s' % (V(PP+2*u+1), V(L8S+2*u+1), V(SS+2*u))]
        for u in range(5):
            ops += ['v_mul_f32 %s, %s, %s' % (V(II+2*u), V(CF+3*u), V(PP+2*u)), 'v_mul_f32 %s, %s, %s' % (V(II+2*u+1), V(CF+3*u), V(PP+2*u+1))]
        for u in range(5):
            ops += ['v_fmac_f32 %s, %s, %s' % (V(II+2*u), V(CF+3*u+2), V(PP+2*u+1)), 'v_fmac_f32 %s, %s, %s' % (V(II+2*u+1), V(CF+3*u+1), V(PP+2*u))]
        PKB = [112, 140]
        FRB = [148, 240]
        def scan_ops(us):
            o = []
            for t in range(8):
                pr = lambda u, part: (II + 2*u + part if t == 0 else acc(u, part, t-1))
                for u in us:
                    o.append('v_fmac_f32 %s, %s, %s' % (V(acc(u, 0, t)), V(L1+3*u), V(pr(u, 0))))
                    o.append('v_fmac_f32 %s, %s, %s' % (V(acc(u, 1, t)), V(L1+3*u), V(pr(u, 1))))
                for u in us:
                    o.append('v_fmac_f32 %s, %s, %s' % (V(acc(u, 0, t)), V(L1+3*u+2), V(pr(u, 1))))
                    o.append('v_fmac_f32 %s, %s, %s' % (V(acc(u, 1, t)), V(L1+3*u+1), V(pr(u, 0))))
            return o
        def out_a(u):
            o = []
            pk = PKB[u % 2]
            for i in range(4): o.append('v_cvt_pk_bf16_f32 %s, %s, %s' % (V(pk+i), V(acc(u, 0, 2*i)), V(acc(u, 0, 2*i+1))))
            o.append('ds_write_b128 %s, %s offset:%d' % (V(vT[6]), V(pk, 4), 2560*u))
            for i in range(4): o.append('v_cvt_pk_bf16_f32 %s, -%s, -%s' % (V(pk+4+i), V(acc(u, 1, 2*i)), V(acc(u, 1, 2*i+1))))
            o.append('ds_write_b128 %s, %s offset:%d' % (V(vT[6]), V(pk+4, 4), 2560*u + 1280))
            fr = FRB[u % 2]
            for m in range(2):
                for e in range(2):
                    o.append('ds_read_b64_tr_b16 %s, %s offset:%d' % (V(fr + 4*m + 2*e, 2), V(vT[7]), 2560*u + 320*e + 32*m))
            return o
        def out_b(u):
            fr = FRB[u % 2]
            def f():
                for m in range(2):
                    self.tH = g('buffer_store_dwordx4 %s, %s, %s, 0 offen offset:%d%s' % (V(fr + 4*m, 4), V(vHs), S(sH, 4), 1024*m, cfg.get('hst', ' sc1')))
                g('v_add_u32 %s, %d, %s' % (V(vHs), HKS, V(vHs)))
            return F(f, 12)
        def ilv(a, b):
            o = []; k = 0
            for i, x in enumerate(a):
                o.append(x)
                while k < len(b) and k*len(a) < (i+1)*len(b): o.append(b[k]); k += 1
            return o
        ops += scan_ops([0]) + ilv(scan_ops([1]), out_a(0)) + ilv(scan_ops([2]), out_a(1) + [out_b(0)]) \
            + ilv(scan_ops([3]), out_a(2) + [out_b(1)]) + ilv(scan_ops([4]), out_a(3) + [out_b(2)]) + out_a(4) + [out_b(3), out_b(4)]
        rest = mix(g, ops, b2, every=pace)
        n2 = cfg.get('s_b2pre', 8)
        g.do(rest[:n2])
        self.flag_store(self.tH, sWS)
        self.stamp(7)
        g.do(rest[n2:])
        self.phase2(0)

    def phase2(self, role):
        g = self.g; cfg = self.cfg
        tb, ta = tabs(role); NS = len(tb)
        hA, hB = (1, 0) if role else (0, 1)
        vHp, vHd, vRw = 4, 5, 6
        vRd = [7, 8, 9, 10, 11]; vOa = [12, 13, 14, 15, 0]
        RD, GA, GB, XD, RXB, DS = 160, 192, 202, 212, 232, 242
        vGr, RXA, T = 160, 170, 180
        vXf, vXv = 252, 253
        sXo, sXi, sM = sItem, sMx, sMw
        g('s_and_b32 %s, %s, 0x63' % (S(sT0), S(sIdx)))
        g('s_lshl_b32 %s, %s, 3' % (S(sT1), S(sWave)))
        g('s_add_u32 %s, %s, %s' % (S(sT0), S(sT0), S(sT1)))
        g('s_lshl_b32 %s, %s, 7' % (S(sT0), S(sT0)))
        g('s_add_u32 %s, %s, %d' % (S(sT0), S(sT0), WS_HFLAG + role*16384))
        g('v_bfe_u32 %s, %s, 2, 1' % (V(vHp), V(vLane)))
        g('v_lshlrev_b32 %s, 9, %s' % (V(vHp), V(vHp)))
        g('v_and_b32 %s, 3, %s' % (V(vHd), V(vLane)))
        g('v_lshl_add_u32 %s, %s, 2, %s' % (V(vHp), V(vHd), V(vHp)))
        g('v_add_u32 %s, %s, %s' % (V(vHp), S(sT0), V(vHp)))
        hp = lambda: g('buffer_load_dword %s, %s, %s, 0 offen sc1' % (V(vHd), V(vHp), S(sWS, 4)))
        if not cfg.get('presetup', 1): hp()
        def a2(n):
            half = hA if n < NS else hB
            return ['buffer_load_dwordx4 %s, %s, %s, %s offen offset:%d%s' % (V(A2R + 16*(n % 4) + 4*rt, 4), V(vL16b if half else vL16), S(sH, 4), S(ta[n % NS]), 1024*rt, cfg.get('a2sc', ' sc1')) for rt in range(4)]
        mains = []; fixed = []
        def tile(rt, nt): return ACC2 + 4*(rt*5 + nt)
        for n in range(2*NS):
            base = B2slot(role, n % NS)
            for rt in range(4):
                for nt in range(5):
                    c = '0' if n % NS == 0 else V(tile(rt, nt), 4)
                    mains.append(('v_mfma_f32_16x16x32_bf16 %s, %s, %s, %s' % (V(tile(rt, nt), 4), A(base + 4*nt, 4), V(A2R + 16*(n % 4) + 4*rt, 4), c), None))
        for n in range(2*NS - 3):
            for i, f in enumerate(a2(n+3)): fixed.append((20*n + 1 + 5*i, f))
        PA, PE = 20*NS, 40*NS
        for k, p in enumerate((20, 80, 140, PA, PA + 40, PA + 100, PA + 140, PE - 60)): fixed.append((p - 0.1, F(lambda k=k: self.stamp(11+k, lvl=3), 0)))
        ops = ['s_lshl_b32 %s, %s, 3' % (S(sT0), S(sC1)), 's_add_u32 %s, %s, %s' % (S(sT0), S(sT0), S(sWave)),
               's_lshl_b32 %s, %s, 4' % (S(sT0), S(sT0)),
               's_mul_i32 %s, %s, 160' % (S(sT1), S(sJ1)), 's_mul_i32 %s, %s, 5440' % (S(sT2), S(sWave)),
               's_mov_b32 %s, 0xffff0000' % S(sM), 's_mov_b32 %s, 81920' % S(sT3)]
        def gload(q, h): return 'buffer_load_dwordx2 %s, %s, %s, 0 offen offset:%d sc1' % (V((GA if h == hA else GB) + 2*q, 2), V(vGr + q), S(sWS, 4), 1024*h)
        for q in range(5):
            e, row, ch, t3 = V(T), V(T+1), V(T+2), V(T+3)
            ops += ['v_add_u32 %s, %d, %s' % (e, 64*q, V(vLane)),
                    'v_mul_u32_u24 %s, 3277, %s' % (row, e), 'v_lshrrev_b32 %s, 16, %s' % (row, row),
                    'v_mul_u32_u24 %s, 20, %s' % (ch, row), 'v_sub_u32 %s, %s, %s' % (ch, e, ch),
                    'v_lshrrev_b32 %s, 2, %s' % (t3, ch), 'v_mul_u32_u24 %s, 1088, %s' % (V(vRd[q]), t3),
                    'v_and_b32 %s, 3, %s' % (t3, ch), 'v_mul_u32_u24 %s, 272, %s' % (t3, t3),
                    'v_add3_u32 %s, %s, %s, %s' % (V(vRd[q]), V(vRd[q]), t3, S(sT2)),
                    'v_lshl_add_u32 %s, %s, 4, %s' % (V(vRd[q]), row, V(vRd[q])),
                    'v_add_u32 %s, %s, %s' % (row, S(sT0), row),
                    'v_lshl_add_u32 %s, %s, 3, %s' % (ch, ch, S(sT1)),
                    'v_mul_u32_u24 %s, 1280, %s' % (e, row), 'v_add_u32 %s, %s, %s' % (e, e, ch)]
            if role == 0:
                ops += ['global_load_dwordx2 %s, %s, %s' % (V(DS + 2*q, 2), ch, S(pDsk, 2)),
                        'buffer_load_dwordx2 %s, %s, %s, 0 offen' % (V(RXA + 2*q, 2), e, S(sX, 4)),
                        'buffer_load_dwordx2 %s, %s, %s, %s offen' % (V(RXB + 2*q, 2), e, S(sX, 4), S(sT3)),
                        'v_add_u32 %s, %s, %s' % (e, S(sT3), e)]
            ops += ['v_lshlrev_b32 %s, 1, %s' % (V(vOa[q]), e),
                    'v_lshlrev_b32 %s, 4, %s' % (row, row), 'v_add_u32 %s, %d, %s' % (V(vGr + q), WS_GATE + 8*role, row),
                    gload(q, 0), gload(q, 1)]
        ops += ['s_mul_i32 %s, %s, 21760' % (S(sT0), S(sWave)),
                'v_lshrrev_b32 %s, 4, %s' % (V(vRw), V(vLane)), 'v_mul_u32_u24 %s, 272, %s' % (V(vRw), V(vRw)),
                'v_and_b32 %s, 15, %s' % (V(T+1), V(vLane)), 'v_lshl_add_u32 %s, %s, 4, %s' % (V(vRw), V(T+1), V(vRw)),
                'v_add_u32 %s, %s, %s' % (V(vRw), S(sT0), V(vRw)),
                's_lshl_b32 %s, %s, 2' % (S(sT0), S(sIdx)), 's_add_u32 %s, %s, %s' % (S(sT0), S(sT0), S(sWave)),
                's_mul_i32 %s, %s, 5120' % (S(sT0), S(sT0)),
                's_add_u32 %s, %s, 0x%x' % (S(sXo), S(sT0), WS_X + role*128*20480), 's_add_u32 %s, %s, 0x%x' % (S(sXi), S(sT0), WS_X + (1-role)*128*20480)]
        ops += self.line_addr(WS_XFLAG, vXf) + ['v_mov_b32 %s, %s' % (V(vXv), S(sNonce))]
        if cfg.get('presetup', 1):
            g.do(ops); ops = []
            hp()
        g('s_barrier')
        self.poll('hf', hp, self.check_eq([vHd]))
        self.stamp(8)
        for n in range(3): g.do(a2(n))
        ops.append('v_xor_b32 %s, 0x4000, %s' % (V(vHp), V(vXf)))
        def xd_ops(RX):
            o = []
            for q in range(5):
                for h in range(2):
                    x, d = V(RX + 2*q + h), V(DS + 2*q + h)
                    a, b, c, dd = V(T), V(T+1), V(T+2), V(T+3)
                    o += ['v_lshlrev_b32 %s, 16, %s' % (a, x), 'v_and_b32 %s, %s, %s' % (b, S(sM), x),
                          'v_lshlrev_b32 %s, 16, %s' % (c, d), 'v_and_b32 %s, %s, %s' % (dd, S(sM), d),
                          'v_mul_f32 %s, %s, %s' % (a, a, c), 'v_mul_f32 %s, %s, %s' % (b, b, dd),
                          'v_cvt_pk_bf16_f32 %s, %s, %s' % (a, a, b),
                          'v_lshlrev_b32 %s, 16, %s' % (V(XD + 4*q + 2*h), a), 'v_and_b32 %s, %s, %s' % (V(XD + 4*q + 2*h + 1), S(sM), a)]
            return o
        s0 = Stream(ops, 2, 100)
        def gall():
            for q in range(5):
                for h in range(2): g(gload(q, h))
        gp = 30 if cfg.get('presetup', 1) else 130
        fixed.append((gp, F(lambda: (s0.flush(g), self.poll('gt', gall, self.check_eq([r + 2*q + 1 for q in range(5) for r in (GA, GB)], T+4, T+5))), 90)))
        streams = [s0]
        if role == 0:
            streams += [Stream(xd_ops(RXA), gp + 2, PA - 4), Stream(xd_ops(RXB), PA + 112, PE - 22)]
        for base in (PA, PE):
            for j in range(20):
                fixed.append((base - 15 + (1.65*j if base == PA else j), 'ds_write_b128 %s, %s offset:%d' % (V(vRw), V(ACC2 + 4*j, 4), 1088*j)))
        mb = PA + 24
        fixed.append((mb - 0.5, F(lambda: (g.waitcnt(lg=0), g('s_barrier')), 8)))
        def rds(q): return ['ds_read_b128 %s, %s offset:%d' % (V(RD + 16*(q % 2) + 4*src, 4), V(vRd[q]), 21760*src) for src in range(4)]
        for i, f in enumerate(rds(0) + rds(1)): fixed.append((mb + i, f))
        for q in range(5):
            p = mb + 12 + 13*q; r0 = RD + 16*(q % 2); o = []
            for src in range(4):
                for r in range(4):
                    if role == 1 and src == 0: continue
                    a = V(r0 + r) if (role == 1 and src == 1) else V(XD + 4*q + r)
                    o.append('v_add_f32 %s, %s, %s' % (V(XD + 4*q + r), a, V(r0 + 4*src + r)))
            nadd = len(o)
            for r in range(4): o.append('v_mul_f32 %s, %s, %s' % (V(XD + 4*q + r), V(GA + 2*q), V(XD + 4*q + r)))
            def st(q=q):
                self.tX = g('buffer_store_dwordx4 %s, %s, %s, %s offen offset:%d sc1' % (V(XD + 4*q, 4), V(vL16 if q < 4 else vL16b), S(sWS, 4), S(sXo), 1024*(q & 3)))
            o.append(F(st))
            for i, f in enumerate(o): fixed.append((p + i*0.55, f))
            if q + 2 < 5:
                for i, f in enumerate(rds(q+2)): fixed.append((p + nadd*0.55 + 0.1 + i, f))
        fixed.append((PA + 112, 's_barrier'))
        fixed.append((PA + cfg.get('xf_at', 150), F(lambda: (g.wait(self.tX), g('buffer_store_dword %s, %s, %s, 0 offen sc1' % (V(vXv), V(vXf), S(sWS, 4)))), 8)))
        xp = cfg.get('xp_at', 0)
        fixed.append((PE - xp - 30, F(hp)))
        def upd():
            g.vm, g.lg, g.smem = [], [], []
            g.label('L_upd')
            g('s_mov_b32 %s, 0x%x' % (S(sT4), cfg.get('spin', 1 << 18)))
            g.label('L_upd_loop')
            g('s_sub_u32 %s, %s, 1' % (S(sT4), S(sT4)))
            g('s_cmp_eq_u32 %s, 0' % S(sT4))
            g('s_cbranch_scc1 L_upd_go')
            g('v_lshlrev_b32 %s, 3, %s' % (V(RD), V(vL16)))
            for i in range(4):
                g('s_mov_b32 %s, %d' % (S(sT0), (WS_PFLAG + 16384 if i < 2 else WS_HFLAG) + 8192*(i & 1)))
                g('buffer_load_dword %s, %s, %s, %s offen sc1' % (V(RD+2+i), V(RD), S(sWS, 4), S(sT0)))
            g('s_waitcnt vmcnt(0)'); g.vm = []
            self.check_eq([RD+2, RD+3, RD+4, RD+5], RD, RD+1)()
            g('s_nop 7')
            g('s_cbranch_scc0 L_upd_loop')
            g.label('L_upd_go')
            g('v_mov_b32 %s, 0' % V(RD))
            g('buffer_store_dword %s, %s, %s, 0 offen sc1' % (V(vXv), V(RD), S(sWS, 4)))
            g('s_waitcnt vmcnt(0)'); g.vm = []
            g('s_nop 7')
            g('s_branch L_upd_done')
        def recv():
            if role == 1:
                g('s_lshl_b32 %s, %s, 8' % (S(sT0), S(sWave)))
                g('s_add_u32 %s, %s, s2' % (S(sT0), S(sT0)))
                g('s_cmp_eq_u32 %s, 1' % S(sT0))
                g('s_cbranch_scc1 L_upd')
                g.label('L_upd_done')
                self.tail.append(upd)
            self.poll('xf', hp, self.check_eq([vHd]))
            for q in range(5):
                g('buffer_load_dwordx4 %s, %s, %s, %s offen offset:%d sc1' % (V(RD + 4*q, 4), V(vL16 if q < 4 else vL16b), S(sWS, 4), S(sXi), 1024*(q & 3)))
        if xp > 0: fixed.append((PE - xp, F(recv, 40)))
        sched(g, mains, 8, fixed, streams, report=self.rep and 'p2')
        if xp <= 0: recv()
        self.stamp(9)
        g.waitcnt(lg=0)
        g('s_barrier')
        for q in range(5):
            for src in range(4):
                g('ds_read_b128 %s, %s offset:%d' % (V(ACC2 + 16*q + 4*src, 4), V(vRd[q]), 21760*src))
        osc = cfg.get('osc', '')
        for q in range(5):
            for src in range(4):
                for r in range(4):
                    if role == 1 and src == 0: continue
                    a = V(ACC2 + 16*q + r) if (role == 1 and src == 1) else V(XD + 4*q + r)
                    g('v_add_f32 %s, %s, %s' % (V(XD + 4*q + r), a, V(ACC2 + 16*q + 4*src + r)))
            for r in range(4):
                g('v_fmac_f32 %s, %s, %s' % (V(RD + 4*q + r), V(GB + 2*q), V(XD + 4*q + r)))
            g('buffer_store_dwordx4 %s, %s, %s, 0 offen%s' % (V(RD + 4*q, 4), V(vOa[q]), S(sOUT, 4), osc))
        self.finish(role)

    def finish(self, role):
        g = self.g
        if self.cfg.get('stamps'):
            g.waitall()
            self.stamp(10)
            self.stamp(31, 's_memtime')
            g('s_lshl_b32 %s, s2, 2' % S(sT0))
            g('s_add_u32 %s, %s, %s' % (S(sT0), S(sT0), S(sWave)))
            g('s_lshl_b32 %s, %s, 7' % (S(sT0), S(sT0)))
            g('s_add_u32 %s, %s, %d' % (S(sT0), S(sT0), WS_STAMP))
            g('v_lshlrev_b32 v4, 2, %s' % V(vLane))
            g('s_mov_b32 exec_hi, 0')
            g('buffer_store_dword %s, v4, %s, %s offen' % (V(vStamp), S(sWS, 4), S(sT0)))
        if role == 0: g.label('L_exit')
        g('s_endpgm')
        g.hist = []

    def build(self):
        g = self.g
        self.prologue()
        st = g.state()
        self.ffn()
        g.vm, g.lg, g.smem = list(st[0]), list(st[1]), list(st[2])
        self.ssm()
        g.raw('L_codeend:')
        for f in self.tail: f()
        hdr = open('gated_mix__ssm_conv_s5__dense_activation_silu__prompt.s.ref').read()
        top = hdr[:hdr.index('; Override launch geometry')]
        txt = top + '; Generated by a hand-written generator script (straight-line schedule, one fused launch).\n'
        txt += '; @launch grid=(256,1,1) block=(256,1,1) lds=163840\n'
        txt += '.amdgcn_target "amdgcn-amd-amdhsa--gfx950"\n.text\n.globl %s\n.p2align 8\n.type %s,@function\n%s:\n' % (KNAME, KNAME, KNAME)
        txt += g.text()
        txt += '''.section .rodata,"a"
.p2align 6
.amdhsa_kernel %s
  .amdhsa_next_free_vgpr 512
  .amdhsa_next_free_sgpr 102
  .amdhsa_accum_offset 256
  .amdhsa_group_segment_fixed_size 0
  .amdhsa_kernarg_size 128
  .amdhsa_user_sgpr_count 2
  .amdhsa_user_sgpr_kernarg_segment_ptr 1
  .amdhsa_system_sgpr_workgroup_id_x 1
.end_amdhsa_kernel
''' % KNAME
        return txt

def make(cfg=None):
    k = K(cfg or {})
    return k.build(), k

if __name__ == '__main__':
    import json
    cfg = json.loads(sys.argv[2]) if len(sys.argv) > 2 else {}
    cfg['report'] = 1
    txt, k = make(cfg)
    open(sys.argv[1], 'w').write(txt)
    print(k.g.stats, 'nops', k.g.nnop, 'bytes', len(txt))
```

```python
import re

def expand(tok):
    tok = tok.strip()
    if tok.startswith('-'): tok = tok[1:]
    m = re.fullmatch(r'abs\((.*)\)', tok)
    if m: tok = m.group(1)
    m = re.fullmatch(r'([vas])\[(\d+):(\d+)\]', tok)
    if m: return ['%s%d' % (m.group(1), i) for i in range(int(m.group(2)), int(m.group(3))+1)]
    if re.fullmatch(r'[vas]\d+', tok): return [tok]
    if tok in ('vcc', 'exec', 'm0'): return [tok]
    if tok in ('vcc_lo', 'vcc_hi'): return ['vcc']
    if tok in ('exec_lo', 'exec_hi'): return ['exec']
    return []

TRANS = ('v_exp_f32', 'v_log_f32', 'v_rcp_f32', 'v_rsq_f32', 'v_sqrt_f32', 'v_sin_f32', 'v_cos_f32')

class Ins:
    __slots__ = ('text', 'op', 'kind', 'rd', 'wr', 'ws', 'passes', 'srcC', 'srcAB', 'sdata', 'dpp', 'wide')
    def __init__(self, text):
        self.text = text
        t = text.split(';')[0].strip()
        t = re.sub(r'\s+(op_sel|op_sel_hi|neg_lo|neg_hi):\[[^\]]*\]', '', t)
        parts = t.split(None, 1)
        op = parts[0]; self.op = op
        ops = []
        if len(parts) > 1:
            ops = [x.strip() for x in parts[1].split(',')]
        mods = ''
        if ops:
            last = ops[-1].split(None, 1)
            if len(last) > 1: ops[-1] = last[0]; mods = last[1]
        self.rd = []; self.wr = []; self.ws = 1; self.passes = 0; self.srcC = []; self.srcAB = []; self.sdata = []
        self.dpp = ('_dpp' in op) or ('row_' in mods) or ('quad_perm' in mods)
        self.wide = False
        E = expand
        base = re.sub(r'_(e32|e64|dpp|sdwa)$', '', op)
        if op.startswith('v_mfma'):
            self.kind = 'mfma'; self.passes = 8 if '32x32' in op else 4
            self.wr = E(ops[0]); self.srcAB = E(ops[1]) + E(ops[2]); self.srcC = E(ops[3]); self.rd = self.srcAB + self.srcC
        elif op.startswith('v_cmp'):
            self.kind = 'valu'; self.wr = E(ops[0]); self.rd = sum((E(o) for o in ops[1:]), [])
            if op.startswith('v_cmpx'): self.wr = self.wr + ['exec']
        elif base in ('v_readfirstlane_b32', 'v_readlane_b32'):
            self.kind = 'valu'; self.wr = E(ops[0]); self.rd = sum((E(o) for o in ops[1:]), [])
        elif base.startswith('v_permlane'):
            self.kind = 'valu'; self.wr = E(ops[0]) + E(ops[1]); self.rd = list(self.wr)
        elif base in ('v_add_co_u32', 'v_sub_co_u32', 'v_addc_co_u32', 'v_subb_co_u32'):
            self.kind = 'valu'; self.wr = E(ops[0]) + E(ops[1]); self.rd = sum((E(o) for o in ops[2:]), [])
        elif op.startswith('v_'):
            self.kind = 'trans' if base in TRANS else 'valu'
            self.wr = E(ops[0]); self.rd = sum((E(o) for o in ops[1:]), [])
            if base in ('v_fmac_f32', 'v_dot2c_f32_bf16', 'v_pk_fmac_f16', 'v_writelane_b32') or self.dpp: self.rd = self.rd + self.wr
            if op == 'v_nop': self.wr = []; self.rd = []
        elif op.startswith('ds_bpermute'):
            self.kind = 'dsr'; self.wr = E(ops[0]); self.rd = E(ops[1]) + E(ops[2])
        elif op.startswith('ds_read'):
            self.kind = 'dsr'; self.wr = E(ops[0]); self.rd = E(ops[1])
        elif op.startswith('ds_write') or op.startswith('ds_add'):
            self.kind = 'dsw'; self.rd = sum((E(o) for o in ops), []); self.sdata = sum((E(o) for o in ops[1:]), [])
        elif op.startswith('buffer_load'):
            if re.search(r'\blds\b', mods):
                self.kind = 'dma'; self.rd = sum((E(o) for o in ops), []) + ['m0']
            else:
                self.kind = 'vload'; self.wr = E(ops[0]); self.rd = sum((E(o) for o in ops[1:]), [])
        elif op.startswith('buffer_store'):
            self.kind = 'vstore'; self.rd = sum((E(o) for o in ops), []); self.sdata = E(ops[0]); self.wide = len(self.sdata) > 2
        elif op.startswith('global_load'):
            self.kind = 'vload'; self.wr = E(ops[0]); self.rd = sum((E(o) for o in ops[1:]), [])
        elif op.startswith('global_store'):
            self.kind = 'vstore'; self.rd = sum((E(o) for o in ops), []); self.sdata = E(ops[1]); self.wide = len(self.sdata) > 2
        elif op.startswith('s_load') or op in ('s_memtime', 's_memrealtime'):
            self.kind = 'smem'; self.wr = E(ops[0]); self.rd = sum((E(o) for o in ops[1:]), [])
        elif op == 's_nop':
            self.kind = 'nop'; self.ws = int(ops[0], 0) + 1
        elif op in ('s_waitcnt', 's_barrier', 's_sleep', 's_endpgm', 's_setprio') or op.startswith('s_cbranch') or op == 's_branch':
            self.kind = 'ctl'
            if op in ('s_cbranch_vccz', 's_cbranch_vccnz'): self.rd = ['vcc']
        elif op.startswith('s_cmp') or op.startswith('s_bitcmp'):
            self.kind = 'salu'; self.rd = sum((E(o) for o in ops), [])
        elif op.startswith('s_'):
            self.kind = 'salu'; self.wr = E(ops[0]); self.rd = sum((E(o) for o in ops[1:]), [])
            if 'saveexec' in op: self.wr = self.wr + ['exec']; self.rd = self.rd + ['exec']
            if op in ('s_addk_i32', 's_mulk_i32'): self.rd = self.rd + self.wr
        else:
            raise ValueError('unknown instr: ' + text)
        if base == 'v_cndmask_b32' and len(ops) == 3: self.rd = self.rd + ['vcc']

def isv(r): return r[0] in 'va' and r != 'vcc'
VALU = ('valu', 'trans')
VMEM = ('vload', 'vstore', 'dma')

def need_ws(p, c):
    n = 0
    pw = set(p.wr); cr = set(c.rd); cw = set(c.wr)
    if p.kind in VALU:
        vw = {r for r in pw if isv(r)}; sw = pw - vw
        if c.kind == 'mfma' and vw & cr: n = max(n, 2)
        if c.kind == 'mfma' and 'exec' in pw: n = max(n, 4)
        if c.kind in VALU and c.dpp and vw & cr: n = max(n, 2)
        if c.kind in VALU and c.dpp and 'exec' in pw: n = max(n, 5)
        if c.op.startswith('v_permlane') and vw & cr: n = max(n, 2)
        if c.op.startswith('v_readfirstlane') or c.op.startswith('v_readlane'):
            if vw & cr: n = max(n, 1)
            if 'exec' in pw: n = max(n, 4)
            if c.op.startswith('v_readlane') and sw & cr: n = max(n, 4)
        if c.kind in VMEM and sw & cr: n = max(n, 5)
        if c.kind in VALU and sw & cr: n = max(n, 2)
        if p.kind == 'trans' and c.kind in ('valu', 'mfma', 'dsw', 'vstore') and vw & cr: n = max(n, 1)
        if 'sdwa' in p.op and c.kind in VALU and vw & (cr | cw): n = max(n, 1)
    if p.op.startswith('v_dot') and pw & (cr | cw):
        if not (c.op == p.op and not (pw & set(c.rd[:2]))): n = max(n, 3)
    if p.kind == 'salu' and 'm0' in pw and c.kind == 'dma': n = max(n, 1)
    if p.kind == 'vstore' and p.wide:
        if set(p.sdata) & cw: n = max(n, 2 if c.kind in VALU else 1)
    if p.kind == 'mfma':
        big = {4: 8, 8: 12}[p.passes]
        if c.kind == 'mfma':
            if pw & set(c.srcAB): n = max(n, big)
            if pw & set(c.srcC):
                if not (list(p.wr) == list(c.srcC) and p.passes == c.passes): n = max(n, {4: 6, 8: 10}[p.passes])
            elif pw & cw:
                n = max(n, {4: 6, 8: 10}[p.passes])
        elif c.kind in VALU:
            if pw & (cr | cw): n = max(n, big)
            if set(p.srcC) & cw: n = max(n, {4: 3, 8: 7}[p.passes])
        elif c.kind in VMEM + ('dsr', 'dsw'):
            if pw & (cr | cw): n = max(n, big)
    return n

VOP3ONLY = ('v_fma_f32', 'v_cvt_pk_bf16_f32', 'v_lshl_add_u32', 'v_add3_u32', 'v_bfe_u32', 'v_mul_lo_u32', 'v_dot2_f32_bf16',
            'v_mad_u32_u24', 'v_or3_b32', 'v_and_or_b32', 'v_add_lshl_u32', 'v_writelane_b32', 'v_readlane_b32', 'v_med3_f32', 'v_bfi_b32', 'v_perm_b32', 'v_lshl_or_b32')
def icost(ins):
    if ins.kind == 'mfma': return 8
    if ins.kind == 'trans': return 8
    if ins.kind == 'nop': return 4*ins.ws if ins.ws < 2 else 4 + (ins.ws-1)
    if ins.kind == 'valu':
        t = ins.text
        if ins.op in VOP3ONLY or ins.op.startswith('v_pk_') or ins.dpp or '_e64' in ins.op or ', -v' in t: return 5
        m = re.search(r', (0x[0-9a-f]+|\d+),', t)
        if m:
            v = int(m.group(1), 0)
            if v > 64 and v not in (0x3f800000, 0x40000000): return 5
    return 4
def cost(item):
    if isinstance(item, str): return sum(icost(Ins(l.strip())) for l in item.split('\n') if l.strip())
    if isinstance(item, (list, tuple)): return sum(cost(x) for x in item)
    return getattr(item, 'cost', 4)

class Tok:
    def __init__(self, cls): self.cls = cls; self.done = False

class Gen:
    def __init__(self):
        self.lines = []
        self.vm = []
        self.lg = []
        self.smem = []
        self.hist = [[]]
        self.snap = {}
        self.nlab = 0
        self.stats = {}
        self.nnop = 0
        self.cyc = 0
    def state(self): return (list(self.vm), list(self.lg), list(self.smem), [list(h) for h in self.hist])
    def set_state(self, st): self.vm, self.lg, self.smem, self.hist = list(st[0]), list(st[1]), list(st[2]), [list(h) for h in st[3]]
    def raw(self, text): self.lines.append(text)
    def comment(self, text): self.lines.append('; ' + text)
    def newlabel(self, base):
        self.nlab += 1; return 'L_%s_%d' % (base, self.nlab)
    def _push(self, ins):
        self.lines.append('    ' + ins.text)
        self.cyc += icost(ins)
        self.stats[ins.kind] = self.stats.get(ins.kind, 0) + 1
        for h in self.hist:
            h.append(ins)
            if len(h) > 24: del h[0]
        if len(self.hist) > 1:
            k = min(len(h) for h in self.hist)
            if k >= 22 and all(h[-22:] == self.hist[0][-22:] for h in self.hist): self.hist = [self.hist[0]]
    def _hazard(self, ins):
        need = 0
        for h in self.hist:
            dist = 0
            for p in reversed(h):
                n = need_ws(p, ins)
                if n > dist: need = max(need, n - dist)
                dist += p.ws
                if dist >= 20: break
        while need > 0:
            k = min(need, 16)
            self._push(Ins('s_nop %d' % (k-1))); need -= k; self.nnop += 1
    def waitcnt(self, vm=None, lg=None):
        parts = []
        if vm is not None and vm < len(self.vm):
            assert vm <= 63
            parts.append('vmcnt(%d)' % vm)
            for t, _ in self.vm[:len(self.vm)-vm]: t.done = True
            self.vm = self.vm[len(self.vm)-vm:]
        if lg is not None and (lg < len(self.lg) or (lg == 0 and self.smem)):
            if self.smem: lg = 0
            lg = min(lg, 15)
            parts.append('lgkmcnt(%d)' % lg)
            for t, _ in self.lg[:len(self.lg)-lg]: t.done = True
            self.lg = self.lg[len(self.lg)-lg:] if lg else []
            if lg == 0:
                for t, _ in self.smem: t.done = True
                self.smem = []
        if parts: self._push(Ins('s_waitcnt ' + ' '.join(parts)))
    def wait(self, *toks):
        vm = None; lg = None
        for t in toks:
            if t is None: continue
            for i, (x, _) in enumerate(self.vm):
                if x is t:
                    k = len(self.vm)-1-i; vm = k if vm is None else min(vm, k)
            for i, (x, _) in enumerate(self.lg):
                if x is t:
                    k = len(self.lg)-1-i; lg = k if lg is None else min(lg, k)
            for x, _ in self.smem:
                if x is t: lg = 0
        if vm is not None and vm > 63: vm = 63
        self.waitcnt(vm, lg)
    def waitall(self): self.waitcnt(0, 0)
    def __call__(self, text):
        tok = None
        for line in text.split('\n'):
            line = line.strip()
            if not line: continue
            t = self._emit(line)
            if t is not None: tok = t
        return tok
    def _emit(self, text):
        ins = Ins(text)
        if '; result unused' in text: ins.wr = []
        regs = set(ins.rd) | set(ins.wr)
        toks = [t for (t, d) in self.vm + self.lg + self.smem if regs & d]
        if toks: self.wait(*toks)
        if ins.kind in VMEM and len(self.vm) >= 63: self.waitcnt(vm=62)
        self._hazard(ins)
        self._push(ins)
        tok = None
        if ins.kind in VMEM:
            tok = Tok('vm'); self.vm.append((tok, set(ins.wr)))
        elif ins.kind in ('dsr', 'dsw'):
            tok = Tok('lg'); self.lg.append((tok, set(ins.wr)))
        elif ins.kind == 'smem':
            tok = Tok('sm'); self.smem.append((tok, set(ins.wr)))
        if ins.op.startswith('s_cbranch') or ins.op == 's_branch':
            lab = text.split()[1]
            self.snap.setdefault(lab, []).extend([list(h) for h in self.hist])
            if ins.op == 's_branch': self.hist = []
        return tok
    def needs_wait(self, text):
        ins = Ins(text)
        regs = set(ins.rd) | set(ins.wr)
        return any(regs & d for (t, d) in self.vm + self.lg + self.smem)
    def pending(self, toks):
        ids = [id(t) for t in toks if t is not None]
        return any(id(t) in ids for (t, d) in self.vm + self.lg + self.smem)
    def do(self, item):
        if isinstance(item, str): return self(item)
        if isinstance(item, (list, tuple)):
            r = None
            for x in item: r = self.do(x)
            return r
        return item()
    def label(self, lab):
        self.lines.append(lab + ':')
        self.hist = self.hist + self.snap.pop(lab, [])
        if not self.hist: self.hist = [[]]
    def text(self): return '\n'.join(self.lines) + '\n'

def weave(g, mains, side):
    side = sorted(enumerate(side), key=lambda x: (x[1][0], x[0]))
    j = 0
    for i, m in enumerate(mains):
        while j < len(side) and side[j][1][0] <= i:
            side[j][1][1](); j += 1
        m()
    while j < len(side):
        side[j][1][1](); j += 1

class F:
    def __init__(self, fn, cost=4): self.fn = fn; self.cost = cost
    def __call__(self): return self.fn()

class Stream:
    def __init__(self, items, start, end, paced=False, slack=16):
        self.items = list(items); self.start = start; self.end = end; self.paced = paced; self.slack = slack
        self.total = sum(cost(x) for x in self.items); self.done = 0; self.i = 0
    def flush(self, g):
        while self.i < len(self.items):
            g.do(self.items[self.i]); self.done += cost(self.items[self.i]); self.i += 1

def sched(g, mains, cap, fixed, streams=(), report=None):
    fixed = sorted(enumerate(fixed), key=lambda x: (x[1][0], x[0]))
    j = 0; over = 0; ovl = [0]
    for i, (text, tokfn) in enumerate(mains):
        t0 = g.cyc
        while j < len(fixed) and fixed[j][1][0] <= i:
            g.do(fixed[j][1][1]); j += 1
        toks = tokfn() if tokfn else []
        res = 4 if (g.pending(toks) or g.needs_wait(text)) else 0
        for st in streams:
            if i < st.start: continue
            while st.i < len(st.items):
                c = cost(st.items[st.i])
                tgt = st.total*min(1.0, (i - st.start + 1)/(st.end - st.start + 1))
                fits = g.cyc - t0 + c + res <= cap
                if st.paced and st.done + 0.5*c > tgt: break
                if not fits and not (st.done < tgt - st.slack or i >= st.end): break
                g.do(st.items[st.i]); st.i += 1; st.done += c
        g.wait(*toks)
        g(text)
        if i > 0:
            over += max(0, g.cyc - t0 - 8 - cap); ovl.append(max(0, g.cyc - t0 - 8 - cap))
    while j < len(fixed):
        g.do(fixed[j][1][1]); j += 1
    for st in streams:
        while st.i < len(st.items):
            g.do(st.items[st.i]); st.i += 1
    if report: print('%s: mains %d, est. overflow %d cycles; per 40: %s' % (report, len(mains), over, [sum(ovl[k:k+40]) for k in range(0, len(ovl), 40)]))

def mix(g, ops, loads, every=72, lead=0):
    loads = list(loads); nxt = g.cyc + lead
    for o in ops:
        if loads and g.cyc >= nxt:
            g.do(loads.pop(0)); nxt = g.cyc + every - 4
        g.do(o)
    return loads
```

```python
import sys
from asmgen import Gen, weave, sched, Stream, F, mix, cost

KNAME = 'gated_mix__ssm_conv_s5__dense_activation_silu__prompt_kernel'

WS_EPOCH = 0
WS_HFLAG = 0x50000
LVL = 131072
WS_GATE = 65536
WS_EBUF = 131072
WS_PFLAG = 0xb0000
WS_XFLAG = 0xe0000
WS_STAMP = 22 << 20
WS_B2 = 1 << 20
WS_H = 5 << 20
WS_X = 16 << 20
WS_SIZE = 23 << 20
KST = 5120
MST = 88*KST
HKS = 8192
HMS = 88*HKS

F_WR = 81920
S_BR = 65536
L_PK = 147456
L_EX = 147456

sX, sW, sWS, sP1, sP2, sPD, sOUT, sB2, sH = 4, 8, 12, 16, 20, 24, 28, 32, 36
pX, pLre, pLim, pBre, pBim, pCre, pCim, pLdt, pDsk, pBx, pW1, pW2, pGate, pOut, pDbg, pWs = range(40, 72, 2)
sWave, sRole, sC1, sJ1, sIdx, sCo, sNonce, sRot = range(72, 80)
sKb = list(range(80, 90))
sItem, sMx, sMw, sWo = 90, 91, 92, 93
sPs = [94, 95, 96, 97]
sT0, sT1, sT2, sT3 = 98, 99, 100, 101
sT4 = 3
sKt = 79
sNl = 42
sCs, sCd, sWs2 = 43, 56, 57
sL1, sL2 = 64, 65
sKs = [40, 41, 46, 47, 48, 49, 50, 51, 52, 53, 58, 59, 60, 61, 62, 63, 66, 67, 68, 69, 70, 71]

vTid, vLane, vL16, vL16b = 0, 1, 2, 3
vT = list(range(4, 16))
vFa, vFd = 254, 253
ACC2 = 16
A2R = 96
vStamp = 255
def B2slot(role, i):
    if i < 4: return 160 + 20*i
    if role == 1: return 20*(i-4)
    return 80 + 20*(i-4) if i < 8 else 20*(i-8)
def tabs(role):
    if role == 1: return sKs[:12], sKs[12:] + [44, 45]
    return sKs[:10], sKs[10:20]
aPK = 240

def R(kind, base, n):
    return '%s%d' % (kind, base) if n == 1 else '%s[%d:%d]' % (kind, base, base+n-1)
def V(b, n=1): return R('v', b, n)
def A(b, n=1): return R('a', b, n)
def S(b, n=1): return R('s', b, n)

LOG2E = 0x3fb8aa3b
NLOG2E = 0xbfb8aa3b
INV2PI = 0x3e22f983

class K:
    def __init__(self, cfg):
        self.cfg = cfg
        self.g = Gen()
        self.tail = []
        self.rep = cfg.get('report')
        self.fw, self.fg, self.lv = {0: (2, 7, 16), 1: (7, 9, LVL), 2: (2, 7, LVL)}[cfg.get('fl', 1)]

    def stamp(self, idx, op='s_memrealtime', lvl=2):
        if idx in (0, 10, 30, 31): lvl = 1
        if self.cfg.get('stamps', 0) < lvl: return
        g = self.g
        if self.cfg.get('cyc'): op = 's_memtime'
        g(op + ' vcc'); g.waitcnt(lg=0)
        g('v_writelane_b32 %s, vcc_lo, %d' % (V(vStamp), idx))

    def cst(self, idx):
        if self.cfg.get('chain'): self.stamp(idx)
    def srd_ptr(self, d, ptr): return ['s_mov_b32 %s, %s' % (S(d), S(ptr)), 's_mov_b32 %s, %s' % (S(d+1), S(ptr+1))]
    def srd_cst(self, d, nrec): return ['s_mov_b32 %s, 0x%x' % (S(d+2), nrec), 's_mov_b32 %s, 0x20000' % S(d+3)]

    def poll(self, name, issue, check):
        g = self.g
        lr, lo = g.newlabel(name + '_retry'), g.newlabel(name + '_ok')
        check()
        g('s_cbranch_scc0 %s' % lr)
        g.label(lo)
        def retry():
            g.vm, g.lg, g.smem = [], [], []
            g.label(lr)
            g('s_mov_b32 %s, 0x%x' % (S(sT4), self.cfg.get('spin', 1 << 18)))
            ll = g.newlabel(name + '_loop')
            g.label(ll)
            g('s_sub_u32 %s, %s, 1' % (S(sT4), S(sT4)))
            g('s_cmp_eq_u32 %s, 0' % S(sT4))
            g('s_nop 7')
            g('s_cbranch_scc1 %s' % lo)
            if self.cfg.get('backoff', 0): g('s_sleep %d' % self.cfg['backoff'])
            g('s_waitcnt lgkmcnt(0)')
            issue()
            g.waitall()
            check()
            g('s_nop 7')
            g('s_cbranch_scc1 %s' % lo)
            g('s_branch %s' % ll)
        self.tail.append(retry)

    def check_eq(self, regs, t0=None, t1=None):
        g = self.g
        def f():
            if len(regs) == 1:
                g('v_cmp_ne_u32 vcc, %s, %s' % (S(sNonce), V(regs[0])))
            else:
                g('v_xor_b32 %s, %s, %s' % (V(t0), S(sNonce), V(regs[0])))
                for r in regs[1:]:
                    g('v_xor_b32 %s, %s, %s' % (V(t1), S(sNonce), V(r)))
                    g('v_or_b32 %s, %s, %s' % (V(t0), V(t0), V(t1)))
                g('v_cmp_ne_u32 vcc, 0, %s' % V(t0))
            g('s_nop 0')
            g('s_cmp_eq_u64 vcc, 0')
        return f

    def b2_loads(self, role, steps):
        out = []
        for step in steps:
            base = B2slot(role, step)
            for nt in range(5):
                va, off = (vL16, nt*1024) if nt < 4 else (vL16b, 0)
                out.append('buffer_load_dwordx4 %s, %s, %s, %s offen offset:%d sc1' % (A(base+4*nt, 4), V(va), S(sB2, 4), S(tabs(role)[0][0 if self.cfg.get('x_b2same') else step]), off))
        return out

    def ks_table(self, role):
        tb, ta = tabs(role); ns = len(tb)
        if role == 1:
            r, bs, r6 = ta[11], tb[11], tb[10]
            o = ['s_add_u32 %s, %s, %s' % (S(r), S(sC1), S(sJ1)), 's_mul_i32 %s, %s, 12' % (S(bs), S(sWave)),
                 's_mul_i32 %s, %s, 43' % (S(r6), S(r)), 's_lshr_b32 %s, %s, 8' % (S(r6), S(r6)),
                 's_mul_i32 %s, %s, 6' % (S(r6), S(r6)), 's_sub_u32 %s, %s, %s' % (S(r6), S(r), S(r6))]
            for n in range(12):
                if n < 6:
                    o += ['s_add_u32 %s, %s, %d' % (S(ta[n]), S(r6), n), 's_sub_u32 %s, %s, 6' % (S(sKt), S(ta[n])),
                          's_min_u32 %s, %s, %s' % (S(ta[n]), S(ta[n]), S(sKt)),
                          's_mul_i32 %s, %s, 11' % (S(sKt), S(ta[n])), 's_lshr_b32 %s, %s, 5' % (S(sKt), S(sKt)),
                          's_mul_i32 %s, %s, 3' % (S(sKt), S(sKt)), 's_add_u32 %s, %s, %s' % (S(ta[n]), S(ta[n]), S(sKt))]
                elif n < 8:
                    o += ['s_add_u32 %s, %s, %d' % (S(sKt), S(r), n), 's_and_b32 %s, %s, 1' % (S(sKt), S(sKt)),
                          's_mul_i32 %s, %s, 6' % (S(sKt), S(sKt)), 's_add_u32 %s, %s, 3' % (S(ta[n]), S(sKt))]
                else:
                    o += ['s_add_u32 %s, %s, %d' % (S(sKt), S(r), n), 's_and_b32 %s, %s, 1' % (S(ta[n]), S(sKt)),
                          's_and_b32 %s, %s, 2' % (S(sKt), S(sKt)), 's_mul_i32 %s, %s, 3' % (S(sKt), S(sKt)),
                          's_add_u32 %s, %s, %s' % (S(ta[n]), S(ta[n]), S(sKt)), 's_add_u32 %s, %s, 4' % (S(ta[n]), S(ta[n]))]
                o += ['s_add_u32 %s, %s, %s' % (S(ta[n]), S(ta[n]), S(bs)),
                      's_mul_i32 %s, %s, %d' % (S(tb[n]), S(ta[n]), KST), 's_lshl_b32 %s, %s, 13' % (S(ta[n]), S(ta[n]))]
            return o
        r, bs = ta[ns-1], tb[ns-1]
        o = ['s_and_b32 %s, %s, 3' % (S(sKt), S(sC1)), 's_mul_i32 %s, %s, 3' % (S(sKt), S(sKt)),
             's_add_u32 %s, %s, %s' % (S(sKt), S(sKt), S(sJ1)),
             's_sub_u32 %s, %s, %d' % (S(r), S(sKt), ns), 's_min_u32 %s, %s, %s' % (S(r), S(r), S(sKt)),
             's_mul_i32 %s, %s, %d' % (S(bs), S(sWave), ns)]
        if role == 0: o.append('s_add_u32 %s, %s, 48' % (S(bs), S(bs)))
        for n in range(ns):
            if n == 0: o.append('s_add_u32 %s, %s, %s' % (S(ta[n]), S(r), S(bs)))
            else:
                o += ['s_sub_u32 %s, %s, %d' % (S(sKt), S(r), ns-n), 's_add_u32 %s, %s, %d' % (S(ta[n]), S(r), n),
                      's_min_u32 %s, %s, %s' % (S(ta[n]), S(ta[n]), S(sKt)), 's_add_u32 %s, %s, %s' % (S(ta[n]), S(ta[n]), S(bs))]
            o += ['s_mul_i32 %s, %s, %d' % (S(tb[n]), S(ta[n]), KST), 's_lshl_b32 %s, %s, 13' % (S(ta[n]), S(ta[n]))]
        return o

    def line_addr(self, base, dst):
        return ['s_lshl_b32 %s, %s, 7' % (S(sKt), S(sRole)), 's_add_u32 %s, %s, %s' % (S(sKt), S(sKt), S(sIdx)),
                's_lshl_b32 %s, %s, %d' % (S(sKt), S(sKt), self.fg - self.fw), 's_add_u32 %s, %s, %s' % (S(sKt), S(sKt), S(sWave)),
                's_lshl_b32 %s, %s, %d' % (S(sKt), S(sKt), self.fw), 's_add_u32 %s, %s, %d' % (S(sKt), S(sKt), base),
                'v_mov_b32 %s, %s' % (V(dst), S(sKt))]

    def late_setup(self, role, t0, t1, vPp):
        o = ['s_mul_i32 %s, %s, 1664525' % (S(sNonce), S(sNonce)), 's_add_u32 %s, %s, 1013904223' % (S(sNonce), S(sNonce))]
        o += self.srd_ptr(sOUT, pOut) + self.srd_cst(sOUT, 2048*2560)
        for d, idx, base, st in ((sB2, sJ1, WS_B2, MST), (sH, sC1, WS_H, HMS)):
            o += ['s_mul_i32 %s, %s, %d' % (S(sKt), S(idx), st), 's_add_u32 %s, %s, 0x%x' % (S(sKt), S(sKt), base),
                  ['s_add_u32 %s, %s, %s' % (S(d), S(pWs), S(sKt)), 's_addc_u32 %s, %s, 0' % (S(d+1), S(pWs+1))]]
            o += self.srd_cst(d, st)
        if role == 1:
            o += ['s_mul_i32 %s, %s, 5' % (S(sKt), S(sJ1)), 's_lshr_b32 %s, %s, 2' % (S(sKt), S(sKt)),
                  'v_min_u32 %s, 23, %s' % (V(t1), V(vLane)),
                  'v_lshrrev_b32 %s, 1, %s' % (V(t0), V(t1)), 'v_mul_u32_u24 %s, 10, %s' % (V(t0), V(t0)),
                  'v_and_b32 %s, 1, %s' % (V(t1), V(t1)), 'v_add3_u32 %s, %s, %s, %s' % (V(t0), V(t0), V(t1), S(sKt)),
                  's_mul_i32 %s, %s, 120' % (S(sKt), S(sWave)), 'v_add_u32 %s, %s, %s' % (V(t0), S(sKt), V(t0))]
        else:
            o += ['v_min_u32 %s, 14, %s' % (V(t1), V(vLane)),
                  'v_mul_u32_u24 %s, 11, %s' % (V(t0), V(t1)), 'v_lshrrev_b32 %s, 5, %s' % (V(t0), V(t0)),
                  'v_mul_u32_u24 %s, 7, %s' % (V(t0), V(t0)),
                  's_mul_i32 %s, %s, 50' % (S(sKt), S(sJ1)), 'v_add3_u32 %s, %s, %s, %s' % (V(t0), V(t1), V(t0), S(sKt)),
                  's_mul_i32 %s, %s, 10' % (S(sKt), S(sWave)), 's_lshr_b32 %s, %s, 2' % (S(sKt), S(sKt)),
                  'v_add_u32 %s, %s, %s' % (V(t0), S(sKt), V(t0))]
        o += ['v_and_b32 %s, 127, %s' % (V(t1), V(t0)), 'v_lshrrev_b32 %s, 7, %s' % (V(t0), V(t0)),
              'v_lshlrev_b32 %s, %d, %s' % (V(t1), self.fg, V(t1)), 'v_lshl_add_u32 %s, %s, %d, %s' % (V(vPp), V(t0), self.fw, V(t1)),
              'v_add_u32 %s, %d, %s' % (V(vPp), WS_PFLAG + (128 << self.fg), V(vPp))]
        if role: o += self.line_addr(WS_PFLAG, vFa)
        o.append('v_mov_b32 %s, %s' % (V(vFd), S(sNonce)))
        return o

    def hbase(self, kmul, extra):
        return ['s_lshl_b32 %s, %s, 11' % (S(sKt), S(sWave)), 's_mul_i32 %s, %s, %d' % (S(sT3), S(sJ1), kmul*HKS),
                's_add_u32 %s, %s, %s' % (S(sKt), S(sKt), S(sT3)), 's_add_u32 %s, %s, 0x%x' % (S(sKt), S(sKt), extra)]

    def flag_store(self, tok, srd):
        self.g.wait(tok)
        self.g('buffer_store_dword %s, %s, %s, 0 offen sc1' % (V(vFd), V(vFa), S(srd, 4)))
    def hoff(self, role, lvl, local):
        if not local: return 0x20000*lvl
        return 0x30000 + 0x20000*lvl if role else 0x20000
    def hflag(self, role, lvl, tok):
        g = self.g
        if self.cfg.get('lfl', 1): g('s_mov_b32 %s, 0x%x' % (S(sL1), self.hoff(role, lvl, 1)))
        g('s_mov_b32 %s, 0x%x' % (S(sL2), self.hoff(role, lvl, 0)))
        g.wait(tok)
        if self.cfg.get('lfl', 1): g('buffer_store_dword %s, %s, %s, %s offen' % (V(vFd), V(vFa), S(sWS, 4), S(sL1)))
        g('buffer_store_dword %s, %s, %s, %s offen sc1' % (V(vFd), V(vFa), S(sWS, 4), S(sL2)))
    def hpoll(self, role, lvl):
        g = self.g
        g('s_mov_b32 %s, 0x%x' % (S(sL1), self.hoff(role, lvl, self.cfg.get('lfl', 1))))
        g('buffer_load_dword %s, %s, %s, %s offen sc1' % (V(self.vHd), V(self.vHp), S(sWS, 4), S(sL1)))
    def hcheck(self, role, lvl):
        g = self.g
        def again():
            g('s_mov_b32 %s, 0x%x' % (S(sL1), self.hoff(role, lvl, self.cfg.get('lfl', 1))))
            g('s_and_b32 %s, %s, 3' % (S(sL2), S(sT4)))
            g('s_cselect_b32 %s, %s, 0x%x' % (S(sL1), S(sL1), self.hoff(role, lvl, 0)))
            g('buffer_load_dword %s, %s, %s, %s offen sc1' % (V(self.vHd), V(self.vHp), S(sWS, 4), S(sL1)))
        self.poll('h%d%d' % (role, lvl), again, self.check_eq([self.vHd]))

    def prologue(self):
        g = self.g
        g('s_cmp_ge_u32 s2, 256')
        g('s_cbranch_scc1 L_exit')
        g('s_load_dwordx16 s[40:55], s[0:1], 0')
        g('s_load_dwordx16 s[56:71], s[0:1], 64')
        g('v_lshrrev_b32 %s, 6, v0' % V(vT[0]))
        g('v_and_b32 %s, 63, v0' % V(vLane))
        g('v_readfirstlane_b32 %s, %s' % (S(sWave), V(vT[0])))
        g('v_lshlrev_b32 %s, 4, %s' % (V(vL16), V(vLane)))
        g('s_lshr_b32 %s, s2, 3' % S(sT1))
        if self.cfg.get('preload', 1):
            g.raw('    s_getpc_b64 s[28:29]\nL_pc:')
            g('s_lshl_b32 %s, %s, 2' % (S(sT0), S(sT1)))
            g('s_add_u32 %s, %s, %s' % (S(sT0), S(sT0), S(sWave)))
            g('s_and_b32 %s, %s, 63' % (S(sT0), S(sT0)))
            g.raw('    s_min_u32 %s, %s, ((L_codeend-L_pc)>>10)-1' % (S(sT0), S(sT0)))
            g('s_lshl_b32 %s, %s, 10' % (S(sT0), S(sT0)))
            g('s_add_u32 s28, s28, %s' % S(sT0))
            g('s_addc_u32 s29, s29, 0')
            g('global_load_dwordx4 v[244:247], %s, s[28:29]' % V(vL16))
        if self.cfg.get('stamps'):
            g('v_mov_b32 %s, 0' % V(vStamp))
        g('v_add_u32 %s, 0x1000, %s' % (V(vL16b), V(vL16)))
        g('s_bfe_u32 %s, s2, 0x20001' % S(sT3))
        g('s_and_b32 %s, %s, 3' % (S(sT2), S(sT1)))
        if self.cfg.get('mixed'):
            g('s_lshr_b32 %s, %s, 4' % (S(sRole), S(sT1)))
            g('s_bfe_u32 %s, %s, 0x20002' % (S(sJ1), S(sT1)))
            g('s_and_b32 %s, s2, 1' % S(sT0))
            g('s_lshl_b32 %s, %s, 2' % (S(sT0), S(sT0)))
            g('s_add_u32 %s, %s, %s' % (S(sJ1), S(sJ1), S(sT0)))
        else:
            g('s_and_b32 %s, s2, 1' % S(sRole))
            g('s_lshr_b32 %s, %s, 2' % (S(sJ1), S(sT1)))
        g('s_lshl_b32 %s, %s, 2' % (S(sC1), S(sT3)))
        g('s_add_u32 %s, %s, %s' % (S(sC1), S(sC1), S(sT2)))
        g('s_lshl_b32 %s, %s, 3' % (S(sIdx), S(sT3)))
        g('s_add_u32 %s, %s, %s' % (S(sIdx), S(sIdx), S(sJ1)))
        g('s_lshl_b32 %s, %s, 2' % (S(sIdx), S(sIdx)))
        g('s_add_u32 %s, %s, %s' % (S(sIdx), S(sIdx), S(sT2)))
        g('s_mul_i32 %s, %s, 3' % (S(sT2), S(sT2)))
        g('s_mul_i32 %s, %s, 5' % (S(sT0), S(sRole)))
        g('s_add_u32 %s, %s, %s' % (S(sRot), S(sJ1), S(sT2)))
        g('s_add_u32 %s, %s, %s' % (S(sRot), S(sRot), S(sT0)))
        g('s_add_u32 %s, %s, %s' % (S(sRot), S(sRot), S(sT3)))
        if self.cfg.get('norot'): g('s_mov_b32 %s, 0' % S(sRot))
        rx = self.cfg.get('rotx', 3)
        if rx:
            g('s_mul_i32 %s, %s, 5' % (S(sRot), S(sT3)))
            g('s_add_u32 %s, %s, 1' % (S(sRot), S(sRot)))
            g('s_lshr_b32 %s, %s, 1' % (S(sRot), S(sRot)))
            g('s_add_u32 %s, %s, %s' % (S(sRot), S(sRot), S(sT0)))
            if rx == 2:
                g('s_add_u32 %s, %s, %s' % (S(sT0), S(sC1), S(sJ1)))
                g('s_and_b32 %s, %s, 1' % (S(sT0), S(sT0)))
                g('s_add_u32 %s, %s, %s' % (S(sRot), S(sRot), S(sT0)))
            if rx == 3:
                g('s_add_u32 %s, %s, %s' % (S(sT0), S(sC1), S(sJ1)))
                g('s_and_b32 %s, %s, 3' % (S(sT0), S(sT0)))
                g('s_add_u32 %s, %s, %s' % (S(sRot), S(sRot), S(sT0)))
        for k in range(2):
            g('s_sub_u32 %s, %s, 10' % (S(sT0), S(sRot)))
            g('s_min_u32 %s, %s, %s' % (S(sRot), S(sRot), S(sT0)))
        if self.cfg.get('rotg') == 2:
            g('s_and_b32 %s, %s, 1' % (S(sRot), S(sRot)))
            g('s_mul_i32 %s, %s, 5' % (S(sRot), S(sRot)))
        if self.cfg.get('rotg') == 5:
            g('s_and_b32 %s, %s, 14' % (S(sRot), S(sRot)))
        if self.cfg.get('rotg') == 3:
            g('s_mul_i32 %s, %s, 11' % (S(sT0), S(sRot)))
            g('s_lshr_b32 %s, %s, 5' % (S(sT0), S(sT0)))
            g('s_mul_i32 %s, %s, 3' % (S(sT0), S(sT0)))
            g('s_sub_u32 %s, %s, %s' % (S(sRot), S(sRot), S(sT0)))
            g('s_mul_i32 %s, %s, 7' % (S(sRot), S(sRot)))
            g('s_lshr_b32 %s, %s, 1' % (S(sRot), S(sRot)))
        g('s_lshl_b32 %s, %s, 7' % (S(sKb[0]), S(sRot)))
        g('v_lshrrev_b32 %s, 3, %s' % (V(vT[0]), V(vLane)))
        g('v_and_b32 %s, 7, %s' % (V(vT[1]), V(vLane)))
        g('v_lshrrev_b32 %s, 4, %s' % (V(vT[2]), V(vLane)))
        g.do(self.srd_cst(sX, 2048*1280))
        g.do(self.srd_cst(sWS, WS_SIZE))
        g('s_cmp_eq_u32 %s, 0' % S(sRole))
        g('s_cbranch_scc1 L_ssm')

    def kb(self, s):
        if self.cfg.get('same'): return ['s_mov_b32 %s, %s' % (S(sKb[s]), S(sKb[0]))]
        return ['s_sub_u32 %s, %s, %d' % (S(sT0), S(sKb[0]), 128*(10-s)), 's_add_u32 %s, %s, %d' % (S(sKb[s]), S(sKb[0]), 128*s),
                's_min_u32 %s, %s, %s' % (S(sKb[s]), S(sKb[s]), S(sT0))]

    def ptrs_ready(self):
        g = self.g
        g.waitcnt(lg=0)
        self.stamp(0)
        self.stamp(30, 's_memtime')
        g.do(self.srd_ptr(sX, pX))

    def pack_addr(self, vPl, vPr, vPc):
        o = ['s_lshl_b32 %s, %s, 7' % (S(sItem), S(sWave)), 's_add_u32 %s, %s, %s' % (S(sItem), S(sItem), S(sIdx))]
        o += self.srd_ptr(sPD, pWs) + self.srd_ptr(sP1, pCre) + self.srd_ptr(sP2, pCim) + self.srd_ptr(54, pW2)
        o += [['s_cmp_lt_u32 %s, 400' % S(sItem), 's_cselect_b32 %s, 0x%x, 0' % (S(sPD+2), WS_SIZE), 's_cselect_b32 %s, 819200, 0' % S(sP1+2)],
              's_mov_b32 %s, %s' % (S(sP2+2), S(sP1+2)),
              's_mov_b32 %s, 0x20000' % S(sPD+3), 's_mov_b32 %s, 0x20000' % S(sP1+3), 's_mov_b32 %s, 0x20000' % S(sP2+3),
              's_mul_i32 %s, %s, 6554' % (S(sT1), S(sItem)), 's_lshr_b32 %s, %s, 16' % (S(sT1), S(sT1)),
              's_mul_i32 %s, %s, 10' % (S(sT2), S(sT1)), 's_sub_u32 %s, %s, %s' % (S(sT2), S(sItem), S(sT2)),
              's_lshl_b32 %s, %s, 7' % (S(sT3), S(sT2)),
              's_mul_i32 %s, %s, 20480' % (S(sCs), S(sT1)), 's_add_u32 %s, %s, %s' % (S(sCs), S(sCs), S(sT3)),
              's_mul_i32 %s, %s, 40960' % (S(sWs2), S(sT1)), 's_add_u32 %s, %s, %s' % (S(sWs2), S(sWs2), S(sT3)),
              's_mul_i32 %s, %s, 52' % (S(sT3), S(sT1)), 's_lshr_b32 %s, %s, 8' % (S(sT3), S(sT3)),
              's_mul_i32 %s, %s, 435' % (S(sT3), S(sT3)), 's_add_u32 %s, %s, %s' % (S(sCd), S(sT1), S(sT3)),
              's_mul_i32 %s, %s, 20' % (S(sT3), S(sT2)), 's_add_u32 %s, %s, %s' % (S(sCd), S(sCd), S(sT3)),
              's_lshl_b32 %s, %s, 10' % (S(sCd), S(sCd)), 's_add_u32 %s, %s, 0x%x' % (S(sCd), S(sCd), WS_B2 + 240*1024),
              's_mul_i32 %s, %s, 5' % (S(sT1), S(sT1)), 's_lshl_b32 %s, %s, 2' % (S(sT2), S(sT2))]
        for i in range(4):
            o += ['s_add_u32 %s, %s, %d' % (S(sPs[i]), S(sT2), i),
                  's_mul_i32 %s, %s, 52' % (S(sT3), S(sPs[i])), 's_lshr_b32 %s, %s, 8' % (S(sT3), S(sT3)),
                  's_mul_i32 %s, %s, 435' % (S(sT3), S(sT3)), 's_add_u32 %s, %s, %s' % (S(sPs[i]), S(sPs[i]), S(sT3)),
                  's_add_u32 %s, %s, %s' % (S(sPs[i]), S(sPs[i]), S(sT1)), 's_lshl_b32 %s, %s, 10' % (S(sPs[i]), S(sPs[i])),
                  's_add_u32 %s, %s, 0x%x' % (S(sPs[i]), S(sPs[i]), WS_B2)]
        t0, t1 = V(vT[4]), V(vT[5]); L = V(vLane)
        o += ['v_lshrrev_b32 %s, 3, %s' % (t0, L), 'v_and_b32 %s, 7, %s' % (t1, L), 'v_mul_u32_u24 %s, 1280, %s' % (t0, t0),
              'v_lshl_add_u32 %s, %s, 4, %s' % (V(vPl), t1, t0),
              's_lshl_b32 %s, %s, 12' % (S(sCo), S(sWave)), 's_add_u32 %s, %s, %d' % (S(sCo), S(sCo), L_PK),
              'v_bfe_u32 %s, %s, 4, 1' % (t0, L), 'v_lshlrev_b32 %s, 11, %s' % (t0, t0), 'v_lshrrev_b32 %s, 5, %s' % (t1, L),
              'v_lshl_add_u32 %s, %s, 9, %s' % (t0, t1, t0), 'v_bfe_u32 %s, %s, 2, 2' % (t1, L), 'v_lshl_add_u32 %s, %s, 7, %s' % (t0, t1, t0),
              'v_and_b32 %s, 3, %s' % (t1, L), 'v_lshl_add_u32 %s, %s, 3, %s' % (t0, t1, t0), 'v_add_u32 %s, %s, %s' % (V(vPr), S(sCo), t0),
              'v_lshrrev_b32 %s, 5, %s' % (t0, L), 'v_lshlrev_b32 %s, 11, %s' % (t0, t0), 'v_and_b32 %s, 15, %s' % (t1, L),
              'v_lshl_add_u32 %s, %s, 7, %s' % (t0, t1, t0), 'v_bfe_u32 %s, %s, 4, 1' % (t1, L), 'v_lshl_add_u32 %s, %s, 4, %s' % (t0, t1, t0),
              'v_add_u32 %s, %s, %s' % (V(vPc), S(sCo), t0), 'v_add_u32 %s, %s, %s' % (V(vPc+1), S(sCo), V(vL16))]
        return o

    def pack_load(self, vPl, PV):
        nt = self.cfg.get('pknt', ' nt')
        o = ['s_add_u32 %s, %s, 10240' % (S(sT0), S(sCs))]
        for part in range(2):
            for h in range(2):
                o.append('buffer_load_dwordx4 %s, %s, %s, %s offen%s' % (V(PV + 8*part + 4*h, 4), V(vPl), S(sP2 if part else sP1, 4), S(sT0 if h else sCs), nt))
        o += self.srd_ptr(sP1, 54) + ['s_cmp_lt_u32 %s, 480' % S(sItem), 's_cselect_b32 %s, %d, 0' % (S(sP1+2), 1536*1280)]
        for q in range(4):
            if q: o.append('s_add_u32 %s, %s, 10240' % (S(sWs2), S(sWs2)))
            o.append('buffer_load_dwordx4 %s, %s, %s, %s offen%s' % (V(PV + 16 + 4*q, 4), V(vPl), S(sP1, 4), S(sWs2), nt))
        return o
    def pack_proc(self, vPw, vPr, vPc, PV):
        g = self.g
        a = ['ds_write_b128 %s, %s offset:%d' % (V(vPw), V(PV + 4*i, 4), 1024*i) for i in range(4)]
        a += ['ds_read_b128 %s, %s offset:%d' % (A(aPK+4*i, 4), V(vPc), 32*i) for i in range(4)]
        a += ['ds_write_b128 %s, %s offset:%d' % (V(vPw), V(PV + 16 + 4*i, 4), 1024*i) for i in range(4)]
        a += ['ds_read_b64_tr_b16 %s, %s offset:%d' % (V(PV+4*i+2*e, 2), V(vPr), e*1024 + i*32) for i in range(4) for e in range(2)]
        b = []
        for i in range(4):
            if i: b.append('s_add_u32 %s, %s, %d' % (S(sCd), S(sCd), KST))
            b.append('buffer_store_dwordx4 %s, %s, %s, %s offen sc1' % (A(aPK+4*i, 4), V(vL16), S(sPD, 4), S(sCd)))
        b.append(['s_cmp_lt_u32 %s, 480' % S(sItem), 's_cselect_b32 %s, 0x%x, 0' % (S(sPD+2), WS_SIZE)])
        for i in range(4):
            def f(i=i): self.tPackSt = g('buffer_store_dwordx4 %s, %s, %s, %s offen sc1' % (V(PV+4*i, 4), V(vL16), S(sPD, 4), S(sPs[i])))
            b.append(F(f))
        return a, b

    def touch_addr(self):
        if not self.cfg.get('coop', 0): return
        g = self.g; L = V(vLane)
        g('s_lshl_b32 %s, s2, 2' % S(sT0))
        g('s_add_u32 %s, %s, %s' % (S(sT0), S(sT0), S(sWave)))
        g('s_mul_i32 %s, %s, 20' % (S(sT1), S(sT0)))
        g('v_min_u32 v248, 19, %s' % L)
        g('v_add_u32 v248, %s, v248' % S(sT1))
        g('v_lshlrev_b32 v248, 7, v248')
        g('s_mul_i32 %s, %s, 25' % (S(sT1), S(sT0)))
        g('s_lshr_b32 %s, %s, 2' % (S(sT1), S(sT1)))
        g('v_min_u32 v249, 6, %s' % L)
        g('v_add_u32 v249, %s, v249' % S(sT1))
        g('v_min_u32 v249, 6399, v249')
        g('v_lshlrev_b32 v249, 7, v249')
        nw = 5 if self.cfg['coop'] == 1 else 15
        g('s_mul_i32 %s, %s, %d' % (S(sT1), S(sT0), nw))
        g('v_min_u32 v250, %d, %s' % (nw-1, L))
        g('v_add_u32 v250, %s, v250' % S(sT1))
        if nw == 5:
            g('v_lshrrev_b32 v251, 3, v250')
            g('v_and_b32 v250, 7, v250')
            g('v_mul_u32_u24 v251, 3072, v251')
            g('v_mul_u32_u24 v250, 384, v250')
            g('v_add_u32 v250, v250, v251')
        else:
            g('v_lshlrev_b32 v250, 7, v250')
    def touch(self):
        if not self.cfg.get('coop', 0): return
        g = self.g
        g('global_load_dword v240, v248, %s' % S(pX, 2))
        g('global_load_dword v241, v249, %s' % S(pBre, 2))
        g('global_load_dword v242, v249, %s' % S(pBim, 2))
        g('global_load_dword v243, v250, %s' % S(pW1, 2))

    def warm_flags(self, role):
        if not self.cfg.get('warm', 1): return []
        L = V(vLane)
        o = ['s_lshl_b32 %s, %s, 7' % (S(sT0), S(sRole)), 's_add_u32 %s, %s, %s' % (S(sT0), S(sT0), S(sIdx)),
             's_lshl_b32 %s, %s, %d' % (S(sT0), S(sT0), self.fg - self.fw), 's_add_u32 %s, %s, %s' % (S(sT0), S(sT0), S(sWave)),
             's_lshl_b32 %s, %s, %d' % (S(sT0), S(sT0), self.fw), 's_add_u32 %s, %s, %d' % (S(sT0), S(sT0), WS_HFLAG),
             'v_min_u32 v250, 9, %s' % L, 'v_lshlrev_b32 v250, 16, v250', 'v_add_u32 v250, %s, v250' % S(sT0)]
        if role == 0:
            o += [
                  's_lshl_b32 %s, %s, 4' % (S(sT0), S(sJ1)), 's_add_u32 %s, %s, %s' % (S(sT0), S(sT0), S(sC1)),
                  's_lshl_b32 %s, %s, 2' % (S(sT0), S(sT0)), 's_add_u32 %s, %s, %s' % (S(sT0), S(sT0), S(sWave)),
                  's_mul_i32 %s, %s, 320' % (S(sT0), S(sT0)), 's_add_u32 %s, %s, %d' % (S(sT0), S(sT0), WS_EBUF),
                  'v_and_b32 v251, 3, %s' % L, 'v_mul_u32_u24 v251, 104, v251', 'v_add_u32 v251, %s, v251' % S(sT0),
                  ['v_cmp_gt_u32 vcc, 12, %s' % L, 'v_cndmask_b32 v250, v251, v250, vcc'],
                  's_lshl_b32 %s, %s, 3' % (S(sT0), S(sC1)), 's_add_u32 %s, %s, %s' % (S(sT0), S(sT0), S(sJ1)),
                  's_lshl_b32 %s, %s, 2' % (S(sT0), S(sT0)), 's_add_u32 %s, %s, %s' % (S(sT0), S(sT0), S(sWave)),
                  's_lshl_b32 %s, %s, 6' % (S(sT0), S(sT0)), 's_add_u32 %s, %s, %d' % (S(sT0), S(sT0), WS_GATE),
                  'v_mov_b32 v251, %s' % S(sT0),
                  ['v_cmp_gt_u32 vcc, 16, %s' % L, 'v_cndmask_b32 v250, v251, v250, vcc']]
        o.append('buffer_load_dword v251, v250, %s, 0 offen sc1' % S(sWS, 4))
        return o

    def pack_poll_issue(self, vPp, vD):
        self.g('buffer_load_dword %s, %s, %s, 0 offen sc1' % (V(vD), V(vPp), S(sWS, 4)))
    def pack_poll_check(self, vPp, vD):
        if self.cfg.get('nopoll'): return
        self.poll('pk', lambda: self.pack_poll_issue(vPp, vD), self.check_eq([vD]))

    def x_dma_addr(self, vXd, perm):
        g = self.g
        g('s_lshl_b32 %s, %s, 2' % (S(sT0), S(sC1)))
        g('s_add_u32 %s, %s, %s' % (S(sT0), S(sT0), S(sWave)))
        g('s_mul_i32 %s, %s, %d' % (S(sT0), S(sT0), 32*1280))
        if perm:
            g('v_lshrrev_b32 %s, 5, %s' % (V(vT[3]), V(vLane)))
            g('v_and_b32 %s, 3, %s' % (V(vT[4]), V(vT[0])))
            g('v_lshl_add_u32 %s, %s, 3, %s' % (V(vT[3]), V(vT[3]), V(vT[4])))
            g('v_mul_u32_u24 %s, 1280, %s' % (V(vT[3]), V(vT[3])))
        else:
            g('v_mul_u32_u24 %s, 1280, %s' % (V(vT[3]), V(vT[0])))
        g('v_xor_b32 %s, %s, %s' % (V(vT[4]), V(vT[1]), V(vT[2])))
        g('v_lshlrev_b32 %s, 4, %s' % (V(vT[4]), V(vT[4])))
        g('v_xor_b32 %s, 64, %s' % (V(vT[5]), V(vT[4])))
        g('v_add3_u32 %s, %s, %s, %s' % (V(vXd[0]), V(vT[4]), V(vT[3]), S(sT0)))
        g('v_add3_u32 %s, %s, %s, %s' % (V(vT[5]), V(vT[5]), V(vT[3]), S(sT0)))
        for q in range(1, 4):
            rows = (16*(q & 1) + 4*(q >> 1)) if perm else 8*q
            g('v_add_u32 %s, %d, %s' % (V(vXd[q]), rows*1280 - 1024*q, V(vT[5] if q & 1 else vXd[0])))

    def ffn(self):
        g = self.g; cfg = self.cfg
        ACC = [16, 48]
        WF = 80; NF = 10
        EP = 120
        PKR = 128
        vXd = [144, 145, 146, 147]; vWd = [148, 149]; vXr = [150, 151, 152, 153]; vWr = [154, 155]; vHs = 156
        vPr, vPs, vPp, vPd = 157, 158, 159, 13
        vWrB = [150, 151]
        def wslot(t):
            if t < 16: return F_WR + (t % 8)*8192
            if t < 24: return (t-16)*8192
            return F_WR + (t-24)*8192
        LA = cfg.get('fla', 7); WE = cfg.get('fwe', 4)
        self.x_dma_addr(vXd, False)
        g('v_and_b32 %s, 1, %s' % (V(vT[3]), V(vT[2])))
        g('v_lshlrev_b32 %s, 2, %s' % (V(vT[3]), V(vT[3])))
        g('v_xor_b32 %s, %s, %s' % (V(vT[3]), V(vT[1]), V(vT[3])))
        g('v_mul_u32_u24 %s, 3072, %s' % (V(vT[4]), V(vT[0])))
        g('v_lshl_add_u32 %s, %s, 4, %s' % (V(vT[3]), V(vT[3]), V(vT[4])))
        g('s_mul_i32 %s, %s, %d' % (S(sT0), S(sWave), 16*3072))
        g('v_add_u32 %s, %s, %s' % (V(vWd[0]), S(sT0), V(vT[3])))
        g('v_add_u32 %s, %d, %s' % (V(vWd[1]), 8*3072 - 1024, V(vWd[0])))
        g('s_mul_i32 %s, %s, 20480' % (S(sMx), S(sWave)))
        g('s_lshl_b32 %s, %s, 11' % (S(sMw), S(sWave)))
        g('s_mul_i32 %s, %s, 384' % (S(sWo), S(sJ1)))
        g.do(self.srd_cst(sW, 640*3072))
        for s in range(1, 10): g.do(self.kb(s))
        tokX = {}; tokW = {}
        def dma_x(s):
            def mk(q):
                def f():
                    tokX[s] = g('buffer_load_dwordx4 %s, %s, %s offen offset:%d%s lds' % (V(vXd[q]), S(sX, 4), S(sKb[s]), 1024*q, (' nt' if s < cfg.get('nt0', 0) else '')))
                return F(f)
            return ['s_add_u32 m0, %s, %d' % (S(sMx), (s % 5)*4096)] + [mk(q) for q in range(4)]
        def dma_w(t):
            o = ['s_add_u32 m0, %s, %d' % (S(sMw), wslot(t))]
            k = sKb[t % 10]
            if t < 10: o += ['s_mul_i32 %s, %s, 1536' % (S(k), S(k)), 's_add_u32 %s, %s, %s' % (S(k), S(k), S(sWo))]
            if t in (10, 20): o += ['v_add_u32 %s, 128, %s' % (V(r), V(r)) for r in vWd]
            nt = ' nt' if t < cfg.get('nt0', 0) else ''
            o.append('buffer_load_dwordx4 %s, %s, %s offen%s lds' % (V(vWd[0]), S(sW, 4), S(k), nt))
            def f():
                tokW[t] = g('buffer_load_dwordx4 %s, %s, %s offen offset:1024%s lds' % (V(vWd[1]), S(sW, 4), S(k), nt))
            return o + [F(f)]
        self.touch_addr()
        self.ptrs_ready()
        g.do(self.srd_ptr(sW, pW1))
        if cfg.get('coop_first', 1): self.touch()
        g.do(dma_x(0) + dma_w(0))
        if not cfg.get('coop_first', 1): self.touch()
        g.do(dma_x(1) + dma_w(1))
        g.do(self.srd_ptr(sWS, pWs))
        g('s_load_dword %s, %s, 0' % (S(sNonce), S(pWs, 2)))
        g.do(self.warm_flags(1))
        g('v_and_b32 %s, 31, %s' % (V(vT[3]), V(vLane)))
        g('v_bfe_u32 %s, %s, 1, 3' % (V(vT[4]), V(vLane)))
        g('v_lshrrev_b32 %s, 5, %s' % (V(vT[7]), V(vLane)))
        g('v_xor_b32 %s, %s, %s' % (V(vT[4]), V(vT[4]), V(vT[7])))
        g('v_lshlrev_b32 %s, 4, %s' % (V(vT[4]), V(vT[4])))
        g('v_lshl_add_u32 %s, %s, 7, %s' % (V(vT[4]), V(vT[3]), V(vT[4])))
        g('v_add_u32 %s, %s, %s' % (V(vXr[0]), S(sMx), V(vT[4])))
        for ks in range(1, 4):
            g('v_xor_b32 %s, %d, %s' % (V(vXr[ks]), 32*ks, V(vXr[0])))
        g('v_bfe_u32 %s, %s, 2, 2' % (V(vT[4]), V(vLane)))
        g('v_lshl_add_u32 %s, %s, 3, %s' % (V(vT[6]), V(vT[7]), V(vT[4])))
        g('v_lshlrev_b32 %s, 7, %s' % (V(vT[6]), V(vT[6])))
        g('v_lshrrev_b32 %s, 1, %s' % (V(vT[4]), V(vT[4])))
        g('v_lshl_add_u32 %s, %s, 6, %s' % (V(vT[6]), V(vT[4]), V(vT[6])))
        g('v_bfe_u32 %s, %s, 4, 1' % (V(vT[4]), V(vLane)))
        g('v_lshl_add_u32 %s, %s, 5, %s' % (V(vT[6]), V(vT[4]), V(vT[6])))
        g('v_and_b32 %s, 3, %s' % (V(vT[4]), V(vLane)))
        g('v_lshl_add_u32 %s, %s, 3, %s' % (V(vT[6]), V(vT[4]), V(vT[6])))
        g('v_add_u32 %s, %d, %s' % (V(vWr[0]), F_WR, V(vT[6])))
        g('v_xor_b32 %s, 64, %s' % (V(vWr[1]), V(vWr[0])))
        vPc = 160
        pk0 = cfg.get('pk', (4,))[0] < 2
        if pk0: g.do(self.pack_addr(vPs, vPr, vPc))
        if cfg.get('pk', (4,))[0] < 0: g.do(self.pack_load(vPs, 164))
        g.do(dma_x(2) + dma_w(2))
        XL = cfg.get('f_xl', 4)
        if XL == 4: g.do(dma_x(3) + dma_w(3))
        self.stamp(1)
        setup = ([] if pk0 else self.pack_addr(vPs, vPr, vPc)) + self.late_setup(1, vT[0], vT[1], vPp)
        n_late = len(setup)
        setup += self.hbase(6, 0) + [
            'v_bfe_u32 %s, %s, 4, 1' % (V(vT[0]), V(vLane)), 'v_lshlrev_b32 %s, 10, %s' % (V(vT[0]), V(vT[0])),
            'v_lshl_add_u32 %s, %s, 9, %s' % (V(vT[0]), V(vT[7]), V(vT[0])), 'v_and_b32 %s, 15, %s' % (V(vT[1]), V(vLane)),
            'v_lshl_add_u32 %s, %s, 4, %s' % (V(vT[0]), V(vT[1]), V(vT[0])), 'v_add_u32 %s, %s, %s' % (V(vHs), S(sKt), V(vT[0])),
            's_mov_b32 %s, 0x%x' % (S(sNl), NLOG2E)]
        setup += self.ks_table(1)

        mains = []; fixed = []
        tokF = {}; tokXr = {}
        def rd_x(s, ks):
            def f(): tokXr[s] = g('ds_read_b128 %s, %s offset:%d' % (A(16*s + 4*ks, 4), V(vXr[ks]), (s % 5)*4096))
            return F(f)
        def rd_w(n, e):
            sg, ks, u = n // 8, (n % 8)//2, n % 2
            def f():
                tokF[n] = g('ds_read_b64_tr_b16 %s, %s offset:%d' % (V(WF + 4*(n % NF) + 2*e, 2), V(vWrB[u] if 16 <= sg < 24 else vWr[u]), wslot(sg) % F_WR + (16*ks + 4*e)*128))
            return F(f)
        def bar(sg, both):
            def f():
                g.wait(tokX.get(sg), tokW[sg+1 if both else sg], tokXr.get(sg-1) if XL == 4 else None)
                g('s_barrier')
                if sg == 0: self.stamp(2)
                if sg == 10: self.stamp(3)
                if sg == 20: self.stamp(4)
                if sg in (3, 5, 7, 12, 16, 26): self.stamp(20 + (3, 5, 7, 12, 16, 26).index(sg), lvl=3)
            return F(f, 8)
        for n in range(240):
            sg, ks, u = n // 8, (n % 8)//2, n % 2
            grp, s = sg // 10, sg % 10
            acc = ACC[grp % 2] + 16*u
            c = '0' if (s == 0 and ks == 0) else V(acc, 16)
            mains.append(('v_mfma_f32_32x32x16_bf16 %s, %s, %s, %s' % (V(acc, 16), V(WF + 4*(n % NF), 4), A(16*s + 4*ks, 4), c),
                          (lambda n=n: [tokF[min(n+WE-1, 239)]]) if n % WE == 0 else None))
        wsched = {}
        if XL == 3:
            for sg in range(7): wsched[sg] = [sg+3]
            wsched[7] = [10, 11]; wsched[8] = [12, 13]; wsched[9] = [14]; wsched[10] = [15]
        else:
            for sg in range(6): wsched[sg] = [sg+4]
            wsched[6] = [10, 11]; wsched[7] = [12, 13]; wsched[8] = [14]; wsched[9] = [15]
        wsched[12] = [16, 17, 18, 19]; wsched[14] = [20, 21, 22]; wsched[16] = [23, 24, 25]; wsched[18] = [26, 27]; wsched[20] = [28, 29]
        endb = {}
        for sg in range(30):
            if sg >= 10 and sg % 2: continue
            p = 8*sg - LA
            fixed.append((p - 0.5, bar(sg, sg >= 10)))
            d = []
            if sg + XL <= 9: d += dma_x(sg+XL)
            for t in wsched.get(sg, []): d += dma_w(t)
            stp = 0.5 if sg < 10 else 15.0/max(len(d), 1)
            for i, f in enumerate(d): fixed.append((p + 0.6 + i*stp, f))
            endb[sg] = p + 0.6 + len(d)*stp
        for u in range(2): fixed.append((90 + u, 'v_subrev_u32 %s, %d, %s' % (V(vWrB[u]), F_WR, V(vWr[u]))))
        if cfg.get('w1warm', 0):
            fixed.append((endb[cfg.get('w1warm_at', 1)], ['s_lshl_b32 %s, %s, 2' % (S(sT0), S(sC1)), 's_add_u32 %s, %s, %s' % (S(sT0), S(sT0), S(sWave)),
                 's_mul_i32 %s, %s, %d' % (S(sT0), S(sT0), 10*3072), 's_add_u32 %s, %s, %s' % (S(sT0), S(sT0), S(sWo)),
                 'v_min_u32 %s, 19, %s' % (V(vT[8]), V(vLane)), 'v_lshrrev_b32 %s, 1, %s' % (V(vPd), V(vT[8])),
                 'v_mul_u32_u24 %s, 3072, %s' % (V(vPd), V(vPd)), 'v_and_b32 %s, 1, %s' % (V(vT[8]), V(vT[8])),
                 'v_lshl_add_u32 %s, %s, 7, %s' % (V(vPd), V(vT[8]), V(vPd)),
                 'buffer_load_dword %s, %s, %s, %s offen offset:128 sc1' % (V(vT[8]), V(vPd), S(sW, 4), S(sT0))]))
        for n in range(240):
            if n < 80 and n % 2 == 0:
                s, ks = n//8, (n % 8)//2
                fixed.append((8*s - LA + ks if XL == 4 else n - LA, rd_x(s, ks)))
            fixed.append((n - LA, rd_w(n, 0))); fixed.append((n - LA, rd_w(n, 1)))
        cl, cr, cf, pp = cfg.get('pk', (4, 8, 12, 22))
        at = lambda sg: endb[sg] if sg < 10 else 8*sg - LA + 0.2
        PV = 164
        if cl >= 0: fixed.append((at(cl), self.pack_load(vPs, PV)))
        pa_, pb_ = self.pack_proc(vPc+1, vPr, vPc, PV)
        for i, f in enumerate(pa_): fixed.append((at(cr) + 0.5*i, f))
        for i, f in enumerate(pb_): fixed.append((at(cr) + 9 + 0.5*i, f))
        fixed.append((at(cf), F(lambda: self.flag_store(self.tPackSt, sPD), 8)))
        if pp < 30:
            fixed.append((at(pp-2), F(lambda: self.pack_poll_issue(vPp, vPd))))
            fixed.append((at(pp), F(lambda: self.pack_poll_check(vPp, vPd), 20)))
        else:
            fixed.append((228, F(lambda: self.pack_poll_issue(vPp, vPd))))
        nb_in = cfg.get('f_b2in', 20) if pp < 30 else 0
        b2 = self.b2_loads(1, range(4 if cfg.get('f_nob2') else 12))
        tU = {}
        def epi(grp):
            ops = []
            for u in range(2):
                acc = ACC[grp % 2] + 16*u
                pk = PKR + 8*u
                def stage(r, k):
                    t = V(EP + (r % 8)); a = V(acc + r)
                    return ['v_mul_f32 %s, %s, %s' % (t, S(sNl), a), 'v_exp_f32 %s, %s' % (t, t), 'v_add_f32 %s, 1.0, %s' % (t, t),
                            'v_rcp_f32 %s, %s' % (t, t), 'v_mul_f32 %s, %s, %s' % (a, a, t)][k]
                for tm in range(16 + 6):
                    for k in (4, 3, 2, 1, 0):
                        r = tm - k
                        if 0 <= r < 16: ops.append(stage(r, k))
                    r = tm - 5
                    if 0 <= r < 16 and r % 2 == 1:
                        ops.append('v_cvt_pk_bf16_f32 %s, %s, %s' % (V(pk + r//2), V(acc + r - 1), V(acc + r)))
                        if r in (7, 15):
                            e = r // 8
                            def st(e=e, pk=pk, un=2*grp+u):
                                tU[un] = g('buffer_store_dwordx4 %s, %s, %s, 0 offen offset:%d%s' % (V(pk + 4*e, 4), V(vHs), S(sH, 4), 256*e, cfg.get('hst', ' sc1')))
                            ops.append(F(st))
                ops.append('v_add_u32 %s, %d, %s' % (V(vHs), HKS, V(vHs)))
            return ops
        pa = 24 if pk0 else min(40, int(at(cl)) - 1)
        sA = Stream(setup[:n_late], 0, pa - 1)
        fixed.append((pa - 0.1, F(lambda: sA.flush(g), 0)))
        streams = [sA, Stream(setup[n_late:], pa, 78),
                   Stream(b2[:nb_in], max(8*pp, cfg.get('f_b2s', 0)), 236, paced=True, slack=4),
                   Stream(epi(0), 82, 158), Stream(epi(1), 162, 238)]
        if cfg.get('noepi'): streams = streams[:3]
        fixed.append((max(at(cf) + 1, 150), self.line_addr(WS_HFLAG, vFa)))
        fixed.append((cfg.get('f_l0', 232), F(lambda: self.hflag(1, 0, tU[2]), 20)))
        sched(g, mains, 24, fixed, streams, report=self.rep and 'ffn')
        self.stamp(5)
        if pp >= 30: self.pack_poll_check(vPp, vPd)
        e2 = epi(2); k = cfg.get('f_hp0', 60)
        rest = mix(g, e2[:k] + self.hp_addr(1) + [F(lambda: self.hpoll(1, 0), 8)] + e2[k:], b2[nb_in:], every=cfg.get('f_pace', 72))
        self.hflag(1, 1, tU[3])
        self.stamp(6)
        self.phase2(1, rest, tU[5])

    def cpow(self, dst, a, th, n, t0, t1):
        if n is None:
            o = ['v_exp_f32 %s, %s' % (V(t0), V(a)), 'v_rndne_f32 %s, %s' % (V(t1), V(th)), 'v_sub_f32 %s, %s, %s' % (V(t1), V(th), V(t1))]
        else:
            o = ['v_mul_f32 %s, %s, %s' % (V(t0), n, V(a)), 'v_mul_f32 %s, %s, %s' % (V(dst), n, V(th)), 'v_exp_f32 %s, %s' % (V(t0), V(t0)),
                 'v_rndne_f32 %s, %s' % (V(t1), V(dst)), 'v_sub_f32 %s, %s, %s' % (V(t1), V(dst), V(t1))]
        return o + ['v_cos_f32 %s, %s' % (V(dst), V(t1)), 'v_sin_f32 %s, %s' % (V(dst+1), V(t1)),
                    'v_mul_f32 %s, %s, %s' % (V(dst), V(t0), V(dst)), 'v_mul_f32 %s, %s, %s' % (V(dst+1), V(t0), V(dst+1))]

    def ssm(self):
        g = self.g; cfg = self.cfg
        ACC = 16
        def acc(u, part, t): return ACC + 16*u + 8*part + t
        L1 = 96
        CF = 111
        L8S = 126
        L8, L128, nL128 = 136, 157, 139
        vXd = [140, 141, 142, 143]; vBd = [144, 145, 146, 147, 148]
        vXr = [149, 150]; vBr = [151, 152, 153, 154]
        vPidx = 155; vHs = 156
        vPr, vPs, vPp, vPd = 157, 158, 159, 13
        BIG = 160
        RAW = 160
        aBF = 0; NF = 12; aXF = 48
        LA = cfg.get('sla', 4); WE = cfg.get('swe', 2); SL = cfg.get('s_sl', 3); RS = 1.4 if SL == 3 else 2.0
        g.label('L_ssm')
        self.x_dma_addr(vXd, True)
        g('s_and_b32 %s, %s, 1' % (S(sT1), S(sWave)))
        g('s_lshl_b32 %s, %s, 1' % (S(sT0), S(sJ1)))
        g('s_add_u32 %s, %s, %s' % (S(sT0), S(sT0), S(sT1)))
        g('s_mul_i32 %s, %s, %d' % (S(sT0), S(sT0), 40*1280))
        g('s_lshl_b32 %s, %s, 6' % (S(sT1), S(sT1)))
        g('v_xor_b32 %s, %s, %s' % (V(vT[4]), S(sT1), V(vT[4])))
        g('v_xor_b32 %s, 64, %s' % (V(vT[5]), V(vT[4])))
        g('v_mul_u32_u24 %s, 1280, %s' % (V(vT[3]), V(vT[0])))
        g('v_add3_u32 %s, %s, %s, %s' % (V(vBd[0]), V(vT[4]), V(vT[3]), S(sT0)))
        g('v_add3_u32 %s, %s, %s, %s' % (V(vT[5]), V(vT[5]), V(vT[3]), S(sT0)))
        for q in range(1, 5):
            g('v_add_u32 %s, %d, %s' % (V(vBd[q]), 8*q*1280 - 1024*(q & 3), V(vT[5] if q & 1 else vBd[0])))
        g('s_lshl_b32 %s, %s, 14' % (S(sMx), S(sWave)))
        g('s_mul_i32 %s, %s, 5120' % (S(sMw), S(sWave)))
        g('s_add_u32 %s, %s, %d' % (S(sMw), S(sMw), S_BR))
        g.do(self.srd_cst(sW, 819200))
        for s in range(1, 10): g.do(self.kb(s))
        tokS = {}
        def dma(s):
            o = ['s_add_u32 m0, %s, %d' % (S(sMx), (s % 4)*4096)]
            for q in range(4): o.append('buffer_load_dwordx4 %s, %s, %s offen offset:%d%s lds' % (V(vXd[q]), S(sX, 4), S(sKb[s]), 1024*q, (' nt' if s < cfg.get('nt0', 0) else '')))
            o.append('s_add_u32 m0, %s, %d' % (S(sMw), (s % 4)*20480))
            nt = ' nt' if s < cfg.get('nt0', 0) else ''
            for q in range(4): o.append('buffer_load_dwordx4 %s, %s, %s offen offset:%d%s lds' % (V(vBd[q]), S(sW, 4), S(sKb[s]), 1024*q, nt))
            o.append('s_add_u32 m0, %s, %d' % (S(sMw), (s % 4)*20480 + 4096))
            def f(): tokS[s] = g('buffer_load_dwordx4 %s, %s, %s offen%s lds' % (V(vBd[4]), S(sW, 4), S(sKb[s]), nt))
            return o + [F(f)]
        self.touch_addr()
        self.ptrs_ready()
        g('s_cmp_lt_u32 %s, 2' % S(sWave))
        g('s_cselect_b32 %s, %s, %s' % (S(sW), S(pBre), S(pBim)))
        g('s_cselect_b32 %s, %s, %s' % (S(sW+1), S(pBre+1), S(pBim+1)))
        if cfg.get('coop_first', 1): self.touch()
        g.do(dma(0))
        if not cfg.get('coop_first', 1): self.touch()
        g.do(self.srd_ptr(sWS, pWs))
        g('s_load_dword %s, %s, 0' % (S(sNonce), S(pWs, 2)))
        g('v_and_b32 %s, 15, %s' % (V(vT[3]), V(vLane)))
        g('v_bfe_u32 %s, %s, 1, 3' % (V(vT[4]), V(vLane)))
        g('v_xor_b32 %s, %s, %s' % (V(vT[4]), V(vT[4]), V(vT[2])))
        g('v_lshlrev_b32 %s, 4, %s' % (V(vT[4]), V(vT[4])))
        g('v_lshl_add_u32 %s, %s, 7, %s' % (V(vT[4]), V(vT[3]), V(vT[4])))
        g('v_add_u32 %s, %s, %s' % (V(vXr[0]), S(sMx), V(vT[4])))
        g('v_xor_b32 %s, 64, %s' % (V(vXr[1]), V(vXr[0])))
        g('v_add_u32 %s, %d, %s' % (V(vBr[0]), S_BR, V(vT[4])))
        g('v_xor_b32 %s, 64, %s' % (V(vBr[1]), V(vBr[0])))
        g('v_add_u32 %s, 40960, %s' % (V(vBr[2]), V(vBr[0])))
        g('v_add_u32 %s, 40960, %s' % (V(vBr[3]), V(vBr[1])))
        g('s_mul_i32 %s, %s, 160' % (S(sT0), S(sJ1)))
        g('v_lshl_add_u32 %s, %s, 1, %s' % (V(vT[7]), V(vT[3]), S(sT0)))
        g('v_min_u32 %s, 19, %s' % (V(vPidx), V(vLane)))
        g('s_mul_i32 %s, %s, 20' % (S(sT1), S(sWave)))
        g('v_add_u32 %s, %s, %s' % (V(vPidx), S(sT1), V(vPidx)))
        g('v_lshl_add_u32 %s, %s, 1, %s' % (V(vT[6]), V(vPidx), S(sT0)))
        g.do(dma(1))
        g.do(self.warm_flags(0))
        parld = []
        for u in range(6):
            for k, p in enumerate((pLre, pLim, pLdt)):
                parld.append('global_load_ushort %s, %s, %s offset:%d' % (V(RAW + 3*u + k), V(vT[7] if u < 5 else vT[6]), S(p, 2), 32*u if u < 5 else 0))
        if cfg.get('s_pla', 1) < 0: g.do(parld)
        UP = cfg.get('s_up', 2)
        if UP == 3: g.do(dma(2))
        self.stamp(1)
        setup = self.late_setup(0, vT[0], vT[1], vPp)
        n_late = len(setup)
        setup += self.hbase(5, 48*HKS) + ['v_add_u32 %s, %s, %s' % (V(vHs), S(sKt), V(vL16))]
        setup += self.ks_table(0)
        PT = BIG + 20
        par = ['s_lshl_b32 %s, %s, 2' % (S(sT2), S(sWave)), 'v_add_u32 %s, %s, %s' % (V(vT[2]), S(sT2), V(vT[2])),
               'v_lshlrev_b32 %s, 3, %s' % (V(PT), V(vT[2])), 'v_cvt_f32_u32 %s, %s' % (V(PT), V(PT)),
               'v_mul_u32_u24 %s, 640, %s' % (V(vT[2]), V(vT[2])), 'v_and_b32 %s, 15, %s' % (V(vT[3]), V(vLane)),
               'v_lshlrev_b32 %s, 3, %s' % (V(vT[3]), V(vT[3])), 'v_add_u32 %s, %d, %s' % (V(vT[3]), L_EX, V(vT[3])),
               'v_add_u32 %s, %s, %s' % (V(vT[2]), V(vT[2]), V(vT[3])),
               'v_lshlrev_b32 %s, 3, %s' % (V(vT[4]), V(vPidx)), 'v_add_u32 %s, %d, %s' % (V(vT[4]), L_EX, V(vT[4])),
               's_mul_i32 %s, %s, 20480' % (S(sT2), S(sJ1)), 's_add_u32 %s, %s, %d' % (S(sT2), S(sT2), WS_EBUF),
               'v_lshlrev_b32 %s, 4, %s' % (V(vT[5]), V(vPidx)), 'v_add_u32 %s, %s, %s' % (V(vT[5]), S(sT2), V(vT[5])),
               's_mul_i32 %s, %s, 1280' % (S(sCo), S(sC1))]
        for u in range(6):
            lr, li, ld = RAW + 3*u, RAW + 3*u + 1, RAW + 3*u + 2
            a, th, t0, t1 = PT+1, PT+2, PT+3, PT+4
            par += ['v_lshlrev_b32 %s, 16, %s' % (V(ld), V(ld)), 'v_mul_f32 %s, 0x%x, %s' % (V(ld), LOG2E, V(ld)),
                    'v_exp_f32 %s, %s' % (V(ld), V(ld)), 'v_lshlrev_b32 %s, 16, %s' % (V(lr), V(lr)),
                    'v_cvt_pk_bf16_f32 %s, %s, %s' % (V(ld), V(ld), V(ld)), 'v_lshlrev_b32 %s, 16, %s' % (V(li), V(li)),
                    'v_lshlrev_b32 %s, 16, %s' % (V(ld), V(ld)),
                    'v_mul_f32 %s, %s, %s' % (V(a), V(ld), V(lr)), 'v_mul_f32 %s, %s, %s' % (V(th), V(ld), V(li)),
                    'v_mul_f32 %s, 0x%x, %s' % (V(a), LOG2E, V(a)), 'v_mul_f32 %s, 0.15915494, %s' % (V(th), V(th))]
            if u < 5:
                l1 = L1 + 3*u; cf = CF + 3*u
                par += self.cpow(l1, a, th, None, t0, t1)
                par += self.cpow(L8S + 2*u, a, th, V(PT), t0, t1)
                par += ['v_mul_f32 %s, %s, %s' % (V(th), V(lr), V(lr)), 'v_fmac_f32 %s, %s, %s' % (V(th), V(li), V(li)),
                        'v_rcp_f32 %s, %s' % (V(th), V(th)), 'v_add_f32 %s, -1.0, %s' % (V(a), V(l1)),
                        'v_sub_f32 %s, 0, %s' % (V(l1+2), V(l1+1)),
                        'v_mul_f32 %s, %s, %s' % (V(cf), V(a), V(lr)), 'v_add_f32 %s, %s, %s' % (V(th), V(th), V(th)),
                        'v_fmac_f32 %s, %s, %s' % (V(cf), V(l1+1), V(li)), 'v_mul_f32 %s, %s, %s' % (V(cf+2), V(a), V(li)),
                        'v_fmac_f32 %s, %s, %s' % (V(cf+2), V(l1+2), V(lr)),
                        'v_mul_f32 %s, %s, %s' % (V(cf), V(cf), V(th)), 'v_mul_f32 %s, %s, %s' % (V(cf+2), V(cf+2), V(th)),
                        'v_sub_f32 %s, 0, %s' % (V(cf+1), V(cf+2))]
            else:
                par += self.cpow(L8, a, th, '0x41000000', t0, t1) + self.cpow(L128, a, th, '0x43000000', t0, t1)
                par += ['v_sub_f32 %s, 0, %s' % (V(L8+2), V(L8+1)), 'v_sub_f32 %s, 0, %s' % (V(nL128), V(L128+1))]

        mains = []; fixed = []
        tokF = {}
        def rd_b(f_):
            sg, s, up = f_ // 20, (f_ % 20)//10, f_ % 10
            u, part = up // 2, up % 2
            def f():
                if cfg.get('s_nord'): tokF[f_] = None; return
                tokF[f_] = g('ds_read_b128 %s, %s offset:%d' % (A(aBF + 4*(f_ % NF), 4), V(vBr[2*((sg % 4)//2) + s]), (sg % 2)*20480 + (part*80 + 16*u)*128))
            return F(f)
        def bar(sg):
            def f():
                g.wait(tokS[sg], tokF.get(20*sg-1) if (SL == 3 and sg + SL <= 9) else None)
                g('s_barrier')
                if sg == 0: self.stamp(2)
                if sg in (2, 4, 6, 8, 9): self.stamp(20 + (2, 4, 6, 8, 9).index(sg), lvl=3)
                if cfg.get('allbar') and sg > 0: self.stamp(19 + sg)
            return F(f, 8)
        for n in range(400):
            f_, m = n // 2, n % 2
            kk, up = f_ // 10, f_ % 10
            u, part = up // 2, up % 2
            d = acc(u, part, 4*m)
            c = '0' if kk == 0 else V(d, 4)
            mains.append(('v_mfma_f32_16x16x32_bf16 %s, %s, %s, %s' % (V(d, 4), A(aXF + 8*(kk % 2) + 4*m, 4), A(aBF + 4*(f_ % NF), 4), c),
                          (lambda f_=f_: [tokF[min(f_+WE-1, 199)]]) if (m == 0 and f_ % WE == 0) else None))
        endb = {}
        for sg in range(10):
            p = 40*sg - 2*LA
            fixed.append((p - 1.5, bar(sg)))
            if sg + SL <= 9:
                d = dma(sg+SL)
                if sg == 0 and UP < SL: d = dma(2) + d
                stp = 36.0/len(d) if len(d) > 12 else 2
                for i, f in enumerate(d): fixed.append((p + 1 + stp*i, f))
                endb[sg] = p + 1 + stp*len(d)
        for f_ in range(200):
            pos = 40*(f_//20) - 2*LA + RS*(f_ % 20)
            if f_ % 10 == 0:
                kk = f_//10; sg, s = kk // 2, kk % 2
                for m in range(2):
                    fixed.append((max(pos - 1, 20*kk - 19) + 0.1*m, 'ds_read_b128 %s, %s offset:%d' % (A(aXF + 8*(kk % 2) + 4*m, 4), V(vXr[s]), (sg % 4)*4096 + 2048*m)))
            fixed.append((pos, rd_b(f_)))
        pla = cfg.get('s_pla', 1)
        if pla >= 0:
            for i, f in enumerate(parld): fixed.append((endb[pla] + 0.5*i, f))
        b2 = [] if cfg.get('s_nob2') else self.b2_loads(0, range(10))
        pc = cfg.get('s_pc', 400); nb_in = cfg.get('s_b2in', 20) if pc < 400 else 0
        fixed.append((pc - 40, F(lambda: self.pack_poll_issue(vPp, vPd))))
        if pc < 400: fixed.append((pc, F(lambda: self.pack_poll_check(vPp, vPd), 20)))
        streams = [Stream(b2[:nb_in], pc + 1, 398, paced=True, slack=4),
                   Stream(setup + self.line_addr(WS_HFLAG, vFa), 40 if pla >= 0 else 0, 200 if pla >= 0 else cfg.get('s_pe', 100)), Stream(self.xd_loads(PT + 5), cfg.get('s_xd', 270), 340), (Stream(par, 40*(pla+3), 392) if pla >= 0 else Stream(par, 0, cfg.get('s_pe', 100)))]
        b2 = b2[nb_in:]
        if cfg.get('s_nomf'): mains = [('s_nop 0', None)]*400; fixed = [f for f in fixed if not (isinstance(f[1], str) and 'ds_read' in f[1])]
        if cfg.get('s_nostream'): streams = [streams[0]]
        sched(g, mains, 8, fixed, streams, report=self.rep and 'ssm')
        self.stamp(3)

        pace = cfg.get('s_pace', 1000)
        E = BIG
        ops = []
        for t in range(1, 8):
            src = lambda u, part: (acc(u, part, 0) if t == 1 else E + 10*((t-1) % 2) + 2*u + part)
            dst = lambda u, part: E + 10*(t % 2) + 2*u + part
            for u in range(5):
                ops.append('v_fma_f32 %s, %s, %s, %s' % (V(dst(u, 0)), V(L1+3*u), V(src(u, 0)), V(acc(u, 0, t))))
                ops.append('v_fma_f32 %s, %s, %s, %s' % (V(dst(u, 1)), V(L1+3*u), V(src(u, 1)), V(acc(u, 1, t))))
            for u in range(5):
                ops.append('v_fmac_f32 %s, %s, %s' % (V(dst(u, 0)), V(L1+3*u+2), V(src(u, 1))))
                ops.append('v_fmac_f32 %s, %s, %s' % (V(dst(u, 1)), V(L1+3*u+1), V(src(u, 0))))
        for u in range(5): ops.append('ds_write_b64 %s, %s offset:%d' % (V(vT[2]), V(E + 10 + 2*u, 2), 128*u))
        ops.append(F(lambda: (self.cst(17), g.waitcnt(lg=0), g('s_barrier'), self.cst(18))))
        P = BIG + 20
        for s in range(16): ops.append('ds_read_b64 %s, %s offset:%d' % (V(P + 2*s, 2), V(vT[4]), 640*s))
        ops += ['v_mov_b32 %s, %s' % (V(P+32), S(sNonce)), 'v_mov_b32 %s, %s' % (V(P+33), S(sNonce))]
        for s in range(1, 16):
            a, b = P + 2*s, P + 2*(s-1)
            ops += ['v_fmac_f32 %s, %s, %s' % (V(a), V(L8), V(b)), 'v_fmac_f32 %s, %s, %s' % (V(a+1), V(L8), V(b+1)),
                    'v_fmac_f32 %s, %s, %s' % (V(a), V(L8+2), V(b+1)), 'v_fmac_f32 %s, %s, %s' % (V(a+1), V(L8+1), V(b))]
        ops.append('buffer_store_dwordx4 %s, %s, %s, %s offen sc1' % (V(P+30, 4), V(vT[5]), S(sWS, 4), S(sCo)))
        if pc < 400: b2 = mix(g, ops, b2, every=cfg.get('s_pace1', 72))
        else: g.do(ops)
        self.stamp(4)
        ops = ['v_mov_b32 %s, 0' % V(vT[6]), 'v_mov_b32 %s, 0' % V(vT[7]), 'ds_write_b64 %s, %s' % (V(vT[4]), V(vT[6], 2))]
        for s in range(1, 16): ops.append('ds_write_b64 %s, %s offset:%d' % (V(vT[4]), V(P + 2*(s-1), 2), 640*s))
        g.do(ops)
        self.cst(11)
        GQ = [164 + 4*i for i in range(10)]
        GX = lambda i: GQ[i//4] + i % 4
        GW = lambda i: GQ[5 + i//4] + i % 4
        gate_ld = ['s_lshl_b32 %s, %s, 3' % (S(sT0), S(sC1)), 's_add_u32 %s, %s, %s' % (S(sT0), S(sT0), S(sJ1)),
              's_lshl_b32 %s, %s, 4' % (S(sT0), S(sT0)),
              'v_lshrrev_b32 %s, 4, v0' % V(vT[8]), 'v_add_u32 %s, %s, %s' % (V(vT[8]), S(sT0), V(vT[8])),
              'v_and_b32 %s, 15, %s' % (V(vT[0]), V(vLane)), 'v_lshlrev_b32 %s, 4, %s' % (V(vT[0]), V(vT[0])),
              'v_mul_u32_u24 %s, 1280, %s' % (V(vT[1]), V(vT[8])), 'v_add_u32 %s, %s, %s' % (V(vT[1]), V(vT[1]), V(vT[0]))]
        for i in range(5):
            gate_ld.append('buffer_load_dwordx4 %s, %s, %s, 0 offen offset:%d' % (V(GQ[i], 4), V(vT[1]), S(sX, 4), 256*i))
            gate_ld.append('global_load_dwordx4 %s, %s, %s offset:%d' % (V(GQ[5+i], 4), V(vT[0]), S(pGate, 2), 256*i))
        TT = 16
        Z = TT + 8; ONE = TT + 9
        ops = ['v_mov_b32 %s, 0' % V(Z), 'v_mov_b32 %s, 0x3f803f80' % V(ONE), 's_mov_b32 %s, 0xffff0000' % S(sT1)]
        for i in range(20):
            x, w = V(GX(i)), V(GW(i))
            a, b, c, d = (V(TT + k + 4*(i % 2)) for k in range(4))
            ops += ['v_lshlrev_b32 %s, 16, %s' % (a, x), 'v_and_b32 %s, %s, %s' % (b, S(sT1), x),
                    'v_lshlrev_b32 %s, 16, %s' % (c, w), 'v_and_b32 %s, %s, %s' % (d, S(sT1), w),
                    'v_mul_f32 %s, %s, %s' % (a, a, c), 'v_mul_f32 %s, %s, %s' % (b, b, d),
                    'v_cvt_pk_bf16_f32 %s, %s, %s' % (a, a, b),
                    'v_dot2_f32_bf16 %s, %s, %s, %s' % (V(Z), a, V(ONE), V(Z))]
        for k in (8, 4, 2, 1):
            ops.append('v_add_f32_dpp %s, %s, %s row_ror:%d row_mask:0xf bank_mask:0xf' % (V(Z), V(Z), V(Z), k))
        G4 = 32
        ops += ['v_cvt_pk_bf16_f32 %s, %s, %s' % (V(Z), V(Z), V(Z)), 'v_lshlrev_b32 %s, 16, %s' % (V(Z), V(Z)),
                'v_mul_f32 %s, 0x%x, %s' % (V(Z), NLOG2E, V(Z)), 'v_exp_f32 %s, %s' % (V(Z), V(Z)),
                'v_mov_b32 %s, %s' % (V(G4+1), S(sNonce)),
                'v_add_f32 %s, 1.0, %s' % (V(Z), V(Z)), 'v_rcp_f32 %s, %s' % (V(Z), V(Z)),
                'v_mov_b32 %s, %s' % (V(G4+3), S(sNonce)),
                'v_cvt_pk_bf16_f32 %s, %s, %s' % (V(Z), V(Z), V(Z)), 'v_lshlrev_b32 %s, 16, %s' % (V(G4), V(Z)),
                'v_sub_f32 %s, 1.0, %s' % (V(ONE), V(G4)),
                'v_cvt_pk_bf16_f32 %s, %s, %s' % (V(ONE), V(ONE), V(ONE)), 'v_lshlrev_b32 %s, 16, %s' % (V(G4+2), V(ONE)),
                'v_lshlrev_b32 %s, 4, %s' % (V(vT[8]), V(vT[8])), 'v_add_u32 %s, %d, %s' % (V(vT[8]), WS_GATE, V(vT[8])),
                'buffer_store_dwordx4 %s, %s, %s, 0 offen sc1' % (V(G4, 4), V(vT[8]), S(sWS, 4))]
        gate_ops = ops
        ops = []
        TT = 140
        for u in range(5):
            cf = CF + 3*u
            for t0 in range(0, 8, 4):
                for t in range(t0, t0+4): ops.append('v_mul_f32 %s, %s, %s' % (V(TT + t % 4), V(cf+1), V(acc(u, 0, t))))
                for t in range(t0, t0+4): ops.append('v_mul_f32 %s, %s, %s' % (V(acc(u, 0, t)), V(cf), V(acc(u, 0, t))))
                for t in range(t0, t0+4): ops.append('v_fmac_f32 %s, %s, %s' % (V(acc(u, 0, t)), V(cf+2), V(acc(u, 1, t))))
                for t in range(t0, t0+4): ops.append('v_fma_f32 %s, %s, %s, %s' % (V(acc(u, 1, t)), V(cf), V(acc(u, 1, t)), V(TT + t % 4)))
        coef_ops = ops
        nc = cfg.get('s_gat', 60)
        if pc < 400: b2 = mix(g, coef_ops[:nc], b2, every=cfg.get('s_pace0', 1000), lead=100)
        else: g.do(coef_ops[:nc])
        self.stamp(5)
        GR = BIG
        def gather():
            for d in range(1, 16):
                r = GR + 4*(d-1)
                g('s_sub_u32 %s, %s, %d' % (S(sT0), S(sCo), 1280*d))
                g('s_cselect_b32 %s, 0x7f000000, %s' % (S(sT0), S(sT0)))
                g('v_add_u32 %s, %s, %s' % (V(r), S(sT0), V(vT[5])))
                g('buffer_load_dwordx3 %s, %s, %s, 0 offen sc1' % (V(r, 3), V(r), S(sWS, 4)))
        def gcheck():
            for d in range(15, 0, -1):
                r = GR + 4*(d-1)
                g('s_cmp_ge_u32 %s, %d' % (S(sC1), d))
                g('s_cselect_b32 %s, %s, 0' % (S(sT0), S(sNonce)))
                if d == 15: g('v_xor_b32 %s, %s, %s' % (V(vT[0]), S(sT0), V(r+2)))
                else:
                    g('v_xor_b32 %s, %s, %s' % (V(vT[1]), S(sT0), V(r+2)))
                    g('v_or_b32 %s, %s, %s' % (V(vT[0]), V(vT[0]), V(vT[1])))
            g('v_cmp_ne_u32 vcc, 0, %s' % V(vT[0]))
            g('s_nop 0')
            g('s_cmp_eq_u64 vcc, 0')
        if pc >= 400: self.pack_poll_check(vPp, vPd)
        gather()
        b2 = mix(g, coef_ops[nc:], b2, every=cfg.get('s_pace3', 72))
        g('v_and_b32 %s, 15, %s' % (V(vT[6]), V(vLane)))
        g('v_mul_u32_u24 %s, 80, %s' % (V(vT[6]), V(vT[6])))
        g('v_lshrrev_b32 %s, 4, %s' % (V(vT[7]), V(vLane)))
        g('v_lshl_add_u32 %s, %s, 4, %s' % (V(vT[6]), V(vT[7]), V(vT[6])))
        g('v_add_u32 %s, %s, %s' % (V(vT[6]), S(sMx), V(vT[6])))
        g('v_bfe_u32 %s, %s, 2, 2' % (V(vT[8]), V(vLane)))
        g('v_lshl_add_u32 %s, %s, 3, %s' % (V(vT[7]), V(vT[7]), V(vT[8])))
        g('v_mul_u32_u24 %s, 80, %s' % (V(vT[7]), V(vT[7])))
        g('v_and_b32 %s, 3, %s' % (V(vT[8]), V(vLane)))
        g('v_lshl_add_u32 %s, %s, 3, %s' % (V(vT[7]), V(vT[8]), V(vT[7])))
        g('v_add_u32 %s, %s, %s' % (V(vT[7]), S(sMx), V(vT[7])))
        self.cst(12)
        self.poll('carry', gather, gcheck)
        self.stamp(6)
        ops = []
        for d in range(14, 0, -1):
            a, b = GR + 4*(d-1), GR + 4*d
            ops += ['v_fmac_f32 %s, %s, %s' % (V(a), V(L128), V(b)), 'v_fmac_f32 %s, %s, %s' % (V(a+1), V(L128), V(b+1)),
                    'v_fmac_f32 %s, %s, %s' % (V(a), V(nL128), V(b+1)), 'v_fmac_f32 %s, %s, %s' % (V(a+1), V(L128+1), V(b))]
        ops.append('ds_write_b64 %s, %s offset:10240' % (V(vT[4]), V(GR, 2)))
        ops.append(F(lambda: (g.waitcnt(lg=0), g('s_barrier'))))
        SS, PP, II = 140, 204, 126
        for u in range(5):
            ops.append('ds_read_b64 %s, %s offset:%d' % (V(SS + 2*u, 2), V(vT[3]), 10240 + 128*u))
            ops.append('ds_read_b64 %s, %s offset:%d' % (V(PP + 2*u, 2), V(vT[2]), 128*u))
        b2 = mix(g, ops + gate_ld, b2, every=pace)
        self.cst(13)
        ops = []
        for u in range(5):
            ops += ['v_fmac_f32 %s, %s, %s' % (V(PP+2*u), V(L8S+2*u), V(SS+2*u)), 'v_fmac_f32 %s, %s, %s' % (V(PP+2*u+1), V(L8S+2*u), V(SS+2*u+1))]
        for u in range(5):
            ops += ['v_fma_f32 %s, -%s, %s, %s' % (V(PP+2*u), V(L8S+2*u+1), V(SS+2*u+1), V(PP+2*u)), 'v_fmac_f32 %s, %s, %s' % (V(PP+2*u+1), V(L8S+2*u+1), V(SS+2*u))]
        for u in range(5):
            ops += ['v_mul_f32 %s, %s, %s' % (V(II+2*u), V(CF+3*u), V(PP+2*u)), 'v_mul_f32 %s, %s, %s' % (V(II+2*u+1), V(CF+3*u), V(PP+2*u+1))]
        for u in range(5):
            ops += ['v_fmac_f32 %s, %s, %s' % (V(II+2*u), V(CF+3*u+2), V(PP+2*u+1)), 'v_fmac_f32 %s, %s, %s' % (V(II+2*u+1), V(CF+3*u+1), V(PP+2*u))]
        PKB = [112, 140]
        FRB = [148, 214]
        def scan_ops(us):
            o = []
            for t in range(8):
                pr = lambda u, part: (II + 2*u + part if t == 0 else acc(u, part, t-1))
                for u in us:
                    o.append('v_fmac_f32 %s, %s, %s' % (V(acc(u, 0, t)), V(L1+3*u), V(pr(u, 0))))
                    o.append('v_fmac_f32 %s, %s, %s' % (V(acc(u, 1, t)), V(L1+3*u), V(pr(u, 1))))
                for u in us:
                    o.append('v_fmac_f32 %s, %s, %s' % (V(acc(u, 0, t)), V(L1+3*u+2), V(pr(u, 1))))
                    o.append('v_fmac_f32 %s, %s, %s' % (V(acc(u, 1, t)), V(L1+3*u+1), V(pr(u, 0))))
            return o
        def out_a(u):
            o = []
            pk = PKB[u % 2]
            for i in range(4): o.append('v_cvt_pk_bf16_f32 %s, %s, %s' % (V(pk+i), V(acc(u, 0, 2*i)), V(acc(u, 0, 2*i+1))))
            o.append('ds_write_b128 %s, %s offset:%d' % (V(vT[6]), V(pk, 4), 2560*u))
            for i in range(4): o.append('v_cvt_pk_bf16_f32 %s, -%s, -%s' % (V(pk+4+i), V(acc(u, 1, 2*i)), V(acc(u, 1, 2*i+1))))
            o.append('ds_write_b128 %s, %s offset:%d' % (V(vT[6]), V(pk+4, 4), 2560*u + 1280))
            fr = FRB[u % 2]
            for m in range(2):
                for e in range(2):
                    o.append('ds_read_b64_tr_b16 %s, %s offset:%d' % (V(fr + 4*m + 2*e, 2), V(vT[7]), 2560*u + 320*e + 32*m))
            return o
        def out_b(u):
            fr = FRB[u % 2]
            def f():
                for m in range(2):
                    self.tH = g('buffer_store_dwordx4 %s, %s, %s, 0 offen offset:%d%s' % (V(fr + 4*m, 4), V(vHs), S(sH, 4), 1024*m, cfg.get('hst', ' sc1')))
                g('v_add_u32 %s, %d, %s' % (V(vHs), HKS, V(vHs)))
            return F(f, 12)
        def ilv(a, b):
            o = []; k = 0
            for i, x in enumerate(a):
                o.append(x)
                while k < len(b) and k*len(a) < (i+1)*len(b): o.append(b[k]); k += 1
            return o
        ops += scan_ops([0]) + ilv(scan_ops([1]), out_a(0)) + ilv(scan_ops([2]), out_a(1) + [out_b(0)]) \
            + ilv(scan_ops([3]), out_a(2) + [out_b(1)]) + ilv(scan_ops([4]), out_a(3) + [out_b(2)]) + out_a(4) + [out_b(3), out_b(4)]
        rest = mix(g, ops, b2, every=pace)
        tH = self.tH
        self.cst(14)
        rest = mix(g, gate_ops + self.hp_addr(0) + self.p2_setup(0) + self.xd_ops(self.RXA), rest, every=cfg.get('s_pace2', 1000), lead=1000)
        self.cst(15)
        self.hflag(0, 0, tH)
        self.stamp(7)
        n2 = cfg.get('s_b2post', 0)
        while any(3 + 4*i > 20*((50 - len(rest) + n2 + i)//5) - 30 for i in range(len(rest) - n2)): n2 += 1
        self.hpoll(0, 0)
        g.do(rest[:n2])
        self.phase2(0, rest[n2:], None)

    RD, XD, GA, GB = 160, 192, 212, 222
    RXA, RXB, DS = 222, 232, 242
    vGr, T = 160, 180
    vHp, vHd, vRw, vXf = 4, 5, 6, 252
    vRd = [7, 8, 9, 10, 11]; vOa = [12, 13, 14, 15, 0]
    def hp_addr(self, role):
        vHp, vHd = self.vHp, self.vHd
        return ['s_and_b32 %s, %s, 0x63' % (S(sT0), S(sIdx)), 's_lshl_b32 %s, %s, 3' % (S(sT1), S(sWave)),
                's_add_u32 %s, %s, %s' % (S(sT0), S(sT0), S(sT1)), 's_lshl_b32 %s, %s, %d' % (S(sT0), S(sT0), self.fg),
                's_add_u32 %s, %s, %d' % (S(sT0), S(sT0), WS_HFLAG + role*(128 << self.fg)),
                'v_bfe_u32 %s, %s, 2, 1' % (V(vHp), V(vLane)), 'v_lshlrev_b32 %s, %d, %s' % (V(vHp), self.fg + 2, V(vHp)),
                'v_and_b32 %s, 3, %s' % (V(vHd), V(vLane)), 'v_lshl_add_u32 %s, %s, %d, %s' % (V(vHp), V(vHd), self.fw, V(vHp)),
                'v_add_u32 %s, %s, %s' % (V(vHp), S(sT0), V(vHp))]
    def hp(self, off=0): self.g('buffer_load_dword %s, %s, %s, 0 offen sc1' % (V(self.vHd), V(self.vHp), S(sWS, 4)))
    def gload(self, role, q, h):
        return 'buffer_load_dwordx2 %s, %s, %s, 0 offen offset:%d sc1' % (V((self.GA if h == role else self.GB) + 2*q, 2), V(self.vGr + q), S(sWS, 4), 1024*h)

    def p2_setup(self, role):
        T, vRd, vOa, vGr, vRw, DS, RXA, RXB = self.T, self.vRd, self.vOa, self.vGr, self.vRw, self.DS, self.RXA, self.RXB
        sXo, sXi, sM = sItem, sMx, sMw
        ops = ['s_lshl_b32 %s, %s, 3' % (S(sT0), S(sC1)), 's_add_u32 %s, %s, %s' % (S(sT0), S(sT0), S(sWave)),
               's_lshl_b32 %s, %s, 4' % (S(sT0), S(sT0)),
               's_mul_i32 %s, %s, 160' % (S(sT1), S(sJ1)), 's_mul_i32 %s, %s, 5440' % (S(sT2), S(sWave)),
               's_mov_b32 %s, 0xffff0000' % S(sM), 's_mov_b32 %s, 81920' % S(sT3)]
        gload = lambda q, h: self.gload(role, q, h)
        for q in range(5):
            e, row, ch, t3 = V(T), V(T+1), V(T+2), V(T+3)
            ops += ['v_add_u32 %s, %d, %s' % (e, 64*q, V(vLane)),
                    'v_mul_u32_u24 %s, 3277, %s' % (row, e), 'v_lshrrev_b32 %s, 16, %s' % (row, row),
                    'v_mul_u32_u24 %s, 20, %s' % (ch, row), 'v_sub_u32 %s, %s, %s' % (ch, e, ch),
                    'v_lshrrev_b32 %s, 2, %s' % (t3, ch), 'v_mul_u32_u24 %s, 1088, %s' % (V(vRd[q]), t3),
                    'v_and_b32 %s, 3, %s' % (t3, ch), 'v_mul_u32_u24 %s, 272, %s' % (t3, t3),
                    'v_add3_u32 %s, %s, %s, %s' % (V(vRd[q]), V(vRd[q]), t3, S(sT2)),
                    'v_lshl_add_u32 %s, %s, 4, %s' % (V(vRd[q]), row, V(vRd[q])),
                    'v_add_u32 %s, %s, %s' % (row, S(sT0), row),
                    'v_lshl_add_u32 %s, %s, 3, %s' % (ch, ch, S(sT1)),
                    'v_mul_u32_u24 %s, 1280, %s' % (e, row), 'v_add_u32 %s, %s, %s' % (e, e, ch)]
            if role == 0: ops.append('v_add_u32 %s, %s, %s' % (e, S(sT3), e))
            ops += ['v_lshlrev_b32 %s, 1, %s' % (V(vOa[q]), e),
                    'v_lshlrev_b32 %s, 4, %s' % (row, row), 'v_add_u32 %s, %d, %s' % (V(vGr + q), WS_GATE + 8*role, row)]
        ops += ['s_mul_i32 %s, %s, 21760' % (S(sT0), S(sWave)),
                'v_lshrrev_b32 %s, 4, %s' % (V(vRw), V(vLane)), 'v_mul_u32_u24 %s, 272, %s' % (V(vRw), V(vRw)),
                'v_and_b32 %s, 15, %s' % (V(T+1), V(vLane)), 'v_lshl_add_u32 %s, %s, 4, %s' % (V(vRw), V(T+1), V(vRw)),
                'v_add_u32 %s, %s, %s' % (V(vRw), S(sT0), V(vRw)),
                's_lshl_b32 %s, %s, 2' % (S(sT0), S(sIdx)), 's_add_u32 %s, %s, %s' % (S(sT0), S(sT0), S(sWave)),
                's_mul_i32 %s, %s, 5120' % (S(sT0), S(sT0)),
                's_add_u32 %s, %s, 0x%x' % (S(sXo), S(sT0), WS_X + role*128*20480), 's_add_u32 %s, %s, 0x%x' % (S(sXi), S(sT0), WS_X + (1-role)*128*20480)]
        ops += self.line_addr(WS_XFLAG, self.vXf)
        return ops

    def xd_ops(self, RX):
        T, DS, XD, sM = self.T, self.DS, self.XD, sMw
        o = []
        for q in range(5):
            for h in range(2):
                x, d = V(RX + 2*q + h), V(DS + 2*q + h)
                a, b, c, dd = V(T), V(T+1), V(T+2), V(T+3)
                o += ['v_lshlrev_b32 %s, 16, %s' % (a, x), 'v_and_b32 %s, %s, %s' % (b, S(sM), x),
                      'v_lshlrev_b32 %s, 16, %s' % (c, d), 'v_and_b32 %s, %s, %s' % (dd, S(sM), d),
                      'v_mul_f32 %s, %s, %s' % (a, a, c), 'v_mul_f32 %s, %s, %s' % (b, b, dd),
                      'v_cvt_pk_bf16_f32 %s, %s, %s' % (a, a, b),
                      'v_lshlrev_b32 %s, 16, %s' % (V(XD + 4*q + 2*h), a), 'v_and_b32 %s, %s, %s' % (V(XD + 4*q + 2*h + 1), S(sM), a)]
        return o

    def xd_loads(self, T):
        o = ['s_lshl_b32 %s, %s, 3' % (S(sT3), S(sC1)), 's_add_u32 %s, %s, %s' % (S(sT3), S(sT3), S(sWave)),
             's_lshl_b32 %s, %s, 4' % (S(sT3), S(sT3)), 's_mul_i32 %s, %s, 160' % (S(sT1), S(sJ1)), 's_mov_b32 %s, 81920' % S(sT0)]
        for q in range(5):
            e, row, ch = V(T), V(T+1), V(T+2)
            o += ['v_add_u32 %s, %d, %s' % (e, 64*q, V(vLane)),
                  'v_mul_u32_u24 %s, 3277, %s' % (row, e), 'v_lshrrev_b32 %s, 16, %s' % (row, row),
                  'v_mul_u32_u24 %s, 20, %s' % (ch, row), 'v_sub_u32 %s, %s, %s' % (ch, e, ch),
                  'v_add_u32 %s, %s, %s' % (row, S(sT3), row), 'v_lshl_add_u32 %s, %s, 3, %s' % (ch, ch, S(sT1)),
                  'v_mul_u32_u24 %s, 1280, %s' % (e, row), 'v_add_u32 %s, %s, %s' % (e, e, ch),
                  'global_load_dwordx2 %s, %s, %s' % (V(self.DS + 2*q, 2), ch, S(pDsk, 2)),
                  'buffer_load_dwordx2 %s, %s, %s, 0 offen' % (V(self.RXA + 2*q, 2), e, S(sX, 4)),
                  'buffer_load_dwordx2 %s, %s, %s, %s offen' % (V(self.RXB + 2*q, 2), e, S(sX, 4), S(sT0))]
        return o

    def phase2(self, role, b2rest, tH2):
        g = self.g; cfg = self.cfg
        tb, ta = tabs(role); NS = len(tb)
        hA, hB = (1, 0) if role else (0, 1)
        vHp, vHd, vRw, vRd, vOa, vXf, vXv = self.vHp, self.vHd, self.vRw, self.vRd, self.vOa, self.vXf, vFd
        RD, GA, GB, XD, RXB, DS, vGr, RXA, T = self.RD, self.GA, self.GB, self.XD, self.RXB, self.DS, self.vGr, self.RXA, self.T
        sXo, sXi, sM = sItem, sMx, sMw
        hp = lambda: self.hp(0)
        gload = lambda q, h: self.gload(role, q, h)
        def a2(n):
            half = hA if n < NS else hB
            return ['buffer_load_dwordx4 %s, %s, %s, %s offen offset:%d%s' % (V(A2R + 16*(n % 4) + 4*rt, 4), V(vL16b if half else vL16), S(sH, 4), S(ta[0 if cfg.get('x_a2same') else n % NS]), 1024*rt, cfg.get('a2sc', ' sc1')) for rt in range(4)]
        mains = []; fixed = []
        def tile(rt, nt): return ACC2 + 4*(rt*5 + nt)
        for n in range(2*NS):
            base = B2slot(role, n % NS)
            for rt in range(4):
                for nt in range(5):
                    c = '0' if n % NS == 0 else V(tile(rt, nt), 4)
                    mains.append(('v_mfma_f32_16x16x32_bf16 %s, %s, %s, %s' % (V(tile(rt, nt), 4), A(base + 4*nt, 4), V(A2R + 16*(n % 4) + 4*rt, 4), c), None))
        for n in range(2*NS - 3):
            for i, f in enumerate(a2(n+3)): fixed.append((20*n + 1 + 5*i, f))
        PA, PE = 20*NS, 40*NS
        for k, p in enumerate((20, 80, 140, PA, PA + 40, PA + 100, PA + 140, PE - 60)): fixed.append((p - 0.1, F(lambda k=k: self.stamp(11+k, lvl=3), 0)))
        self.cst(16)
        self.hcheck(role, 0)
        self.stamp(8)
        for n in range(3): g.do(a2(n))
        ops = []
        if role == 1:
            ops = self.p2_setup(1)
            fixed.append((cfg.get('f_l2', 6), F(lambda: self.hflag(1, 2, tH2), 20)))
            fixed.append((cfg.get('f_p1', 44), F(lambda: self.hpoll(1, 1), 8)))
            fixed.append((60.5, F(lambda: self.hcheck(1, 1), 20)))
            fixed.append((cfg.get('f_p2', 84), F(lambda: self.hpoll(1, 2), 8)))
            fixed.append((100.5, F(lambda: self.hcheck(1, 2), 20)))
        fixed.append((102, 'v_xor_b32 %s, %d, %s' % (V(vHp), 128 << self.fg, V(vXf))))
        fixed.append((cfg.get('p2bar', 150), 's_barrier'))
        nb0 = 5*NS - len(b2rest)
        for i, f in enumerate(b2rest):
            p = 3 + 4*i
            assert p <= 20*((nb0 + i)//5) - 30 or cfg.get('bad'), (role, i, p)
            fixed.append((p, f))
        xd_ops = self.xd_ops
        s0 = Stream(ops, 2, 99)
        fixed.append((101.5, F(lambda: s0.flush(g), 0)))
        def gall():
            for q in range(5):
                for h in range(2): g(gload(q, h))
        gl, gp = (60, 130) if role == 0 else (104, 160)
        for q in range(5):
            for h in range(2): fixed.append((gl + 5*q + 2*h, gload(q, h)))
        fixed.append((gp, F(lambda: (s0.flush(g), self.poll('gt', gall, self.check_eq([r + 2*q + 1 for q in range(5) for r in (GA, GB)], T+4, T+5))), 90)))
        streams = [s0]
        if role == 0:
            streams += [Stream(xd_ops(RXB), PA + 112, PE - 22)]
        for base in (PA, PE):
            for j in range(20):
                fixed.append((base - 15 + (1.65*j if base == PA else j), 'ds_write_b128 %s, %s offset:%d' % (V(vRw), V(ACC2 + 4*j, 4), 1088*j)))
        mb = PA + 24
        fixed.append((mb - 0.5, F(lambda: (g.waitcnt(lg=0), g('s_barrier')), 8)))
        def rds(q): return ['ds_read_b128 %s, %s offset:%d' % (V(RD + 16*(q % 2) + 4*src, 4), V(vRd[q]), 21760*src) for src in range(4)]
        for i, f in enumerate(rds(0) + rds(1)): fixed.append((mb + i, f))
        for q in range(5):
            p = mb + 12 + 13*q; r0 = RD + 16*(q % 2); o = []
            for src in range(4):
                for r in range(4):
                    if role == 1 and src == 0: continue
                    a = V(r0 + r) if (role == 1 and src == 1) else V(XD + 4*q + r)
                    o.append('v_add_f32 %s, %s, %s' % (V(XD + 4*q + r), a, V(r0 + 4*src + r)))
            nadd = len(o)
            for r in range(4): o.append('v_mul_f32 %s, %s, %s' % (V(XD + 4*q + r), V(GA + 2*q), V(XD + 4*q + r)))
            def st(q=q):
                self.tX = g('buffer_store_dwordx4 %s, %s, %s, %s offen offset:%d sc1' % (V(XD + 4*q, 4), V(vL16 if q < 4 else vL16b), S(sWS, 4), S(sXo), 1024*(q & 3)))
            o.append(F(st))
            for i, f in enumerate(o): fixed.append((p + i*0.55, f))
            if q + 2 < 5:
                for i, f in enumerate(rds(q+2)): fixed.append((p + nadd*0.55 + 0.1 + i, f))
        fixed.append((PA + 112, 's_barrier'))
        fixed.append((PA + cfg.get('xf_at', 150), F(lambda: (g.wait(self.tX), g('buffer_store_dword %s, %s, %s, 0 offen sc1' % (V(vXv), V(vXf), S(sWS, 4)))), 8)))
        xp = cfg.get('xp_at', 0)
        fixed.append((PE - xp - 30, F(hp)))
        def upd():
            g.vm, g.lg, g.smem = [], [], []
            g.label('L_upd')
            g('s_mov_b32 %s, 0x%x' % (S(sT4), cfg.get('spin', 1 << 18)))
            g.label('L_upd_loop')
            g('s_sub_u32 %s, %s, 1' % (S(sT4), S(sT4)))
            g('s_cmp_eq_u32 %s, 0' % S(sT4))
            g('s_cbranch_scc1 L_upd_go')
            g('v_lshlrev_b32 %s, %d, %s' % (V(RD), self.fg, V(vLane)))
            for i in range(4):
                g('s_mov_b32 %s, %d' % (S(sT0), (WS_PFLAG + (128 << self.fg) if i < 2 else WS_HFLAG) + (64 << self.fg)*(i & 1)))
                g('buffer_load_dword %s, %s, %s, %s offen sc1' % (V(RD+2+i), V(RD), S(sWS, 4), S(sT0)))
            g('s_waitcnt vmcnt(0)'); g.vm = []
            self.check_eq([RD+2, RD+3, RD+4, RD+5], RD, RD+1)()
            g('s_nop 7')
            g('s_cbranch_scc0 L_upd_loop')
            g.label('L_upd_go')
            g('v_mov_b32 %s, 0' % V(RD))
            g('buffer_store_dword %s, %s, %s, 0 offen sc1' % (V(vXv), V(RD), S(sWS, 4)))
            g('s_waitcnt vmcnt(0)'); g.vm = []
            g('s_nop 7')
            g('s_branch L_upd_done')
        def recv():
            if role == 1:
                g('s_or_b32 %s, %s, %s' % (S(sT0), S(sWave), S(sIdx)))
                g('s_cmp_eq_u32 %s, 0' % S(sT0))
                g('s_cbranch_scc1 L_upd')
                g.label('L_upd_done')
                self.tail.append(upd)
            self.poll('xf', hp, self.check_eq([vHd]))
            for q in range(5):
                g('buffer_load_dwordx4 %s, %s, %s, %s offen offset:%d sc1' % (V(RD + 4*q, 4), V(vL16 if q < 4 else vL16b), S(sWS, 4), S(sXi), 1024*(q & 3)))
        if xp > 0: fixed.append((PE - xp, F(recv, 40)))
        sched(g, mains, 8, fixed, streams, report=self.rep and 'p2')
        if xp <= 0: recv()
        self.stamp(9)
        g.waitcnt(lg=0)
        g('s_barrier')
        for q in range(5):
            for src in range(4):
                g('ds_read_b128 %s, %s offset:%d' % (V(ACC2 + 16*q + 4*src, 4), V(vRd[q]), 21760*src))
        osc = cfg.get('osc', '')
        for q in range(5):
            for src in range(4):
                for r in range(4):
                    if role == 1 and src == 0: continue
                    a = V(ACC2 + 16*q + r) if (role == 1 and src == 1) else V(XD + 4*q + r)
                    g('v_add_f32 %s, %s, %s' % (V(XD + 4*q + r), a, V(ACC2 + 16*q + 4*src + r)))
            for r in range(4):
                g('v_fmac_f32 %s, %s, %s' % (V(RD + 4*q + r), V(GB + 2*q), V(XD + 4*q + r)))
            g('buffer_store_dwordx4 %s, %s, %s, 0 offen%s' % (V(RD + 4*q, 4), V(vOa[q]), S(sOUT, 4), osc))
        self.finish(role)

    def finish(self, role):
        g = self.g
        if self.cfg.get('stamps'):
            g.waitall()
            self.stamp(10)
            self.stamp(31, 's_memtime')
            g('s_lshl_b32 %s, s2, 2' % S(sT0))
            g('s_add_u32 %s, %s, %s' % (S(sT0), S(sT0), S(sWave)))
            g('s_lshl_b32 %s, %s, 7' % (S(sT0), S(sT0)))
            g('s_add_u32 %s, %s, %d' % (S(sT0), S(sT0), WS_STAMP))
            g('v_lshlrev_b32 v4, 2, %s' % V(vLane))
            g('s_mov_b32 exec_hi, 0')
            g('buffer_store_dword %s, v4, %s, %s offen' % (V(vStamp), S(sWS, 4), S(sT0)))
        if role == 0: g.label('L_exit')
        g('s_endpgm')
        g.hist = []

    def post(self, txt):
        c = self.cfg; out = []
        for l in txt.split('\n'):
            if c.get('x_nox') and ('s[12:15], s90 offen' in l or 's[12:15], s91 offen' in l) and 'dwordx4' in l: l = l.replace('s[12:15]', 's[20:23]')
            if c.get('x_noh') and 'buffer_store_dwordx4' in l and 's[36:39]' in l: l = l.replace('s[36:39]', 's[20:23]')
            if c.get('x_nopk') and 'dwordx4' in l and ('s[24:27]' in l or 's[16:19]' in l or 's[20:23]' in l): l = l.replace('s[24:27]', 's[20:23]').replace('s[16:19]', 's[20:23]')
            if c.get('x_noout') and 's[28:31]' in l and 'store' in l: l = l.replace('s[28:31]', 's[20:23]')
            if (c.get('x_nox') or c.get('x_noh') or c.get('x_nopk') or c.get('x_noout')):
                if 's_mov_b32 s22, s18' in l: l = '    s_mov_b32 s22, 0'
                if l.startswith('L_ssm:'): l += '\n    s_mov_b32 s20, 0\n    s_mov_b32 s21, 0\n    s_mov_b32 s22, 0\n    s_mov_b32 s23, 0x20000'
            out.append(l)
        return '\n'.join(out)

    def build(self):
        g = self.g
        self.prologue()
        st = g.state()
        self.ffn()
        g.vm, g.lg, g.smem = list(st[0]), list(st[1]), list(st[2])
        self.ssm()
        g.raw('L_codeend:')
        for f in self.tail: f()
        hdr = open('gated_mix__ssm_conv_s5__dense_activation_silu__prompt.s.ref').read()
        top = hdr[:hdr.index('; Override launch geometry')]
        txt = top + '; Generated by a hand-written generator script (straight-line schedule, one fused launch).\n'
        txt += '; @launch grid=(256,1,1) block=(256,1,1) lds=163840\n'
        txt += '.amdgcn_target "amdgcn-amd-amdhsa--gfx950"\n.text\n.globl %s\n.p2align 8\n.type %s,@function\n%s:\n' % (KNAME, KNAME, KNAME)
        txt += self.post(g.text())
        txt += '''.section .rodata,"a"
.p2align 6
.amdhsa_kernel %s
  .amdhsa_next_free_vgpr 512
  .amdhsa_next_free_sgpr 102
  .amdhsa_accum_offset 256
  .amdhsa_group_segment_fixed_size 0
  .amdhsa_kernarg_size 128
  .amdhsa_user_sgpr_count 2
  .amdhsa_user_sgpr_kernarg_segment_ptr 1
  .amdhsa_system_sgpr_workgroup_id_x 1
.end_amdhsa_kernel
''' % KNAME
        return txt

def make(cfg=None):
    k = K(cfg or {})
    return k.build(), k

if __name__ == '__main__':
    import json
    cfg = json.loads(sys.argv[2]) if len(sys.argv) > 2 else {}
    cfg['report'] = 1
    txt, k = make(cfg)
    open(sys.argv[1], 'w').write(txt)
    print(k.g.stats, 'nops', k.g.nnop, 'bytes', len(txt))
```

```python
import sys
from asmgen import Gen, weave, sched, Stream, F, mix, cost

KNAME = 'gated_mix__ssm_conv_s5__dense_activation_silu__prompt_kernel'

WS_EPOCH = 0
WS_HFLAG = 0x50000
LVL = 131072
WS_GATE = 65536
WS_EBUF = 131072
WS_PFLAG = 0xb0000
WS_XFLAG = 0xe0000
WS_STAMP = 22 << 20
WS_B2 = 1 << 20
WS_H = 5 << 20
WS_X = 16 << 20
WS_SIZE = 23 << 20
KST = 5120
MST = 88*KST
HKS = 8192
HMS = 88*HKS

F_WR = 81920
S_BR = 65536
L_PK = 147456
L_EX = 147456

sX, sW, sWS, sP1, sP2, sPD, sOUT, sB2, sH = 4, 8, 12, 16, 20, 24, 28, 32, 36
pX, pLre, pLim, pBre, pBim, pCre, pCim, pLdt, pDsk, pBx, pW1, pW2, pGate, pOut, pDbg, pWs = range(40, 72, 2)
sWave, sRole, sC1, sJ1, sIdx, sCo, sNonce, sRot = range(72, 80)
sKb = list(range(80, 90))
sItem, sMx, sMw, sWo = 90, 91, 92, 93
sPs = [94, 95, 96, 97]
sT0, sT1, sT2, sT3 = 98, 99, 100, 101
sT4 = 3
sKt = 79
sNl = 42
sCs, sCd, sWs2 = 43, 56, 57
sL1, sL2 = 64, 65
sKs = [40, 41, 46, 47, 48, 49, 50, 51, 52, 53, 58, 59, 60, 61, 62, 63, 66, 67, 68, 69, 70, 71]

vTid, vLane, vL16, vL16b = 0, 1, 2, 3
vT = list(range(4, 16))
vFa, vFd = 254, 253
ACC2 = 16
A2R = 96
vStamp = 255
def B2slot(role, i):
    if i < 4: return 160 + 20*i
    if role == 1: return 20*(i-4)
    return 80 + 20*(i-4) if i < 8 else 20*(i-8)
def tabs(role):
    if role == 1: return sKs[:12], sKs[12:] + [44, 45]
    return sKs[:10], sKs[10:20]
aPK = 240

def R(kind, base, n):
    return '%s%d' % (kind, base) if n == 1 else '%s[%d:%d]' % (kind, base, base+n-1)
def V(b, n=1): return R('v', b, n)
def A(b, n=1): return R('a', b, n)
def S(b, n=1): return R('s', b, n)

LOG2E = 0x3fb8aa3b
NLOG2E = 0xbfb8aa3b
INV2PI = 0x3e22f983

class K:
    def __init__(self, cfg):
        self.cfg = cfg
        self.g = Gen()
        self.tail = []
        self.rep = cfg.get('report')
        self.fw, self.fg, self.lv = {0: (2, 7, 16), 1: (7, 9, LVL), 2: (2, 7, LVL)}[cfg.get('fl', 1)]

    def stamp(self, idx, op='s_memrealtime', lvl=2):
        if idx in (0, 10, 30, 31): lvl = 1
        if self.cfg.get('stamps', 0) < lvl: return
        g = self.g
        if self.cfg.get('cyc'): op = 's_memtime'
        g(op + ' vcc'); g.waitcnt(lg=0)
        g('v_writelane_b32 %s, vcc_lo, %d' % (V(vStamp), idx))

    def cst(self, idx):
        if self.cfg.get('chain'): self.stamp(idx)
    def srd_ptr(self, d, ptr): return ['s_mov_b32 %s, %s' % (S(d), S(ptr)), 's_mov_b32 %s, %s' % (S(d+1), S(ptr+1))]
    def srd_cst(self, d, nrec): return ['s_mov_b32 %s, 0x%x' % (S(d+2), nrec), 's_mov_b32 %s, 0x20000' % S(d+3)]

    def poll(self, name, issue, check):
        g = self.g
        lr, lo = g.newlabel(name + '_retry'), g.newlabel(name + '_ok')
        check()
        g('s_cbranch_scc0 %s' % lr)
        g.label(lo)
        def retry():
            g.vm, g.lg, g.smem = [], [], []
            g.label(lr)
            g('s_mov_b32 %s, 0x%x' % (S(sT4), self.cfg.get('spin', 1 << 18)))
            ll = g.newlabel(name + '_loop')
            g.label(ll)
            g('s_sub_u32 %s, %s, 1' % (S(sT4), S(sT4)))
            g('s_cmp_eq_u32 %s, 0' % S(sT4))
            g('s_nop 7')
            g('s_cbranch_scc1 %s' % lo)
            if self.cfg.get('backoff', 0): g('s_sleep %d' % self.cfg['backoff'])
            g('s_waitcnt lgkmcnt(0)')
            issue()
            g.waitall()
            check()
            g('s_nop 7')
            g('s_cbranch_scc1 %s' % lo)
            g('s_branch %s' % ll)
        self.tail.append(retry)

    def check_eq(self, regs, t0=None, t1=None):
        g = self.g
        def f():
            if len(regs) == 1:
                g('v_cmp_ne_u32 vcc, %s, %s' % (S(sNonce), V(regs[0])))
            else:
                g('v_xor_b32 %s, %s, %s' % (V(t0), S(sNonce), V(regs[0])))
                for r in regs[1:]:
                    g('v_xor_b32 %s, %s, %s' % (V(t1), S(sNonce), V(r)))
                    g('v_or_b32 %s, %s, %s' % (V(t0), V(t0), V(t1)))
                g('v_cmp_ne_u32 vcc, 0, %s' % V(t0))
            g('s_nop 0')
            g('s_cmp_eq_u64 vcc, 0')
        return f

    def b2_loads(self, role, steps):
        out = []
        for step in steps:
            base = B2slot(role, step)
            for nt in range(5):
                va, off = (vL16, nt*1024) if nt < 4 else (vL16b, 0)
                out.append('buffer_load_dwordx4 %s, %s, %s, %s offen offset:%d sc1' % (A(base+4*nt, 4), V(va), S(sB2, 4), S(tabs(role)[0][0 if self.cfg.get('x_b2same') else step]), off))
        return out

    def ks_table(self, role):
        tb, ta = tabs(role); ns = len(tb)
        if role == 1:
            r, bs, r6 = ta[11], tb[11], tb[10]
            o = ['s_add_u32 %s, %s, %s' % (S(r), S(sC1), S(sJ1)), 's_mul_i32 %s, %s, 12' % (S(bs), S(sWave)),
                 's_mul_i32 %s, %s, 43' % (S(r6), S(r)), 's_lshr_b32 %s, %s, 8' % (S(r6), S(r6)),
                 's_mul_i32 %s, %s, 6' % (S(r6), S(r6)), 's_sub_u32 %s, %s, %s' % (S(r6), S(r), S(r6))]
            for n in range(12):
                if n < 6:
                    o += ['s_add_u32 %s, %s, %d' % (S(ta[n]), S(r6), n), 's_sub_u32 %s, %s, 6' % (S(sKt), S(ta[n])),
                          's_min_u32 %s, %s, %s' % (S(ta[n]), S(ta[n]), S(sKt)),
                          's_mul_i32 %s, %s, 11' % (S(sKt), S(ta[n])), 's_lshr_b32 %s, %s, 5' % (S(sKt), S(sKt)),
                          's_mul_i32 %s, %s, 3' % (S(sKt), S(sKt)), 's_add_u32 %s, %s, %s' % (S(ta[n]), S(ta[n]), S(sKt))]
                elif n < 8:
                    o += ['s_add_u32 %s, %s, %d' % (S(sKt), S(r), n), 's_and_b32 %s, %s, 1' % (S(sKt), S(sKt)),
                          's_mul_i32 %s, %s, 6' % (S(sKt), S(sKt)), 's_add_u32 %s, %s, 3' % (S(ta[n]), S(sKt))]
                else:
                    o += ['s_add_u32 %s, %s, %d' % (S(sKt), S(r), n), 's_and_b32 %s, %s, 1' % (S(ta[n]), S(sKt)),
                          's_and_b32 %s, %s, 2' % (S(sKt), S(sKt)), 's_mul_i32 %s, %s, 3' % (S(sKt), S(sKt)),
                          's_add_u32 %s, %s, %s' % (S(ta[n]), S(ta[n]), S(sKt)), 's_add_u32 %s, %s, 4' % (S(ta[n]), S(ta[n]))]
                o += ['s_add_u32 %s, %s, %s' % (S(ta[n]), S(ta[n]), S(bs)),
                      's_mul_i32 %s, %s, %d' % (S(tb[n]), S(ta[n]), KST), 's_lshl_b32 %s, %s, 13' % (S(ta[n]), S(ta[n]))]
            return o
        r, bs = ta[ns-1], tb[ns-1]
        o = ['s_and_b32 %s, %s, 3' % (S(sKt), S(sC1)), 's_mul_i32 %s, %s, 3' % (S(sKt), S(sKt)),
             's_add_u32 %s, %s, %s' % (S(sKt), S(sKt), S(sJ1)),
             's_sub_u32 %s, %s, %d' % (S(r), S(sKt), ns), 's_min_u32 %s, %s, %s' % (S(r), S(r), S(sKt)),
             's_mul_i32 %s, %s, %d' % (S(bs), S(sWave), ns)]
        if role == 0: o.append('s_add_u32 %s, %s, 48' % (S(bs), S(bs)))
        for n in range(ns):
            if n == 0: o.append('s_add_u32 %s, %s, %s' % (S(ta[n]), S(r), S(bs)))
            else:
                o += ['s_sub_u32 %s, %s, %d' % (S(sKt), S(r), ns-n), 's_add_u32 %s, %s, %d' % (S(ta[n]), S(r), n),
                      's_min_u32 %s, %s, %s' % (S(ta[n]), S(ta[n]), S(sKt)), 's_add_u32 %s, %s, %s' % (S(ta[n]), S(ta[n]), S(bs))]
            o += ['s_mul_i32 %s, %s, %d' % (S(tb[n]), S(ta[n]), KST), 's_lshl_b32 %s, %s, 13' % (S(ta[n]), S(ta[n]))]
        return o

    def line_addr(self, base, dst):
        return ['s_lshl_b32 %s, %s, 7' % (S(sKt), S(sRole)), 's_add_u32 %s, %s, %s' % (S(sKt), S(sKt), S(sIdx)),
                's_lshl_b32 %s, %s, %d' % (S(sKt), S(sKt), self.fg - self.fw), 's_add_u32 %s, %s, %s' % (S(sKt), S(sKt), S(sWave)),
                's_lshl_b32 %s, %s, %d' % (S(sKt), S(sKt), self.fw), 's_add_u32 %s, %s, %d' % (S(sKt), S(sKt), base),
                'v_mov_b32 %s, %s' % (V(dst), S(sKt))]

    def late_setup(self, role, t0, t1, vPp):
        o = ['s_mul_i32 %s, %s, 1664525' % (S(sNonce), S(sNonce)), 's_add_u32 %s, %s, 1013904223' % (S(sNonce), S(sNonce))]
        o += self.srd_ptr(sOUT, pOut) + self.srd_cst(sOUT, 2048*2560)
        for d, idx, base, st in ((sB2, sJ1, WS_B2, MST), (sH, sC1, WS_H, HMS)):
            o += ['s_mul_i32 %s, %s, %d' % (S(sKt), S(idx), st), 's_add_u32 %s, %s, 0x%x' % (S(sKt), S(sKt), base),
                  ['s_add_u32 %s, %s, %s' % (S(d), S(pWs), S(sKt)), 's_addc_u32 %s, %s, 0' % (S(d+1), S(pWs+1))]]
            o += self.srd_cst(d, st)
        if role == 1:
            o += ['s_mul_i32 %s, %s, 5' % (S(sKt), S(sJ1)), 's_lshr_b32 %s, %s, 2' % (S(sKt), S(sKt)),
                  'v_min_u32 %s, 23, %s' % (V(t1), V(vLane)),
                  'v_lshrrev_b32 %s, 1, %s' % (V(t0), V(t1)), 'v_mul_u32_u24 %s, 10, %s' % (V(t0), V(t0)),
                  'v_and_b32 %s, 1, %s' % (V(t1), V(t1)), 'v_add3_u32 %s, %s, %s, %s' % (V(t0), V(t0), V(t1), S(sKt)),
                  's_mul_i32 %s, %s, 120' % (S(sKt), S(sWave)), 'v_add_u32 %s, %s, %s' % (V(t0), S(sKt), V(t0))]
        else:
            o += ['v_min_u32 %s, 14, %s' % (V(t1), V(vLane)),
                  'v_mul_u32_u24 %s, 11, %s' % (V(t0), V(t1)), 'v_lshrrev_b32 %s, 5, %s' % (V(t0), V(t0)),
                  'v_mul_u32_u24 %s, 7, %s' % (V(t0), V(t0)),
                  's_mul_i32 %s, %s, 50' % (S(sKt), S(sJ1)), 'v_add3_u32 %s, %s, %s, %s' % (V(t0), V(t1), V(t0), S(sKt)),
                  's_mul_i32 %s, %s, 10' % (S(sKt), S(sWave)), 's_lshr_b32 %s, %s, 2' % (S(sKt), S(sKt)),
                  'v_add_u32 %s, %s, %s' % (V(t0), S(sKt), V(t0))]
        o += ['v_and_b32 %s, 127, %s' % (V(t1), V(t0)), 'v_lshrrev_b32 %s, 7, %s' % (V(t0), V(t0)),
              'v_lshlrev_b32 %s, %d, %s' % (V(t1), self.fg, V(t1)), 'v_lshl_add_u32 %s, %s, %d, %s' % (V(vPp), V(t0), self.fw, V(t1)),
              'v_add_u32 %s, %d, %s' % (V(vPp), WS_PFLAG + (128 << self.fg), V(vPp))]
        if role: o += self.line_addr(WS_PFLAG, vFa)
        o.append('v_mov_b32 %s, %s' % (V(vFd), S(sNonce)))
        return o

    def hbase(self, kmul, extra):
        return ['s_lshl_b32 %s, %s, 11' % (S(sKt), S(sWave)), 's_mul_i32 %s, %s, %d' % (S(sT3), S(sJ1), kmul*HKS),
                's_add_u32 %s, %s, %s' % (S(sKt), S(sKt), S(sT3)), 's_add_u32 %s, %s, 0x%x' % (S(sKt), S(sKt), extra)]

    def flag_store(self, tok, srd):
        self.g.wait(tok)
        self.g('buffer_store_dword %s, %s, %s, 0 offen sc1' % (V(vFd), V(vFa), S(srd, 4)))
    def hoff(self, role, lvl, local):
        if not local: return 0x20000*lvl
        return 0x30000 + 0x20000*lvl if role else 0x20000
    def hflag(self, role, lvl, tok):
        g = self.g
        if self.cfg.get('lfl', 1): g('s_mov_b32 %s, 0x%x' % (S(sL1), self.hoff(role, lvl, 1)))
        g('s_mov_b32 %s, 0x%x' % (S(sL2), self.hoff(role, lvl, 0)))
        g.wait(tok)
        if self.cfg.get('lfl', 1): g('buffer_store_dword %s, %s, %s, %s offen' % (V(vFd), V(vFa), S(sWS, 4), S(sL1)))
        g('buffer_store_dword %s, %s, %s, %s offen sc1' % (V(vFd), V(vFa), S(sWS, 4), S(sL2)))
    def hpoll(self, role, lvl):
        g = self.g
        g('s_mov_b32 %s, 0x%x' % (S(sL1), self.hoff(role, lvl, self.cfg.get('lfl', 1))))
        g('buffer_load_dword %s, %s, %s, %s offen sc1' % (V(self.vHd), V(self.vHp), S(sWS, 4), S(sL1)))
    def hcheck(self, role, lvl):
        g = self.g
        def again():
            g('s_mov_b32 %s, 0x%x' % (S(sL1), self.hoff(role, lvl, self.cfg.get('lfl', 1))))
            g('s_and_b32 %s, %s, 3' % (S(sL2), S(sT4)))
            g('s_cselect_b32 %s, %s, 0x%x' % (S(sL1), S(sL1), self.hoff(role, lvl, 0)))
            g('buffer_load_dword %s, %s, %s, %s offen sc1' % (V(self.vHd), V(self.vHp), S(sWS, 4), S(sL1)))
        self.poll('h%d%d' % (role, lvl), again, self.check_eq([self.vHd]))

    def prologue(self):
        g = self.g
        g('s_cmp_ge_u32 s2, 256')
        g('s_cbranch_scc1 L_exit')
        g('s_load_dwordx16 s[40:55], s[0:1], 0')
        g('s_load_dwordx16 s[56:71], s[0:1], 64')
        g('v_lshrrev_b32 %s, 6, v0' % V(vT[0]))
        g('v_and_b32 %s, 63, v0' % V(vLane))
        g('v_readfirstlane_b32 %s, %s' % (S(sWave), V(vT[0])))
        g('v_lshlrev_b32 %s, 4, %s' % (V(vL16), V(vLane)))
        g('s_lshr_b32 %s, s2, 3' % S(sT1))
        if self.cfg.get('preload', 1):
            g.raw('    s_getpc_b64 s[28:29]\nL_pc:')
            g('s_lshl_b32 %s, %s, 2' % (S(sT0), S(sT1)))
            g('s_add_u32 %s, %s, %s' % (S(sT0), S(sT0), S(sWave)))
            g('s_and_b32 %s, %s, 63' % (S(sT0), S(sT0)))
            g.raw('    s_min_u32 %s, %s, ((L_codeend-L_pc)>>10)-1' % (S(sT0), S(sT0)))
            g('s_lshl_b32 %s, %s, 10' % (S(sT0), S(sT0)))
            g('s_add_u32 s28, s28, %s' % S(sT0))
            g('s_addc_u32 s29, s29, 0')
            g('global_load_dwordx4 v[244:247], %s, s[28:29]' % V(vL16))
        if self.cfg.get('stamps'):
            g('v_mov_b32 %s, 0' % V(vStamp))
        g('v_add_u32 %s, 0x1000, %s' % (V(vL16b), V(vL16)))
        g('s_bfe_u32 %s, s2, 0x20001' % S(sT3))
        g('s_and_b32 %s, %s, 3' % (S(sT2), S(sT1)))
        if self.cfg.get('mixed'):
            g('s_lshr_b32 %s, %s, 4' % (S(sRole), S(sT1)))
            g('s_bfe_u32 %s, %s, 0x20002' % (S(sJ1), S(sT1)))
            g('s_and_b32 %s, s2, 1' % S(sT0))
            g('s_lshl_b32 %s, %s, 2' % (S(sT0), S(sT0)))
            g('s_add_u32 %s, %s, %s' % (S(sJ1), S(sJ1), S(sT0)))
        else:
            g('s_and_b32 %s, s2, 1' % S(sRole))
            g('s_lshr_b32 %s, %s, 2' % (S(sJ1), S(sT1)))
        g('s_lshl_b32 %s, %s, 2' % (S(sC1), S(sT3)))
        g('s_add_u32 %s, %s, %s' % (S(sC1), S(sC1), S(sT2)))
        g('s_lshl_b32 %s, %s, 3' % (S(sIdx), S(sT3)))
        g('s_add_u32 %s, %s, %s' % (S(sIdx), S(sIdx), S(sJ1)))
        g('s_lshl_b32 %s, %s, 2' % (S(sIdx), S(sIdx)))
        g('s_add_u32 %s, %s, %s' % (S(sIdx), S(sIdx), S(sT2)))
        g('s_mul_i32 %s, %s, 3' % (S(sT2), S(sT2)))
        g('s_mul_i32 %s, %s, 5' % (S(sT0), S(sRole)))
        g('s_add_u32 %s, %s, %s' % (S(sRot), S(sJ1), S(sT2)))
        g('s_add_u32 %s, %s, %s' % (S(sRot), S(sRot), S(sT0)))
        g('s_add_u32 %s, %s, %s' % (S(sRot), S(sRot), S(sT3)))
        if self.cfg.get('norot'): g('s_mov_b32 %s, 0' % S(sRot))
        rx = self.cfg.get('rotx', 3)
        if rx:
            g('s_mul_i32 %s, %s, 5' % (S(sRot), S(sT3)))
            g('s_add_u32 %s, %s, 1' % (S(sRot), S(sRot)))
            g('s_lshr_b32 %s, %s, 1' % (S(sRot), S(sRot)))
            g('s_add_u32 %s, %s, %s' % (S(sRot), S(sRot), S(sT0)))
            if rx == 2:
                g('s_add_u32 %s, %s, %s' % (S(sT0), S(sC1), S(sJ1)))
                g('s_and_b32 %s, %s, 1' % (S(sT0), S(sT0)))
                g('s_add_u32 %s, %s, %s' % (S(sRot), S(sRot), S(sT0)))
            if rx == 3:
                g('s_add_u32 %s, %s, %s' % (S(sT0), S(sC1), S(sJ1)))
                g('s_and_b32 %s, %s, 3' % (S(sT0), S(sT0)))
                g('s_add_u32 %s, %s, %s' % (S(sRot), S(sRot), S(sT0)))
        for k in range(2):
            g('s_sub_u32 %s, %s, 10' % (S(sT0), S(sRot)))
            g('s_min_u32 %s, %s, %s' % (S(sRot), S(sRot), S(sT0)))
        if self.cfg.get('rotg') == 2:
            g('s_and_b32 %s, %s, 1' % (S(sRot), S(sRot)))
            g('s_mul_i32 %s, %s, 5' % (S(sRot), S(sRot)))
        if self.cfg.get('rotg') == 5:
            g('s_and_b32 %s, %s, 14' % (S(sRot), S(sRot)))
        if self.cfg.get('rotg') == 3:
            g('s_mul_i32 %s, %s, 11' % (S(sT0), S(sRot)))
            g('s_lshr_b32 %s, %s, 5' % (S(sT0), S(sT0)))
            g('s_mul_i32 %s, %s, 3' % (S(sT0), S(sT0)))
            g('s_sub_u32 %s, %s, %s' % (S(sRot), S(sRot), S(sT0)))
            g('s_mul_i32 %s, %s, 7' % (S(sRot), S(sRot)))
            g('s_lshr_b32 %s, %s, 1' % (S(sRot), S(sRot)))
        g('s_lshl_b32 %s, %s, 7' % (S(sKb[0]), S(sRot)))
        g('v_lshrrev_b32 %s, 3, %s' % (V(vT[0]), V(vLane)))
        g('v_and_b32 %s, 7, %s' % (V(vT[1]), V(vLane)))
        g('v_lshrrev_b32 %s, 4, %s' % (V(vT[2]), V(vLane)))
        g.do(self.srd_cst(sX, 2048*1280))
        g.do(self.srd_cst(sWS, WS_SIZE))
        g('s_cmp_eq_u32 %s, 0' % S(sRole))
        g('s_cbranch_scc1 L_ssm')

    def kb(self, s):
        if self.cfg.get('same'): return ['s_mov_b32 %s, %s' % (S(sKb[s]), S(sKb[0]))]
        return ['s_sub_u32 %s, %s, %d' % (S(sT0), S(sKb[0]), 128*(10-s)), 's_add_u32 %s, %s, %d' % (S(sKb[s]), S(sKb[0]), 128*s),
                's_min_u32 %s, %s, %s' % (S(sKb[s]), S(sKb[s]), S(sT0))]

    def ptrs_ready(self):
        g = self.g
        g.waitcnt(lg=0)
        self.stamp(0)
        self.stamp(30, 's_memtime')
        g.do(self.srd_ptr(sX, pX))

    def pack_addr(self, vPl, vPr, vPc):
        o = ['s_lshl_b32 %s, %s, 7' % (S(sItem), S(sWave)), 's_add_u32 %s, %s, %s' % (S(sItem), S(sItem), S(sIdx))]
        o += self.srd_ptr(sPD, pWs) + self.srd_ptr(sP1, pCre) + self.srd_ptr(sP2, pCim) + self.srd_ptr(54, pW2)
        o += [['s_cmp_lt_u32 %s, 400' % S(sItem), 's_cselect_b32 %s, 0x%x, 0' % (S(sPD+2), WS_SIZE), 's_cselect_b32 %s, 819200, 0' % S(sP1+2)],
              's_mov_b32 %s, %s' % (S(sP2+2), S(sP1+2)),
              's_mov_b32 %s, 0x20000' % S(sPD+3), 's_mov_b32 %s, 0x20000' % S(sP1+3), 's_mov_b32 %s, 0x20000' % S(sP2+3),
              's_mul_i32 %s, %s, 6554' % (S(sT1), S(sItem)), 's_lshr_b32 %s, %s, 16' % (S(sT1), S(sT1)),
              's_mul_i32 %s, %s, 10' % (S(sT2), S(sT1)), 's_sub_u32 %s, %s, %s' % (S(sT2), S(sItem), S(sT2)),
              's_lshl_b32 %s, %s, 7' % (S(sT3), S(sT2)),
              's_mul_i32 %s, %s, 20480' % (S(sCs), S(sT1)), 's_add_u32 %s, %s, %s' % (S(sCs), S(sCs), S(sT3)),
              's_mul_i32 %s, %s, 40960' % (S(sWs2), S(sT1)), 's_add_u32 %s, %s, %s' % (S(sWs2), S(sWs2), S(sT3)),
              's_mul_i32 %s, %s, 52' % (S(sT3), S(sT1)), 's_lshr_b32 %s, %s, 8' % (S(sT3), S(sT3)),
              's_mul_i32 %s, %s, 435' % (S(sT3), S(sT3)), 's_add_u32 %s, %s, %s' % (S(sCd), S(sT1), S(sT3)),
              's_mul_i32 %s, %s, 20' % (S(sT3), S(sT2)), 's_add_u32 %s, %s, %s' % (S(sCd), S(sCd), S(sT3)),
              's_lshl_b32 %s, %s, 10' % (S(sCd), S(sCd)), 's_add_u32 %s, %s, 0x%x' % (S(sCd), S(sCd), WS_B2 + 240*1024),
              's_mul_i32 %s, %s, 5' % (S(sT1), S(sT1)), 's_lshl_b32 %s, %s, 2' % (S(sT2), S(sT2))]
        for i in range(4):
            o += ['s_add_u32 %s, %s, %d' % (S(sPs[i]), S(sT2), i),
                  's_mul_i32 %s, %s, 52' % (S(sT3), S(sPs[i])), 's_lshr_b32 %s, %s, 8' % (S(sT3), S(sT3)),
                  's_mul_i32 %s, %s, 435' % (S(sT3), S(sT3)), 's_add_u32 %s, %s, %s' % (S(sPs[i]), S(sPs[i]), S(sT3)),
                  's_add_u32 %s, %s, %s' % (S(sPs[i]), S(sPs[i]), S(sT1)), 's_lshl_b32 %s, %s, 10' % (S(sPs[i]), S(sPs[i])),
                  's_add_u32 %s, %s, 0x%x' % (S(sPs[i]), S(sPs[i]), WS_B2)]
        t0, t1 = V(vT[4]), V(vT[5]); L = V(vLane)
        o += ['v_lshrrev_b32 %s, 3, %s' % (t0, L), 'v_and_b32 %s, 7, %s' % (t1, L), 'v_mul_u32_u24 %s, 1280, %s' % (t0, t0),
              'v_lshl_add_u32 %s, %s, 4, %s' % (V(vPl), t1, t0),
              's_lshl_b32 %s, %s, 12' % (S(sCo), S(sWave)), 's_add_u32 %s, %s, %d' % (S(sCo), S(sCo), L_PK),
              'v_bfe_u32 %s, %s, 4, 1' % (t0, L), 'v_lshlrev_b32 %s, 11, %s' % (t0, t0), 'v_lshrrev_b32 %s, 5, %s' % (t1, L),
              'v_lshl_add_u32 %s, %s, 9, %s' % (t0, t1, t0), 'v_bfe_u32 %s, %s, 2, 2' % (t1, L), 'v_lshl_add_u32 %s, %s, 7, %s' % (t0, t1, t0),
              'v_and_b32 %s, 3, %s' % (t1, L), 'v_lshl_add_u32 %s, %s, 3, %s' % (t0, t1, t0), 'v_add_u32 %s, %s, %s' % (V(vPr), S(sCo), t0),
              'v_lshrrev_b32 %s, 5, %s' % (t0, L), 'v_lshlrev_b32 %s, 11, %s' % (t0, t0), 'v_and_b32 %s, 15, %s' % (t1, L),
              'v_lshl_add_u32 %s, %s, 7, %s' % (t0, t1, t0), 'v_bfe_u32 %s, %s, 4, 1' % (t1, L), 'v_lshl_add_u32 %s, %s, 4, %s' % (t0, t1, t0),
              'v_add_u32 %s, %s, %s' % (V(vPc), S(sCo), t0), 'v_add_u32 %s, %s, %s' % (V(vPc+1), S(sCo), V(vL16))]
        return o

    def pack_load(self, vPl, PV):
        nt = self.cfg.get('pknt', ' nt')
        o = ['s_add_u32 %s, %s, 10240' % (S(sT0), S(sCs))]
        for part in range(2):
            for h in range(2):
                o.append('buffer_load_dwordx4 %s, %s, %s, %s offen%s' % (V(PV + 8*part + 4*h, 4), V(vPl), S(sP2 if part else sP1, 4), S(sT0 if h else sCs), nt))
        o += self.srd_ptr(sP1, 54) + ['s_cmp_lt_u32 %s, 480' % S(sItem), 's_cselect_b32 %s, %d, 0' % (S(sP1+2), 1536*1280)]
        for q in range(4):
            if q: o.append('s_add_u32 %s, %s, 10240' % (S(sWs2), S(sWs2)))
            o.append('buffer_load_dwordx4 %s, %s, %s, %s offen%s' % (V(PV + 16 + 4*q, 4), V(vPl), S(sP1, 4), S(sWs2), nt))
        return o
    def pack_proc(self, vPw, vPr, vPc, PV):
        g = self.g
        a = ['ds_write_b128 %s, %s offset:%d' % (V(vPw), V(PV + 4*i, 4), 1024*i) for i in range(4)]
        a += ['ds_read_b128 %s, %s offset:%d' % (A(aPK+4*i, 4), V(vPc), 32*i) for i in range(4)]
        a += ['ds_write_b128 %s, %s offset:%d' % (V(vPw), V(PV + 16 + 4*i, 4), 1024*i) for i in range(4)]
        a += ['ds_read_b64_tr_b16 %s, %s offset:%d' % (V(PV+4*i+2*e, 2), V(vPr), e*1024 + i*32) for i in range(4) for e in range(2)]
        b = []
        for i in range(4):
            if i: b.append('s_add_u32 %s, %s, %d' % (S(sCd), S(sCd), KST))
            b.append('buffer_store_dwordx4 %s, %s, %s, %s offen sc1' % (A(aPK+4*i, 4), V(vL16), S(sPD, 4), S(sCd)))
        b.append(['s_cmp_lt_u32 %s, 480' % S(sItem), 's_cselect_b32 %s, 0x%x, 0' % (S(sPD+2), WS_SIZE)])
        for i in range(4):
            def f(i=i): self.tPackSt = g('buffer_store_dwordx4 %s, %s, %s, %s offen sc1' % (V(PV+4*i, 4), V(vL16), S(sPD, 4), S(sPs[i])))
            b.append(F(f))
        return a, b

    def touch_addr(self):
        if not self.cfg.get('coop', 0): return
        g = self.g; L = V(vLane)
        g('s_lshl_b32 %s, s2, 2' % S(sT0))
        g('s_add_u32 %s, %s, %s' % (S(sT0), S(sT0), S(sWave)))
        g('s_mul_i32 %s, %s, 20' % (S(sT1), S(sT0)))
        g('v_min_u32 v248, 19, %s' % L)
        g('v_add_u32 v248, %s, v248' % S(sT1))
        g('v_lshlrev_b32 v248, 7, v248')
        g('s_mul_i32 %s, %s, 25' % (S(sT1), S(sT0)))
        g('s_lshr_b32 %s, %s, 2' % (S(sT1), S(sT1)))
        g('v_min_u32 v249, 6, %s' % L)
        g('v_add_u32 v249, %s, v249' % S(sT1))
        g('v_min_u32 v249, 6399, v249')
        g('v_lshlrev_b32 v249, 7, v249')
        nw = 5 if self.cfg['coop'] == 1 else 15
        g('s_mul_i32 %s, %s, %d' % (S(sT1), S(sT0), nw))
        g('v_min_u32 v250, %d, %s' % (nw-1, L))
        g('v_add_u32 v250, %s, v250' % S(sT1))
        if nw == 5:
            g('v_lshrrev_b32 v251, 3, v250')
            g('v_and_b32 v250, 7, v250')
            g('v_mul_u32_u24 v251, 3072, v251')
            g('v_mul_u32_u24 v250, 384, v250')
            g('v_add_u32 v250, v250, v251')
        else:
            g('v_lshlrev_b32 v250, 7, v250')
    def touch(self):
        if not self.cfg.get('coop', 0): return
        g = self.g
        g('global_load_dword v240, v248, %s' % S(pX, 2))
        g('global_load_dword v241, v249, %s' % S(pBre, 2))
        g('global_load_dword v242, v249, %s' % S(pBim, 2))
        g('global_load_dword v243, v250, %s' % S(pW1, 2))

    def warm_flags(self, role):
        if not self.cfg.get('warm', 1): return []
        L = V(vLane)
        o = ['s_lshl_b32 %s, %s, 7' % (S(sT0), S(sRole)), 's_add_u32 %s, %s, %s' % (S(sT0), S(sT0), S(sIdx)),
             's_lshl_b32 %s, %s, %d' % (S(sT0), S(sT0), self.fg - self.fw), 's_add_u32 %s, %s, %s' % (S(sT0), S(sT0), S(sWave)),
             's_lshl_b32 %s, %s, %d' % (S(sT0), S(sT0), self.fw), 's_add_u32 %s, %s, %d' % (S(sT0), S(sT0), WS_HFLAG),
             'v_min_u32 v250, 9, %s' % L, 'v_lshlrev_b32 v250, 16, v250', 'v_add_u32 v250, %s, v250' % S(sT0)]
        if role == 0:
            o += [
                  's_lshl_b32 %s, %s, 4' % (S(sT0), S(sJ1)), 's_add_u32 %s, %s, %s' % (S(sT0), S(sT0), S(sC1)),
                  's_lshl_b32 %s, %s, 2' % (S(sT0), S(sT0)), 's_add_u32 %s, %s, %s' % (S(sT0), S(sT0), S(sWave)),
                  's_mul_i32 %s, %s, 320' % (S(sT0), S(sT0)), 's_add_u32 %s, %s, %d' % (S(sT0), S(sT0), WS_EBUF),
                  'v_and_b32 v251, 3, %s' % L, 'v_mul_u32_u24 v251, 104, v251', 'v_add_u32 v251, %s, v251' % S(sT0),
                  ['v_cmp_gt_u32 vcc, 12, %s' % L, 'v_cndmask_b32 v250, v251, v250, vcc'],
                  's_lshl_b32 %s, %s, 3' % (S(sT0), S(sC1)), 's_add_u32 %s, %s, %s' % (S(sT0), S(sT0), S(sJ1)),
                  's_lshl_b32 %s, %s, 2' % (S(sT0), S(sT0)), 's_add_u32 %s, %s, %s' % (S(sT0), S(sT0), S(sWave)),
                  's_lshl_b32 %s, %s, 6' % (S(sT0), S(sT0)), 's_add_u32 %s, %s, %d' % (S(sT0), S(sT0), WS_GATE),
                  'v_mov_b32 v251, %s' % S(sT0),
                  ['v_cmp_gt_u32 vcc, 16, %s' % L, 'v_cndmask_b32 v250, v251, v250, vcc']]
        o.append('buffer_load_dword v251, v250, %s, 0 offen sc1' % S(sWS, 4))
        return o

    def pack_poll_issue(self, vPp, vD):
        self.g('buffer_load_dword %s, %s, %s, 0 offen sc1' % (V(vD), V(vPp), S(sWS, 4)))
    def pack_poll_check(self, vPp, vD):
        if self.cfg.get('nopoll'): return
        self.poll('pk', lambda: self.pack_poll_issue(vPp, vD), self.check_eq([vD]))

    def x_dma_addr(self, vXd, perm):
        g = self.g
        g('s_lshl_b32 %s, %s, 2' % (S(sT0), S(sC1)))
        g('s_add_u32 %s, %s, %s' % (S(sT0), S(sT0), S(sWave)))
        g('s_mul_i32 %s, %s, %d' % (S(sT0), S(sT0), 32*1280))
        if perm:
            g('v_lshrrev_b32 %s, 5, %s' % (V(vT[3]), V(vLane)))
            g('v_and_b32 %s, 1, %s' % (V(vT[4]), V(vT[0])))
            g('v_lshl_add_u32 %s, %s, 1, %s' % (V(vT[3]), V(vT[3]), V(vT[4])))
            g('v_and_b32 %s, 1, %s' % (V(vT[4]), V(vT[2])))
            g('v_lshl_add_u32 %s, %s, 2, %s' % (V(vT[3]), V(vT[3]), V(vT[4])))
            g('v_mul_u32_u24 %s, 1280, %s' % (V(vT[3]), V(vT[3])))
        else:
            g('v_mul_u32_u24 %s, 1280, %s' % (V(vT[3]), V(vT[0])))
        g('v_xor_b32 %s, %s, %s' % (V(vT[4]), V(vT[1]), V(vT[2])))
        g('v_lshlrev_b32 %s, 4, %s' % (V(vT[4]), V(vT[4])))
        g('v_xor_b32 %s, 64, %s' % (V(vT[5]), V(vT[4])))
        g('v_add3_u32 %s, %s, %s, %s' % (V(vXd[0]), V(vT[4]), V(vT[3]), S(sT0)))
        g('v_add3_u32 %s, %s, %s, %s' % (V(vT[5]), V(vT[5]), V(vT[3]), S(sT0)))
        for q in range(1, 4):
            rows = (16*(q & 1) + 2*(q >> 1)) if perm else 8*q
            g('v_add_u32 %s, %d, %s' % (V(vXd[q]), rows*1280 - 1024*q, V(vT[5] if q & 1 else vXd[0])))

    def ffn(self):
        g = self.g; cfg = self.cfg
        ACC = [16, 48]
        WF = 80; NF = 10
        EP = 120
        PKR = 128
        vXd = [144, 145, 146, 147]; vWd = [148, 149]; vXr = [150, 151, 152, 153]; vWr = [154, 155]; vHs = 156
        vPr, vPs, vPp, vPd = 157, 158, 159, 13
        vWrB = [150, 151]
        def wslot(t):
            if t < 16: return F_WR + (t % 8)*8192
            if t < 24: return (t-16)*8192
            return F_WR + (t-24)*8192
        LA = cfg.get('fla', 7); WE = cfg.get('fwe', 4)
        self.x_dma_addr(vXd, False)
        g('v_and_b32 %s, 1, %s' % (V(vT[3]), V(vT[2])))
        g('v_lshlrev_b32 %s, 2, %s' % (V(vT[3]), V(vT[3])))
        g('v_xor_b32 %s, %s, %s' % (V(vT[3]), V(vT[1]), V(vT[3])))
        g('v_mul_u32_u24 %s, 3072, %s' % (V(vT[4]), V(vT[0])))
        g('v_lshl_add_u32 %s, %s, 4, %s' % (V(vT[3]), V(vT[3]), V(vT[4])))
        g('s_mul_i32 %s, %s, %d' % (S(sT0), S(sWave), 16*3072))
        g('v_add_u32 %s, %s, %s' % (V(vWd[0]), S(sT0), V(vT[3])))
        g('v_add_u32 %s, %d, %s' % (V(vWd[1]), 8*3072 - 1024, V(vWd[0])))
        g('s_mul_i32 %s, %s, 20480' % (S(sMx), S(sWave)))
        g('s_lshl_b32 %s, %s, 11' % (S(sMw), S(sWave)))
        g('s_mul_i32 %s, %s, 384' % (S(sWo), S(sJ1)))
        g.do(self.srd_cst(sW, 640*3072))
        for s in range(1, 10): g.do(self.kb(s))
        tokX = {}; tokW = {}
        def dma_x(s):
            def mk(q):
                def f():
                    tokX[s] = g('buffer_load_dwordx4 %s, %s, %s offen offset:%d%s lds' % (V(vXd[q]), S(sX, 4), S(sKb[s]), 1024*q, (' nt' if s < cfg.get('nt0', 0) else '')))
                return F(f)
            return ['s_add_u32 m0, %s, %d' % (S(sMx), (s % 5)*4096)] + [mk(q) for q in range(4)]
        def dma_w(t):
            o = ['s_add_u32 m0, %s, %d' % (S(sMw), wslot(t))]
            k = sKb[t % 10]
            if t < 10: o += ['s_mul_i32 %s, %s, 1536' % (S(k), S(k)), 's_add_u32 %s, %s, %s' % (S(k), S(k), S(sWo))]
            if t in (10, 20): o += ['v_add_u32 %s, 128, %s' % (V(r), V(r)) for r in vWd]
            nt = ' nt' if t < cfg.get('nt0', 0) else ''
            o.append('buffer_load_dwordx4 %s, %s, %s offen%s lds' % (V(vWd[0]), S(sW, 4), S(k), nt))
            def f():
                tokW[t] = g('buffer_load_dwordx4 %s, %s, %s offen offset:1024%s lds' % (V(vWd[1]), S(sW, 4), S(k), nt))
            return o + [F(f)]
        self.touch_addr()
        self.ptrs_ready()
        g.do(self.srd_ptr(sW, pW1))
        if cfg.get('coop_first', 1): self.touch()
        g.do(dma_x(0) + dma_w(0))
        if not cfg.get('coop_first', 1): self.touch()
        g.do(dma_x(1) + dma_w(1))
        g.do(self.srd_ptr(sWS, pWs))
        g('s_load_dword %s, %s, 0' % (S(sNonce), S(pWs, 2)))
        g.do(self.warm_flags(1))
        g('v_and_b32 %s, 31, %s' % (V(vT[3]), V(vLane)))
        g('v_bfe_u32 %s, %s, 1, 3' % (V(vT[4]), V(vLane)))
        g('v_lshrrev_b32 %s, 5, %s' % (V(vT[7]), V(vLane)))
        g('v_xor_b32 %s, %s, %s' % (V(vT[4]), V(vT[4]), V(vT[7])))
        g('v_lshlrev_b32 %s, 4, %s' % (V(vT[4]), V(vT[4])))
        g('v_lshl_add_u32 %s, %s, 7, %s' % (V(vT[4]), V(vT[3]), V(vT[4])))
        g('v_add_u32 %s, %s, %s' % (V(vXr[0]), S(sMx), V(vT[4])))
        for ks in range(1, 4):
            g('v_xor_b32 %s, %d, %s' % (V(vXr[ks]), 32*ks, V(vXr[0])))
        g('v_bfe_u32 %s, %s, 2, 2' % (V(vT[4]), V(vLane)))
        g('v_lshl_add_u32 %s, %s, 3, %s' % (V(vT[6]), V(vT[7]), V(vT[4])))
        g('v_lshlrev_b32 %s, 7, %s' % (V(vT[6]), V(vT[6])))
        g('v_lshrrev_b32 %s, 1, %s' % (V(vT[4]), V(vT[4])))
        g('v_lshl_add_u32 %s, %s, 6, %s' % (V(vT[6]), V(vT[4]), V(vT[6])))
        g('v_bfe_u32 %s, %s, 4, 1' % (V(vT[4]), V(vLane)))
        g('v_lshl_add_u32 %s, %s, 5, %s' % (V(vT[6]), V(vT[4]), V(vT[6])))
        g('v_and_b32 %s, 3, %s' % (V(vT[4]), V(vLane)))
        g('v_lshl_add_u32 %s, %s, 3, %s' % (V(vT[6]), V(vT[4]), V(vT[6])))
        g('v_add_u32 %s, %d, %s' % (V(vWr[0]), F_WR, V(vT[6])))
        g('v_xor_b32 %s, 64, %s' % (V(vWr[1]), V(vWr[0])))
        vPc = 160
        pk0 = cfg.get('pk', (4,))[0] < 2
        if pk0: g.do(self.pack_addr(vPs, vPr, vPc))
        if cfg.get('pk', (4,))[0] < 0: g.do(self.pack_load(vPs, 164))
        g.do(dma_x(2) + dma_w(2))
        XL = cfg.get('f_xl', 4)
        if XL == 4: g.do(dma_x(3) + dma_w(3))
        self.stamp(1)
        setup = ([] if pk0 else self.pack_addr(vPs, vPr, vPc)) + self.late_setup(1, vT[0], vT[1], vPp)
        n_late = len(setup)
        setup += self.hbase(6, 0) + [
            'v_bfe_u32 %s, %s, 4, 1' % (V(vT[0]), V(vLane)), 'v_lshlrev_b32 %s, 10, %s' % (V(vT[0]), V(vT[0])),
            'v_lshl_add_u32 %s, %s, 9, %s' % (V(vT[0]), V(vT[7]), V(vT[0])), 'v_and_b32 %s, 15, %s' % (V(vT[1]), V(vLane)),
            'v_lshl_add_u32 %s, %s, 4, %s' % (V(vT[0]), V(vT[1]), V(vT[0])), 'v_add_u32 %s, %s, %s' % (V(vHs), S(sKt), V(vT[0])),
            's_mov_b32 %s, 0x%x' % (S(sNl), NLOG2E)]
        setup += self.ks_table(1)

        mains = []; fixed = []
        tokF = {}; tokXr = {}
        def rd_x(s, ks):
            def f(): tokXr[s] = g('ds_read_b128 %s, %s offset:%d' % (A(16*s + 4*ks, 4), V(vXr[ks]), (s % 5)*4096))
            return F(f)
        def rd_w(n, e):
            sg, ks, u = n // 8, (n % 8)//2, n % 2
            def f():
                tokF[n] = g('ds_read_b64_tr_b16 %s, %s offset:%d' % (V(WF + 4*(n % NF) + 2*e, 2), V(vWrB[u] if 16 <= sg < 24 else vWr[u]), wslot(sg) % F_WR + (16*ks + 4*e)*128))
            return F(f)
        def bar(sg, both):
            def f():
                g.wait(tokX.get(sg), tokW[sg+1 if both else sg], tokXr.get(sg-1) if XL == 4 else None)
                g('s_barrier')
                if sg == 0: self.stamp(2)
                if sg == 10: self.stamp(3)
                if sg == 20: self.stamp(4)
                if sg in (3, 5, 7, 12, 16, 26): self.stamp(20 + (3, 5, 7, 12, 16, 26).index(sg), lvl=3)
            return F(f, 8)
        for n in range(240):
            sg, ks, u = n // 8, (n % 8)//2, n % 2
            grp, s = sg // 10, sg % 10
            acc = ACC[grp % 2] + 16*u
            c = '0' if (s == 0 and ks == 0) else V(acc, 16)
            mains.append(('v_mfma_f32_32x32x16_bf16 %s, %s, %s, %s' % (V(acc, 16), V(WF + 4*(n % NF), 4), A(16*s + 4*ks, 4), c),
                          (lambda n=n: [tokF[min(n+WE-1, 239)]]) if n % WE == 0 else None))
        wsched = {}
        if XL == 3:
            for sg in range(7): wsched[sg] = [sg+3]
            wsched[7] = [10, 11]; wsched[8] = [12, 13]; wsched[9] = [14]; wsched[10] = [15]
        else:
            for sg in range(6): wsched[sg] = [sg+4]
            wsched[6] = [10, 11]; wsched[7] = [12, 13]; wsched[8] = [14]; wsched[9] = [15]
        wsched[12] = [16, 17, 18, 19]; wsched[14] = [20, 21, 22]; wsched[16] = [23, 24, 25]; wsched[18] = [26, 27]; wsched[20] = [28, 29]
        endb = {}
        for sg in range(30):
            if sg >= 10 and sg % 2: continue
            p = 8*sg - LA
            fixed.append((p - 0.5, bar(sg, sg >= 10)))
            d = []
            if sg + XL <= 9: d += dma_x(sg+XL)
            for t in wsched.get(sg, []): d += dma_w(t)
            stp = 0.5 if sg < 10 else 15.0/max(len(d), 1)
            for i, f in enumerate(d): fixed.append((p + 0.6 + i*stp, f))
            endb[sg] = p + 0.6 + len(d)*stp
        for u in range(2): fixed.append((90 + u, 'v_subrev_u32 %s, %d, %s' % (V(vWrB[u]), F_WR, V(vWr[u]))))
        if cfg.get('w1warm', 0):
            fixed.append((endb[cfg.get('w1warm_at', 1)], ['s_lshl_b32 %s, %s, 2' % (S(sT0), S(sC1)), 's_add_u32 %s, %s, %s' % (S(sT0), S(sT0), S(sWave)),
                 's_mul_i32 %s, %s, %d' % (S(sT0), S(sT0), 10*3072), 's_add_u32 %s, %s, %s' % (S(sT0), S(sT0), S(sWo)),
                 'v_min_u32 %s, 19, %s' % (V(vT[8]), V(vLane)), 'v_lshrrev_b32 %s, 1, %s' % (V(vPd), V(vT[8])),
                 'v_mul_u32_u24 %s, 3072, %s' % (V(vPd), V(vPd)), 'v_and_b32 %s, 1, %s' % (V(vT[8]), V(vT[8])),
                 'v_lshl_add_u32 %s, %s, 7, %s' % (V(vPd), V(vT[8]), V(vPd)),
                 'buffer_load_dword %s, %s, %s, %s offen offset:128 sc1' % (V(vT[8]), V(vPd), S(sW, 4), S(sT0))]))
        for n in range(240):
            if n < 80 and n % 2 == 0:
                s, ks = n//8, (n % 8)//2
                fixed.append((8*s - LA + ks if XL == 4 else n - LA, rd_x(s, ks)))
            fixed.append((n - LA, rd_w(n, 0))); fixed.append((n - LA, rd_w(n, 1)))
        cl, cr, cf, pp = cfg.get('pk', (4, 8, 12, 22))
        at = lambda sg: endb[sg] if sg < 10 else 8*sg - LA + 0.2
        PV = 164
        if cl >= 0: fixed.append((at(cl), self.pack_load(vPs, PV)))
        pa_, pb_ = self.pack_proc(vPc+1, vPr, vPc, PV)
        for i, f in enumerate(pa_): fixed.append((at(cr) + 0.5*i, f))
        for i, f in enumerate(pb_): fixed.append((at(cr) + 9 + 0.5*i, f))
        fixed.append((at(cf), F(lambda: self.flag_store(self.tPackSt, sPD), 8)))
        if pp < 30:
            fixed.append((at(pp-2), F(lambda: self.pack_poll_issue(vPp, vPd))))
            fixed.append((at(pp), F(lambda: self.pack_poll_check(vPp, vPd), 20)))
        else:
            fixed.append((228, F(lambda: self.pack_poll_issue(vPp, vPd))))
        nb_in = cfg.get('f_b2in', 20) if pp < 30 else 0
        b2 = self.b2_loads(1, range(4 if cfg.get('f_nob2') else 12))
        tU = {}
        def epi(grp):
            ops = []
            for u in range(2):
                acc = ACC[grp % 2] + 16*u
                pk = PKR + 8*u
                def stage(r, k):
                    t = V(EP + (r % 8)); a = V(acc + r)
                    return ['v_mul_f32 %s, %s, %s' % (t, S(sNl), a), 'v_exp_f32 %s, %s' % (t, t), 'v_add_f32 %s, 1.0, %s' % (t, t),
                            'v_rcp_f32 %s, %s' % (t, t), 'v_mul_f32 %s, %s, %s' % (a, a, t)][k]
                for tm in range(16 + 6):
                    for k in (4, 3, 2, 1, 0):
                        r = tm - k
                        if 0 <= r < 16: ops.append(stage(r, k))
                    r = tm - 5
                    if 0 <= r < 16 and r % 2 == 1:
                        ops.append('v_cvt_pk_bf16_f32 %s, %s, %s' % (V(pk + r//2), V(acc + r - 1), V(acc + r)))
                        if r in (7, 15):
                            e = r // 8
                            def st(e=e, pk=pk, un=2*grp+u):
                                tU[un] = g('buffer_store_dwordx4 %s, %s, %s, 0 offen offset:%d%s' % (V(pk + 4*e, 4), V(vHs), S(sH, 4), 256*e, cfg.get('hst', ' sc1')))
                            ops.append(F(st))
                ops.append('v_add_u32 %s, %d, %s' % (V(vHs), HKS, V(vHs)))
            return ops
        pa = 24 if pk0 else min(40, int(at(cl)) - 1)
        sA = Stream(setup[:n_late], 0, pa - 1)
        fixed.append((pa - 0.1, F(lambda: sA.flush(g), 0)))
        streams = [sA, Stream(setup[n_late:], pa, 78),
                   Stream(b2[:nb_in], max(8*pp, cfg.get('f_b2s', 0)), 236, paced=True, slack=4),
                   Stream(epi(0), 82, 158), Stream(epi(1), 162, 238)]
        if cfg.get('noepi'): streams = streams[:3]
        fixed.append((max(at(cf) + 1, 150), self.line_addr(WS_HFLAG, vFa)))
        fixed.append((cfg.get('f_l0', 232), F(lambda: self.hflag(1, 0, tU[2]), 20)))
        sched(g, mains, 24, fixed, streams, report=self.rep and 'ffn')
        self.stamp(5)
        if pp >= 30: self.pack_poll_check(vPp, vPd)
        e2 = epi(2); k = cfg.get('f_hp0', 60)
        rest = mix(g, e2[:k] + self.hp_addr(1) + [F(lambda: self.hpoll(1, 0), 8)] + e2[k:], b2[nb_in:], every=cfg.get('f_pace', 72))
        self.hflag(1, 1, tU[3])
        self.stamp(6)
        self.phase2(1, rest, tU[5])

    def cpow(self, dst, a, th, n, t0, t1):
        if n is None:
            o = ['v_exp_f32 %s, %s' % (V(t0), V(a)), 'v_rndne_f32 %s, %s' % (V(t1), V(th)), 'v_sub_f32 %s, %s, %s' % (V(t1), V(th), V(t1))]
        else:
            o = ['v_mul_f32 %s, %s, %s' % (V(t0), n, V(a)), 'v_mul_f32 %s, %s, %s' % (V(dst), n, V(th)), 'v_exp_f32 %s, %s' % (V(t0), V(t0)),
                 'v_rndne_f32 %s, %s' % (V(t1), V(dst)), 'v_sub_f32 %s, %s, %s' % (V(t1), V(dst), V(t1))]
        return o + ['v_cos_f32 %s, %s' % (V(dst), V(t1)), 'v_sin_f32 %s, %s' % (V(dst+1), V(t1)),
                    'v_mul_f32 %s, %s, %s' % (V(dst), V(t0), V(dst)), 'v_mul_f32 %s, %s, %s' % (V(dst+1), V(t0), V(dst+1))]

    def ssm(self):
        g = self.g; cfg = self.cfg
        ACC = 16
        def acc(u, part, t): return ACC + 16*u + 8*part + t
        L1, CF, L8S, L4 = 96, 106, 116, 126
        L8, L128, nL128, LK, vGrp = 136, 157, 139, 214, 216
        def pk(op, d, c, hi, x, y=None, neg=False):
            n = 3 if y is not None else 2
            t = 'v_pk_%s_f32 %s, %s, %s' % (op, V(d, 2), V(c, 2), V(x, 2)) + (', %s' % V(y, 2) if y is not None else '')
            t += ' op_sel:[%d%s] op_sel_hi:[%d%s]' % (hi, ',0'*(n-1), hi, ',1'*(n-1))
            if neg: t += ' neg_lo:[1%s] neg_hi:[1%s]' % (',0'*(n-1), ',0'*(n-1))
            return t
        vXd = [140, 141, 142, 143]; vBd = [144, 145, 146, 147, 148]
        vXr = [149, 150]; vBr = [151, 152, 153, 154]
        vPidx = 155; vHs = 156
        vPr, vPs, vPp, vPd = 157, 158, 159, 13
        BIG = 160
        RAW = 160
        aBF = 0; NF = 12; aXF = 48
        LA = cfg.get('sla', 4); WE = cfg.get('swe', 2); SL = cfg.get('s_sl', 3); RS = 1.4 if SL == 3 else 2.0
        g.label('L_ssm')
        self.x_dma_addr(vXd, True)
        g('s_and_b32 %s, %s, 1' % (S(sT1), S(sWave)))
        g('s_lshl_b32 %s, %s, 1' % (S(sT0), S(sJ1)))
        g('s_add_u32 %s, %s, %s' % (S(sT0), S(sT0), S(sT1)))
        g('s_mul_i32 %s, %s, %d' % (S(sT0), S(sT0), 40*1280))
        g('s_lshl_b32 %s, %s, 6' % (S(sT1), S(sT1)))
        g('v_xor_b32 %s, %s, %s' % (V(vT[4]), S(sT1), V(vT[4])))
        g('v_xor_b32 %s, 64, %s' % (V(vT[5]), V(vT[4])))
        g('v_mul_u32_u24 %s, 1280, %s' % (V(vT[3]), V(vT[0])))
        g('v_add3_u32 %s, %s, %s, %s' % (V(vBd[0]), V(vT[4]), V(vT[3]), S(sT0)))
        g('v_add3_u32 %s, %s, %s, %s' % (V(vT[5]), V(vT[5]), V(vT[3]), S(sT0)))
        for q in range(1, 5):
            g('v_add_u32 %s, %d, %s' % (V(vBd[q]), 8*q*1280 - 1024*(q & 3), V(vT[5] if q & 1 else vBd[0])))
        g('s_lshl_b32 %s, %s, 14' % (S(sMx), S(sWave)))
        g('s_mul_i32 %s, %s, 5120' % (S(sMw), S(sWave)))
        g('s_add_u32 %s, %s, %d' % (S(sMw), S(sMw), S_BR))
        g.do(self.srd_cst(sW, 819200))
        for s in range(1, 10): g.do(self.kb(s))
        tokS = {}
        def dma(s):
            o = ['s_add_u32 m0, %s, %d' % (S(sMx), (s % 4)*4096)]
            for q in range(4): o.append('buffer_load_dwordx4 %s, %s, %s offen offset:%d%s lds' % (V(vXd[q]), S(sX, 4), S(sKb[s]), 1024*q, (' nt' if s < cfg.get('nt0', 0) else '')))
            o.append('s_add_u32 m0, %s, %d' % (S(sMw), (s % 4)*20480))
            nt = ' nt' if s < cfg.get('nt0', 0) else ''
            for q in range(4): o.append('buffer_load_dwordx4 %s, %s, %s offen offset:%d%s lds' % (V(vBd[q]), S(sW, 4), S(sKb[s]), 1024*q, nt))
            o.append('s_add_u32 m0, %s, %d' % (S(sMw), (s % 4)*20480 + 4096))
            def f(): tokS[s] = g('buffer_load_dwordx4 %s, %s, %s offen%s lds' % (V(vBd[4]), S(sW, 4), S(sKb[s]), nt))
            return o + [F(f)]
        self.touch_addr()
        self.ptrs_ready()
        g('s_cmp_lt_u32 %s, 2' % S(sWave))
        g('s_cselect_b32 %s, %s, %s' % (S(sW), S(pBre), S(pBim)))
        g('s_cselect_b32 %s, %s, %s' % (S(sW+1), S(pBre+1), S(pBim+1)))
        if cfg.get('coop_first', 1): self.touch()
        g.do(dma(0))
        if not cfg.get('coop_first', 1): self.touch()
        g.do(self.srd_ptr(sWS, pWs))
        g('s_load_dword %s, %s, 0' % (S(sNonce), S(pWs, 2)))
        g('v_and_b32 %s, 15, %s' % (V(vT[3]), V(vLane)))
        g('v_bfe_u32 %s, %s, 1, 3' % (V(vT[4]), V(vLane)))
        g('v_xor_b32 %s, %s, %s' % (V(vT[4]), V(vT[4]), V(vT[2])))
        g('v_lshlrev_b32 %s, 4, %s' % (V(vT[4]), V(vT[4])))
        g('v_lshl_add_u32 %s, %s, 7, %s' % (V(vT[4]), V(vT[3]), V(vT[4])))
        g('v_add_u32 %s, %s, %s' % (V(vXr[0]), S(sMx), V(vT[4])))
        g('v_xor_b32 %s, 64, %s' % (V(vXr[1]), V(vXr[0])))
        g('v_add_u32 %s, %d, %s' % (V(vBr[0]), S_BR, V(vT[4])))
        g('v_xor_b32 %s, 64, %s' % (V(vBr[1]), V(vBr[0])))
        g('v_add_u32 %s, 40960, %s' % (V(vBr[2]), V(vBr[0])))
        g('v_add_u32 %s, 40960, %s' % (V(vBr[3]), V(vBr[1])))
        g('s_mul_i32 %s, %s, 160' % (S(sT0), S(sJ1)))
        g('v_lshl_add_u32 %s, %s, 1, %s' % (V(vT[7]), V(vT[3]), S(sT0)))
        g('v_mul_u32_u24 %s, 13, %s' % (V(vGrp), V(vLane)))
        g('v_lshrrev_b32 %s, 8, %s' % (V(vGrp), V(vGrp)))
        g('v_mul_u32_u24 %s, 20, %s' % (V(vPidx), V(vGrp)))
        g('v_sub_u32 %s, %s, %s' % (V(vPidx), V(vLane), V(vPidx)))
        g('s_mul_i32 %s, %s, 20' % (S(sT1), S(sWave)))
        g('v_add_u32 %s, %s, %s' % (V(vPidx), S(sT1), V(vPidx)))
        g('v_lshl_add_u32 %s, %s, 1, %s' % (V(vT[6]), V(vPidx), S(sT0)))
        g.do(dma(1))
        g.do(self.warm_flags(0))
        parld = []
        for u in range(6):
            for k, p in enumerate((pLre, pLim, pLdt)):
                parld.append('global_load_ushort %s, %s, %s offset:%d' % (V(RAW + 3*u + k), V(vT[7] if u < 5 else vT[6]), S(p, 2), 32*u if u < 5 else 0))
        if cfg.get('s_pla', 1) < 0: g.do(parld)
        UP = cfg.get('s_up', 2)
        if UP == 3: g.do(dma(2))
        self.stamp(1)
        setup = self.late_setup(0, vT[0], vT[1], vPp)
        n_late = len(setup)
        setup += self.hbase(5, 48*HKS) + ['v_add_u32 %s, %s, %s' % (V(vHs), S(sKt), V(vL16))]
        setup += self.ks_table(0)
        PT = BIG + 20
        par = ['s_lshl_b32 %s, %s, 2' % (S(sT2), S(sWave)), 'v_add_u32 %s, %s, %s' % (V(vT[2]), S(sT2), V(vT[2])),
               'v_lshlrev_b32 %s, 3, %s' % (V(PT), V(vT[2])), 'v_cvt_f32_u32 %s, %s' % (V(PT), V(PT)),
               'v_mul_u32_u24 %s, 640, %s' % (V(vT[2]), V(vT[2])), 'v_and_b32 %s, 15, %s' % (V(vT[3]), V(vLane)),
               'v_lshlrev_b32 %s, 3, %s' % (V(vT[3]), V(vT[3])), 'v_add_u32 %s, %d, %s' % (V(vT[3]), L_EX, V(vT[3])),
               'v_add_u32 %s, %s, %s' % (V(vT[2]), V(vT[2]), V(vT[3])),
               'v_lshlrev_b32 %s, 3, %s' % (V(vT[4]), V(vPidx)), 'v_add_u32 %s, %d, %s' % (V(vT[4]), L_EX, V(vT[4])),
               's_mul_i32 %s, %s, 20480' % (S(sT2), S(sJ1)), 's_add_u32 %s, %s, %d' % (S(sT2), S(sT2), WS_EBUF),
               'v_lshlrev_b32 %s, 4, %s' % (V(vT[5]), V(vPidx)), 'v_add_u32 %s, %s, %s' % (V(vT[5]), S(sT2), V(vT[5])),
               's_mul_i32 %s, %s, 1280' % (S(sCo), S(sC1))]
        for u in range(6):
            lr, li, ld = RAW + 3*u, RAW + 3*u + 1, RAW + 3*u + 2
            a, th, t0, t1 = PT+1, PT+2, PT+3, PT+4
            par += ['v_lshlrev_b32 %s, 16, %s' % (V(ld), V(ld)), 'v_mul_f32 %s, 0x%x, %s' % (V(ld), LOG2E, V(ld)),
                    'v_exp_f32 %s, %s' % (V(ld), V(ld)), 'v_lshlrev_b32 %s, 16, %s' % (V(lr), V(lr)),
                    'v_cvt_pk_bf16_f32 %s, %s, %s' % (V(ld), V(ld), V(ld)), 'v_lshlrev_b32 %s, 16, %s' % (V(li), V(li)),
                    'v_lshlrev_b32 %s, 16, %s' % (V(ld), V(ld)),
                    'v_mul_f32 %s, %s, %s' % (V(a), V(ld), V(lr)), 'v_mul_f32 %s, %s, %s' % (V(th), V(ld), V(li)),
                    'v_mul_f32 %s, 0x%x, %s' % (V(a), LOG2E, V(a)), 'v_mul_f32 %s, 0.15915494, %s' % (V(th), V(th))]
            if u < 5:
                l1 = L1 + 2*u; cf = CF + 2*u; l4 = L4 + 2*u
                par += self.cpow(l1, a, th, None, t0, t1)
                par += self.cpow(L8S + 2*u, a, th, V(PT), t0, t1)
                par += ['v_mul_f32 %s, %s, %s' % (V(th), V(lr), V(lr)), 'v_fmac_f32 %s, %s, %s' % (V(th), V(li), V(li)),
                        'v_rcp_f32 %s, %s' % (V(th), V(th)), 'v_add_f32 %s, -1.0, %s' % (V(a), V(l1)),
                        'v_mul_f32 %s, %s, %s' % (V(t0), V(l1), V(l1)), 'v_mul_f32 %s, %s, %s' % (V(t1), V(l1), V(l1+1)),
                        'v_mul_f32 %s, %s, %s' % (V(cf), V(a), V(lr)), 'v_add_f32 %s, %s, %s' % (V(th), V(th), V(th)),
                        'v_fmac_f32 %s, %s, %s' % (V(cf), V(l1+1), V(li)), 'v_mul_f32 %s, %s, %s' % (V(cf+1), V(l1+1), V(lr)),
                        'v_fma_f32 %s, -%s, %s, %s' % (V(cf+1), V(a), V(li), V(cf+1)),
                        'v_mul_f32 %s, %s, %s' % (V(cf), V(cf), V(th)), 'v_mul_f32 %s, %s, %s' % (V(cf+1), V(cf+1), V(th)),
                        'v_fma_f32 %s, -%s, %s, %s' % (V(t0), V(l1+1), V(l1+1), V(t0)), 'v_add_f32 %s, %s, %s' % (V(t1), V(t1), V(t1)),
                        'v_mul_f32 %s, %s, %s' % (V(l4), V(t0), V(t0)), 'v_mul_f32 %s, %s, %s' % (V(l4+1), V(t0), V(t1)),
                        'v_fma_f32 %s, -%s, %s, %s' % (V(l4), V(t1), V(t1), V(l4)), 'v_add_f32 %s, %s, %s' % (V(l4+1), V(l4+1), V(l4+1))]
            else:
                par += self.cpow(L8, a, th, '0x41000000', t0, t1) + self.cpow(L128, a, th, '0x43000000', t0, t1)
                par += ['v_sub_f32 %s, 0, %s' % (V(L8+2), V(L8+1)), 'v_sub_f32 %s, 0, %s' % (V(nL128), V(L128+1)),
                        'v_mul_u32_u24 %s, 640, %s' % (V(PT), V(vGrp)), 'v_cvt_f32_u32 %s, %s' % (V(PT), V(PT))]
                par += self.cpow(LK, a, th, V(PT), t0, t1)

        mains = []; fixed = []
        tokF = {}
        def rd_b(f_):
            sg, s, up = f_ // 20, (f_ % 20)//10, f_ % 10
            u, part = up // 2, up % 2
            def f():
                if cfg.get('s_nord'): tokF[f_] = None; return
                tokF[f_] = g('ds_read_b128 %s, %s offset:%d' % (A(aBF + 4*(f_ % NF), 4), V(vBr[2*((sg % 4)//2) + s]), (sg % 2)*20480 + (part*80 + 16*u)*128))
            return F(f)
        def bar(sg):
            def f():
                g.wait(tokS[sg], tokF.get(20*sg-1) if (SL == 3 and sg + SL <= 9) else None)
                g('s_barrier')
                if sg == 0: self.stamp(2)
                if sg in (2, 4, 6, 8, 9): self.stamp(20 + (2, 4, 6, 8, 9).index(sg), lvl=3)
                if cfg.get('allbar') and sg > 0: self.stamp(19 + sg)
            return F(f, 8)
        for n in range(400):
            f_, m = n // 2, n % 2
            kk, up = f_ // 10, f_ % 10
            u, part = up // 2, up % 2
            d = acc(u, part, 4*m)
            c = '0' if kk == 0 else V(d, 4)
            mains.append(('v_mfma_f32_16x16x32_bf16 %s, %s, %s, %s' % (V(d, 4), A(aXF + 8*(kk % 2) + 4*m, 4), A(aBF + 4*(f_ % NF), 4), c),
                          (lambda f_=f_: [tokF[min(f_+WE-1, 199)]]) if (m == 0 and f_ % WE == 0) else None))
        endb = {}
        for sg in range(10):
            p = 40*sg - 2*LA
            fixed.append((p - 1.5, bar(sg)))
            if sg + SL <= 9:
                d = dma(sg+SL)
                if sg == 0 and UP < SL: d = dma(2) + d
                stp = 36.0/len(d) if len(d) > 12 else 2
                for i, f in enumerate(d): fixed.append((p + 1 + stp*i, f))
                endb[sg] = p + 1 + stp*len(d)
        for f_ in range(200):
            pos = 40*(f_//20) - 2*LA + RS*(f_ % 20)
            if f_ % 10 == 0:
                kk = f_//10; sg, s = kk // 2, kk % 2
                for m in range(2):
                    fixed.append((max(pos - 1, 20*kk - 19) + 0.1*m, 'ds_read_b128 %s, %s offset:%d' % (A(aXF + 8*(kk % 2) + 4*m, 4), V(vXr[s]), (sg % 4)*4096 + 2048*m)))
            fixed.append((pos, rd_b(f_)))
        pla = cfg.get('s_pla', 1)
        if pla >= 0:
            for i, f in enumerate(parld): fixed.append((endb[pla] + 0.5*i, f))
        b2 = [] if cfg.get('s_nob2') else self.b2_loads(0, range(10))
        pc = cfg.get('s_pc', 400); nb_in = cfg.get('s_b2in', 20) if pc < 400 else 0
        fixed.append((pc - 40, F(lambda: self.pack_poll_issue(vPp, vPd))))
        if pc < 400: fixed.append((pc, F(lambda: self.pack_poll_check(vPp, vPd), 20)))
        streams = [Stream(b2[:nb_in], pc + 1, 398, paced=True, slack=4),
                   Stream(setup + self.line_addr(WS_HFLAG, vFa), 40 if pla >= 0 else 0, 200 if pla >= 0 else cfg.get('s_pe', 100)), Stream(self.xd_loads(PT + 5), cfg.get('s_xd', 270), 340), (Stream(par, 40*(pla+3), 392) if pla >= 0 else Stream(par, 0, cfg.get('s_pe', 100)))]
        b2 = b2[nb_in:]
        if cfg.get('s_nomf'): mains = [('s_nop 0', None)]*400; fixed = [f for f in fixed if not (isinstance(f[1], str) and 'ds_read' in f[1])]
        if cfg.get('s_nostream'): streams = [streams[0]]
        sched(g, mains, 8, fixed, streams, report=self.rep and 'ssm')
        self.stamp(3)

        pace = cfg.get('s_pace', 144)
        II, EB, EM = 160, 180, 200
        pr = lambda u, part, k: ACC + 16*u + 8*part + 2*k
        ops = []
        for k in range(1, 4):
            src = lambda u, part: (pr(u, part, 0) if k == 1 else (II if k == 2 else EB) + 4*u + 2*part)
            dst = lambda u, part: (EB if k == 2 else II) + 4*u + 2*part
            for u in range(5):
                ops += [pk('fma', dst(u, 0), L1+2*u, 0, src(u, 0), pr(u, 0, k)), pk('fma', dst(u, 1), L1+2*u, 0, src(u, 1), pr(u, 1, k))]
            for u in range(5):
                ops += [pk('fma', dst(u, 0), L1+2*u, 1, src(u, 1), dst(u, 0), True), pk('fma', dst(u, 1), L1+2*u, 1, src(u, 0), dst(u, 1))]
        for u in range(5):
            ops += ['v_fma_f32 %s, %s, %s, %s' % (V(EM+2*u), V(L4+2*u), V(II+4*u), V(II+4*u+1)),
                    'v_fma_f32 %s, %s, %s, %s' % (V(EM+2*u+1), V(L4+2*u), V(II+4*u+2), V(II+4*u+3))]
        for u in range(5):
            ops += ['v_fma_f32 %s, -%s, %s, %s' % (V(EM+2*u), V(L4+2*u+1), V(II+4*u+2), V(EM+2*u)),
                    'v_fmac_f32 %s, %s, %s' % (V(EM+2*u+1), V(L4+2*u+1), V(II+4*u)),
                    'ds_write_b64 %s, %s offset:%d' % (V(vT[2]), V(EM + 2*u, 2), 128*u)]
        ops.append(F(lambda: (self.cst(17), g.waitcnt(lg=0), g('s_barrier'), self.cst(18))))
        P = BIG + 20
        for s in range(16): ops.append('ds_read_b64 %s, %s offset:%d' % (V(P + 2*s, 2), V(vT[4]), 640*s))
        ops += ['v_mov_b32 %s, %s' % (V(P+32), S(sNonce)), 'v_mov_b32 %s, %s' % (V(P+33), S(sNonce))]
        for s in range(1, 16):
            a, b = P + 2*s, P + 2*(s-1)
            ops += ['v_fmac_f32 %s, %s, %s' % (V(a), V(L8), V(b)), 'v_fmac_f32 %s, %s, %s' % (V(a+1), V(L8), V(b+1)),
                    'v_fmac_f32 %s, %s, %s' % (V(a), V(L8+2), V(b+1)), 'v_fmac_f32 %s, %s, %s' % (V(a+1), V(L8+1), V(b))]
        ops.append('buffer_store_dwordx4 %s, %s, %s, %s offen sc1' % (V(P+30, 4), V(vT[5]), S(sWS, 4), S(sCo)))
        if pc < 400: b2 = mix(g, ops, b2, every=cfg.get('s_pace1', 72))
        else: g.do(ops)
        self.stamp(4)
        ops = ['v_mov_b32 %s, 0' % V(vT[6]), 'v_mov_b32 %s, 0' % V(vT[7]), 'ds_write_b64 %s, %s' % (V(vT[4]), V(vT[6], 2)),
               'ds_write_b64 %s, %s offset:10240' % (V(vT[4]), V(vT[6], 2))]
        for s in range(1, 16): ops.append('ds_write_b64 %s, %s offset:%d' % (V(vT[4]), V(P + 2*(s-1), 2), 640*s))
        g.do(ops)
        self.cst(11)
        GQ = [180 + 4*i for i in range(10)]
        GX = lambda i: GQ[i//4] + i % 4
        GW = lambda i: GQ[5 + i//4] + i % 4
        gate_ld = ['s_lshl_b32 %s, %s, 3' % (S(sT0), S(sC1)), 's_add_u32 %s, %s, %s' % (S(sT0), S(sT0), S(sJ1)),
              's_lshl_b32 %s, %s, 4' % (S(sT0), S(sT0)),
              'v_lshrrev_b32 %s, 4, v0' % V(vT[8]), 'v_add_u32 %s, %s, %s' % (V(vT[8]), S(sT0), V(vT[8])),
              'v_and_b32 %s, 15, %s' % (V(vT[0]), V(vLane)), 'v_lshlrev_b32 %s, 4, %s' % (V(vT[0]), V(vT[0])),
              'v_mul_u32_u24 %s, 1280, %s' % (V(vT[1]), V(vT[8])), 'v_add_u32 %s, %s, %s' % (V(vT[1]), V(vT[1]), V(vT[0]))]
        for i in range(5):
            gate_ld.append('buffer_load_dwordx4 %s, %s, %s, 0 offen offset:%d' % (V(GQ[i], 4), V(vT[1]), S(sX, 4), 256*i))
            gate_ld.append('global_load_dwordx4 %s, %s, %s offset:%d' % (V(GQ[5+i], 4), V(vT[0]), S(pGate, 2), 256*i))
        TT = 16
        Z = TT + 8; ONE = TT + 9
        ops = ['v_mov_b32 %s, 0' % V(Z), 'v_mov_b32 %s, 0x3f803f80' % V(ONE), 's_mov_b32 %s, 0xffff0000' % S(sT1)]
        for i in range(20):
            x, w = V(GX(i)), V(GW(i))
            a, b, c, d = (V(TT + k + 4*(i % 2)) for k in range(4))
            ops += ['v_lshlrev_b32 %s, 16, %s' % (a, x), 'v_and_b32 %s, %s, %s' % (b, S(sT1), x),
                    'v_lshlrev_b32 %s, 16, %s' % (c, w), 'v_and_b32 %s, %s, %s' % (d, S(sT1), w),
                    'v_mul_f32 %s, %s, %s' % (a, a, c), 'v_mul_f32 %s, %s, %s' % (b, b, d),
                    'v_cvt_pk_bf16_f32 %s, %s, %s' % (a, a, b),
                    'v_dot2_f32_bf16 %s, %s, %s, %s' % (V(Z), a, V(ONE), V(Z))]
        for k in (8, 4, 2, 1):
            ops.append('v_add_f32_dpp %s, %s, %s row_ror:%d row_mask:0xf bank_mask:0xf' % (V(Z), V(Z), V(Z), k))
        G4 = 32
        ops += ['v_cvt_pk_bf16_f32 %s, %s, %s' % (V(Z), V(Z), V(Z)), 'v_lshlrev_b32 %s, 16, %s' % (V(Z), V(Z)),
                'v_mul_f32 %s, 0x%x, %s' % (V(Z), NLOG2E, V(Z)), 'v_exp_f32 %s, %s' % (V(Z), V(Z)),
                'v_mov_b32 %s, %s' % (V(G4+1), S(sNonce)),
                'v_add_f32 %s, 1.0, %s' % (V(Z), V(Z)), 'v_rcp_f32 %s, %s' % (V(Z), V(Z)),
                'v_mov_b32 %s, %s' % (V(G4+3), S(sNonce)),
                'v_cvt_pk_bf16_f32 %s, %s, %s' % (V(Z), V(Z), V(Z)), 'v_lshlrev_b32 %s, 16, %s' % (V(G4), V(Z)),
                'v_sub_f32 %s, 1.0, %s' % (V(ONE), V(G4)),
                'v_cvt_pk_bf16_f32 %s, %s, %s' % (V(ONE), V(ONE), V(ONE)), 'v_lshlrev_b32 %s, 16, %s' % (V(G4+2), V(ONE)),
                'v_lshlrev_b32 %s, 4, %s' % (V(vT[8]), V(vT[8])), 'v_add_u32 %s, %d, %s' % (V(vT[8]), WS_GATE, V(vT[8])),
                'buffer_store_dwordx4 %s, %s, %s, 0 offen sc1' % (V(G4, 4), V(vT[8]), S(sWS, 4))]
        gate_ops = ops
        ops = []
        TT = 150
        for u in range(5):
            cf = CF + 2*u
            for k0 in (0, 2):
                for k in (k0, k0+1): ops.append(pk('mul', TT + 2*(k % 2), cf, 1, pr(u, 0, k)))
                for k in (k0, k0+1): ops.append(pk('mul', pr(u, 0, k), cf, 0, pr(u, 0, k)))
                for k in (k0, k0+1): ops.append(pk('fma', pr(u, 0, k), cf, 1, pr(u, 1, k), pr(u, 0, k), True))
                for k in (k0, k0+1): ops.append(pk('fma', pr(u, 1, k), cf, 0, pr(u, 1, k), TT + 2*(k % 2)))
            ops += ['v_mul_f32 %s, %s, %s' % (V(II+4*u+1), V(cf), V(II+4*u)), 'v_mul_f32 %s, %s, %s' % (V(II+4*u+3), V(cf), V(II+4*u+2)),
                    'v_fma_f32 %s, -%s, %s, %s' % (V(II+4*u+1), V(cf+1), V(II+4*u+2), V(II+4*u+1)),
                    'v_fmac_f32 %s, %s, %s' % (V(II+4*u+3), V(cf+1), V(II+4*u))]
        coef_ops = ops
        vGa, vTe, GR = 140, 145, 180
        ops = ['v_mul_u32_u24 %s, 5, %s' % (V(vGrp), V(vGrp)), 'v_sub_u32 %s, %s, %s' % (V(vGrp), S(sC1), V(vGrp)),
               ['v_cmp_gt_u32 vcc, 60, %s' % V(vLane), 'v_cndmask_b32 %s, 0, %s, vcc' % (V(vGrp), V(vGrp))],
               'v_mul_i32_i24 %s, 1280, %s' % (V(vT[0]), V(vGrp)), 'v_add_u32 %s, %s, %s' % (V(vT[0]), V(vT[0]), V(vT[5])),
               'v_mov_b32 %s, 0x7f000000' % V(vT[1])]
        for i in range(5):
            ops += ['v_subrev_u32 %s, %d, %s' % (V(vGa+i), 1280*(i+1), V(vT[0])),
                    ['v_cmp_lt_i32 vcc, %d, %s' % (i, V(vGrp)), 'v_cndmask_b32 %s, %s, %s, vcc' % (V(vGa+i), V(vT[1]), V(vGa+i)),
                     'v_cndmask_b32 %s, 0, %s, vcc' % (V(vTe+i), V(vFd))]]
        nc = cfg.get('s_gat', 20)
        g.do(ops + coef_ops[:nc])
        self.stamp(5)
        def gather():
            for i in range(5):
                g('buffer_load_dwordx3 %s, %s, %s, 0 offen sc1' % (V(GR + 4*i, 3), V(vGa+i), S(sWS, 4)))
        def gcheck():
            for i in range(4, -1, -1):
                g('v_xor_b32 %s, %s, %s' % (V(vT[0] if i == 4 else vT[1]), V(vTe+i), V(GR + 4*i + 2)))
                if i < 4: g('v_or_b32 %s, %s, %s' % (V(vT[0]), V(vT[0]), V(vT[1])))
            g('v_cmp_ne_u32 vcc, 0, %s' % V(vT[0]))
            g('s_nop 0')
            g('s_cmp_eq_u64 vcc, 0')
        if pc >= 400: self.pack_poll_check(vPp, vPd)
        gather()
        b2 = mix(g, coef_ops[nc:], b2, every=cfg.get('s_pace3', 72))
        g('v_and_b32 %s, 15, %s' % (V(vT[6]), V(vLane)))
        g('v_mul_u32_u24 %s, 80, %s' % (V(vT[6]), V(vT[6])))
        g('v_lshrrev_b32 %s, 4, %s' % (V(vT[7]), V(vLane)))
        g('v_lshl_add_u32 %s, %s, 4, %s' % (V(vT[6]), V(vT[7]), V(vT[6])))
        g('v_add_u32 %s, %s, %s' % (V(vT[6]), S(sMx), V(vT[6])))
        g('v_bfe_u32 %s, %s, 2, 2' % (V(vT[8]), V(vLane)))
        g('v_lshl_add_u32 %s, %s, 3, %s' % (V(vT[7]), V(vT[7]), V(vT[8])))
        g('v_mul_u32_u24 %s, 80, %s' % (V(vT[7]), V(vT[7])))
        g('v_and_b32 %s, 3, %s' % (V(vT[8]), V(vLane)))
        g('v_lshl_add_u32 %s, %s, 3, %s' % (V(vT[7]), V(vT[8]), V(vT[7])))
        g('v_add_u32 %s, %s, %s' % (V(vT[7]), S(sMx), V(vT[7])))
        self.cst(12)
        self.poll('carry', gather, gcheck)
        self.stamp(6)
        ops = []
        for d in range(4, 0, -1):
            a, b = GR + 4*(d-1), GR + 4*d
            ops += ['v_fmac_f32 %s, %s, %s' % (V(a), V(L128), V(b)), 'v_fmac_f32 %s, %s, %s' % (V(a+1), V(L128), V(b+1)),
                    'v_fmac_f32 %s, %s, %s' % (V(a), V(nL128), V(b+1)), 'v_fmac_f32 %s, %s, %s' % (V(a+1), V(L128+1), V(b))]
        ops += ['v_mul_f32 %s, %s, %s' % (V(GR+4), V(LK), V(GR)), 'v_mul_f32 %s, %s, %s' % (V(GR+5), V(LK), V(GR+1)),
                'v_fma_f32 %s, -%s, %s, %s' % (V(GR+4), V(LK+1), V(GR+1), V(GR+4)), 'v_fmac_f32 %s, %s, %s' % (V(GR+5), V(LK+1), V(GR)),
                'ds_add_f32 %s, %s offset:10240' % (V(vT[4]), V(GR+4)), 'ds_add_f32 %s, %s offset:10244' % (V(vT[4]), V(GR+5))]
        ops.append(F(lambda: (g.waitcnt(lg=0), g('s_barrier'))))
        SS, PP = 200, 210
        for u in range(5):
            ops.append('ds_read_b64 %s, %s offset:%d' % (V(SS + 2*u, 2), V(vT[3]), 10240 + 128*u))
            ops.append('ds_read_b64 %s, %s offset:%d' % (V(PP + 2*u, 2), V(vT[2]), 128*u))
        b2 = mix(g, ops, b2, every=pace)
        self.cst(13)
        ops = []
        for u in range(5):
            ops += ['v_fmac_f32 %s, %s, %s' % (V(PP+2*u), V(L8S+2*u), V(SS+2*u)), 'v_fmac_f32 %s, %s, %s' % (V(PP+2*u+1), V(L8S+2*u), V(SS+2*u+1))]
        for u in range(5):
            ops += ['v_fma_f32 %s, -%s, %s, %s' % (V(PP+2*u), V(L8S+2*u+1), V(SS+2*u+1), V(PP+2*u)), 'v_fmac_f32 %s, %s, %s' % (V(PP+2*u+1), V(L8S+2*u+1), V(SS+2*u))]
        for u in range(5):
            ops += ['v_mul_f32 %s, %s, %s' % (V(II+4*u), V(CF+2*u), V(PP+2*u)), 'v_mul_f32 %s, %s, %s' % (V(II+4*u+2), V(CF+2*u), V(PP+2*u+1))]
        for u in range(5):
            ops += ['v_fma_f32 %s, -%s, %s, %s' % (V(II+4*u), V(CF+2*u+1), V(PP+2*u+1), V(II+4*u)), 'v_fmac_f32 %s, %s, %s' % (V(II+4*u+2), V(CF+2*u+1), V(PP+2*u))]
        for u in range(5):
            ops += ['v_fmac_f32 %s, %s, %s' % (V(II+4*u+1), V(L4+2*u), V(II+4*u)), 'v_fmac_f32 %s, %s, %s' % (V(II+4*u+3), V(L4+2*u), V(II+4*u+2))]
        for u in range(5):
            ops += ['v_fma_f32 %s, -%s, %s, %s' % (V(II+4*u+1), V(L4+2*u+1), V(II+4*u+2), V(II+4*u+1)), 'v_fmac_f32 %s, %s, %s' % (V(II+4*u+3), V(L4+2*u+1), V(II+4*u))]
        PKB = [106, 140]
        FRB = [148, 116]
        def scan_ops(us):
            o = []
            for k in range(4):
                pv = lambda u, part: (II + 4*u + 2*part if k == 0 else pr(u, part, k-1))
                for u in us:
                    o += [pk('fma', pr(u, 0, k), L1+2*u, 0, pv(u, 0), pr(u, 0, k)), pk('fma', pr(u, 1, k), L1+2*u, 0, pv(u, 1), pr(u, 1, k))]
                for u in us:
                    o += [pk('fma', pr(u, 0, k), L1+2*u, 1, pv(u, 1), pr(u, 0, k), True), pk('fma', pr(u, 1, k), L1+2*u, 1, pv(u, 0), pr(u, 1, k))]
            return o
        tp = lambda i: (0, 4, 1, 5)[i]
        def out_a(u):
            o = []
            pk = PKB[u % 2]
            for i in range(4): o.append('v_cvt_pk_bf16_f32 %s, %s, %s' % (V(pk+i), V(acc(u, 0, tp(i))), V(acc(u, 0, tp(i)+2))))
            o.append('ds_write_b128 %s, %s offset:%d' % (V(vT[6]), V(pk, 4), 2560*u))
            for i in range(4): o.append('v_cvt_pk_bf16_f32 %s, -%s, -%s' % (V(pk+4+i), V(acc(u, 1, tp(i))), V(acc(u, 1, tp(i)+2))))
            o.append('ds_write_b128 %s, %s offset:%d' % (V(vT[6]), V(pk+4, 4), 2560*u + 1280))
            fr = FRB[u % 2]
            for m in range(2):
                for e in range(2):
                    o.append('ds_read_b64_tr_b16 %s, %s offset:%d' % (V(fr + 4*m + 2*e, 2), V(vT[7]), 2560*u + 320*e + 32*m))
            return o
        def out_b(u):
            fr = FRB[u % 2]
            def f():
                for m in range(2):
                    self.tH = g('buffer_store_dwordx4 %s, %s, %s, 0 offen offset:%d%s' % (V(fr + 4*m, 4), V(vHs), S(sH, 4), 1024*m, cfg.get('hst', ' sc1')))
                g('v_add_u32 %s, %d, %s' % (V(vHs), HKS, V(vHs)))
            return F(f, 12)
        def ilv(a, b):
            o = []; k = 0
            for i, x in enumerate(a):
                o.append(x)
                while k < len(b) and k*len(a) < (i+1)*len(b): o.append(b[k]); k += 1
            return o
        ops += scan_ops([0, 1]) + out_a(0) + gate_ld + ilv(scan_ops([2]), out_a(1)) + [out_b(0)] \
            + ilv(scan_ops([3]), out_a(2)) + [out_b(1)] + ilv(scan_ops([4]), out_a(3)) + [out_b(2)] + out_a(4) + [out_b(3)] + self.hp_addr(0) + [out_b(4)]
        rest = mix(g, ops, b2, every=pace)
        tH = self.tH
        self.cst(14)
        rest = mix(g, gate_ops + self.p2_setup(0) + self.xd_ops(self.RXA), rest, every=cfg.get('s_pace2', 144), lead=1000)
        self.cst(15)
        self.hflag(0, 0, tH)
        self.stamp(7)
        n2 = cfg.get('s_b2post', 0)
        while any(3 + 4*i > 20*((50 - len(rest) + n2 + i)//5) - 30 for i in range(len(rest) - n2)): n2 += 1
        self.hpoll(0, 0)
        g.do(rest[:n2])
        self.phase2(0, rest[n2:], None)

    RD, XD, GA, GB = 160, 192, 212, 222
    RXA, RXB, DS = 222, 232, 242
    vGr, T = 160, 180
    vHp, vHd, vRw, vXf = 4, 5, 6, 252
    vRd = [7, 8, 9, 10, 11]; vOa = [12, 13, 14, 15, 0]
    def hp_addr(self, role):
        vHp, vHd = self.vHp, self.vHd
        return ['s_and_b32 %s, %s, 0x63' % (S(sT0), S(sIdx)), 's_lshl_b32 %s, %s, 3' % (S(sT1), S(sWave)),
                's_add_u32 %s, %s, %s' % (S(sT0), S(sT0), S(sT1)), 's_lshl_b32 %s, %s, %d' % (S(sT0), S(sT0), self.fg),
                's_add_u32 %s, %s, %d' % (S(sT0), S(sT0), WS_HFLAG + role*(128 << self.fg)),
                'v_bfe_u32 %s, %s, 2, 1' % (V(vHp), V(vLane)), 'v_lshlrev_b32 %s, %d, %s' % (V(vHp), self.fg + 2, V(vHp)),
                'v_and_b32 %s, 3, %s' % (V(vHd), V(vLane)), 'v_lshl_add_u32 %s, %s, %d, %s' % (V(vHp), V(vHd), self.fw, V(vHp)),
                'v_add_u32 %s, %s, %s' % (V(vHp), S(sT0), V(vHp))]
    def hp(self, off=0): self.g('buffer_load_dword %s, %s, %s, 0 offen sc1' % (V(self.vHd), V(self.vHp), S(sWS, 4)))
    def gload(self, role, q, h):
        return 'buffer_load_dwordx2 %s, %s, %s, 0 offen offset:%d sc1' % (V((self.GA if h == role else self.GB) + 2*q, 2), V(self.vGr + q), S(sWS, 4), 1024*h)

    def p2_setup(self, role):
        T, vRd, vOa, vGr, vRw, DS, RXA, RXB = self.T, self.vRd, self.vOa, self.vGr, self.vRw, self.DS, self.RXA, self.RXB
        sXo, sXi, sM = sItem, sMx, sMw
        ops = ['s_lshl_b32 %s, %s, 3' % (S(sT0), S(sC1)), 's_add_u32 %s, %s, %s' % (S(sT0), S(sT0), S(sWave)),
               's_lshl_b32 %s, %s, 4' % (S(sT0), S(sT0)),
               's_mul_i32 %s, %s, 160' % (S(sT1), S(sJ1)), 's_mul_i32 %s, %s, 5440' % (S(sT2), S(sWave)),
               's_mov_b32 %s, 0xffff0000' % S(sM), 's_mov_b32 %s, 81920' % S(sT3)]
        gload = lambda q, h: self.gload(role, q, h)
        for q in range(5):
            e, row, ch, t3 = V(T), V(T+1), V(T+2), V(T+3)
            ops += ['v_add_u32 %s, %d, %s' % (e, 64*q, V(vLane)),
                    'v_mul_u32_u24 %s, 3277, %s' % (row, e), 'v_lshrrev_b32 %s, 16, %s' % (row, row),
                    'v_mul_u32_u24 %s, 20, %s' % (ch, row), 'v_sub_u32 %s, %s, %s' % (ch, e, ch),
                    'v_lshrrev_b32 %s, 2, %s' % (t3, ch), 'v_mul_u32_u24 %s, 1088, %s' % (V(vRd[q]), t3),
                    'v_and_b32 %s, 3, %s' % (t3, ch), 'v_mul_u32_u24 %s, 272, %s' % (t3, t3),
                    'v_add3_u32 %s, %s, %s, %s' % (V(vRd[q]), V(vRd[q]), t3, S(sT2)),
                    'v_lshl_add_u32 %s, %s, 4, %s' % (V(vRd[q]), row, V(vRd[q])),
                    'v_add_u32 %s, %s, %s' % (row, S(sT0), row),
                    'v_lshl_add_u32 %s, %s, 3, %s' % (ch, ch, S(sT1)),
                    'v_mul_u32_u24 %s, 1280, %s' % (e, row), 'v_add_u32 %s, %s, %s' % (e, e, ch)]
            if role == 0: ops.append('v_add_u32 %s, %s, %s' % (e, S(sT3), e))
            ops += ['v_lshlrev_b32 %s, 1, %s' % (V(vOa[q]), e),
                    'v_lshlrev_b32 %s, 4, %s' % (row, row), 'v_add_u32 %s, %d, %s' % (V(vGr + q), WS_GATE + 8*role, row)]
        ops += ['s_mul_i32 %s, %s, 21760' % (S(sT0), S(sWave)),
                'v_lshrrev_b32 %s, 4, %s' % (V(vRw), V(vLane)), 'v_mul_u32_u24 %s, 272, %s' % (V(vRw), V(vRw)),
                'v_and_b32 %s, 15, %s' % (V(T+1), V(vLane)), 'v_lshl_add_u32 %s, %s, 4, %s' % (V(vRw), V(T+1), V(vRw)),
                'v_add_u32 %s, %s, %s' % (V(vRw), S(sT0), V(vRw)),
                's_lshl_b32 %s, %s, 2' % (S(sT0), S(sIdx)), 's_add_u32 %s, %s, %s' % (S(sT0), S(sT0), S(sWave)),
                's_mul_i32 %s, %s, 5120' % (S(sT0), S(sT0)),
                's_add_u32 %s, %s, 0x%x' % (S(sXo), S(sT0), WS_X + role*128*20480), 's_add_u32 %s, %s, 0x%x' % (S(sXi), S(sT0), WS_X + (1-role)*128*20480)]
        ops += self.line_addr(WS_XFLAG, self.vXf)
        return ops

    def xd_ops(self, RX):
        T, DS, XD, sM = self.T, self.DS, self.XD, sMw
        o = []
        for q in range(5):
            for h in range(2):
                x, d = V(RX + 2*q + h), V(DS + 2*q + h)
                a, b, c, dd = V(T), V(T+1), V(T+2), V(T+3)
                o += ['v_lshlrev_b32 %s, 16, %s' % (a, x), 'v_and_b32 %s, %s, %s' % (b, S(sM), x),
                      'v_lshlrev_b32 %s, 16, %s' % (c, d), 'v_and_b32 %s, %s, %s' % (dd, S(sM), d),
                      'v_mul_f32 %s, %s, %s' % (a, a, c), 'v_mul_f32 %s, %s, %s' % (b, b, dd),
                      'v_cvt_pk_bf16_f32 %s, %s, %s' % (a, a, b),
                      'v_lshlrev_b32 %s, 16, %s' % (V(XD + 4*q + 2*h), a), 'v_and_b32 %s, %s, %s' % (V(XD + 4*q + 2*h + 1), S(sM), a)]
        return o

    def xd_loads(self, T):
        o = ['s_lshl_b32 %s, %s, 3' % (S(sT3), S(sC1)), 's_add_u32 %s, %s, %s' % (S(sT3), S(sT3), S(sWave)),
             's_lshl_b32 %s, %s, 4' % (S(sT3), S(sT3)), 's_mul_i32 %s, %s, 160' % (S(sT1), S(sJ1)), 's_mov_b32 %s, 81920' % S(sT0)]
        for q in range(5):
            e, row, ch = V(T), V(T+1), V(T+2)
            o += ['v_add_u32 %s, %d, %s' % (e, 64*q, V(vLane)),
                  'v_mul_u32_u24 %s, 3277, %s' % (row, e), 'v_lshrrev_b32 %s, 16, %s' % (row, row),
                  'v_mul_u32_u24 %s, 20, %s' % (ch, row), 'v_sub_u32 %s, %s, %s' % (ch, e, ch),
                  'v_add_u32 %s, %s, %s' % (row, S(sT3), row), 'v_lshl_add_u32 %s, %s, 3, %s' % (ch, ch, S(sT1)),
                  'v_mul_u32_u24 %s, 1280, %s' % (e, row), 'v_add_u32 %s, %s, %s' % (e, e, ch),
                  'global_load_dwordx2 %s, %s, %s' % (V(self.DS + 2*q, 2), ch, S(pDsk, 2)),
                  'buffer_load_dwordx2 %s, %s, %s, 0 offen' % (V(self.RXA + 2*q, 2), e, S(sX, 4)),
                  'buffer_load_dwordx2 %s, %s, %s, %s offen' % (V(self.RXB + 2*q, 2), e, S(sX, 4), S(sT0))]
        return o

    def phase2(self, role, b2rest, tH2):
        g = self.g; cfg = self.cfg
        tb, ta = tabs(role); NS = len(tb)
        hA, hB = (1, 0) if role else (0, 1)
        vHp, vHd, vRw, vRd, vOa, vXf, vXv = self.vHp, self.vHd, self.vRw, self.vRd, self.vOa, self.vXf, vFd
        RD, GA, GB, XD, RXB, DS, vGr, RXA, T = self.RD, self.GA, self.GB, self.XD, self.RXB, self.DS, self.vGr, self.RXA, self.T
        sXo, sXi, sM = sItem, sMx, sMw
        hp = lambda: self.hp(0)
        gload = lambda q, h: self.gload(role, q, h)
        def a2(n):
            half = hA if n < NS else hB
            return ['buffer_load_dwordx4 %s, %s, %s, %s offen offset:%d%s' % (V(A2R + 16*(n % 4) + 4*rt, 4), V(vL16b if half else vL16), S(sH, 4), S(ta[0 if cfg.get('x_a2same') else n % NS]), 1024*rt, cfg.get('a2sc', ' sc1')) for rt in range(4)]
        mains = []; fixed = []
        def tile(rt, nt): return ACC2 + 4*(rt*5 + nt)
        for n in range(2*NS):
            base = B2slot(role, n % NS)
            for rt in range(4):
                for nt in range(5):
                    c = '0' if n % NS == 0 else V(tile(rt, nt), 4)
                    mains.append(('v_mfma_f32_16x16x32_bf16 %s, %s, %s, %s' % (V(tile(rt, nt), 4), A(base + 4*nt, 4), V(A2R + 16*(n % 4) + 4*rt, 4), c), None))
        for n in range(2*NS - 3):
            for i, f in enumerate(a2(n+3)): fixed.append((20*n + 1 + 5*i, f))
        PA, PE = 20*NS, 40*NS
        for k, p in enumerate((20, 80, 140, PA, PA + 40, PA + 100, PA + 140, PE - 60)): fixed.append((p - 0.1, F(lambda k=k: self.stamp(11+k, lvl=3), 0)))
        self.cst(16)
        self.hcheck(role, 0)
        self.stamp(8)
        for n in range(3): g.do(a2(n))
        ops = []
        if role == 1:
            ops = self.p2_setup(1)
            fixed.append((cfg.get('f_l2', 6), F(lambda: self.hflag(1, 2, tH2), 20)))
            fixed.append((cfg.get('f_p1', 44), F(lambda: self.hpoll(1, 1), 8)))
            fixed.append((60.5, F(lambda: self.hcheck(1, 1), 20)))
            fixed.append((cfg.get('f_p2', 84), F(lambda: self.hpoll(1, 2), 8)))
            fixed.append((100.5, F(lambda: self.hcheck(1, 2), 20)))
        fixed.append((102, 'v_xor_b32 %s, %d, %s' % (V(vHp), 128 << self.fg, V(vXf))))
        fixed.append((cfg.get('p2bar', 150), 's_barrier'))
        nb0 = 5*NS - len(b2rest)
        for i, f in enumerate(b2rest):
            p = 3 + 4*i
            assert p <= 20*((nb0 + i)//5) - 30 or cfg.get('bad'), (role, i, p)
            fixed.append((p, f))
        xd_ops = self.xd_ops
        s0 = Stream(ops, 2, 99)
        fixed.append((101.5, F(lambda: s0.flush(g), 0)))
        def gall():
            for q in range(5):
                for h in range(2): g(gload(q, h))
        gl, gp = (60, 130) if role == 0 else (104, 160)
        for q in range(5):
            for h in range(2): fixed.append((gl + 5*q + 2*h, gload(q, h)))
        fixed.append((gp, F(lambda: (s0.flush(g), self.poll('gt', gall, self.check_eq([r + 2*q + 1 for q in range(5) for r in (GA, GB)], T+4, T+5))), 90)))
        streams = [s0]
        if role == 0:
            streams += [Stream(xd_ops(RXB), PA + 112, PE - 22)]
        for base in (PA, PE):
            for j in range(20):
                fixed.append((base - 15 + (1.65*j if base == PA else j), 'ds_write_b128 %s, %s offset:%d' % (V(vRw), V(ACC2 + 4*j, 4), 1088*j)))
        mb = PA + 24
        fixed.append((mb - 0.5, F(lambda: (g.waitcnt(lg=0), g('s_barrier')), 8)))
        def rds(q): return ['ds_read_b128 %s, %s offset:%d' % (V(RD + 16*(q % 2) + 4*src, 4), V(vRd[q]), 21760*src) for src in range(4)]
        for i, f in enumerate(rds(0) + rds(1)): fixed.append((mb + i, f))
        for q in range(5):
            p = mb + 12 + 13*q; r0 = RD + 16*(q % 2); o = []
            for src in range(4):
                for r in range(4):
                    if role == 1 and src == 0: continue
                    a = V(r0 + r) if (role == 1 and src == 1) else V(XD + 4*q + r)
                    o.append('v_add_f32 %s, %s, %s' % (V(XD + 4*q + r), a, V(r0 + 4*src + r)))
            nadd = len(o)
            for r in range(4): o.append('v_mul_f32 %s, %s, %s' % (V(XD + 4*q + r), V(GA + 2*q), V(XD + 4*q + r)))
            def st(q=q):
                self.tX = g('buffer_store_dwordx4 %s, %s, %s, %s offen offset:%d sc1' % (V(XD + 4*q, 4), V(vL16 if q < 4 else vL16b), S(sWS, 4), S(sXo), 1024*(q & 3)))
            o.append(F(st))
            for i, f in enumerate(o): fixed.append((p + i*0.55, f))
            if q + 2 < 5:
                for i, f in enumerate(rds(q+2)): fixed.append((p + nadd*0.55 + 0.1 + i, f))
        fixed.append((PA + 112, 's_barrier'))
        fixed.append((PA + cfg.get('xf_at', 150), F(lambda: (g.wait(self.tX), g('buffer_store_dword %s, %s, %s, 0 offen sc1' % (V(vXv), V(vXf), S(sWS, 4)))), 8)))
        xp = cfg.get('xp_at', 0)
        fixed.append((PE - xp - 30, F(hp)))
        if role == 1:
            U = 232
            def uload():
                for i in range(4):
                    g('s_mov_b32 %s, %d' % (S(sL1), (WS_PFLAG + (128 << self.fg) if i < 2 else WS_HFLAG) + (64 << self.fg)*(i & 1)))
                    g('buffer_load_dword %s, %s, %s, %s offen sc1' % (V(U+2+i), V(U+6), S(sPD, 4), S(sL1)))
            def ucheck():
                self.check_eq([U+2, U+3, U+4, U+5], U, U+1)()
                g('s_cselect_b32 %s, 0, %s' % (S(sL1), S(sPD+2)))
                g('s_cmp_eq_u32 %s, 0' % S(sL1))
            fixed.append((PA + 114, ['s_or_b32 %s, %s, %s' % (S(sL1), S(sWave), S(sIdx)), 's_cselect_b32 %s, 0, 0x%x' % (S(sPD+2), WS_SIZE)]))
            fixed.append((PA + 115, ['v_lshlrev_b32 %s, %d, %s' % (V(U+6), self.fg, V(vLane)), 'v_mov_b32 %s, 0' % V(U+7)]))
            fixed.append((PA + 117, F(uload, 32)))
            fixed.append((PA + 170, F(lambda: (self.poll('up', uload, ucheck), g('buffer_store_dword %s, %s, %s, 0 offen sc1' % (V(vXv), V(U+7), S(sPD, 4)))), 60)))
        def recv():
            self.poll('xf', hp, self.check_eq([vHd]))
            for q in range(5):
                g('buffer_load_dwordx4 %s, %s, %s, %s offen offset:%d sc1' % (V(RD + 4*q, 4), V(vL16 if q < 4 else vL16b), S(sWS, 4), S(sXi), 1024*(q & 3)))
        if xp > 0: fixed.append((PE - xp, F(recv, 40)))
        sched(g, mains, 8, fixed, streams, report=self.rep and 'p2')
        if xp <= 0: recv()
        self.stamp(9)
        g.waitcnt(lg=0)
        g('s_barrier')
        for q in range(5):
            for src in range(4):
                g('ds_read_b128 %s, %s offset:%d' % (V(ACC2 + 16*q + 4*src, 4), V(vRd[q]), 21760*src))
        osc = cfg.get('osc', '')
        for q in range(5):
            for src in range(4):
                for r in range(4):
                    if role == 1 and src == 0: continue
                    a = V(ACC2 + 16*q + r) if (role == 1 and src == 1) else V(XD + 4*q + r)
                    g('v_add_f32 %s, %s, %s' % (V(XD + 4*q + r), a, V(ACC2 + 16*q + 4*src + r)))
            for r in range(4):
                g('v_fmac_f32 %s, %s, %s' % (V(RD + 4*q + r), V(GB + 2*q), V(XD + 4*q + r)))
            g('buffer_store_dwordx4 %s, %s, %s, 0 offen%s' % (V(RD + 4*q, 4), V(vOa[q]), S(sOUT, 4), osc))
        self.finish(role)

    def finish(self, role):
        g = self.g
        if self.cfg.get('stamps'):
            g.waitall()
            self.stamp(10)
            self.stamp(31, 's_memtime')
            g('s_lshl_b32 %s, s2, 2' % S(sT0))
            g('s_add_u32 %s, %s, %s' % (S(sT0), S(sT0), S(sWave)))
            g('s_lshl_b32 %s, %s, 7' % (S(sT0), S(sT0)))
            g('s_add_u32 %s, %s, %d' % (S(sT0), S(sT0), WS_STAMP))
            g('v_lshlrev_b32 v4, 2, %s' % V(vLane))
            g('s_mov_b32 exec_hi, 0')
            g('buffer_store_dword %s, v4, %s, %s offen' % (V(vStamp), S(sWS, 4), S(sT0)))
        if role == 0: g.label('L_exit')
        g('s_endpgm')
        g.hist = []

    def post(self, txt):
        c = self.cfg; out = []
        for l in txt.split('\n'):
            if c.get('x_nox') and ('s[12:15], s90 offen' in l or 's[12:15], s91 offen' in l) and 'dwordx4' in l: l = l.replace('s[12:15]', 's[20:23]')
            if c.get('x_noh') and 'buffer_store_dwordx4' in l and 's[36:39]' in l: l = l.replace('s[36:39]', 's[20:23]')
            if c.get('x_nopk') and 'dwordx4' in l and ('s[24:27]' in l or 's[16:19]' in l or 's[20:23]' in l): l = l.replace('s[24:27]', 's[20:23]').replace('s[16:19]', 's[20:23]')
            if c.get('x_noout') and 's[28:31]' in l and 'store' in l: l = l.replace('s[28:31]', 's[20:23]')
            if (c.get('x_nox') or c.get('x_noh') or c.get('x_nopk') or c.get('x_noout')):
                if 's_mov_b32 s22, s18' in l: l = '    s_mov_b32 s22, 0'
                if l.startswith('L_ssm:'): l += '\n    s_mov_b32 s20, 0\n    s_mov_b32 s21, 0\n    s_mov_b32 s22, 0\n    s_mov_b32 s23, 0x20000'
            out.append(l)
        return '\n'.join(out)

    def build(self):
        g = self.g
        self.prologue()
        st = g.state()
        self.ffn()
        g.vm, g.lg, g.smem = list(st[0]), list(st[1]), list(st[2])
        self.ssm()
        g.raw('L_codeend:')
        for f in self.tail: f()
        hdr = open('gated_mix__ssm_conv_s5__dense_activation_silu__prompt.s.ref').read()
        top = hdr[:hdr.index('; Override launch geometry')]
        txt = top + '; Generated by a hand-written generator script (straight-line schedule, one fused launch).\n'
        txt += '; @launch grid=(256,1,1) block=(256,1,1) lds=163840\n'
        txt += '.amdgcn_target "amdgcn-amd-amdhsa--gfx950"\n.text\n.globl %s\n.p2align 8\n.type %s,@function\n%s:\n' % (KNAME, KNAME, KNAME)
        txt += self.post(g.text())
        txt += '''.section .rodata,"a"
.p2align 6
.amdhsa_kernel %s
  .amdhsa_next_free_vgpr 512
  .amdhsa_next_free_sgpr 102
  .amdhsa_accum_offset 256
  .amdhsa_group_segment_fixed_size 0
  .amdhsa_kernarg_size 128
  .amdhsa_user_sgpr_count 2
  .amdhsa_user_sgpr_kernarg_segment_ptr 1
  .amdhsa_system_sgpr_workgroup_id_x 1
.end_amdhsa_kernel
''' % KNAME
        return txt

def make(cfg=None):
    k = K(cfg or {})
    return k.build(), k

if __name__ == '__main__':
    import json
    cfg = json.loads(sys.argv[2]) if len(sys.argv) > 2 else {}
    cfg['report'] = 1
    txt, k = make(cfg)
    open(sys.argv[1], 'w').write(txt)
    print(k.g.stats, 'nops', k.g.nnop, 'bytes', len(txt))
```

```python
import sys
from asmgen import Gen, weave, sched, Stream, F, mix, cost

KNAME = 'gated_mix__ssm_conv_s5__dense_activation_silu__prompt_kernel'

WS_EPOCH = 0
WS_HFLAG = 0x50000
LVL = 131072
WS_GATE = 65536
WS_EBUF = 131072
WS_PFLAG = 0xb0000
WS_XFLAG = 0xe0000
WS_STAMP = 22 << 20
WS_B2 = 0x110000
WS_H = 5 << 20
WS_X = 16 << 20
WS_SIZE = 23 << 20
KST = 5120
MST = 88*KST
HKS = 8192
HMS = 88*HKS

F_WR = 81920
S_BR = 65536
L_PK = 147456
L_EX = 147456

sX, sW, sWS, sP1, sP2, sPD, sOUT, sB2, sH = 4, 8, 12, 16, 20, 24, 28, 32, 36
pX, pLre, pLim, pBre, pBim, pCre, pCim, pLdt, pDsk, pBx, pW1, pW2, pGate, pOut, pDbg, pWs = range(40, 72, 2)
sWave, sRole, sC1, sJ1, sIdx, sCo, sNonce, sRot = range(72, 80)
sKb = list(range(80, 90))
sItem, sMx, sMw, sWo = 90, 91, 92, 93
sPs = [94, 95, 96, 97]
sT0, sT1, sT2, sT3 = 98, 99, 100, 101
sT4 = 3
sKt = 79
sNl = 42
sWs2 = 93
sL1, sL2 = 64, 65
sKs = [40, 41, 46, 47, 48, 49, 50, 51, 52, 53, 58, 59, 60, 61, 62, 63, 66, 67, 68, 69, 70, 71]

vTid, vLane, vL16, vL16b = 0, 1, 2, 3
vT = list(range(4, 16))
vFa, vFd = 254, 253
ACC2 = 16
A2R = 96
vStamp = 255
def B2slot(role, i):
    if i < 4: return 160 + 20*i
    if role == 1: return 20*(i-4)
    return 80 + 20*(i-4) if i < 8 else 20*(i-8)
def tabs(role):
    if role == 1: return sKs[:12], sKs[12:] + [44, 45]
    return sKs[:10], sKs[10:20]
aPK = 240

def R(kind, base, n):
    return '%s%d' % (kind, base) if n == 1 else '%s[%d:%d]' % (kind, base, base+n-1)
def V(b, n=1): return R('v', b, n)
def A(b, n=1): return R('a', b, n)
def S(b, n=1): return R('s', b, n)

LOG2E = 0x3fb8aa3b
NLOG2E = 0xbfb8aa3b
INV2PI = 0x3e22f983

class K:
    def __init__(self, cfg):
        self.cfg = cfg
        self.g = Gen()
        self.tail = []
        self.rep = cfg.get('report')
        self.fw, self.fg, self.lv = {0: (2, 7, 16), 1: (7, 9, LVL), 2: (2, 7, LVL)}[cfg.get('fl', 1)]

    def stamp(self, idx, op='s_memrealtime', lvl=2):
        if idx in (0, 10, 30, 31): lvl = 1
        if self.cfg.get('stamps', 0) < lvl: return
        g = self.g
        if self.cfg.get('cyc'): op = 's_memtime'
        g(op + ' vcc'); g.waitcnt(lg=0)
        g('v_writelane_b32 %s, vcc_lo, %d' % (V(vStamp), idx))

    def cst(self, idx):
        if self.cfg.get('chain'): self.stamp(idx)
    def srd_ptr(self, d, ptr): return ['s_mov_b32 %s, %s' % (S(d), S(ptr)), 's_mov_b32 %s, %s' % (S(d+1), S(ptr+1))]
    def srd_cst(self, d, nrec): return ['s_mov_b32 %s, 0x%x' % (S(d+2), nrec), 's_mov_b32 %s, 0x20000' % S(d+3)]

    def poll(self, name, issue, check):
        g = self.g
        lr, lo = g.newlabel(name + '_retry'), g.newlabel(name + '_ok')
        check()
        g('s_cbranch_scc0 %s' % lr)
        g.label(lo)
        def retry():
            g.vm, g.lg, g.smem = [], [], []
            g.label(lr)
            g('s_mov_b32 %s, 0x%x' % (S(sT4), self.cfg.get('spin', 1 << 18)))
            ll = g.newlabel(name + '_loop')
            g.label(ll)
            g('s_sub_u32 %s, %s, 1' % (S(sT4), S(sT4)))
            g('s_cmp_eq_u32 %s, 0' % S(sT4))
            g('s_nop 7')
            g('s_cbranch_scc1 %s' % lo)
            if self.cfg.get('backoff', 0): g('s_sleep %d' % self.cfg['backoff'])
            g('s_waitcnt lgkmcnt(0)')
            issue()
            g.waitall()
            check()
            g('s_nop 7')
            g('s_cbranch_scc1 %s' % lo)
            g('s_branch %s' % ll)
        self.tail.append(retry)

    def check_eq(self, regs, t0=None, t1=None):
        g = self.g
        def f():
            if len(regs) == 1:
                g('v_cmp_ne_u32 vcc, %s, %s' % (S(sNonce), V(regs[0])))
            else:
                g('v_xor_b32 %s, %s, %s' % (V(t0), S(sNonce), V(regs[0])))
                for r in regs[1:]:
                    g('v_xor_b32 %s, %s, %s' % (V(t1), S(sNonce), V(r)))
                    g('v_or_b32 %s, %s, %s' % (V(t0), V(t0), V(t1)))
                g('v_cmp_ne_u32 vcc, 0, %s' % V(t0))
            g('s_nop 0')
            g('s_cmp_eq_u64 vcc, 0')
        return f

    def b2_loads(self, role, steps):
        out = []
        for step in steps:
            base = B2slot(role, step)
            for nt in range(5):
                va, off = (vL16, nt*1024) if nt < 4 else (vL16b, 0)
                out.append('buffer_load_dwordx4 %s, %s, %s, %s offen offset:%d sc1' % (A(base+4*nt, 4), V(va), S(sB2, 4), S(tabs(role)[0][0 if self.cfg.get('x_b2same') else step]), off))
        return out

    def ks_table(self, role):
        tb, ta = tabs(role); ns = len(tb)
        if role == 1:
            r, bs, r6 = ta[11], tb[11], tb[10]
            o = ['s_add_u32 %s, %s, %s' % (S(r), S(sC1), S(sJ1)), 's_mul_i32 %s, %s, 12' % (S(bs), S(sWave)),
                 's_mul_i32 %s, %s, 43' % (S(r6), S(r)), 's_lshr_b32 %s, %s, 8' % (S(r6), S(r6)),
                 's_mul_i32 %s, %s, 6' % (S(r6), S(r6)), 's_sub_u32 %s, %s, %s' % (S(r6), S(r), S(r6))]
            for n in range(12):
                if n < 6:
                    o += ['s_add_u32 %s, %s, %d' % (S(ta[n]), S(r6), n), 's_sub_u32 %s, %s, 6' % (S(sKt), S(ta[n])),
                          's_min_u32 %s, %s, %s' % (S(ta[n]), S(ta[n]), S(sKt)),
                          's_mul_i32 %s, %s, 11' % (S(sKt), S(ta[n])), 's_lshr_b32 %s, %s, 5' % (S(sKt), S(sKt)),
                          's_mul_i32 %s, %s, 3' % (S(sKt), S(sKt)), 's_add_u32 %s, %s, %s' % (S(ta[n]), S(ta[n]), S(sKt))]
                elif n < 8:
                    o += ['s_add_u32 %s, %s, %d' % (S(sKt), S(r), n), 's_and_b32 %s, %s, 1' % (S(sKt), S(sKt)),
                          's_mul_i32 %s, %s, 6' % (S(sKt), S(sKt)), 's_add_u32 %s, %s, 3' % (S(ta[n]), S(sKt))]
                else:
                    o += ['s_add_u32 %s, %s, %d' % (S(sKt), S(r), n), 's_and_b32 %s, %s, 1' % (S(ta[n]), S(sKt)),
                          's_and_b32 %s, %s, 2' % (S(sKt), S(sKt)), 's_mul_i32 %s, %s, 3' % (S(sKt), S(sKt)),
                          's_add_u32 %s, %s, %s' % (S(ta[n]), S(ta[n]), S(sKt)), 's_add_u32 %s, %s, 4' % (S(ta[n]), S(ta[n]))]
                o += ['s_add_u32 %s, %s, %s' % (S(ta[n]), S(ta[n]), S(bs)),
                      's_mul_i32 %s, %s, %d' % (S(tb[n]), S(ta[n]), KST), 's_lshl_b32 %s, %s, 13' % (S(ta[n]), S(ta[n]))]
            return o
        r, bs = ta[ns-1], tb[ns-1]
        o = ['s_and_b32 %s, %s, 3' % (S(sKt), S(sC1)), 's_mul_i32 %s, %s, 3' % (S(sKt), S(sKt)),
             's_add_u32 %s, %s, %s' % (S(sKt), S(sKt), S(sJ1)),
             's_sub_u32 %s, %s, %d' % (S(r), S(sKt), ns), 's_min_u32 %s, %s, %s' % (S(r), S(r), S(sKt)),
             's_mul_i32 %s, %s, %d' % (S(bs), S(sWave), ns)]
        if role == 0: o.append('s_add_u32 %s, %s, 48' % (S(bs), S(bs)))
        for n in range(ns):
            if n == 0: o.append('s_add_u32 %s, %s, %s' % (S(ta[n]), S(r), S(bs)))
            else:
                o += ['s_sub_u32 %s, %s, %d' % (S(sKt), S(r), ns-n), 's_add_u32 %s, %s, %d' % (S(ta[n]), S(r), n),
                      's_min_u32 %s, %s, %s' % (S(ta[n]), S(ta[n]), S(sKt)), 's_add_u32 %s, %s, %s' % (S(ta[n]), S(ta[n]), S(bs))]
            o += ['s_mul_i32 %s, %s, %d' % (S(tb[n]), S(ta[n]), KST), 's_lshl_b32 %s, %s, 13' % (S(ta[n]), S(ta[n]))]
        return o

    def line_addr(self, base, dst):
        return ['s_lshl_b32 %s, %s, 7' % (S(sKt), S(sRole)), 's_add_u32 %s, %s, %s' % (S(sKt), S(sKt), S(sIdx)),
                's_lshl_b32 %s, %s, %d' % (S(sKt), S(sKt), self.fg - self.fw), 's_add_u32 %s, %s, %s' % (S(sKt), S(sKt), S(sWave)),
                's_lshl_b32 %s, %s, %d' % (S(sKt), S(sKt), self.fw), 's_add_u32 %s, %s, %d' % (S(sKt), S(sKt), base),
                'v_mov_b32 %s, %s' % (V(dst), S(sKt))]

    def late_setup(self, role, t0, t1, vPp):
        o = self.srd_ptr(sOUT, pOut) + self.srd_cst(sOUT, 2048*2560)
        for d, idx, base, st in ((sB2, sJ1, WS_B2, MST), (sH, sC1, WS_H, HMS)):
            o += ['s_mul_i32 %s, %s, %d' % (S(sKt), S(idx), st), 's_add_u32 %s, %s, 0x%x' % (S(sKt), S(sKt), base),
                  ['s_add_u32 %s, %s, %s' % (S(d), S(pWs), S(sKt)), 's_addc_u32 %s, %s, 0' % (S(d+1), S(pWs+1))]]
            o += self.srd_cst(d, st)
        if role == 1:
            o += ['s_mul_i32 %s, %s, 5' % (S(sKt), S(sJ1)), 's_lshr_b32 %s, %s, 2' % (S(sKt), S(sKt)),
                  'v_min_u32 %s, 23, %s' % (V(t1), V(vLane)),
                  'v_lshrrev_b32 %s, 1, %s' % (V(t0), V(t1)), 'v_mul_u32_u24 %s, 10, %s' % (V(t0), V(t0)),
                  'v_and_b32 %s, 1, %s' % (V(t1), V(t1)), 'v_add3_u32 %s, %s, %s, %s' % (V(t0), V(t0), V(t1), S(sKt)),
                  's_mul_i32 %s, %s, 120' % (S(sKt), S(sWave)), 'v_add_u32 %s, %s, %s' % (V(t0), S(sKt), V(t0))]
        else:
            o += ['v_min_u32 %s, 14, %s' % (V(t1), V(vLane)),
                  'v_mul_u32_u24 %s, 11, %s' % (V(t0), V(t1)), 'v_lshrrev_b32 %s, 5, %s' % (V(t0), V(t0)),
                  'v_mul_u32_u24 %s, 7, %s' % (V(t0), V(t0)),
                  's_mul_i32 %s, %s, 50' % (S(sKt), S(sJ1)), 'v_add3_u32 %s, %s, %s, %s' % (V(t0), V(t1), V(t0), S(sKt)),
                  's_mul_i32 %s, %s, 10' % (S(sKt), S(sWave)), 's_lshr_b32 %s, %s, 2' % (S(sKt), S(sKt)),
                  'v_add_u32 %s, %s, %s' % (V(t0), S(sKt), V(t0))]
        o += ['v_and_b32 %s, 127, %s' % (V(t1), V(t0)), 'v_lshrrev_b32 %s, 7, %s' % (V(t0), V(t0)),
              'v_lshlrev_b32 %s, %d, %s' % (V(t1), self.fg, V(t1)), 'v_lshl_add_u32 %s, %s, %d, %s' % (V(vPp), V(t0), self.fw, V(t1)),
              'v_add_u32 %s, %d, %s' % (V(vPp), WS_PFLAG + role*(128 << self.fg), V(vPp))]
        o += self.line_addr(WS_PFLAG, vFa)
        return o
    def nonce_ops(self):
        return ['s_mul_i32 %s, %s, 1664525' % (S(sNonce), S(sNonce)), 's_add_u32 %s, %s, 1013904223' % (S(sNonce), S(sNonce)),
                'v_mov_b32 %s, %s' % (V(vFd), S(sNonce))]

    def hbase(self, kmul, extra):
        return ['s_lshl_b32 %s, %s, 11' % (S(sKt), S(sWave)), 's_mul_i32 %s, %s, %d' % (S(sT3), S(sJ1), kmul*HKS),
                's_add_u32 %s, %s, %s' % (S(sKt), S(sKt), S(sT3)), 's_add_u32 %s, %s, 0x%x' % (S(sKt), S(sKt), extra)]

    def flag_store(self, tok, srd):
        self.g.wait(tok)
        self.g('buffer_store_dword %s, %s, %s, 0 offen sc1' % (V(vFd), V(vFa), S(srd, 4)))
    def hoff(self, role, lvl, local):
        if not local: return 0x20000*lvl
        return (0x30000, 0xa0000, 0x70000)[lvl] if role else 0x20000
    def hflag(self, role, lvl, tok):
        g = self.g
        if self.cfg.get('lfl', 1): g('s_mov_b32 %s, 0x%x' % (S(sL1), self.hoff(role, lvl, 1)))
        g('s_mov_b32 %s, 0x%x' % (S(sL2), self.hoff(role, lvl, 0)))
        g.wait(tok)
        if self.cfg.get('lfl', 1): g('buffer_store_dword %s, %s, %s, %s offen' % (V(vFd), V(vFa), S(sWS, 4), S(sL1)))
        g('buffer_store_dword %s, %s, %s, %s offen sc1' % (V(vFd), V(vFa), S(sWS, 4), S(sL2)))
    def hpoll(self, role, lvl):
        g = self.g
        g('s_mov_b32 %s, 0x%x' % (S(sL1), self.hoff(role, lvl, self.cfg.get('lfl', 1))))
        g('buffer_load_dword %s, %s, %s, %s offen sc1' % (V(self.vHd), V(self.vHp), S(sWS, 4), S(sL1)))
    def hcheck(self, role, lvl):
        g = self.g
        def again():
            g('s_mov_b32 %s, 0x%x' % (S(sL1), self.hoff(role, lvl, self.cfg.get('lfl', 1))))
            g('s_and_b32 %s, %s, 3' % (S(sL2), S(sT4)))
            g('s_cselect_b32 %s, %s, 0x%x' % (S(sL1), S(sL1), self.hoff(role, lvl, 0)))
            g('buffer_load_dword %s, %s, %s, %s offen sc1' % (V(self.vHd), V(self.vHp), S(sWS, 4), S(sL1)))
        self.poll('h%d%d' % (role, lvl), again, self.check_eq([self.vHd]))

    def prologue(self):
        g = self.g
        g('s_cmp_ge_u32 s2, 256')
        g('s_cbranch_scc1 L_exit')
        g('s_load_dwordx16 s[40:55], s[0:1], 0')
        g('s_load_dwordx16 s[56:71], s[0:1], 64')
        g('v_lshrrev_b32 %s, 6, v0' % V(vT[0]))
        g('v_and_b32 %s, 63, v0' % V(vLane))
        g('v_readfirstlane_b32 %s, %s' % (S(sWave), V(vT[0])))
        g('v_lshlrev_b32 %s, 4, %s' % (V(vL16), V(vLane)))
        g('s_lshr_b32 %s, s2, 3' % S(sT1))
        if self.cfg.get('preload', 1):
            g.raw('    s_getpc_b64 s[28:29]\nL_pc:')
            g('s_lshl_b32 %s, %s, 2' % (S(sT0), S(sT1)))
            g('s_add_u32 %s, %s, %s' % (S(sT0), S(sT0), S(sWave)))
            g('s_and_b32 %s, %s, 63' % (S(sT0), S(sT0)))
            g.raw('    s_min_u32 %s, %s, ((L_codeend-L_pc)>>10)-1' % (S(sT0), S(sT0)))
            g('s_lshl_b32 %s, %s, 10' % (S(sT0), S(sT0)))
            g('s_add_u32 s28, s28, %s' % S(sT0))
            g('s_addc_u32 s29, s29, 0')
            g('global_load_dwordx4 v[244:247], %s, s[28:29]' % V(vL16))
        if self.cfg.get('stamps'):
            g('v_mov_b32 %s, 0' % V(vStamp))
        g('v_add_u32 %s, 0x1000, %s' % (V(vL16b), V(vL16)))
        g('s_bfe_u32 %s, s2, 0x20001' % S(sT3))
        g('s_and_b32 %s, %s, 3' % (S(sT2), S(sT1)))
        if self.cfg.get('mixed'):
            g('s_lshr_b32 %s, %s, 4' % (S(sRole), S(sT1)))
            g('s_bfe_u32 %s, %s, 0x20002' % (S(sJ1), S(sT1)))
            g('s_and_b32 %s, s2, 1' % S(sT0))
            g('s_lshl_b32 %s, %s, 2' % (S(sT0), S(sT0)))
            g('s_add_u32 %s, %s, %s' % (S(sJ1), S(sJ1), S(sT0)))
        else:
            g('s_and_b32 %s, s2, 1' % S(sRole))
            g('s_lshr_b32 %s, %s, 2' % (S(sJ1), S(sT1)))
        g('s_lshl_b32 %s, %s, 2' % (S(sC1), S(sT3)))
        g('s_add_u32 %s, %s, %s' % (S(sC1), S(sC1), S(sT2)))
        g('s_lshl_b32 %s, %s, 3' % (S(sIdx), S(sT3)))
        g('s_add_u32 %s, %s, %s' % (S(sIdx), S(sIdx), S(sJ1)))
        g('s_lshl_b32 %s, %s, 2' % (S(sIdx), S(sIdx)))
        g('s_add_u32 %s, %s, %s' % (S(sIdx), S(sIdx), S(sT2)))
        g('s_mul_i32 %s, %s, 3' % (S(sT2), S(sT2)))
        g('s_mul_i32 %s, %s, 5' % (S(sT0), S(sRole)))
        g('s_add_u32 %s, %s, %s' % (S(sRot), S(sJ1), S(sT2)))
        g('s_add_u32 %s, %s, %s' % (S(sRot), S(sRot), S(sT0)))
        g('s_add_u32 %s, %s, %s' % (S(sRot), S(sRot), S(sT3)))
        if self.cfg.get('norot'): g('s_mov_b32 %s, 0' % S(sRot))
        rx = self.cfg.get('rotx', 3)
        if rx:
            g('s_mul_i32 %s, %s, 5' % (S(sRot), S(sT3)))
            g('s_add_u32 %s, %s, 1' % (S(sRot), S(sRot)))
            g('s_lshr_b32 %s, %s, 1' % (S(sRot), S(sRot)))
            g('s_add_u32 %s, %s, %s' % (S(sRot), S(sRot), S(sT0)))
            if rx == 2:
                g('s_add_u32 %s, %s, %s' % (S(sT0), S(sC1), S(sJ1)))
                g('s_and_b32 %s, %s, 1' % (S(sT0), S(sT0)))
                g('s_add_u32 %s, %s, %s' % (S(sRot), S(sRot), S(sT0)))
            if rx == 3:
                g('s_add_u32 %s, %s, %s' % (S(sT0), S(sC1), S(sJ1)))
                g('s_and_b32 %s, %s, 3' % (S(sT0), S(sT0)))
                g('s_add_u32 %s, %s, %s' % (S(sRot), S(sRot), S(sT0)))
        for k in range(2):
            g('s_sub_u32 %s, %s, 10' % (S(sT0), S(sRot)))
            g('s_min_u32 %s, %s, %s' % (S(sRot), S(sRot), S(sT0)))
        if self.cfg.get('rotg') == 2:
            g('s_and_b32 %s, %s, 1' % (S(sRot), S(sRot)))
            g('s_mul_i32 %s, %s, 5' % (S(sRot), S(sRot)))
        if self.cfg.get('rotg') == 5:
            g('s_and_b32 %s, %s, 14' % (S(sRot), S(sRot)))
        if self.cfg.get('rotg') == 3:
            g('s_mul_i32 %s, %s, 11' % (S(sT0), S(sRot)))
            g('s_lshr_b32 %s, %s, 5' % (S(sT0), S(sT0)))
            g('s_mul_i32 %s, %s, 3' % (S(sT0), S(sT0)))
            g('s_sub_u32 %s, %s, %s' % (S(sRot), S(sRot), S(sT0)))
            g('s_mul_i32 %s, %s, 7' % (S(sRot), S(sRot)))
            g('s_lshr_b32 %s, %s, 1' % (S(sRot), S(sRot)))
        g('s_lshl_b32 %s, %s, 7' % (S(sKb[0]), S(sRot)))
        g('v_lshrrev_b32 %s, 3, %s' % (V(vT[0]), V(vLane)))
        g('v_and_b32 %s, 7, %s' % (V(vT[1]), V(vLane)))
        g('v_lshrrev_b32 %s, 4, %s' % (V(vT[2]), V(vLane)))
        g.do(self.srd_cst(sX, 2048*1280))
        g.do(self.srd_cst(sWS, WS_SIZE))
        g('s_cmp_eq_u32 %s, 0' % S(sRole))
        g('s_cbranch_scc1 L_ssm')

    def kb(self, s):
        if self.cfg.get('same'): return ['s_mov_b32 %s, %s' % (S(sKb[s]), S(sKb[0]))]
        return ['s_sub_u32 %s, %s, %d' % (S(sT0), S(sKb[0]), 128*(10-s)), 's_add_u32 %s, %s, %d' % (S(sKb[s]), S(sKb[0]), 128*s),
                's_min_u32 %s, %s, %s' % (S(sKb[s]), S(sKb[s]), S(sT0))]

    def ptrs_ready(self):
        g = self.g
        g.waitcnt(lg=0)
        self.stamp(0)
        self.stamp(30, 's_memtime')
        g.do(self.srd_ptr(sX, pX))

    def pack_addr(self, role, vPl, vPr, vPw):
        o = ['s_lshl_b32 %s, %s, 7' % (S(sItem), S(sWave)), 's_add_u32 %s, %s, %s' % (S(sItem), S(sItem), S(sIdx))]
        o += self.srd_ptr(sPD, pWs) + self.srd_ptr(sP1, pW2 if role else pCre)
        o += [['s_cmp_lt_u32 %s, %d' % (S(sItem), 480 if role else 400), 's_cselect_b32 %s, 0x%x, 0' % (S(sPD+2), WS_SIZE),
               's_cselect_b32 %s, %d, 0' % (S(sP1+2), 1536*1280 if role else 819200)],
              's_mov_b32 %s, 0x20000' % S(sPD+3), 's_mov_b32 %s, 0x20000' % S(sP1+3),
              's_mul_i32 %s, %s, 6554' % (S(sT1), S(sItem)), 's_lshr_b32 %s, %s, 16' % (S(sT1), S(sT1)),
              's_mul_i32 %s, %s, 10' % (S(sT2), S(sT1)), 's_sub_u32 %s, %s, %s' % (S(sT2), S(sItem), S(sT2)),
              's_lshl_b32 %s, %s, 7' % (S(sT3), S(sT2)),
              's_mul_i32 %s, %s, %d' % (S(sItem), S(sT1), 40960 if role else 20480), 's_add_u32 %s, %s, %s' % (S(sItem), S(sItem), S(sT3))]
        t0, t1 = V(vT[4]), V(vT[5]); L = V(vLane)
        if role:
            o += ['s_mul_i32 %s, %s, 5' % (S(sT1), S(sT1)), 's_lshl_b32 %s, %s, 2' % (S(sT2), S(sT2))]
            for i in range(4):
                o += ['s_add_u32 %s, %s, %d' % (S(sPs[i]), S(sT2), i),
                      's_mul_i32 %s, %s, 52' % (S(sT3), S(sPs[i])), 's_lshr_b32 %s, %s, 8' % (S(sT3), S(sT3)),
                      's_mul_i32 %s, %s, 435' % (S(sT3), S(sT3)), 's_add_u32 %s, %s, %s' % (S(sPs[i]), S(sPs[i]), S(sT3)),
                      's_add_u32 %s, %s, %s' % (S(sPs[i]), S(sPs[i]), S(sT1)), 's_lshl_b32 %s, %s, 10' % (S(sPs[i]), S(sPs[i])),
                      's_add_u32 %s, %s, 0x%x' % (S(sPs[i]), S(sPs[i]), WS_B2)]
            o += ['v_bfe_u32 %s, %s, 4, 1' % (t0, L), 'v_lshlrev_b32 %s, 11, %s' % (t0, t0), 'v_lshrrev_b32 %s, 5, %s' % (t1, L),
                  'v_lshl_add_u32 %s, %s, 9, %s' % (t0, t1, t0), 'v_bfe_u32 %s, %s, 2, 2' % (t1, L), 'v_lshl_add_u32 %s, %s, 7, %s' % (t0, t1, t0),
                  'v_and_b32 %s, 3, %s' % (t1, L), 'v_lshl_add_u32 %s, %s, 3, %s' % (t0, t1, t0)]
        else:
            o += self.srd_ptr(sP2, pCim) + ['s_mov_b32 %s, %s' % (S(sP2+2), S(sP1+2)), 's_mov_b32 %s, 0x20000' % S(sP2+3),
                  's_mul_i32 %s, %s, 52' % (S(sT3), S(sT1)), 's_lshr_b32 %s, %s, 8' % (S(sT3), S(sT3)),
                  's_mul_i32 %s, %s, 435' % (S(sT3), S(sT3)), 's_add_u32 %s, %s, %s' % (S(sT1), S(sT1), S(sT3)),
                  's_mul_i32 %s, %s, 20' % (S(sT3), S(sT2)), 's_add_u32 %s, %s, %s' % (S(sT1), S(sT1), S(sT3)),
                  's_lshl_b32 %s, %s, 10' % (S(sT1), S(sT1))]
            o += ['s_add_u32 %s, %s, 0x%x' % (S(sPs[i]), S(sT1), WS_B2 + 240*1024 + KST*i) for i in range(4)]
            o += ['v_lshrrev_b32 %s, 5, %s' % (t0, L), 'v_lshlrev_b32 %s, 11, %s' % (t0, t0), 'v_and_b32 %s, 15, %s' % (t1, L),
                  'v_lshl_add_u32 %s, %s, 7, %s' % (t0, t1, t0), 'v_bfe_u32 %s, %s, 4, 1' % (t1, L), 'v_lshl_add_u32 %s, %s, 4, %s' % (t0, t1, t0)]
        o += ['s_lshl_b32 %s, %s, 12' % (S(sT3), S(sWave)), 's_add_u32 %s, %s, %d' % (S(sT3), S(sT3), L_PK),
              'v_add_u32 %s, %s, %s' % (V(vPr), S(sT3), t0), 's_mov_b32 %s, %s' % (S(sWs2), S(sT3)),
              'v_lshrrev_b32 %s, 3, %s' % (t0, L), 'v_and_b32 %s, 7, %s' % (t1, L), 'v_mul_u32_u24 %s, 1280, %s' % (t0, t0),
              'v_lshl_add_u32 %s, %s, 4, %s' % (V(vPl), t1, t0)]
        return o

    def pack_load(self, role, vPl):
        g = self.g; nt = self.cfg.get('pknt', ' nt')
        g('s_mov_b32 m0, %s' % S(sWs2))
        for q in range(4):
            if role:
                if q: g('s_add_u32 %s, %s, 9216' % (S(sItem), S(sItem)))
                else: g('s_nop 0')
                self.tPack = g('buffer_load_dwordx4 %s, %s, %s offen offset:%d%s lds' % (V(vPl), S(sP1, 4), S(sItem), 1024*q, nt))
            else:
                if q == 0: g('s_add_u32 %s, %s, 9216' % (S(sT0), S(sItem)))
                if q == 2: g('s_add_u32 m0, %s, 2048' % S(sWs2))
                self.tPack = g('buffer_load_dwordx4 %s, %s, %s offen offset:%d%s lds' % (V(vPl), S(sP2 if q >= 2 else sP1, 4), S(sT0 if q & 1 else sItem), 1024*(q & 1), nt))
    def pack_proc(self, role, vPr):
        g = self.g
        a = [F(lambda: g.wait(self.tPack))]
        if role: a += ['ds_read_b64_tr_b16 %s, %s offset:%d' % (A(aPK+4*i+2*e, 2), V(vPr), e*1024 + i*32) for i in range(4) for e in range(2)]
        else: a += ['ds_read_b128 %s, %s offset:%d' % (A(aPK+4*i, 4), V(vPr), 32*i) for i in range(4)]
        b = []
        for i in range(4):
            def f(i=i): self.tPackSt = g('buffer_store_dwordx4 %s, %s, %s, %s offen sc1' % (A(aPK+4*i, 4), V(vL16), S(sPD, 4), S(sPs[i])))
            b.append(F(f))
        return a, b

    def touch_addr(self):
        if not self.cfg.get('coop', 0): return
        g = self.g; L = V(vLane)
        g('s_lshl_b32 %s, s2, 2' % S(sT0))
        g('s_add_u32 %s, %s, %s' % (S(sT0), S(sT0), S(sWave)))
        g('s_mul_i32 %s, %s, 20' % (S(sT1), S(sT0)))
        g('v_min_u32 v248, 19, %s' % L)
        g('v_add_u32 v248, %s, v248' % S(sT1))
        g('v_lshlrev_b32 v248, 7, v248')
        g('s_mul_i32 %s, %s, 25' % (S(sT1), S(sT0)))
        g('s_lshr_b32 %s, %s, 2' % (S(sT1), S(sT1)))
        g('v_min_u32 v249, 6, %s' % L)
        g('v_add_u32 v249, %s, v249' % S(sT1))
        g('v_min_u32 v249, 6399, v249')
        g('v_lshlrev_b32 v249, 7, v249')
        nw = 5 if self.cfg['coop'] == 1 else 15
        g('s_mul_i32 %s, %s, %d' % (S(sT1), S(sT0), nw))
        g('v_min_u32 v250, %d, %s' % (nw-1, L))
        g('v_add_u32 v250, %s, v250' % S(sT1))
        if nw == 5:
            g('v_lshrrev_b32 v251, 3, v250')
            g('v_and_b32 v250, 7, v250')
            g('v_mul_u32_u24 v251, 3072, v251')
            g('v_mul_u32_u24 v250, 384, v250')
            g('v_add_u32 v250, v250, v251')
        else:
            g('v_lshlrev_b32 v250, 7, v250')
    def touch(self):
        if not self.cfg.get('coop', 0): return
        g = self.g
        g('global_load_dword v240, v248, %s' % S(pX, 2))
        g('global_load_dword v241, v249, %s' % S(pBre, 2))
        g('global_load_dword v242, v249, %s' % S(pBim, 2))
        g('global_load_dword v243, v250, %s' % S(pW1, 2))

    def warm_flags(self, role):
        if not self.cfg.get('warm', 1): return []
        L = V(vLane)
        o = ['s_lshl_b32 %s, %s, 7' % (S(sT0), S(sRole)), 's_add_u32 %s, %s, %s' % (S(sT0), S(sT0), S(sIdx)),
             's_lshl_b32 %s, %s, %d' % (S(sT0), S(sT0), self.fg - self.fw), 's_add_u32 %s, %s, %s' % (S(sT0), S(sT0), S(sWave)),
             's_lshl_b32 %s, %s, %d' % (S(sT0), S(sT0), self.fw), 's_add_u32 %s, %s, %d' % (S(sT0), S(sT0), WS_HFLAG),
             'v_min_u32 v250, 10, %s' % L, 'v_lshlrev_b32 v250, 16, v250', 'v_add_u32 v250, %s, v250' % S(sT0)]
        if role == 0:
            o += [
                  's_lshl_b32 %s, %s, 4' % (S(sT0), S(sJ1)), 's_add_u32 %s, %s, %s' % (S(sT0), S(sT0), S(sC1)),
                  's_lshl_b32 %s, %s, 2' % (S(sT0), S(sT0)), 's_add_u32 %s, %s, %s' % (S(sT0), S(sT0), S(sWave)),
                  's_mul_i32 %s, %s, 320' % (S(sT0), S(sT0)), 's_add_u32 %s, %s, %d' % (S(sT0), S(sT0), WS_EBUF),
                  'v_and_b32 v251, 3, %s' % L, 'v_mul_u32_u24 v251, 104, v251', 'v_add_u32 v251, %s, v251' % S(sT0),
                  ['v_cmp_gt_u32 vcc, 12, %s' % L, 'v_cndmask_b32 v250, v251, v250, vcc'],
                  's_lshl_b32 %s, %s, 3' % (S(sT0), S(sC1)), 's_add_u32 %s, %s, %s' % (S(sT0), S(sT0), S(sJ1)),
                  's_lshl_b32 %s, %s, 2' % (S(sT0), S(sT0)), 's_add_u32 %s, %s, %s' % (S(sT0), S(sT0), S(sWave)),
                  's_lshl_b32 %s, %s, 6' % (S(sT0), S(sT0)), 's_add_u32 %s, %s, %d' % (S(sT0), S(sT0), WS_GATE),
                  'v_mov_b32 v251, %s' % S(sT0),
                  ['v_cmp_gt_u32 vcc, 16, %s' % L, 'v_cndmask_b32 v250, v251, v250, vcc']]
        if self.cfg.get('pages', 0):
            def lane(k, expr):
                return expr + ['v_writelane_b32 v250, %s, %d' % (S(sT0), k)]
            o += lane(32, ['s_mul_i32 %s, %s, %d' % (S(sT0), S(sC1), HMS), 's_add_u32 %s, %s, 0x%x' % (S(sT0), S(sT0), WS_H + (0 if role else 48*HKS))])
            o += lane(33, ['s_add_u32 %s, %s, %d' % (S(sT0), S(sT0), (48 if role else 40)*HKS - 128)])
            o += lane(34, ['s_mul_i32 %s, %s, %d' % (S(sT0), S(sJ1), MST), 's_add_u32 %s, %s, 0x%x' % (S(sT0), S(sT0), WS_B2 + (0 if role else 48*KST))])
            o += lane(35, ['s_add_u32 %s, %s, %d' % (S(sT0), S(sT0), (48 if role else 40)*KST - 128)])
            o += lane(36, ['s_mul_i32 %s, %s, 20480' % (S(sT0), S(sIdx)), 's_add_u32 %s, %s, 0x%x' % (S(sT0), S(sT0), WS_X)])
            o += lane(37, ['s_add_u32 %s, %s, %d' % (S(sT0), S(sT0), 128*20480)])
        o.append('buffer_load_dword v251, v250, %s, 0 offen sc1' % S(sWS, 4))
        if self.cfg.get('pages', 0) >= 2:
            o += ['s_mul_i32 %s, %s, %d' % (S(sT0), S(sC1), 128*2560), 's_add_u32 %s, %s, %d' % (S(sT0), S(sT0), (1-role)*64*2560),
                  'v_and_b32 v249, 1, %s' % L, 'v_mul_u32_u24 v249, %d, v249' % (63*2560), 'v_add_u32 v249, %s, v249' % S(sT0),
                  'global_load_dword v248, v249, %s' % S(pOut, 2)]
        return o

    def pack_poll_issue(self, vPp, vD):
        self.g('buffer_load_dword %s, %s, %s, 0 offen sc1' % (V(vD), V(vPp), S(sWS, 4)))
    def pack_poll_check(self, vPp, vD):
        if self.cfg.get('nopoll'): return
        self.poll('pk', lambda: self.pack_poll_issue(vPp, vD), self.check_eq([vD]))

    def x_dma_addr(self, vXd, perm):
        g = self.g
        g('s_lshl_b32 %s, %s, 2' % (S(sT0), S(sC1)))
        g('s_add_u32 %s, %s, %s' % (S(sT0), S(sT0), S(sWave)))
        g('s_mul_i32 %s, %s, %d' % (S(sT0), S(sT0), 32*1280))
        if perm:
            g('v_lshrrev_b32 %s, 5, %s' % (V(vT[3]), V(vLane)))
            g('v_and_b32 %s, 1, %s' % (V(vT[4]), V(vT[0])))
            g('v_lshl_add_u32 %s, %s, 1, %s' % (V(vT[3]), V(vT[3]), V(vT[4])))
            g('v_and_b32 %s, 1, %s' % (V(vT[4]), V(vT[2])))
            g('v_lshl_add_u32 %s, %s, 2, %s' % (V(vT[3]), V(vT[3]), V(vT[4])))
            g('v_mul_u32_u24 %s, 1280, %s' % (V(vT[3]), V(vT[3])))
        else:
            g('v_mul_u32_u24 %s, 1280, %s' % (V(vT[3]), V(vT[0])))
        g('v_xor_b32 %s, %s, %s' % (V(vT[4]), V(vT[1]), V(vT[2])))
        g('v_lshlrev_b32 %s, 4, %s' % (V(vT[4]), V(vT[4])))
        g('v_xor_b32 %s, 64, %s' % (V(vT[5]), V(vT[4])))
        g('v_add3_u32 %s, %s, %s, %s' % (V(vXd[0]), V(vT[4]), V(vT[3]), S(sT0)))
        g('v_add3_u32 %s, %s, %s, %s' % (V(vT[5]), V(vT[5]), V(vT[3]), S(sT0)))
        for q in range(1, 4):
            rows = (16*(q & 1) + 2*(q >> 1)) if perm else 8*q
            g('v_add_u32 %s, %d, %s' % (V(vXd[q]), rows*1280 - 1024*q, V(vT[5] if q & 1 else vXd[0])))

    def ffn(self):
        g = self.g; cfg = self.cfg
        ACC = [16, 48]
        WF = 80; NF = 10
        EP = 120
        PKR = 128
        vXd = [144, 145, 146, 147]; vWd = [148, 149]; vXr = [150, 151, 152, 153]; vWr = [154, 155]; vHs = 156
        vPr, vPs, vPp, vPd = 157, 158, 159, 13
        vWrB = [150, 151]
        def wslot(t):
            if t < 16: return F_WR + (t % 8)*8192
            if t < 24: return (t-16)*8192
            return F_WR + (t-24)*8192
        LA = cfg.get('fla', 7); WE = cfg.get('fwe', 4)
        self.x_dma_addr(vXd, False)
        g('v_and_b32 %s, 1, %s' % (V(vT[3]), V(vT[2])))
        g('v_lshlrev_b32 %s, 2, %s' % (V(vT[3]), V(vT[3])))
        g('v_xor_b32 %s, %s, %s' % (V(vT[3]), V(vT[1]), V(vT[3])))
        g('v_mul_u32_u24 %s, 3072, %s' % (V(vT[4]), V(vT[0])))
        g('v_lshl_add_u32 %s, %s, 4, %s' % (V(vT[3]), V(vT[3]), V(vT[4])))
        g('s_mul_i32 %s, %s, %d' % (S(sT0), S(sWave), 16*3072))
        g('v_add_u32 %s, %s, %s' % (V(vWd[0]), S(sT0), V(vT[3])))
        g('v_add_u32 %s, %d, %s' % (V(vWd[1]), 8*3072 - 1024, V(vWd[0])))
        g('s_mul_i32 %s, %s, 20480' % (S(sMx), S(sWave)))
        g('s_lshl_b32 %s, %s, 11' % (S(sMw), S(sWave)))
        g('s_mul_i32 %s, %s, 384' % (S(sWo), S(sJ1)))
        g.do(self.srd_cst(sW, 640*3072))
        for s in range(1, 10): g.do(self.kb(s))
        tokX = {}; tokW = {}
        def dma_x(s):
            def mk(q):
                def f():
                    tokX[s] = g('buffer_load_dwordx4 %s, %s, %s offen offset:%d%s lds' % (V(vXd[q]), S(sX, 4), S(sKb[s]), 1024*q, (' nt' if s < cfg.get('nt0', 0) else '')))
                return F(f)
            return ['s_add_u32 m0, %s, %d' % (S(sMx), (s % 5)*4096)] + [mk(q) for q in range(4)]
        def dma_w(t):
            o = ['s_add_u32 m0, %s, %d' % (S(sMw), wslot(t))]
            k = sKb[t % 10]
            if t < 10: o += ['s_mul_i32 %s, %s, 1536' % (S(k), S(k)), 's_add_u32 %s, %s, %s' % (S(k), S(k), S(sWo))]
            if t in (10, 20): o += ['v_add_u32 %s, 128, %s' % (V(r), V(r)) for r in vWd]
            nt = ' nt' if t < cfg.get('nt0', 0) else ''
            o.append('buffer_load_dwordx4 %s, %s, %s offen%s lds' % (V(vWd[0]), S(sW, 4), S(k), nt))
            def f():
                tokW[t] = g('buffer_load_dwordx4 %s, %s, %s offen offset:1024%s lds' % (V(vWd[1]), S(sW, 4), S(k), nt))
            return o + [F(f)]
        self.touch_addr()
        self.ptrs_ready()
        g.do(self.srd_ptr(sW, pW1))
        if cfg.get('coop_first', 1): self.touch()
        g.do(dma_x(0) + dma_w(0))
        if not cfg.get('coop_first', 1): self.touch()
        g.do(dma_x(1) + dma_w(1))
        g.do(self.srd_ptr(sWS, pWs))
        g('s_load_dword %s, %s, 0' % (S(sNonce), S(pWs, 2)))
        g.do(self.warm_flags(1))
        g('v_and_b32 %s, 31, %s' % (V(vT[3]), V(vLane)))
        g('v_bfe_u32 %s, %s, 1, 3' % (V(vT[4]), V(vLane)))
        g('v_lshrrev_b32 %s, 5, %s' % (V(vT[7]), V(vLane)))
        g('v_xor_b32 %s, %s, %s' % (V(vT[4]), V(vT[4]), V(vT[7])))
        g('v_lshlrev_b32 %s, 4, %s' % (V(vT[4]), V(vT[4])))
        g('v_lshl_add_u32 %s, %s, 7, %s' % (V(vT[4]), V(vT[3]), V(vT[4])))
        g('v_add_u32 %s, %s, %s' % (V(vXr[0]), S(sMx), V(vT[4])))
        for ks in range(1, 4):
            g('v_xor_b32 %s, %d, %s' % (V(vXr[ks]), 32*ks, V(vXr[0])))
        g('v_bfe_u32 %s, %s, 2, 2' % (V(vT[4]), V(vLane)))
        g('v_lshl_add_u32 %s, %s, 3, %s' % (V(vT[6]), V(vT[7]), V(vT[4])))
        g('v_lshlrev_b32 %s, 7, %s' % (V(vT[6]), V(vT[6])))
        g('v_lshrrev_b32 %s, 1, %s' % (V(vT[4]), V(vT[4])))
        g('v_lshl_add_u32 %s, %s, 6, %s' % (V(vT[6]), V(vT[4]), V(vT[6])))
        g('v_bfe_u32 %s, %s, 4, 1' % (V(vT[4]), V(vLane)))
        g('v_lshl_add_u32 %s, %s, 5, %s' % (V(vT[6]), V(vT[4]), V(vT[6])))
        g('v_and_b32 %s, 3, %s' % (V(vT[4]), V(vLane)))
        g('v_lshl_add_u32 %s, %s, 3, %s' % (V(vT[6]), V(vT[4]), V(vT[6])))
        g('v_add_u32 %s, %d, %s' % (V(vWr[0]), F_WR, V(vT[6])))
        g('v_xor_b32 %s, 64, %s' % (V(vWr[1]), V(vWr[0])))
        global sWs2
        sWs2 = 43
        pk0 = cfg.get('pk', (4,))[0] < 2
        if pk0: g.do(self.pack_addr(1, vPs, vPr, None))
        if cfg.get('pk', (4,))[0] < 0: self.pack_load(1, vPs)
        g.do(dma_x(2) + dma_w(2))
        XL = cfg.get('f_xl', 4)
        if XL == 4: g.do(dma_x(3) + dma_w(3))
        self.stamp(1)
        setup = ([] if pk0 else self.pack_addr(1, vPs, vPr, None)) + self.nonce_ops() + self.late_setup(1, vT[0], vT[1], vPp)
        n_late = len(setup)
        setup += self.hbase(6, 0) + [
            'v_bfe_u32 %s, %s, 4, 1' % (V(vT[0]), V(vLane)), 'v_lshlrev_b32 %s, 10, %s' % (V(vT[0]), V(vT[0])),
            'v_lshl_add_u32 %s, %s, 9, %s' % (V(vT[0]), V(vT[7]), V(vT[0])), 'v_and_b32 %s, 15, %s' % (V(vT[1]), V(vLane)),
            'v_lshl_add_u32 %s, %s, 4, %s' % (V(vT[0]), V(vT[1]), V(vT[0])), 'v_add_u32 %s, %s, %s' % (V(vHs), S(sKt), V(vT[0])),
            's_mov_b32 %s, 0x%x' % (S(sNl), NLOG2E)]
        setup += self.ks_table(1)

        mains = []; fixed = []
        tokF = {}; tokXr = {}
        def rd_x(s, ks):
            def f(): tokXr[s] = g('ds_read_b128 %s, %s offset:%d' % (A(16*s + 4*ks, 4), V(vXr[ks]), (s % 5)*4096))
            return F(f)
        def rd_w(n, e):
            sg, ks, u = n // 8, (n % 8)//2, n % 2
            def f():
                tokF[n] = g('ds_read_b64_tr_b16 %s, %s offset:%d' % (V(WF + 4*(n % NF) + 2*e, 2), V(vWrB[u] if 16 <= sg < 24 else vWr[u]), wslot(sg) % F_WR + (16*ks + 4*e)*128))
            return F(f)
        def bar(sg, both):
            def f():
                g.wait(tokX.get(sg), tokW[sg+1 if both else sg], tokXr.get(sg-1) if XL == 4 else None)
                g('s_barrier')
                if sg == 0: self.stamp(2)
                if sg == 10: self.stamp(3)
                if sg == 20: self.stamp(4)
                if sg in (3, 5, 7, 12, 16, 26): self.stamp(20 + (3, 5, 7, 12, 16, 26).index(sg), lvl=3)
            return F(f, 8)
        for n in range(240):
            sg, ks, u = n // 8, (n % 8)//2, n % 2
            grp, s = sg // 10, sg % 10
            acc = ACC[grp % 2] + 16*u
            c = '0' if (s == 0 and ks == 0) else V(acc, 16)
            mains.append(('v_mfma_f32_32x32x16_bf16 %s, %s, %s, %s' % (V(acc, 16), V(WF + 4*(n % NF), 4), A(16*s + 4*ks, 4), c),
                          (lambda n=n: [tokF[min(n+WE-1, 239)]]) if n % WE == 0 else None))
        wsched = {}
        if XL == 3:
            for sg in range(7): wsched[sg] = [sg+3]
            wsched[7] = [10, 11]; wsched[8] = [12, 13]; wsched[9] = [14]; wsched[10] = [15]
        else:
            for sg in range(6): wsched[sg] = [sg+4]
            wsched[6] = [10, 11]; wsched[7] = [12, 13]; wsched[8] = [14]; wsched[9] = [15]
        wsched[12] = [16, 17, 18, 19]; wsched[14] = [20, 21, 22]; wsched[16] = [23, 24, 25]; wsched[18] = [26, 27]; wsched[20] = [28, 29]
        endb = {}
        for sg in range(30):
            if sg >= 10 and sg % 2: continue
            p = 8*sg - LA
            fixed.append((p - 0.5, bar(sg, sg >= 10)))
            d = []
            if sg + XL <= 9: d += dma_x(sg+XL)
            for t in wsched.get(sg, []): d += dma_w(t)
            stp = 0.5 if sg < 10 else 15.0/max(len(d), 1)
            for i, f in enumerate(d): fixed.append((p + 0.6 + i*stp, f))
            endb[sg] = p + 0.6 + len(d)*stp
        for u in range(2): fixed.append((90 + u, 'v_subrev_u32 %s, %d, %s' % (V(vWrB[u]), F_WR, V(vWr[u]))))
        if cfg.get('w1warm', 0):
            fixed.append((endb[cfg.get('w1warm_at', 1)], ['s_lshl_b32 %s, %s, 2' % (S(sT0), S(sC1)), 's_add_u32 %s, %s, %s' % (S(sT0), S(sT0), S(sWave)),
                 's_mul_i32 %s, %s, %d' % (S(sT0), S(sT0), 10*3072), 's_add_u32 %s, %s, %s' % (S(sT0), S(sT0), S(sWo)),
                 'v_min_u32 %s, 19, %s' % (V(vT[8]), V(vLane)), 'v_lshrrev_b32 %s, 1, %s' % (V(vPd), V(vT[8])),
                 'v_mul_u32_u24 %s, 3072, %s' % (V(vPd), V(vPd)), 'v_and_b32 %s, 1, %s' % (V(vT[8]), V(vT[8])),
                 'v_lshl_add_u32 %s, %s, 7, %s' % (V(vPd), V(vT[8]), V(vPd)),
                 'buffer_load_dword %s, %s, %s, %s offen offset:128 sc1' % (V(vT[8]), V(vPd), S(sW, 4), S(sT0))]))
        for n in range(240):
            if n < 80 and n % 2 == 0:
                s, ks = n//8, (n % 8)//2
                fixed.append((8*s - LA + ks if XL == 4 else n - LA, rd_x(s, ks)))
            fixed.append((n - LA, rd_w(n, 0))); fixed.append((n - LA, rd_w(n, 1)))
        cl, cr, cf, pp = cfg.get('pk', (4, 8, 12, 22))
        at = lambda sg: endb[sg] if sg < 10 else 8*sg - LA + 0.2
        if cl >= 0: fixed.append((endb[cl], F(lambda: self.pack_load(1, vPs), 36)))
        pa_, pb_ = self.pack_proc(1, vPr)
        for i, f in enumerate(pa_): fixed.append((at(cr) + 0.5*i, f))
        for i, f in enumerate(pb_): fixed.append((at(cr) + 8 + 0.5*i, f))
        fixed.append((at(cf), F(lambda: self.flag_store(self.tPackSt, sPD), 8)))
        if pp < 30:
            fixed.append((at(pp-2), F(lambda: self.pack_poll_issue(vPp, vPd))))
            fixed.append((at(pp), F(lambda: self.pack_poll_check(vPp, vPd), 20)))
        else:
            fixed.append((228, F(lambda: self.pack_poll_issue(vPp, vPd))))
        nb_in = cfg.get('f_b2in', 20) if pp < 30 else 0
        b2 = self.b2_loads(1, range(4 if cfg.get('f_nob2') else 12))
        tU = {}
        def epi(grp):
            ops = []
            for u in range(2):
                acc = ACC[grp % 2] + 16*u
                pk = PKR + 8*u
                def stage(r, k):
                    t = V(EP + (r % 8)); a = V(acc + r)
                    return ['v_mul_f32 %s, %s, %s' % (t, S(sNl), a), 'v_exp_f32 %s, %s' % (t, t), 'v_add_f32 %s, 1.0, %s' % (t, t),
                            'v_rcp_f32 %s, %s' % (t, t), 'v_mul_f32 %s, %s, %s' % (a, a, t)][k]
                for tm in range(16 + 6):
                    for k in (4, 3, 2, 1, 0):
                        r = tm - k
                        if 0 <= r < 16: ops.append(stage(r, k))
                    r = tm - 5
                    if 0 <= r < 16 and r % 2 == 1:
                        ops.append('v_cvt_pk_bf16_f32 %s, %s, %s' % (V(pk + r//2), V(acc + r - 1), V(acc + r)))
                        if r in (7, 15):
                            e = r // 8
                            def st(e=e, pk=pk, un=2*grp+u):
                                tU[un] = g('buffer_store_dwordx4 %s, %s, %s, 0 offen offset:%d%s' % (V(pk + 4*e, 4), V(vHs), S(sH, 4), 256*e, cfg.get('hst', ' sc1')))
                            ops.append(F(st))
                ops.append('v_add_u32 %s, %d, %s' % (V(vHs), HKS, V(vHs)))
            return ops
        pa = 24 if pk0 else min(40, int(at(cl)) - 1)
        sA = Stream(setup[:n_late], 0, pa - 1)
        fixed.append((pa - 0.1, F(lambda: sA.flush(g), 0)))
        streams = [sA, Stream(setup[n_late:], pa, 78),
                   Stream(b2[:nb_in], max(8*pp, cfg.get('f_b2s', 0)), 236, paced=True, slack=4),
                   Stream(epi(0), 82, 158), Stream(epi(1), 162, 238)]
        if cfg.get('noepi'): streams = streams[:3]
        fixed.append((max(at(cf) + 1, 150), self.line_addr(WS_HFLAG, vFa)))
        fixed.append((cfg.get('f_l0', 232), F(lambda: self.hflag(1, 0, tU[2]), 20)))
        sched(g, mains, 24, fixed, streams, report=self.rep and 'ffn')
        self.stamp(5)
        if pp >= 30: self.pack_poll_check(vPp, vPd)
        e2 = epi(2); k = cfg.get('f_hp0', 60)
        rest = mix(g, e2[:k] + self.hp_addr(1) + [F(lambda: self.hpoll(1, 0), 8)] + e2[k:], b2[nb_in:], every=cfg.get('f_pace', 72))
        self.hflag(1, 1, tU[3])
        self.stamp(6)
        self.phase2(1, rest, tU[5])

    def cpow(self, dst, a, th, n, t0, t1):
        if n is None:
            o = ['v_exp_f32 %s, %s' % (V(t0), V(a)), 'v_rndne_f32 %s, %s' % (V(t1), V(th)), 'v_sub_f32 %s, %s, %s' % (V(t1), V(th), V(t1))]
        else:
            o = ['v_mul_f32 %s, %s, %s' % (V(t0), n, V(a)), 'v_mul_f32 %s, %s, %s' % (V(dst), n, V(th)), 'v_exp_f32 %s, %s' % (V(t0), V(t0)),
                 'v_rndne_f32 %s, %s' % (V(t1), V(dst)), 'v_sub_f32 %s, %s, %s' % (V(t1), V(dst), V(t1))]
        return o + ['v_cos_f32 %s, %s' % (V(dst), V(t1)), 'v_sin_f32 %s, %s' % (V(dst+1), V(t1)),
                    'v_mul_f32 %s, %s, %s' % (V(dst), V(t0), V(dst)), 'v_mul_f32 %s, %s, %s' % (V(dst+1), V(t0), V(dst+1))]

    def ssm(self):
        g = self.g; cfg = self.cfg
        ACC = 16
        def acc(u, part, t): return ACC + 16*u + 8*part + t
        L1, CF, L4, L8S = 96, 98, 100, 102
        L8, L128, nL128, LK, vGrp = 136, 157, 139, 214, 216
        def pk(op, d, c, hi, x, y=None, neg=False):
            n = 3 if y is not None else 2
            t = 'v_pk_%s_f32 %s, %s, %s' % (op, V(d, 2), V(c, 2), V(x, 2)) + (', %s' % V(y, 2) if y is not None else '')
            t += ' op_sel:[%d%s] op_sel_hi:[%d%s]' % (hi, ',0'*(n-1), hi, ',1'*(n-1))
            if neg: t += ' neg_lo:[1%s] neg_hi:[1%s]' % (',0'*(n-1), ',0'*(n-1))
            return t
        vXd = [140, 141, 142, 143]; vBd = [144, 145, 146, 147, 148]
        vXr = [149, 150]; vBr = [151, 152, 153, 154]
        vPidx = 155; vHs = 156
        vPr, vPs, vPp, vPd = 217, 218, 159, 13
        BIG = 160
        RAW = 160
        aBF = 0; NF = 14; aXF = 56
        LA = cfg.get('sla', 6); WE = cfg.get('swe', 4); SL = cfg.get('s_sl', 3); RS = 1.4 if SL == 3 else 2.0
        g.label('L_ssm')
        self.x_dma_addr(vXd, True)
        g('s_and_b32 %s, %s, 1' % (S(sT1), S(sWave)))
        g('s_lshl_b32 %s, %s, 1' % (S(sT0), S(sJ1)))
        g('s_add_u32 %s, %s, %s' % (S(sT0), S(sT0), S(sT1)))
        g('s_mul_i32 %s, %s, %d' % (S(sT0), S(sT0), 40*1280))
        g('s_lshl_b32 %s, %s, 6' % (S(sT1), S(sT1)))
        g('v_xor_b32 %s, %s, %s' % (V(vT[4]), S(sT1), V(vT[4])))
        g('v_xor_b32 %s, 64, %s' % (V(vT[5]), V(vT[4])))
        g('v_mul_u32_u24 %s, 1280, %s' % (V(vT[3]), V(vT[0])))
        g('v_add3_u32 %s, %s, %s, %s' % (V(vBd[0]), V(vT[4]), V(vT[3]), S(sT0)))
        g('v_add3_u32 %s, %s, %s, %s' % (V(vT[5]), V(vT[5]), V(vT[3]), S(sT0)))
        for q in range(1, 5):
            g('v_add_u32 %s, %d, %s' % (V(vBd[q]), 8*q*1280 - 1024*(q & 3), V(vT[5] if q & 1 else vBd[0])))
        g('s_lshl_b32 %s, %s, 14' % (S(sMx), S(sWave)))
        g('s_mul_i32 %s, %s, 5120' % (S(sMw), S(sWave)))
        g('s_add_u32 %s, %s, %d' % (S(sMw), S(sMw), S_BR))
        g.do(self.srd_cst(sW, 819200))
        for s in range(1, 10): g.do(self.kb(s))
        tokS = {}
        def dma(s):
            o = ['s_add_u32 m0, %s, %d' % (S(sMx), (s % 4)*4096)]
            for q in range(4): o.append('buffer_load_dwordx4 %s, %s, %s offen offset:%d%s lds' % (V(vXd[q]), S(sX, 4), S(sKb[s]), 1024*q, (' nt' if s < cfg.get('nt0', 0) else '')))
            o.append('s_add_u32 m0, %s, %d' % (S(sMw), (s % 4)*20480))
            nt = ' nt' if s < cfg.get('nt0', 0) else ''
            for q in range(4): o.append('buffer_load_dwordx4 %s, %s, %s offen offset:%d%s lds' % (V(vBd[q]), S(sW, 4), S(sKb[s]), 1024*q, nt))
            o.append('s_add_u32 m0, %s, %d' % (S(sMw), (s % 4)*20480 + 4096))
            def f(): tokS[s] = g('buffer_load_dwordx4 %s, %s, %s offen%s lds' % (V(vBd[4]), S(sW, 4), S(sKb[s]), nt))
            return o + [F(f)]
        g('s_mul_i32 %s, %s, 160' % (S(sT0), S(sJ1)))
        g('v_mul_u32_u24 %s, 13, %s' % (V(vGrp), V(vLane)))
        g('v_lshrrev_b32 %s, 8, %s' % (V(vGrp), V(vGrp)))
        g('v_mul_u32_u24 %s, 20, %s' % (V(vPidx), V(vGrp)))
        g('v_sub_u32 %s, %s, %s' % (V(vPidx), V(vLane), V(vPidx)))
        g('s_mul_i32 %s, %s, 20' % (S(sT1), S(sWave)))
        g('v_add_u32 %s, %s, %s' % (V(vPidx), S(sT1), V(vPidx)))
        g('v_lshl_add_u32 %s, %s, 1, %s' % (V(vT[6]), V(vPidx), S(sT0)))
        self.ptrs_ready()
        g('s_cmp_lt_u32 %s, 2' % S(sWave))
        g('s_cselect_b32 %s, %s, %s' % (S(sW), S(pBre), S(pBim)))
        g('s_cselect_b32 %s, %s, %s' % (S(sW+1), S(pBre+1), S(pBim+1)))
        g.do(dma(0))
        for k, p in enumerate((pLre, pLim, pLdt)): g('global_load_ushort %s, %s, %s' % (V(RAW + k), V(vT[6]), S(p, 2)))
        g.do(self.srd_ptr(sWS, pWs))
        g('s_load_dword %s, %s, 0' % (S(sNonce), S(pWs, 2)))
        d1 = dma(1); n1 = cfg.get('s_n1', 5)
        g.do(d1[:n1])
        g.do(self.warm_flags(0))
        global sWs2
        sWs2 = 93
        sl_, sr_, sf_ = cfg.get('spk', (-1, 1, 4))
        g.do(self.pack_addr(0, vPs, vPr, None))
        if sl_ < 0: self.pack_load(0, vPs)
        g('v_and_b32 %s, 15, %s' % (V(vT[3]), V(vLane)))
        g('v_bfe_u32 %s, %s, 1, 3' % (V(vT[4]), V(vLane)))
        g('v_xor_b32 %s, %s, %s' % (V(vT[4]), V(vT[4]), V(vT[2])))
        g('v_lshlrev_b32 %s, 4, %s' % (V(vT[4]), V(vT[4])))
        g('v_lshl_add_u32 %s, %s, 7, %s' % (V(vT[4]), V(vT[3]), V(vT[4])))
        g('v_add_u32 %s, %s, %s' % (V(vXr[0]), S(sMx), V(vT[4])))
        g('v_xor_b32 %s, 64, %s' % (V(vXr[1]), V(vXr[0])))
        g('v_add_u32 %s, %d, %s' % (V(vBr[0]), S_BR, V(vT[4])))
        g('v_xor_b32 %s, 64, %s' % (V(vBr[1]), V(vBr[0])))
        g('v_add_u32 %s, 40960, %s' % (V(vBr[2]), V(vBr[0])))
        g('v_add_u32 %s, 40960, %s' % (V(vBr[3]), V(vBr[1])))
        PT = BIG + 20
        L_PAR = L_EX + 11264
        setup = self.late_setup(0, vT[0], vT[1], vPp) + self.hbase(5, 48*HKS) + ['v_add_u32 %s, %s, %s' % (V(vHs), S(sKt), V(vL16))]
        setup += self.ks_table(0)
        setup += ['s_lshl_b32 %s, %s, 2' % (S(sT2), S(sWave)), 'v_add_u32 %s, %s, %s' % (V(vT[2]), S(sT2), V(vT[2])),
               'v_lshlrev_b32 %s, 3, %s' % (V(PT), V(vT[2])), 'v_cvt_f32_u32 %s, %s' % (V(PT), V(PT)),
               'v_mul_u32_u24 %s, 640, %s' % (V(vT[2]), V(vT[2])),
               'v_lshlrev_b32 %s, 5, %s' % (V(vT[7]), V(vT[3])), 'v_add_u32 %s, %d, %s' % (V(vT[7]), L_PAR, V(vT[7])),
               'v_lshlrev_b32 %s, 5, %s' % (V(vT[6]), V(vPidx)), 'v_add_u32 %s, %d, %s' % (V(vT[6]), L_PAR, V(vT[6])),
               'v_lshlrev_b32 %s, 3, %s' % (V(vT[3]), V(vT[3])), 'v_add_u32 %s, %d, %s' % (V(vT[3]), L_EX, V(vT[3])),
               'v_add_u32 %s, %s, %s' % (V(vT[2]), V(vT[2]), V(vT[3])),
               'v_lshlrev_b32 %s, 3, %s' % (V(vT[4]), V(vPidx)), 'v_add_u32 %s, %d, %s' % (V(vT[4]), L_EX, V(vT[4])),
               's_mul_i32 %s, %s, 20480' % (S(sT2), S(sJ1)), 's_add_u32 %s, %s, %d' % (S(sT2), S(sT2), WS_EBUF),
               'v_lshlrev_b32 %s, 4, %s' % (V(vT[5]), V(vPidx)), 'v_add_u32 %s, %s, %s' % (V(vT[5]), S(sT2), V(vT[5])),
               's_mul_i32 %s, %s, 1280' % (S(sCo), S(sC1)),
               'v_mul_u32_u24 %s, 640, %s' % (V(PT+1), V(vGrp)), 'v_cvt_f32_u32 %s, %s' % (V(PT+1), V(PT+1))]
        xdl = self.xd_loads(PT + 5)
        if cfg.get('s_xd', 250) < 0: setup += xdl
        g.do(setup)
        g.do(d1[n1:])
        UP = cfg.get('s_up', 2)
        if UP == 3: g.do(dma(2))
        self.stamp(1)
        lr, li, ld = RAW, RAW + 1, RAW + 2
        Q = RAW + 4; l1, cf, l4, a, th = Q, Q+2, Q+4, Q+6, Q+7
        t0, t1, t2, t3 = PT+2, PT+3, PT+4, RAW+3
        par = ['v_lshlrev_b32 %s, 16, %s' % (V(ld), V(ld)), 'v_mul_f32 %s, 0x%x, %s' % (V(ld), LOG2E, V(ld)),
               'v_exp_f32 %s, %s' % (V(ld), V(ld)), 'v_lshlrev_b32 %s, 16, %s' % (V(lr), V(lr)),
               'v_cvt_pk_bf16_f32 %s, %s, %s' % (V(ld), V(ld), V(ld)), 'v_lshlrev_b32 %s, 16, %s' % (V(li), V(li)),
               'v_lshlrev_b32 %s, 16, %s' % (V(ld), V(ld)),
               'v_mul_f32 %s, %s, %s' % (V(a), V(ld), V(lr)), 'v_mul_f32 %s, %s, %s' % (V(th), V(ld), V(li)),
               'v_mul_f32 %s, 0x%x, %s' % (V(a), LOG2E, V(a)), 'v_mul_f32 %s, 0.15915494, %s' % (V(th), V(th))]
        par += self.cpow(l1, a, th, None, t0, t1)
        par += ['v_mul_f32 %s, %s, %s' % (V(t2), V(lr), V(lr)), 'v_fmac_f32 %s, %s, %s' % (V(t2), V(li), V(li)),
                'v_rcp_f32 %s, %s' % (V(t2), V(t2)), 'v_add_f32 %s, -1.0, %s' % (V(t3), V(l1)),
                'v_mul_f32 %s, %s, %s' % (V(t0), V(l1), V(l1)), 'v_mul_f32 %s, %s, %s' % (V(t1), V(l1), V(l1+1)),
                'v_mul_f32 %s, %s, %s' % (V(cf), V(t3), V(lr)), 'v_add_f32 %s, %s, %s' % (V(t2), V(t2), V(t2)),
                'v_fmac_f32 %s, %s, %s' % (V(cf), V(l1+1), V(li)), 'v_mul_f32 %s, %s, %s' % (V(cf+1), V(l1+1), V(lr)),
                'v_fma_f32 %s, -%s, %s, %s' % (V(cf+1), V(t3), V(li), V(cf+1)),
                'v_mul_f32 %s, %s, %s' % (V(cf), V(cf), V(t2)), 'v_mul_f32 %s, %s, %s' % (V(cf+1), V(cf+1), V(t2)),
                'v_fma_f32 %s, -%s, %s, %s' % (V(t0), V(l1+1), V(l1+1), V(t0)), 'v_add_f32 %s, %s, %s' % (V(t1), V(t1), V(t1)),
                'v_mul_f32 %s, %s, %s' % (V(l4), V(t0), V(t0)), 'v_mul_f32 %s, %s, %s' % (V(l4+1), V(t0), V(t1)),
                'v_fma_f32 %s, -%s, %s, %s' % (V(l4), V(t1), V(t1), V(l4)), 'v_add_f32 %s, %s, %s' % (V(l4+1), V(l4+1), V(l4+1))]
        par += self.cpow(L8, a, th, '0x41000000', t0, t1) + self.cpow(L128, a, th, '0x43000000', t0, t1)
        par += ['v_sub_f32 %s, 0, %s' % (V(L8+2), V(L8+1)), 'v_sub_f32 %s, 0, %s' % (V(nL128), V(L128+1))]
        par += self.cpow(LK, a, th, V(PT+1), t0, t1)
        par_w = ['ds_write_b128 %s, %s' % (V(vT[6]), V(Q, 4)), 'ds_write_b128 %s, %s offset:16' % (V(vT[6]), V(Q+4, 4))]
        par_r = ['ds_read_b128 %s, %s offset:%d' % (V(L1 + 8*u + 4*h, 4), V(vT[7]), 512*u + 16*h) for u in range(5) for h in range(2)]
        par2 = []
        for u in range(5): par2 += self.cpow(L8S + 8*u, L8S + 8*u, L8S + 8*u + 1, V(PT), t0, t1)

        mains = []; fixed = []
        tokF = {}; tokP = {}
        def rd_b(f_):
            sg, s, up = f_ // 20, (f_ % 20)//10, f_ % 10
            u, part = up // 2, up % 2
            def f():
                if cfg.get('s_nord'): tokF[f_] = None; return
                tokF[f_] = g('ds_read_b128 %s, %s offset:%d' % (A(aBF + 4*(f_ % NF), 4), V(vBr[2*((sg % 4)//2) + s]), (sg % 2)*20480 + (part*80 + 16*u)*128))
            return F(f)
        def bar(sg):
            def f():
                g.wait(tokS[sg], tokF.get(20*sg-1) if (SL == 3 and sg + SL <= 9) else None, tokP.get(sg))
                g('s_barrier')
                if sg == 0: self.stamp(2)
                if sg in (2, 4, 6, 8, 9): self.stamp(20 + (2, 4, 6, 8, 9).index(sg), lvl=3)
                if cfg.get('allbar') and sg > 0: self.stamp(19 + sg)
            return F(f, 8)
        for n in range(400):
            f_, m = n // 2, n % 2
            kk, up = f_ // 10, f_ % 10
            u, part = up // 2, up % 2
            d = acc(u, part, 4*m)
            c = '0' if kk == 0 else V(d, 4)
            mains.append(('v_mfma_f32_16x16x32_bf16 %s, %s, %s, %s' % (V(d, 4), A(aXF + 8*(kk % 2) + 4*m, 4), A(aBF + 4*(f_ % NF), 4), c),
                          (lambda f_=f_: [tokF[min(f_+WE-1, 199)]]) if (m == 0 and f_ % WE == 0) else None))
        endb = {}
        for sg in range(10):
            p = 40*sg - 2*LA
            fixed.append((p - 1.5, bar(sg)))
            if sg + SL <= 9:
                d = dma(sg+SL)
                if sg == 0 and UP < SL: d = dma(2) + d
                stp = 36.0/len(d) if len(d) > 12 else 2
                for i, f in enumerate(d): fixed.append((p + 1 + stp*i, f))
                endb[sg] = p + 1 + stp*len(d)
        for f_ in range(200):
            pos = 40*(f_//20) - 2*LA + RS*(f_ % 20)
            if f_ % 10 == 0:
                kk = f_//10; sg, s = kk // 2, kk % 2
                for m in range(2):
                    fixed.append((max(pos - 1, 20*kk - 19) + 0.1*m, 'ds_read_b128 %s, %s offset:%d' % (A(aXF + 8*(kk % 2) + 4*m, 4), V(vXr[s]), (sg % 4)*4096 + 2048*m)))
            fixed.append((pos, rd_b(f_)))
        b2 = [] if cfg.get('s_nob2') else self.b2_loads(0, range(10))
        if sl_ >= 0: fixed.append((endb[sl_], F(lambda: self.pack_load(0, vPs), 32)))
        pa_, pb_ = self.pack_proc(0, vPr)
        for i, f in enumerate(pa_): fixed.append((endb[sr_] - 12 + i, f))
        for i, f in enumerate(pb_): fixed.append((endb[sr_] + i, f))
        pw = max(sr_ + 1, 2)
        sA = Stream(self.nonce_ops() + par, 2, 40*pw - 2*LA - 3)
        def parw():
            sA.flush(g); tokP[pw+1] = g.do(par_w)
        fixed.append((40*pw - 2*LA + 2, F(parw, 8)))
        for i, f in enumerate(par_r): fixed.append((40*(pw+1) - 2*LA + 21 + 1.4*i, f))
        fixed.append((40*sf_ - 2*LA - 1.4, F(lambda: self.flag_store(self.tPackSt, sPD), 8)))
        pc = cfg.get('s_pc', 280); nb_in = cfg.get('s_b2in', 36) if pc < 400 else 0
        fixed.append((pc - 40, F(lambda: self.pack_poll_issue(vPp, vPd))))
        if pc < 400: fixed.append((pc, F(lambda: self.pack_poll_check(vPp, vPd), 20)))
        streams = [Stream(b2[:nb_in], pc + 1, 398, paced=True, slack=4), sA,
                   Stream(self.line_addr(WS_HFLAG, vFa), 40*sf_, 40*sf_ + 20), Stream(par2, 40*(pw+2), 390)]
        if cfg.get('s_xd', 250) >= 0: streams.append(Stream(xdl, cfg.get('s_xd', 250), cfg.get('s_xd', 250) + 100))
        assert sf_ >= pw
        b2 = b2[nb_in:]
        if cfg.get('s_nomf'): mains = [('s_nop 0', None)]*400; fixed = [f for f in fixed if not (isinstance(f[1], str) and 'ds_read' in f[1])]
        if cfg.get('s_nostream'): streams = [streams[0]]
        sched(g, mains, 8, fixed, streams, report=self.rep and 'ssm')
        self.stamp(3)

        pace = cfg.get('s_pace', 144)
        II, EB, EM = 160, 180, 200
        pr = lambda u, part, k: ACC + 16*u + 8*part + 2*k
        ops = []
        for k in range(1, 4):
            src = lambda u, part: (pr(u, part, 0) if k == 1 else (II if k == 2 else EB) + 4*u + 2*part)
            dst = lambda u, part: (EB if k == 2 else II) + 4*u + 2*part
            for u in range(5):
                ops += [pk('fma', dst(u, 0), L1+8*u, 0, src(u, 0), pr(u, 0, k)), pk('fma', dst(u, 1), L1+8*u, 0, src(u, 1), pr(u, 1, k))]
            for u in range(5):
                ops += [pk('fma', dst(u, 0), L1+8*u, 1, src(u, 1), dst(u, 0), True), pk('fma', dst(u, 1), L1+8*u, 1, src(u, 0), dst(u, 1))]
        for u in range(5):
            ops += ['v_fma_f32 %s, %s, %s, %s' % (V(EM+2*u), V(L4+8*u), V(II+4*u), V(II+4*u+1)),
                    'v_fma_f32 %s, %s, %s, %s' % (V(EM+2*u+1), V(L4+8*u), V(II+4*u+2), V(II+4*u+3))]
        for u in range(5):
            ops += ['v_fma_f32 %s, -%s, %s, %s' % (V(EM+2*u), V(L4+8*u+1), V(II+4*u+2), V(EM+2*u)),
                    'v_fmac_f32 %s, %s, %s' % (V(EM+2*u+1), V(L4+8*u+1), V(II+4*u)),
                    'ds_write_b64 %s, %s offset:%d' % (V(vT[2]), V(EM + 2*u, 2), 128*u)]
        ops.append(F(lambda: (self.cst(17), g.waitcnt(lg=0), g('s_barrier'), self.cst(18))))
        P = BIG + 20
        for s in range(16): ops.append('ds_read_b64 %s, %s offset:%d' % (V(P + 2*s, 2), V(vT[4]), 640*s))
        ops += ['v_mov_b32 %s, %s' % (V(P+32), S(sNonce)), 'v_mov_b32 %s, %s' % (V(P+33), S(sNonce))]
        for s in range(1, 16):
            a, b = P + 2*s, P + 2*(s-1)
            ops += ['v_fmac_f32 %s, %s, %s' % (V(a), V(L8), V(b)), 'v_fmac_f32 %s, %s, %s' % (V(a+1), V(L8), V(b+1)),
                    'v_fmac_f32 %s, %s, %s' % (V(a), V(L8+2), V(b+1)), 'v_fmac_f32 %s, %s, %s' % (V(a+1), V(L8+1), V(b))]
        ops.append('buffer_store_dwordx4 %s, %s, %s, %s offen sc1' % (V(P+30, 4), V(vT[5]), S(sWS, 4), S(sCo)))
        if pc < 400: b2 = mix(g, ops, b2, every=cfg.get('s_pace1', 72))
        else: g.do(ops)
        self.stamp(4)
        ops = ['v_mov_b32 %s, 0' % V(vT[6]), 'v_mov_b32 %s, 0' % V(vT[7]), 'ds_write_b64 %s, %s' % (V(vT[4]), V(vT[6], 2)),
               'ds_write_b64 %s, %s offset:10240' % (V(vT[4]), V(vT[6], 2))]
        for s in range(1, 16): ops.append('ds_write_b64 %s, %s offset:%d' % (V(vT[4]), V(P + 2*(s-1), 2), 640*s))
        g.do(ops)
        self.cst(11)
        GQ = [180 + 4*i for i in range(10)]
        GX = lambda i: GQ[i//4] + i % 4
        GW = lambda i: GQ[5 + i//4] + i % 4
        gate_ld = ['s_lshl_b32 %s, %s, 3' % (S(sT0), S(sC1)), 's_add_u32 %s, %s, %s' % (S(sT0), S(sT0), S(sJ1)),
              's_lshl_b32 %s, %s, 4' % (S(sT0), S(sT0)),
              'v_lshrrev_b32 %s, 4, v0' % V(vT[8]), 'v_add_u32 %s, %s, %s' % (V(vT[8]), S(sT0), V(vT[8])),
              'v_and_b32 %s, 15, %s' % (V(vT[0]), V(vLane)), 'v_lshlrev_b32 %s, 4, %s' % (V(vT[0]), V(vT[0])),
              'v_mul_u32_u24 %s, 1280, %s' % (V(vT[1]), V(vT[8])), 'v_add_u32 %s, %s, %s' % (V(vT[1]), V(vT[1]), V(vT[0]))]
        for i in range(5):
            gate_ld.append('buffer_load_dwordx4 %s, %s, %s, 0 offen offset:%d' % (V(GQ[i], 4), V(vT[1]), S(sX, 4), 256*i))
            gate_ld.append('global_load_dwordx4 %s, %s, %s offset:%d' % (V(GQ[5+i], 4), V(vT[0]), S(pGate, 2), 256*i))
        TT = 16
        Z = TT + 8; ONE = TT + 9
        ops = ['v_mov_b32 %s, 0' % V(Z), 'v_mov_b32 %s, 0x3f803f80' % V(ONE), 's_mov_b32 %s, 0xffff0000' % S(sT1)]
        for i in range(20):
            x, w = V(GX(i)), V(GW(i))
            a, b, c, d = (V(TT + k + 4*(i % 2)) for k in range(4))
            ops += ['v_lshlrev_b32 %s, 16, %s' % (a, x), 'v_and_b32 %s, %s, %s' % (b, S(sT1), x),
                    'v_lshlrev_b32 %s, 16, %s' % (c, w), 'v_and_b32 %s, %s, %s' % (d, S(sT1), w),
                    'v_mul_f32 %s, %s, %s' % (a, a, c), 'v_mul_f32 %s, %s, %s' % (b, b, d),
                    'v_cvt_pk_bf16_f32 %s, %s, %s' % (a, a, b),
                    'v_dot2_f32_bf16 %s, %s, %s, %s' % (V(Z), a, V(ONE), V(Z))]
        for k in (8, 4, 2, 1):
            ops.append('v_add_f32_dpp %s, %s, %s row_ror:%d row_mask:0xf bank_mask:0xf' % (V(Z), V(Z), V(Z), k))
        G4 = 32
        ops += ['v_cvt_pk_bf16_f32 %s, %s, %s' % (V(Z), V(Z), V(Z)), 'v_lshlrev_b32 %s, 16, %s' % (V(Z), V(Z)),
                'v_mul_f32 %s, 0x%x, %s' % (V(Z), NLOG2E, V(Z)), 'v_exp_f32 %s, %s' % (V(Z), V(Z)),
                'v_mov_b32 %s, %s' % (V(G4+1), S(sNonce)),
                'v_add_f32 %s, 1.0, %s' % (V(Z), V(Z)), 'v_rcp_f32 %s, %s' % (V(Z), V(Z)),
                'v_mov_b32 %s, %s' % (V(G4+3), S(sNonce)),
                'v_cvt_pk_bf16_f32 %s, %s, %s' % (V(Z), V(Z), V(Z)), 'v_lshlrev_b32 %s, 16, %s' % (V(G4), V(Z)),
                'v_sub_f32 %s, 1.0, %s' % (V(ONE), V(G4)),
                'v_cvt_pk_bf16_f32 %s, %s, %s' % (V(ONE), V(ONE), V(ONE)), 'v_lshlrev_b32 %s, 16, %s' % (V(G4+2), V(ONE)),
                'v_lshlrev_b32 %s, 4, %s' % (V(vT[8]), V(vT[8])), 'v_add_u32 %s, %d, %s' % (V(vT[8]), WS_GATE, V(vT[8])),
                'buffer_store_dwordx4 %s, %s, %s, 0 offen sc1' % (V(G4, 4), V(vT[8]), S(sWS, 4))]
        gate_ops = ops
        ops = []
        TT = 150
        for u in range(5):
            cf = CF + 8*u
            for k0 in (0, 2):
                for k in (k0, k0+1): ops.append(pk('mul', TT + 2*(k % 2), cf, 1, pr(u, 0, k)))
                for k in (k0, k0+1): ops.append(pk('mul', pr(u, 0, k), cf, 0, pr(u, 0, k)))
                for k in (k0, k0+1): ops.append(pk('fma', pr(u, 0, k), cf, 1, pr(u, 1, k), pr(u, 0, k), True))
                for k in (k0, k0+1): ops.append(pk('fma', pr(u, 1, k), cf, 0, pr(u, 1, k), TT + 2*(k % 2)))
            ops += ['v_mul_f32 %s, %s, %s' % (V(II+4*u+1), V(cf), V(II+4*u)), 'v_mul_f32 %s, %s, %s' % (V(II+4*u+3), V(cf), V(II+4*u+2)),
                    'v_fma_f32 %s, -%s, %s, %s' % (V(II+4*u+1), V(cf+1), V(II+4*u+2), V(II+4*u+1)),
                    'v_fmac_f32 %s, %s, %s' % (V(II+4*u+3), V(cf+1), V(II+4*u))]
        coef_ops = ops
        vGa, vTe, GR = 140, 145, 180
        ops = ['v_mul_u32_u24 %s, 5, %s' % (V(vGrp), V(vGrp)), 'v_sub_u32 %s, %s, %s' % (V(vGrp), S(sC1), V(vGrp)),
               ['v_cmp_gt_u32 vcc, 60, %s' % V(vLane), 'v_cndmask_b32 %s, 0, %s, vcc' % (V(vGrp), V(vGrp))],
               'v_mul_i32_i24 %s, 1280, %s' % (V(vT[0]), V(vGrp)), 'v_add_u32 %s, %s, %s' % (V(vT[0]), V(vT[0]), V(vT[5])),
               'v_mov_b32 %s, 0x7f000000' % V(vT[1])]
        for i in range(5):
            ops += ['v_subrev_u32 %s, %d, %s' % (V(vGa+i), 1280*(i+1), V(vT[0])),
                    ['v_cmp_lt_i32 vcc, %d, %s' % (i, V(vGrp)), 'v_cndmask_b32 %s, %s, %s, vcc' % (V(vGa+i), V(vT[1]), V(vGa+i)),
                     'v_cndmask_b32 %s, 0, %s, vcc' % (V(vTe+i), V(vFd))]]
        nc = cfg.get('s_gat', 20)
        g.do(ops + coef_ops[:nc])
        self.stamp(5)
        def gather():
            for i in range(5):
                g('buffer_load_dwordx3 %s, %s, %s, 0 offen sc1' % (V(GR + 4*i, 3), V(vGa+i), S(sWS, 4)))
        def gcheck():
            for i in range(4, -1, -1):
                g('v_xor_b32 %s, %s, %s' % (V(vT[0] if i == 4 else vT[1]), V(vTe+i), V(GR + 4*i + 2)))
                if i < 4: g('v_or_b32 %s, %s, %s' % (V(vT[0]), V(vT[0]), V(vT[1])))
            g('v_cmp_ne_u32 vcc, 0, %s' % V(vT[0]))
            g('s_nop 0')
            g('s_cmp_eq_u64 vcc, 0')
        if pc >= 400: self.pack_poll_check(vPp, vPd)
        gather()
        b2 = mix(g, coef_ops[nc:], b2, every=cfg.get('s_pace3', 72))
        g('v_and_b32 %s, 15, %s' % (V(vT[6]), V(vLane)))
        g('v_mul_u32_u24 %s, 80, %s' % (V(vT[6]), V(vT[6])))
        g('v_lshrrev_b32 %s, 4, %s' % (V(vT[7]), V(vLane)))
        g('v_lshl_add_u32 %s, %s, 4, %s' % (V(vT[6]), V(vT[7]), V(vT[6])))
        g('v_add_u32 %s, %s, %s' % (V(vT[6]), S(sMx), V(vT[6])))
        g('v_bfe_u32 %s, %s, 2, 2' % (V(vT[8]), V(vLane)))
        g('v_lshl_add_u32 %s, %s, 3, %s' % (V(vT[7]), V(vT[7]), V(vT[8])))
        g('v_mul_u32_u24 %s, 80, %s' % (V(vT[7]), V(vT[7])))
        g('v_and_b32 %s, 3, %s' % (V(vT[8]), V(vLane)))
        g('v_lshl_add_u32 %s, %s, 3, %s' % (V(vT[7]), V(vT[8]), V(vT[7])))
        g('v_add_u32 %s, %s, %s' % (V(vT[7]), S(sMx), V(vT[7])))
        self.cst(12)
        self.poll('carry', gather, gcheck)
        self.stamp(6)
        ops = []
        for d in range(4, 0, -1):
            a, b = GR + 4*(d-1), GR + 4*d
            ops += ['v_fmac_f32 %s, %s, %s' % (V(a), V(L128), V(b)), 'v_fmac_f32 %s, %s, %s' % (V(a+1), V(L128), V(b+1)),
                    'v_fmac_f32 %s, %s, %s' % (V(a), V(nL128), V(b+1)), 'v_fmac_f32 %s, %s, %s' % (V(a+1), V(L128+1), V(b))]
        ops += ['v_mul_f32 %s, %s, %s' % (V(GR+4), V(LK), V(GR)), 'v_mul_f32 %s, %s, %s' % (V(GR+5), V(LK), V(GR+1)),
                'v_fma_f32 %s, -%s, %s, %s' % (V(GR+4), V(LK+1), V(GR+1), V(GR+4)), 'v_fmac_f32 %s, %s, %s' % (V(GR+5), V(LK+1), V(GR)),
                'ds_add_f32 %s, %s offset:10240' % (V(vT[4]), V(GR+4)), 'ds_add_f32 %s, %s offset:10244' % (V(vT[4]), V(GR+5))]
        ops.append(F(lambda: (g.waitcnt(lg=0), g('s_barrier'))))
        SS, PP = 200, 210
        for u in range(5):
            ops.append('ds_read_b64 %s, %s offset:%d' % (V(SS + 2*u, 2), V(vT[3]), 10240 + 128*u))
            ops.append('ds_read_b64 %s, %s offset:%d' % (V(PP + 2*u, 2), V(vT[2]), 128*u))
        b2 = mix(g, ops, b2, every=pace)
        self.cst(13)
        ops = []
        for u in range(5):
            ops += ['v_fmac_f32 %s, %s, %s' % (V(PP+2*u), V(L8S+8*u), V(SS+2*u)), 'v_fmac_f32 %s, %s, %s' % (V(PP+2*u+1), V(L8S+8*u), V(SS+2*u+1))]
        for u in range(5):
            ops += ['v_fma_f32 %s, -%s, %s, %s' % (V(PP+2*u), V(L8S+8*u+1), V(SS+2*u+1), V(PP+2*u)), 'v_fmac_f32 %s, %s, %s' % (V(PP+2*u+1), V(L8S+8*u+1), V(SS+2*u))]
        for u in range(5):
            ops += ['v_mul_f32 %s, %s, %s' % (V(II+4*u), V(CF+8*u), V(PP+2*u)), 'v_mul_f32 %s, %s, %s' % (V(II+4*u+2), V(CF+8*u), V(PP+2*u+1))]
        for u in range(5):
            ops += ['v_fma_f32 %s, -%s, %s, %s' % (V(II+4*u), V(CF+8*u+1), V(PP+2*u+1), V(II+4*u)), 'v_fmac_f32 %s, %s, %s' % (V(II+4*u+2), V(CF+8*u+1), V(PP+2*u))]
        for u in range(5):
            ops += ['v_fmac_f32 %s, %s, %s' % (V(II+4*u+1), V(L4+8*u), V(II+4*u)), 'v_fmac_f32 %s, %s, %s' % (V(II+4*u+3), V(L4+8*u), V(II+4*u+2))]
        for u in range(5):
            ops += ['v_fma_f32 %s, -%s, %s, %s' % (V(II+4*u+1), V(L4+8*u+1), V(II+4*u+2), V(II+4*u+1)), 'v_fmac_f32 %s, %s, %s' % (V(II+4*u+3), V(L4+8*u+1), V(II+4*u))]
        PKB = [104, 140]
        FRB = [148, 96]
        def scan_ops(us):
            o = []
            for k in range(4):
                pv = lambda u, part: (II + 4*u + 2*part if k == 0 else pr(u, part, k-1))
                for u in us:
                    o += [pk('fma', pr(u, 0, k), L1+8*u, 0, pv(u, 0), pr(u, 0, k)), pk('fma', pr(u, 1, k), L1+8*u, 0, pv(u, 1), pr(u, 1, k))]
                for u in us:
                    o += [pk('fma', pr(u, 0, k), L1+8*u, 1, pv(u, 1), pr(u, 0, k), True), pk('fma', pr(u, 1, k), L1+8*u, 1, pv(u, 0), pr(u, 1, k))]
            return o
        tp = lambda i: (0, 4, 1, 5)[i]
        def out_a(u):
            o = []
            pk = PKB[u % 2]
            for i in range(4): o.append('v_cvt_pk_bf16_f32 %s, %s, %s' % (V(pk+i), V(acc(u, 0, tp(i))), V(acc(u, 0, tp(i)+2))))
            o.append('ds_write_b128 %s, %s offset:%d' % (V(vT[6]), V(pk, 4), 2560*u))
            for i in range(4): o.append('v_cvt_pk_bf16_f32 %s, -%s, -%s' % (V(pk+4+i), V(acc(u, 1, tp(i))), V(acc(u, 1, tp(i)+2))))
            o.append('ds_write_b128 %s, %s offset:%d' % (V(vT[6]), V(pk+4, 4), 2560*u + 1280))
            fr = FRB[u % 2]
            for m in range(2):
                for e in range(2):
                    o.append('ds_read_b64_tr_b16 %s, %s offset:%d' % (V(fr + 4*m + 2*e, 2), V(vT[7]), 2560*u + 320*e + 32*m))
            return o
        def out_b(u):
            fr = FRB[u % 2]
            def f():
                for m in range(2):
                    self.tH = g('buffer_store_dwordx4 %s, %s, %s, 0 offen offset:%d%s' % (V(fr + 4*m, 4), V(vHs), S(sH, 4), 1024*m, cfg.get('hst', ' sc1')))
                g('v_add_u32 %s, %d, %s' % (V(vHs), HKS, V(vHs)))
            return F(f, 12)
        def ilv(a, b):
            o = []; k = 0
            for i, x in enumerate(a):
                o.append(x)
                while k < len(b) and k*len(a) < (i+1)*len(b): o.append(b[k]); k += 1
            return o
        ops += scan_ops([0, 1]) + out_a(0) + gate_ld + ilv(scan_ops([2]), out_a(1)) + [out_b(0)] \
            + ilv(scan_ops([3]), out_a(2)) + [out_b(1)] + ilv(scan_ops([4]), out_a(3)) + [out_b(2)] + out_a(4) + [out_b(3)] + self.hp_addr(0) + [out_b(4)]
        rest = mix(g, ops, b2, every=pace)
        tH = self.tH
        self.cst(14)
        rest = mix(g, gate_ops, rest, every=cfg.get('s_pace2', 144), lead=cfg.get('s_lead2', 300))
        self.cst(15)
        self.hflag(0, 0, tH)
        self.stamp(7)
        n2 = cfg.get('s_b2post', 0)
        while any(3 + 4*i > 20*((50 - len(rest) + n2 + i)//5) - 30 for i in range(len(rest) - n2)): n2 += 1
        self.hpoll(0, 0)
        g.do(rest[:n2])
        self.phase2(0, rest[n2:], None)

    RD, XD, GA, GB = 160, 192, 212, 222
    RXA, RXB, DS = 222, 232, 242
    vGr, T = 160, 180
    vHp, vHd, vRw, vXf = 4, 5, 6, 252
    vRd = [7, 8, 9, 10, 11]; vOa = [12, 13, 14, 15, 0]
    def hp_addr(self, role):
        vHp, vHd = self.vHp, self.vHd
        return ['s_and_b32 %s, %s, 0x63' % (S(sT0), S(sIdx)), 's_lshl_b32 %s, %s, 3' % (S(sT1), S(sWave)),
                's_add_u32 %s, %s, %s' % (S(sT0), S(sT0), S(sT1)), 's_lshl_b32 %s, %s, %d' % (S(sT0), S(sT0), self.fg),
                's_add_u32 %s, %s, %d' % (S(sT0), S(sT0), WS_HFLAG + role*(128 << self.fg)),
                'v_bfe_u32 %s, %s, 2, 1' % (V(vHp), V(vLane)), 'v_lshlrev_b32 %s, %d, %s' % (V(vHp), self.fg + 2, V(vHp)),
                'v_and_b32 %s, 3, %s' % (V(vHd), V(vLane)), 'v_lshl_add_u32 %s, %s, %d, %s' % (V(vHp), V(vHd), self.fw, V(vHp)),
                'v_add_u32 %s, %s, %s' % (V(vHp), S(sT0), V(vHp))]
    def hp(self, off=0): self.g('buffer_load_dword %s, %s, %s, 0 offen sc1' % (V(self.vHd), V(self.vHp), S(sWS, 4)))
    def gload(self, role, q, h):
        return 'buffer_load_dwordx2 %s, %s, %s, 0 offen offset:%d sc1' % (V((self.GA if h == role else self.GB) + 2*q, 2), V(self.vGr + q), S(sWS, 4), 1024*h)

    def p2_setup(self, role):
        T, vRd, vOa, vGr, vRw, DS, RXA, RXB = self.T, self.vRd, self.vOa, self.vGr, self.vRw, self.DS, self.RXA, self.RXB
        sXo, sXi, sM = sItem, sMx, sMw
        ops = ['s_lshl_b32 %s, %s, 3' % (S(sT0), S(sC1)), 's_add_u32 %s, %s, %s' % (S(sT0), S(sT0), S(sWave)),
               's_lshl_b32 %s, %s, 4' % (S(sT0), S(sT0)),
               's_mul_i32 %s, %s, 160' % (S(sT1), S(sJ1)), 's_mul_i32 %s, %s, 5440' % (S(sT2), S(sWave)),
               's_mov_b32 %s, 0xffff0000' % S(sM), 's_mov_b32 %s, 81920' % S(sT3)]
        gload = lambda q, h: self.gload(role, q, h)
        for q in range(5):
            e, row, ch, t3 = V(T), V(T+1), V(T+2), V(T+3)
            ops += ['v_add_u32 %s, %d, %s' % (e, 64*q, V(vLane)),
                    'v_mul_u32_u24 %s, 3277, %s' % (row, e), 'v_lshrrev_b32 %s, 16, %s' % (row, row),
                    'v_mul_u32_u24 %s, 20, %s' % (ch, row), 'v_sub_u32 %s, %s, %s' % (ch, e, ch),
                    'v_lshrrev_b32 %s, 2, %s' % (t3, ch), 'v_mul_u32_u24 %s, 1088, %s' % (V(vRd[q]), t3),
                    'v_and_b32 %s, 3, %s' % (t3, ch), 'v_mul_u32_u24 %s, 272, %s' % (t3, t3),
                    'v_add3_u32 %s, %s, %s, %s' % (V(vRd[q]), V(vRd[q]), t3, S(sT2)),
                    'v_lshl_add_u32 %s, %s, 4, %s' % (V(vRd[q]), row, V(vRd[q])),
                    'v_add_u32 %s, %s, %s' % (row, S(sT0), row),
                    'v_lshl_add_u32 %s, %s, 3, %s' % (ch, ch, S(sT1)),
                    'v_mul_u32_u24 %s, 1280, %s' % (e, row), 'v_add_u32 %s, %s, %s' % (e, e, ch)]
            if role == 0: ops.append('v_add_u32 %s, %s, %s' % (e, S(sT3), e))
            ops += ['v_lshlrev_b32 %s, 1, %s' % (V(vOa[q]), e),
                    'v_lshlrev_b32 %s, 4, %s' % (row, row), 'v_add_u32 %s, %d, %s' % (V(vGr + q), WS_GATE + 8*role, row)]
        ops += ['s_mul_i32 %s, %s, 21760' % (S(sT0), S(sWave)),
                'v_lshrrev_b32 %s, 4, %s' % (V(vRw), V(vLane)), 'v_mul_u32_u24 %s, 272, %s' % (V(vRw), V(vRw)),
                'v_and_b32 %s, 15, %s' % (V(T+1), V(vLane)), 'v_lshl_add_u32 %s, %s, 4, %s' % (V(vRw), V(T+1), V(vRw)),
                'v_add_u32 %s, %s, %s' % (V(vRw), S(sT0), V(vRw)),
                's_lshl_b32 %s, %s, 2' % (S(sT0), S(sIdx)), 's_add_u32 %s, %s, %s' % (S(sT0), S(sT0), S(sWave)),
                's_mul_i32 %s, %s, 5120' % (S(sT0), S(sT0)),
                's_add_u32 %s, %s, 0x%x' % (S(sXo), S(sT0), WS_X + role*128*20480), 's_add_u32 %s, %s, 0x%x' % (S(sXi), S(sT0), WS_X + (1-role)*128*20480)]
        ops += self.line_addr(WS_XFLAG, self.vXf)
        return ops

    def xd_ops(self, RX):
        T, DS, XD, sM = self.T, self.DS, self.XD, sMw
        o = []
        for q in range(5):
            for h in range(2):
                x, d = V(RX + 2*q + h), V(DS + 2*q + h)
                a, b, c, dd = V(T), V(T+1), V(T+2), V(T+3)
                o += ['v_lshlrev_b32 %s, 16, %s' % (a, x), 'v_and_b32 %s, %s, %s' % (b, S(sM), x),
                      'v_lshlrev_b32 %s, 16, %s' % (c, d), 'v_and_b32 %s, %s, %s' % (dd, S(sM), d),
                      'v_mul_f32 %s, %s, %s' % (a, a, c), 'v_mul_f32 %s, %s, %s' % (b, b, dd),
                      'v_cvt_pk_bf16_f32 %s, %s, %s' % (a, a, b),
                      'v_lshlrev_b32 %s, 16, %s' % (V(XD + 4*q + 2*h), a), 'v_and_b32 %s, %s, %s' % (V(XD + 4*q + 2*h + 1), S(sM), a)]
        return o

    def xd_loads(self, T):
        o = ['s_lshl_b32 %s, %s, 3' % (S(sT3), S(sC1)), 's_add_u32 %s, %s, %s' % (S(sT3), S(sT3), S(sWave)),
             's_lshl_b32 %s, %s, 4' % (S(sT3), S(sT3)), 's_mul_i32 %s, %s, 160' % (S(sT1), S(sJ1)), 's_mov_b32 %s, 81920' % S(sT0)]
        for q in range(5):
            e, row, ch = V(T), V(T+1), V(T+2)
            o += ['v_add_u32 %s, %d, %s' % (e, 64*q, V(vLane)),
                  'v_mul_u32_u24 %s, 3277, %s' % (row, e), 'v_lshrrev_b32 %s, 16, %s' % (row, row),
                  'v_mul_u32_u24 %s, 20, %s' % (ch, row), 'v_sub_u32 %s, %s, %s' % (ch, e, ch),
                  'v_add_u32 %s, %s, %s' % (row, S(sT3), row), 'v_lshl_add_u32 %s, %s, 3, %s' % (ch, ch, S(sT1)),
                  'v_mul_u32_u24 %s, 1280, %s' % (e, row), 'v_add_u32 %s, %s, %s' % (e, e, ch),
                  'global_load_dwordx2 %s, %s, %s' % (V(self.DS + 2*q, 2), ch, S(pDsk, 2)),
                  'buffer_load_dwordx2 %s, %s, %s, 0 offen' % (V(self.RXA + 2*q, 2), e, S(sX, 4)),
                  'buffer_load_dwordx2 %s, %s, %s, %s offen' % (V(self.RXB + 2*q, 2), e, S(sX, 4), S(sT0))]
        return o

    def phase2(self, role, b2rest, tH2):
        g = self.g; cfg = self.cfg
        tb, ta = tabs(role); NS = len(tb)
        hA, hB = (1, 0) if role else (0, 1)
        vHp, vHd, vRw, vRd, vOa, vXf, vXv = self.vHp, self.vHd, self.vRw, self.vRd, self.vOa, self.vXf, vFd
        RD, GA, GB, XD, RXB, DS, vGr, RXA, T = self.RD, self.GA, self.GB, self.XD, self.RXB, self.DS, self.vGr, self.RXA, self.T
        sXo, sXi, sM = sItem, sMx, sMw
        hp = lambda: self.hp(0)
        gload = lambda q, h: self.gload(role, q, h)
        def a2(n):
            half = hA if n < NS else hB
            return ['buffer_load_dwordx4 %s, %s, %s, %s offen offset:%d%s' % (V(A2R + 16*(n % 4) + 4*rt, 4), V(vL16b if half else vL16), S(sH, 4), S(ta[0 if cfg.get('x_a2same') else n % NS]), 1024*rt, cfg.get('a2sc', ' sc1')) for rt in range(4)]
        mains = []; fixed = []
        def tile(rt, nt): return ACC2 + 4*(rt*5 + nt)
        for n in range(2*NS):
            base = B2slot(role, n % NS)
            for rt in range(4):
                for nt in range(5):
                    c = '0' if n % NS == 0 else V(tile(rt, nt), 4)
                    mains.append(('v_mfma_f32_16x16x32_bf16 %s, %s, %s, %s' % (V(tile(rt, nt), 4), A(base + 4*nt, 4), V(A2R + 16*(n % 4) + 4*rt, 4), c), None))
        for n in range(2*NS - 3):
            for i, f in enumerate(a2(n+3)): fixed.append((20*n + 1 + 5*i, f))
        PA, PE = 20*NS, 40*NS
        for k, p in enumerate((20, 80, 140, PA, PA + 40, PA + 100, PA + 140, PE - 60)): fixed.append((p - 0.1, F(lambda k=k: self.stamp(11+k, lvl=3), 0)))
        self.cst(16)
        self.hcheck(role, 0)
        self.stamp(8)
        for n in range(3): g.do(a2(n))
        ops = self.p2_setup(role)
        if role == 1:
            fixed.append((cfg.get('f_l2', 6), F(lambda: self.hflag(1, 2, tH2), 20)))
            fixed.append((cfg.get('f_p1', 44), F(lambda: self.hpoll(1, 1), 8)))
            fixed.append((60.5, F(lambda: self.hcheck(1, 1), 20)))
            fixed.append((cfg.get('f_p2', 84), F(lambda: self.hpoll(1, 2), 8)))
            fixed.append((100.5, F(lambda: self.hcheck(1, 2), 20)))
        fixed.append((102, 'v_xor_b32 %s, %d, %s' % (V(vHp), 128 << self.fg, V(vXf))))
        fixed.append((cfg.get('p2bar', 150), 's_barrier'))
        nb0 = 5*NS - len(b2rest)
        for i, f in enumerate(b2rest):
            p = 3 + 4*i
            assert p <= 20*((nb0 + i)//5) - 30 or cfg.get('bad'), (role, i, p)
            fixed.append((p, f))
        xd_ops = self.xd_ops
        s0 = Stream(ops, 2, 99)
        fixed.append((101.5, F(lambda: s0.flush(g), 0)))
        def gall():
            for q in range(5):
                for h in range(2): g(gload(q, h))
        gl, gp = (150, 190) if role == 0 else (104, 160)
        for q in range(5):
            for h in range(2): fixed.append((gl + 5*q + 2*h, gload(q, h)))
        fixed.append((gp, F(lambda: (s0.flush(g), self.poll('gt', gall, self.check_eq([r + 2*q + 1 for q in range(5) for r in (GA, GB)], T+4, T+5))), 90)))
        streams = [s0]
        if role == 0:
            streams += [Stream(xd_ops(RXA), 102, 148), Stream(xd_ops(RXB), PA + 112, PE - 22)]
        for base in (PA, PE):
            for j in range(20):
                fixed.append((base - 15 + (1.65*j if base == PA else j), 'ds_write_b128 %s, %s offset:%d' % (V(vRw), V(ACC2 + 4*j, 4), 1088*j)))
        mb = PA + 24
        fixed.append((mb - 0.5, F(lambda: (g.waitcnt(lg=0), g('s_barrier')), 8)))
        def rds(q): return ['ds_read_b128 %s, %s offset:%d' % (V(RD + 16*(q % 2) + 4*src, 4), V(vRd[q]), 21760*src) for src in range(4)]
        for i, f in enumerate(rds(0) + rds(1)): fixed.append((mb + i, f))
        for q in range(5):
            p = mb + 12 + 13*q; r0 = RD + 16*(q % 2); o = []
            for src in range(4):
                for r in range(4):
                    if role == 1 and src == 0: continue
                    a = V(r0 + r) if (role == 1 and src == 1) else V(XD + 4*q + r)
                    o.append('v_add_f32 %s, %s, %s' % (V(XD + 4*q + r), a, V(r0 + 4*src + r)))
            nadd = len(o)
            for r in range(4): o.append('v_mul_f32 %s, %s, %s' % (V(XD + 4*q + r), V(GA + 2*q), V(XD + 4*q + r)))
            def st(q=q):
                self.tX = g('buffer_store_dwordx4 %s, %s, %s, %s offen offset:%d sc1' % (V(XD + 4*q, 4), V(vL16 if q < 4 else vL16b), S(sWS, 4), S(sXo), 1024*(q & 3)))
            o.append(F(st))
            for i, f in enumerate(o): fixed.append((p + i*0.55, f))
            if q + 2 < 5:
                for i, f in enumerate(rds(q+2)): fixed.append((p + nadd*0.55 + 0.1 + i, f))
        fixed.append((PA + 112, 's_barrier'))
        if cfg.get('otouch', 0): fixed.append((cfg['otouch'], 'buffer_load_dword %s, %s, %s, 0 offen' % (V(vFa), V(vOa[0]), S(sOUT, 4))))
        fixed.append((PA + cfg.get('xf_at', 150), F(lambda: (g.wait(self.tX), g('buffer_store_dword %s, %s, %s, 0 offen sc1' % (V(vXv), V(vXf), S(sWS, 4)))), 8)))
        xp = cfg.get('xp_at', 0)
        fixed.append((PE - xp - 30, F(hp)))
        if role == 1:
            U = 232
            def uload():
                for i in range(4):
                    g('s_mov_b32 %s, %d' % (S(sL1), WS_PFLAG + (64 << self.fg)*i))
                    g('buffer_load_dword %s, %s, %s, %s offen sc1' % (V(U+2+i), V(U+6), S(sPD, 4), S(sL1)))
            def ucheck():
                self.check_eq([U+2, U+3, U+4, U+5], U, U+1)()
                g('s_cselect_b32 %s, 0, %s' % (S(sL1), S(sPD+2)))
                g('s_cmp_eq_u32 %s, 0' % S(sL1))
            fixed.append((PA + 114, ['s_or_b32 %s, %s, %s' % (S(sL1), S(sWave), S(sIdx)), 's_cselect_b32 %s, 0, 0x%x' % (S(sPD+2), WS_SIZE)]))
            fixed.append((PA + 115, ['v_lshlrev_b32 %s, %d, %s' % (V(U+6), self.fg, V(vLane)), 'v_mov_b32 %s, 0' % V(U+7)]))
            fixed.append((PA + 117, F(uload, 32)))
            fixed.append((PA + 170, F(lambda: (self.poll('up', uload, ucheck), g('buffer_store_dword %s, %s, %s, 0 offen sc1' % (V(vXv), V(U+7), S(sPD, 4)))), 60)))
        def recv():
            self.poll('xf', hp, self.check_eq([vHd]))
            for q in range(5):
                g('buffer_load_dwordx4 %s, %s, %s, %s offen offset:%d sc1' % (V(RD + 4*q, 4), V(vL16 if q < 4 else vL16b), S(sWS, 4), S(sXi), 1024*(q & 3)))
        if xp > 0: fixed.append((PE - xp, F(recv, 40)))
        sched(g, mains, 8, fixed, streams, report=self.rep and 'p2')
        if xp <= 0: recv()
        self.stamp(9)
        g.waitcnt(lg=0)
        g('s_barrier')
        for q in range(5):
            for src in range(4):
                g('ds_read_b128 %s, %s offset:%d' % (V(ACC2 + 16*q + 4*src, 4), V(vRd[q]), 21760*src))
        osc = cfg.get('osc', '')
        for q in range(5):
            for src in range(4):
                for r in range(4):
                    if role == 1 and src == 0: continue
                    a = V(ACC2 + 16*q + r) if (role == 1 and src == 1) else V(XD + 4*q + r)
                    g('v_add_f32 %s, %s, %s' % (V(XD + 4*q + r), a, V(ACC2 + 16*q + 4*src + r)))
            for r in range(4):
                g('v_fmac_f32 %s, %s, %s' % (V(RD + 4*q + r), V(GB + 2*q), V(XD + 4*q + r)))
            g('buffer_store_dwordx4 %s, %s, %s, 0 offen%s' % (V(RD + 4*q, 4), V(vOa[q]), S(sOUT, 4), osc))
        self.finish(role)

    def finish(self, role):
        g = self.g
        if self.cfg.get('stamps'):
            g.waitall()
            self.stamp(10)
            self.stamp(31, 's_memtime')
            g('s_lshl_b32 %s, s2, 2' % S(sT0))
            g('s_add_u32 %s, %s, %s' % (S(sT0), S(sT0), S(sWave)))
            g('s_lshl_b32 %s, %s, 7' % (S(sT0), S(sT0)))
            g('s_add_u32 %s, %s, %d' % (S(sT0), S(sT0), WS_STAMP))
            g('v_lshlrev_b32 v4, 2, %s' % V(vLane))
            g('s_mov_b32 exec_hi, 0')
            g('buffer_store_dword %s, v4, %s, %s offen' % (V(vStamp), S(sWS, 4), S(sT0)))
        if role == 0: g.label('L_exit')
        g('s_endpgm')
        g.hist = []

    def post(self, txt):
        c = self.cfg; out = []
        for l in txt.split('\n'):
            if c.get('x_nox') and ('s[12:15], s90 offen' in l or 's[12:15], s91 offen' in l) and 'dwordx4' in l: l = l.replace('s[12:15]', 's[20:23]')
            if c.get('x_noh') and 'buffer_store_dwordx4' in l and 's[36:39]' in l: l = l.replace('s[36:39]', 's[20:23]')
            if c.get('x_nopk') and 'dwordx4' in l and ('s[24:27]' in l or 's[16:19]' in l or 's[20:23]' in l): l = l.replace('s[24:27]', 's[20:23]').replace('s[16:19]', 's[20:23]')
            if c.get('x_noout') and 's[28:31]' in l and 'store' in l: l = l.replace('s[28:31]', 's[20:23]')
            if (c.get('x_nox') or c.get('x_noh') or c.get('x_nopk') or c.get('x_noout')):
                if 's_mov_b32 s22, s18' in l: l = '    s_mov_b32 s22, 0'
                if l.startswith('L_ssm:'): l += '\n    s_mov_b32 s20, 0\n    s_mov_b32 s21, 0\n    s_mov_b32 s22, 0\n    s_mov_b32 s23, 0x20000'
            out.append(l)
        return '\n'.join(out)

    def build(self):
        g = self.g
        self.prologue()
        st = g.state()
        self.ffn()
        g.vm, g.lg, g.smem = list(st[0]), list(st[1]), list(st[2])
        self.ssm()
        g.raw('L_codeend:')
        for f in self.tail: f()
        hdr = open('gated_mix__ssm_conv_s5__dense_activation_silu__prompt.s.ref').read()
        top = hdr[:hdr.index('; Override launch geometry')]
        txt = top + '; Generated by a hand-written generator script (straight-line schedule, one fused launch).\n'
        txt += '; @launch grid=(256,1,1) block=(256,1,1) lds=163840\n'
        txt += '.amdgcn_target "amdgcn-amd-amdhsa--gfx950"\n.text\n.globl %s\n.p2align 8\n.type %s,@function\n%s:\n' % (KNAME, KNAME, KNAME)
        txt += self.post(g.text())
        txt += '''.section .rodata,"a"
.p2align 6
.amdhsa_kernel %s
  .amdhsa_next_free_vgpr 512
  .amdhsa_next_free_sgpr 102
  .amdhsa_accum_offset 256
  .amdhsa_group_segment_fixed_size 0
  .amdhsa_kernarg_size 128
  .amdhsa_user_sgpr_count 2
  .amdhsa_user_sgpr_kernarg_segment_ptr 1
  .amdhsa_system_sgpr_workgroup_id_x 1
.end_amdhsa_kernel
''' % KNAME
        return txt

def make(cfg=None):
    k = K(cfg or {})
    return k.build(), k

if __name__ == '__main__':
    import json
    cfg = json.loads(sys.argv[2]) if len(sys.argv) > 2 else {}
    cfg['report'] = 1
    txt, k = make(cfg)
    open(sys.argv[1], 'w').write(txt)
    print(k.g.stats, 'nops', k.g.nnop, 'bytes', len(txt))
```

```python
import sys
from asmgen import Gen, weave, sched, Stream, F, mix, cost

KNAME = 'gated_mix__ssm_conv_s5__dense_activation_silu__prompt_kernel'

WS_EPOCH = 0
WS_HFLAG = 0x50000
LVL = 131072
WS_GATE = 65536
WS_EBUF = 131072
WS_PFLAG = 0xb0000
WS_XFLAG = 0xe0000
WS_STAMP = 22 << 20
WS_B2 = 0x130000
WS_H = 5 << 20
WS_X = 16 << 20
WS_SIZE = 23 << 20
KST = 5120
MST = 88*KST
HKS = 8192
HMS = 88*HKS

F_WR = 81920
S_BR = 65536
L_PK = 147456
L_EX = 147456

sX, sW, sWS, sP1, sP2, sPD, sOUT, sB2, sH = 4, 8, 12, 16, 20, 24, 28, 32, 36
pX, pLre, pLim, pBre, pBim, pCre, pCim, pLdt, pDsk, pBx, pW1, pW2, pGate, pOut, pDbg, pWs = range(40, 72, 2)
sWave, sRole, sC1, sJ1, sIdx, sCo, sNonce, sRot = range(72, 80)
sKb = list(range(80, 90))
sItem, sMx, sMw, sWo = 90, 91, 92, 93
sPs = [94, 95, 96, 97]
sT0, sT1, sT2, sT3 = 98, 99, 100, 101
sT4 = 3
sKt = 79
sNl = 42
sWs2 = 93
sL1, sL2 = 64, 65
sKs = [40, 41, 46, 47, 48, 49, 50, 51, 52, 53, 58, 59, 60, 61, 62, 63, 66, 67, 68, 69, 70, 71]

vTid, vLane, vL16, vL16b = 0, 1, 2, 3
vT = list(range(4, 16))
vFa, vFd = 254, 253
ACC2 = 16
A2R = 96
vStamp = 255
def B2slot(role, i):
    if i < 4: return 160 + 20*i
    if role == 1: return 20*(i-4)
    return 80 + 20*(i-4) if i < 8 else 20*(i-8)
def tabs(role):
    if role == 1: return sKs[:12], sKs[12:] + [44, 45]
    return sKs[:10], sKs[10:20]
aPK = 240

def R(kind, base, n):
    return '%s%d' % (kind, base) if n == 1 else '%s[%d:%d]' % (kind, base, base+n-1)
def V(b, n=1): return R('v', b, n)
def A(b, n=1): return R('a', b, n)
def S(b, n=1): return R('s', b, n)

LOG2E = 0x3fb8aa3b
NLOG2E = 0xbfb8aa3b
INV2PI = 0x3e22f983

class K:
    def __init__(self, cfg):
        self.cfg = cfg
        self.g = Gen()
        self.tail = []
        self.rep = cfg.get('report')
        self.fw, self.fg, self.lv = {0: (2, 7, 16), 1: (7, 9, LVL), 2: (2, 7, LVL)}[cfg.get('fl', 1)]

    def stamp(self, idx, op='s_memrealtime', lvl=2):
        if idx in (0, 10, 30, 31): lvl = 1
        if self.cfg.get('stamps', 0) < lvl: return
        g = self.g
        if self.cfg.get('cyc'): op = 's_memtime'
        g(op + ' vcc'); g.waitcnt(lg=0)
        g('v_writelane_b32 %s, vcc_lo, %d' % (V(vStamp), idx))

    def cst(self, idx):
        if self.cfg.get('chain'): self.stamp(idx)
    def srd_ptr(self, d, ptr): return ['s_mov_b32 %s, %s' % (S(d), S(ptr)), 's_mov_b32 %s, %s' % (S(d+1), S(ptr+1))]
    def srd_cst(self, d, nrec): return ['s_mov_b32 %s, 0x%x' % (S(d+2), nrec), 's_mov_b32 %s, 0x20000' % S(d+3)]

    def poll(self, name, issue, check):
        g = self.g
        lr, lo = g.newlabel(name + '_retry'), g.newlabel(name + '_ok')
        check()
        g('s_cbranch_scc0 %s' % lr)
        g.label(lo)
        def retry():
            g.vm, g.lg, g.smem = [], [], []
            g.label(lr)
            g('s_mov_b32 %s, 0x%x' % (S(sT4), self.cfg.get('spin', 1 << 18)))
            ll = g.newlabel(name + '_loop')
            g.label(ll)
            g('s_sub_u32 %s, %s, 1' % (S(sT4), S(sT4)))
            g('s_cmp_eq_u32 %s, 0' % S(sT4))
            g('s_nop 7')
            g('s_cbranch_scc1 %s' % lo)
            if self.cfg.get('backoff', 0): g('s_sleep %d' % self.cfg['backoff'])
            g('s_waitcnt lgkmcnt(0)')
            issue()
            g.waitall()
            check()
            g('s_nop 7')
            g('s_cbranch_scc1 %s' % lo)
            g('s_branch %s' % ll)
        self.tail.append(retry)

    def check_eq(self, regs, t0=None, t1=None):
        g = self.g
        def f():
            if len(regs) == 1:
                g('v_cmp_ne_u32 vcc, %s, %s' % (S(sNonce), V(regs[0])))
            else:
                g('v_xor_b32 %s, %s, %s' % (V(t0), S(sNonce), V(regs[0])))
                for r in regs[1:]:
                    g('v_xor_b32 %s, %s, %s' % (V(t1), S(sNonce), V(r)))
                    g('v_or_b32 %s, %s, %s' % (V(t0), V(t0), V(t1)))
                g('v_cmp_ne_u32 vcc, 0, %s' % V(t0))
            g('s_nop 0')
            g('s_cmp_eq_u64 vcc, 0')
        return f

    def b2_loads(self, role, steps):
        out = []
        for step in steps:
            base = B2slot(role, step)
            for nt in range(5):
                va, off = (vL16, nt*1024) if nt < 4 else (vL16b, 0)
                out.append('buffer_load_dwordx4 %s, %s, %s, %s offen offset:%d sc1' % (A(base+4*nt, 4), V(va), S(sB2, 4), S(tabs(role)[0][0 if self.cfg.get('x_b2same') else step]), off))
        return out

    def ks_table(self, role):
        tb, ta = tabs(role); ns = len(tb)
        nu = 6 if role else 5
        r, bs, r6 = ta[ns-1], tb[ns-1], tb[ns-2]
        o = ['s_add_u32 %s, %s, %s' % (S(r), S(sC1), S(sJ1)), 's_mul_i32 %s, %s, %d' % (S(bs), S(sWave), ns),
             's_mul_i32 %s, %s, 43' % (S(r6), S(r)), 's_lshr_b32 %s, %s, 8' % (S(r6), S(r6)),
             's_mul_i32 %s, %s, 6' % (S(r6), S(r6)), 's_sub_u32 %s, %s, %s' % (S(r6), S(r), S(r6))]
        if role == 0: o.append('s_add_u32 %s, %s, 48' % (S(bs), S(bs)))
        for n in range(ns):
            if n < 6:
                o += ['s_add_u32 %s, %s, %d' % (S(ta[n]), S(r6), n), 's_sub_u32 %s, %s, 6' % (S(sKt), S(ta[n])),
                      's_min_u32 %s, %s, %s' % (S(ta[n]), S(ta[n]), S(sKt)),
                      's_mul_i32 %s, %s, 11' % (S(sKt), S(ta[n])), 's_lshr_b32 %s, %s, 5' % (S(sKt), S(sKt)),
                      's_mul_i32 %s, %s, %d' % (S(sKt), S(sKt), nu - 3), 's_add_u32 %s, %s, %s' % (S(ta[n]), S(ta[n]), S(sKt))]
            elif n < ns - 4:
                o += ['s_add_u32 %s, %s, %d' % (S(sKt), S(r), n), 's_and_b32 %s, %s, 1' % (S(sKt), S(sKt)),
                      's_mul_i32 %s, %s, 6' % (S(sKt), S(sKt)), 's_add_u32 %s, %s, 3' % (S(ta[n]), S(sKt))]
            else:
                o += ['s_add_u32 %s, %s, %d' % (S(sKt), S(r), n), 's_and_b32 %s, %s, 1' % (S(ta[n]), S(sKt)),
                      's_bfe_u32 %s, %s, 0x10001' % (S(sKt), S(sKt)), 's_mul_i32 %s, %s, %d' % (S(sKt), S(sKt), nu),
                      's_add_u32 %s, %s, %s' % (S(ta[n]), S(ta[n]), S(sKt)), 's_add_u32 %s, %s, %d' % (S(ta[n]), S(ta[n]), nu - 2)]
            o += ['s_add_u32 %s, %s, %s' % (S(ta[n]), S(ta[n]), S(bs)),
                  's_mul_i32 %s, %s, %d' % (S(tb[n]), S(ta[n]), KST), 's_lshl_b32 %s, %s, 13' % (S(ta[n]), S(ta[n]))]
        return o

    def line_addr(self, base, dst):
        return ['s_lshl_b32 %s, %s, 7' % (S(sKt), S(sRole)), 's_add_u32 %s, %s, %s' % (S(sKt), S(sKt), S(sIdx)),
                's_lshl_b32 %s, %s, %d' % (S(sKt), S(sKt), self.fg - self.fw), 's_add_u32 %s, %s, %s' % (S(sKt), S(sKt), S(sWave)),
                's_lshl_b32 %s, %s, %d' % (S(sKt), S(sKt), self.fw), 's_add_u32 %s, %s, %d' % (S(sKt), S(sKt), base),
                'v_mov_b32 %s, %s' % (V(dst), S(sKt))]

    def late_setup(self, role, t0, t1, vPp):
        o = self.srd_ptr(sOUT, pOut) + self.srd_cst(sOUT, 2048*2560)
        for d, idx, base, st in ((sB2, sJ1, WS_B2, MST), (sH, sC1, WS_H, HMS)):
            o += ['s_mul_i32 %s, %s, %d' % (S(sKt), S(idx), st), 's_add_u32 %s, %s, 0x%x' % (S(sKt), S(sKt), base),
                  ['s_add_u32 %s, %s, %s' % (S(d), S(pWs), S(sKt)), 's_addc_u32 %s, %s, 0' % (S(d+1), S(pWs+1))]]
            o += self.srd_cst(d, st)
        if role == 1:
            o += ['s_mul_i32 %s, %s, 5' % (S(sKt), S(sJ1)), 's_lshr_b32 %s, %s, 2' % (S(sKt), S(sKt)),
                  'v_min_u32 %s, 23, %s' % (V(t1), V(vLane)),
                  'v_lshrrev_b32 %s, 1, %s' % (V(t0), V(t1)), 'v_mul_u32_u24 %s, 10, %s' % (V(t0), V(t0)),
                  'v_and_b32 %s, 1, %s' % (V(t1), V(t1)), 'v_add3_u32 %s, %s, %s, %s' % (V(t0), V(t0), V(t1), S(sKt)),
                  's_mul_i32 %s, %s, 120' % (S(sKt), S(sWave)), 'v_add_u32 %s, %s, %s' % (V(t0), S(sKt), V(t0))]
        else:
            o += ['v_min_u32 %s, 14, %s' % (V(t1), V(vLane)),
                  'v_mul_u32_u24 %s, 11, %s' % (V(t0), V(t1)), 'v_lshrrev_b32 %s, 5, %s' % (V(t0), V(t0)),
                  'v_mul_u32_u24 %s, 7, %s' % (V(t0), V(t0)),
                  's_mul_i32 %s, %s, 50' % (S(sKt), S(sJ1)), 'v_add3_u32 %s, %s, %s, %s' % (V(t0), V(t1), V(t0), S(sKt)),
                  's_mul_i32 %s, %s, 10' % (S(sKt), S(sWave)), 's_lshr_b32 %s, %s, 2' % (S(sKt), S(sKt)),
                  'v_add_u32 %s, %s, %s' % (V(t0), S(sKt), V(t0))]
        o += ['v_and_b32 %s, 127, %s' % (V(t1), V(t0)), 'v_lshrrev_b32 %s, 7, %s' % (V(t0), V(t0)),
              'v_lshlrev_b32 %s, %d, %s' % (V(t1), self.fg, V(t1)), 'v_lshl_add_u32 %s, %s, %d, %s' % (V(vPp), V(t0), self.fw, V(t1)),
              'v_add_u32 %s, %d, %s' % (V(vPp), WS_PFLAG + role*(128 << self.fg), V(vPp))]
        o += self.line_addr(WS_PFLAG, vFa)
        return o
    def nonce_ops(self):
        return ['s_mul_i32 %s, %s, 1664525' % (S(sNonce), S(sNonce)), 's_add_u32 %s, %s, 1013904223' % (S(sNonce), S(sNonce)),
                'v_mov_b32 %s, %s' % (V(vFd), S(sNonce))]

    def hbase(self, kmul, extra):
        return ['s_lshl_b32 %s, %s, 11' % (S(sKt), S(sWave)), 's_mul_i32 %s, %s, %d' % (S(sT3), S(sJ1), kmul*HKS),
                's_add_u32 %s, %s, %s' % (S(sKt), S(sKt), S(sT3)), 's_add_u32 %s, %s, 0x%x' % (S(sKt), S(sKt), extra)]

    def flag_store(self, tok, srd, va=None):
        self.g.wait(tok)
        self.g('buffer_store_dword %s, %s, %s, 0 offen sc1' % (V(vFd), V(va or vFa), S(srd, 4)))
    def hoff(self, role, lvl, local):
        if role: return ((0, 0x20000, 0x40000), (0x30000, 0xa0000, 0x70000))[local][lvl]
        return ((0, 0xc0000), (0x20000, 0xd0000))[local][lvl]
    def hflag(self, role, lvl, tok):
        g = self.g
        if self.cfg.get('lfl', 1): g('s_mov_b32 %s, 0x%x' % (S(sL1), self.hoff(role, lvl, 1)))
        g('s_mov_b32 %s, 0x%x' % (S(sL2), self.hoff(role, lvl, 0)))
        g.wait(tok)
        if self.cfg.get('lfl', 1): g('buffer_store_dword %s, %s, %s, %s offen' % (V(vFd), V(vFa), S(sWS, 4), S(sL1)))
        g('buffer_store_dword %s, %s, %s, %s offen sc1' % (V(vFd), V(vFa), S(sWS, 4), S(sL2)))
    def hpoll(self, role, lvl):
        g = self.g
        g('s_mov_b32 %s, 0x%x' % (S(sL1), self.hoff(role, lvl, self.cfg.get('lfl', 1))))
        g('buffer_load_dword %s, %s, %s, %s offen sc1' % (V(self.vHd), V(self.vHp), S(sWS, 4), S(sL1)))
    def hcheck(self, role, lvl):
        g = self.g
        def again():
            g('s_mov_b32 %s, 0x%x' % (S(sL1), self.hoff(role, lvl, self.cfg.get('lfl', 1))))
            g('s_and_b32 %s, %s, 3' % (S(sL2), S(sT4)))
            g('s_cselect_b32 %s, %s, 0x%x' % (S(sL1), S(sL1), self.hoff(role, lvl, 0)))
            g('buffer_load_dword %s, %s, %s, %s offen sc1' % (V(self.vHd), V(self.vHp), S(sWS, 4), S(sL1)))
        self.poll('h%d%d' % (role, lvl), again, self.check_eq([self.vHd]))

    def prologue(self):
        g = self.g
        g('s_cmp_ge_u32 s2, 256')
        g('s_cbranch_scc1 L_exit')
        if self.cfg.get('entry'): g('s_memrealtime s[96:97]')
        g('s_load_dwordx16 s[40:55], s[0:1], 0')
        g('s_load_dwordx16 s[56:71], s[0:1], 64')
        g('v_lshrrev_b32 %s, 6, v0' % V(vT[0]))
        g('v_and_b32 %s, 63, v0' % V(vLane))
        g('v_readfirstlane_b32 %s, %s' % (S(sWave), V(vT[0])))
        g('v_lshlrev_b32 %s, 4, %s' % (V(vL16), V(vLane)))
        g('s_lshr_b32 %s, s2, 3' % S(sT1))
        if self.cfg.get('preload', 1):
            g.raw('    s_getpc_b64 s[28:29]\nL_pc:')
            g('s_lshl_b32 %s, %s, 2' % (S(sT0), S(sT1)))
            g('s_add_u32 %s, %s, %s' % (S(sT0), S(sT0), S(sWave)))
            g('s_and_b32 %s, %s, 63' % (S(sT0), S(sT0)))
            g.raw('    s_min_u32 %s, %s, ((L_codeend-L_pc)>>10)-1' % (S(sT0), S(sT0)))
            g('s_lshl_b32 %s, %s, 10' % (S(sT0), S(sT0)))
            g('s_add_u32 s28, s28, %s' % S(sT0))
            g('s_addc_u32 s29, s29, 0')
            g('global_load_dwordx4 v[244:247], %s, s[28:29]' % V(vL16))
        if self.cfg.get('stamps'):
            g('v_mov_b32 %s, 0' % V(vStamp))
        g('v_add_u32 %s, 0x1000, %s' % (V(vL16b), V(vL16)))
        g('s_bfe_u32 %s, s2, %s' % (S(sT3), '0x20000' if self.cfg.get('rmap') else '0x20001'))
        if self.cfg.get('amap', 1) == 1:
            g('s_lshr_b32 %s, %s, 1' % (S(sT2), S(sT3)))
            g('s_xor_b32 %s, %s, %s' % (S(sT3), S(sT3), S(sT2)))
        if self.cfg.get('amap') == 2: g('s_xor_b32 %s, %s, 2' % (S(sT3), S(sT3)))
        g('s_and_b32 %s, %s, 3' % (S(sT2), S(sT1)))
        if self.cfg.get('mixed'):
            g('s_lshr_b32 %s, %s, 4' % (S(sRole), S(sT1)))
            g('s_bfe_u32 %s, %s, 0x20002' % (S(sJ1), S(sT1)))
            g('s_and_b32 %s, s2, 1' % S(sT0))
            g('s_lshl_b32 %s, %s, 2' % (S(sT0), S(sT0)))
            g('s_add_u32 %s, %s, %s' % (S(sJ1), S(sJ1), S(sT0)))
        else:
            if self.cfg.get('rmap'): g('s_bfe_u32 %s, s2, 0x10002' % S(sRole))
            else: g('s_and_b32 %s, s2, 1' % S(sRole))
            if self.cfg.get('rmap') == 2 or self.cfg.get('rflip'): g('s_xor_b32 %s, %s, 1' % (S(sRole), S(sRole)))
            g('s_lshr_b32 %s, %s, 2' % (S(sJ1), S(sT1)))
        g('s_lshl_b32 %s, %s, 2' % (S(sC1), S(sT3)))
        g('s_add_u32 %s, %s, %s' % (S(sC1), S(sC1), S(sT2)))
        g('s_lshl_b32 %s, %s, 3' % (S(sIdx), S(sT3)))
        g('s_add_u32 %s, %s, %s' % (S(sIdx), S(sIdx), S(sJ1)))
        g('s_lshl_b32 %s, %s, 2' % (S(sIdx), S(sIdx)))
        g('s_add_u32 %s, %s, %s' % (S(sIdx), S(sIdx), S(sT2)))
        g('s_mul_i32 %s, %s, 3' % (S(sT2), S(sT2)))
        g('s_mul_i32 %s, %s, 5' % (S(sT0), S(sRole)))
        g('s_add_u32 %s, %s, %s' % (S(sRot), S(sJ1), S(sT2)))
        g('s_add_u32 %s, %s, %s' % (S(sRot), S(sRot), S(sT0)))
        g('s_add_u32 %s, %s, %s' % (S(sRot), S(sRot), S(sT3)))
        if self.cfg.get('norot'): g('s_mov_b32 %s, 0' % S(sRot))
        rx = self.cfg.get('rotx', 3)
        if rx:
            g('s_mul_i32 %s, %s, 5' % (S(sRot), S(sT3)))
            g('s_add_u32 %s, %s, 1' % (S(sRot), S(sRot)))
            g('s_lshr_b32 %s, %s, 1' % (S(sRot), S(sRot)))
            g('s_add_u32 %s, %s, %s' % (S(sRot), S(sRot), S(sT0)))
            if rx == 2:
                g('s_add_u32 %s, %s, %s' % (S(sT0), S(sC1), S(sJ1)))
                g('s_and_b32 %s, %s, 1' % (S(sT0), S(sT0)))
                g('s_add_u32 %s, %s, %s' % (S(sRot), S(sRot), S(sT0)))
            if rx == 3:
                g('s_add_u32 %s, %s, %s' % (S(sT0), S(sC1), S(sJ1)))
                g('s_and_b32 %s, %s, 3' % (S(sT0), S(sT0)))
                g('s_add_u32 %s, %s, %s' % (S(sRot), S(sRot), S(sT0)))
        for k in range(2):
            g('s_sub_u32 %s, %s, 10' % (S(sT0), S(sRot)))
            g('s_min_u32 %s, %s, %s' % (S(sRot), S(sRot), S(sT0)))
        if self.cfg.get('rotg') == 2:
            g('s_and_b32 %s, %s, 1' % (S(sRot), S(sRot)))
            g('s_mul_i32 %s, %s, 5' % (S(sRot), S(sRot)))
        if self.cfg.get('rotg') == 5:
            g('s_and_b32 %s, %s, 14' % (S(sRot), S(sRot)))
        if self.cfg.get('rotg') == 3:
            g('s_mul_i32 %s, %s, 11' % (S(sT0), S(sRot)))
            g('s_lshr_b32 %s, %s, 5' % (S(sT0), S(sT0)))
            g('s_mul_i32 %s, %s, 3' % (S(sT0), S(sT0)))
            g('s_sub_u32 %s, %s, %s' % (S(sRot), S(sRot), S(sT0)))
            g('s_mul_i32 %s, %s, 7' % (S(sRot), S(sRot)))
            g('s_lshr_b32 %s, %s, 1' % (S(sRot), S(sRot)))
        g('s_lshl_b32 %s, %s, 7' % (S(sKb[0]), S(sRot)))
        g('v_lshrrev_b32 %s, 3, %s' % (V(vT[0]), V(vLane)))
        g('v_and_b32 %s, 7, %s' % (V(vT[1]), V(vLane)))
        g('v_lshrrev_b32 %s, 4, %s' % (V(vT[2]), V(vLane)))
        g.do(self.srd_cst(sX, 2048*1280))
        g.do(self.srd_cst(sWS, WS_SIZE))
        g('s_cmp_eq_u32 %s, 0' % S(sRole))
        g('s_cbranch_scc1 L_ssm')

    def kb(self, s, k0=sKb[0]):
        if self.cfg.get('same'): return ['s_mov_b32 %s, %s' % (S(sKb[s]), S(k0))]
        return ['s_sub_u32 %s, %s, %d' % (S(sT0), S(k0), 128*(10-s)), 's_add_u32 %s, %s, %d' % (S(sKb[s]), S(k0), 128*s),
                's_min_u32 %s, %s, %s' % (S(sKb[s]), S(sKb[s]), S(sT0))]

    def ptrs_ready(self):
        g = self.g
        g.waitcnt(lg=0)
        if self.cfg.get('entry'): g('v_writelane_b32 %s, s96, 29' % V(vStamp))
        self.stamp(0)
        self.stamp(30, 's_memtime')
        g.do(self.srd_ptr(sX, pX))

    def pack_addr(self, role, vPl, vPr, vPw):
        o = ['s_lshl_b32 %s, %s, 7' % (S(sItem), S(sWave)), 's_add_u32 %s, %s, %s' % (S(sItem), S(sItem), S(sIdx))]
        o += self.srd_ptr(sPD, pWs) + self.srd_ptr(sP1, pW2 if role else pCre)
        o += [['s_cmp_lt_u32 %s, %d' % (S(sItem), 480 if role else 400), 's_cselect_b32 %s, 0x%x, 0' % (S(sPD+2), WS_SIZE),
               's_cselect_b32 %s, %d, 0' % (S(sP1+2), 1536*1280 if role else 819200)],
              's_mov_b32 %s, 0x20000' % S(sPD+3), 's_mov_b32 %s, 0x20000' % S(sP1+3),
              's_mul_i32 %s, %s, 6554' % (S(sT1), S(sItem)), 's_lshr_b32 %s, %s, 16' % (S(sT1), S(sT1)),
              's_mul_i32 %s, %s, 10' % (S(sT2), S(sT1)), 's_sub_u32 %s, %s, %s' % (S(sT2), S(sItem), S(sT2)),
              's_lshl_b32 %s, %s, 7' % (S(sT3), S(sT2)),
              's_mul_i32 %s, %s, %d' % (S(sItem), S(sT1), 40960 if role else 20480), 's_add_u32 %s, %s, %s' % (S(sItem), S(sItem), S(sT3))]
        t0, t1 = V(vT[4]), V(vT[5]); L = V(vLane)
        if role:
            o += ['s_mul_i32 %s, %s, 5' % (S(sT1), S(sT1)), 's_lshl_b32 %s, %s, 2' % (S(sT2), S(sT2))]
            for i in range(4):
                o += ['s_add_u32 %s, %s, %d' % (S(sPs[i]), S(sT2), i),
                      's_mul_i32 %s, %s, 52' % (S(sT3), S(sPs[i])), 's_lshr_b32 %s, %s, 8' % (S(sT3), S(sT3)),
                      's_mul_i32 %s, %s, 435' % (S(sT3), S(sT3)), 's_add_u32 %s, %s, %s' % (S(sPs[i]), S(sPs[i]), S(sT3)),
                      's_add_u32 %s, %s, %s' % (S(sPs[i]), S(sPs[i]), S(sT1)), 's_lshl_b32 %s, %s, 10' % (S(sPs[i]), S(sPs[i])),
                      's_add_u32 %s, %s, 0x%x' % (S(sPs[i]), S(sPs[i]), WS_B2)]
            o += ['v_bfe_u32 %s, %s, 4, 1' % (t0, L), 'v_lshlrev_b32 %s, 11, %s' % (t0, t0), 'v_lshrrev_b32 %s, 5, %s' % (t1, L),
                  'v_lshl_add_u32 %s, %s, 9, %s' % (t0, t1, t0), 'v_bfe_u32 %s, %s, 2, 2' % (t1, L), 'v_lshl_add_u32 %s, %s, 7, %s' % (t0, t1, t0),
                  'v_and_b32 %s, 3, %s' % (t1, L), 'v_lshl_add_u32 %s, %s, 3, %s' % (t0, t1, t0)]
        else:
            o += self.srd_ptr(sP2, pCim) + ['s_mov_b32 %s, %s' % (S(sP2+2), S(sP1+2)), 's_mov_b32 %s, 0x20000' % S(sP2+3),
                  's_mul_i32 %s, %s, 52' % (S(sT3), S(sT1)), 's_lshr_b32 %s, %s, 8' % (S(sT3), S(sT3)),
                  's_mul_i32 %s, %s, 435' % (S(sT3), S(sT3)), 's_add_u32 %s, %s, %s' % (S(sT1), S(sT1), S(sT3)),
                  's_mul_i32 %s, %s, 20' % (S(sT3), S(sT2)), 's_add_u32 %s, %s, %s' % (S(sT1), S(sT1), S(sT3)),
                  's_lshl_b32 %s, %s, 10' % (S(sT1), S(sT1))]
            o += ['s_add_u32 %s, %s, 0x%x' % (S(sPs[i]), S(sT1), WS_B2 + 240*1024 + KST*i) for i in range(4)]
            o += ['v_lshrrev_b32 %s, 5, %s' % (t0, L), 'v_lshlrev_b32 %s, 11, %s' % (t0, t0), 'v_and_b32 %s, 15, %s' % (t1, L),
                  'v_lshl_add_u32 %s, %s, 7, %s' % (t0, t1, t0), 'v_bfe_u32 %s, %s, 4, 1' % (t1, L), 'v_lshl_add_u32 %s, %s, 4, %s' % (t0, t1, t0)]
        o += ['s_lshl_b32 %s, %s, 12' % (S(sT3), S(sWave)), 's_add_u32 %s, %s, %d' % (S(sT3), S(sT3), L_PK),
              'v_add_u32 %s, %s, %s' % (V(vPr), S(sT3), t0), 's_mov_b32 %s, %s' % (S(sWs2), S(sT3)),
              'v_lshrrev_b32 %s, 3, %s' % (t0, L), 'v_and_b32 %s, 7, %s' % (t1, L), 'v_mul_u32_u24 %s, 1280, %s' % (t0, t0),
              'v_lshl_add_u32 %s, %s, 4, %s' % (V(vPl), t1, t0)]
        return o

    def pack_load(self, role, vPl):
        g = self.g; nt = self.cfg.get('pknt', ' nt')
        g('s_mov_b32 m0, %s' % S(sWs2))
        for q in range(4):
            if role:
                if q: g('s_add_u32 %s, %s, 9216' % (S(sItem), S(sItem)))
                else: g('s_nop 0')
                self.tPack = g('buffer_load_dwordx4 %s, %s, %s offen offset:%d%s lds' % (V(vPl), S(sP1, 4), S(sItem), 1024*q, nt))
            else:
                if q == 0: g('s_add_u32 %s, %s, 9216' % (S(sT0), S(sItem)))
                if q == 2: g('s_add_u32 m0, %s, 2048' % S(sWs2))
                self.tPack = g('buffer_load_dwordx4 %s, %s, %s offen offset:%d%s lds' % (V(vPl), S(sP2 if q >= 2 else sP1, 4), S(sT0 if q & 1 else sItem), 1024*(q & 1), nt))
    def pack_proc(self, role, vPr):
        g = self.g
        a = [F(lambda: g.wait(self.tPack))]
        if role: a += ['ds_read_b64_tr_b16 %s, %s offset:%d' % (A(aPK+4*i+2*e, 2), V(vPr), e*1024 + i*32) for i in range(4) for e in range(2)]
        else: a += ['ds_read_b128 %s, %s offset:%d' % (A(aPK+4*i, 4), V(vPr), 32*i) for i in range(4)]
        b = []
        for i in range(4):
            def f(i=i): self.tPackSt = g('buffer_store_dwordx4 %s, %s, %s, %s offen sc1' % (A(aPK+4*i, 4), V(vL16), S(sPD, 4), S(sPs[i])))
            b.append(F(f))
        return a, b

    def touch_addr(self):
        if not self.cfg.get('coop', 0): return
        g = self.g; L = V(vLane)
        g('s_lshl_b32 %s, s2, 2' % S(sT0))
        g('s_add_u32 %s, %s, %s' % (S(sT0), S(sT0), S(sWave)))
        g('s_mul_i32 %s, %s, 20' % (S(sT1), S(sT0)))
        g('v_min_u32 v248, 19, %s' % L)
        g('v_add_u32 v248, %s, v248' % S(sT1))
        g('v_lshlrev_b32 v248, 7, v248')
        g('s_mul_i32 %s, %s, 25' % (S(sT1), S(sT0)))
        g('s_lshr_b32 %s, %s, 2' % (S(sT1), S(sT1)))
        g('v_min_u32 v249, 6, %s' % L)
        g('v_add_u32 v249, %s, v249' % S(sT1))
        g('v_min_u32 v249, 6399, v249')
        g('v_lshlrev_b32 v249, 7, v249')
        nw = 5 if self.cfg['coop'] == 1 else 15
        g('s_mul_i32 %s, %s, %d' % (S(sT1), S(sT0), nw))
        g('v_min_u32 v250, %d, %s' % (nw-1, L))
        g('v_add_u32 v250, %s, v250' % S(sT1))
        if nw == 5:
            g('v_lshrrev_b32 v251, 3, v250')
            g('v_and_b32 v250, 7, v250')
            g('v_mul_u32_u24 v251, 3072, v251')
            g('v_mul_u32_u24 v250, 384, v250')
            g('v_add_u32 v250, v250, v251')
        else:
            g('v_lshlrev_b32 v250, 7, v250')
    def touch(self):
        if not self.cfg.get('coop', 0): return
        g = self.g
        g('global_load_dword v240, v248, %s' % S(pX, 2))
        g('global_load_dword v241, v249, %s' % S(pBre, 2))
        g('global_load_dword v242, v249, %s' % S(pBim, 2))
        g('global_load_dword v243, v250, %s' % S(pW1, 2))

    def warm_flags(self, role):
        if not self.cfg.get('warm', 1): return []
        L = V(vLane)
        o = ['s_lshl_b32 %s, %s, 7' % (S(sT0), S(sRole)), 's_add_u32 %s, %s, %s' % (S(sT0), S(sT0), S(sIdx)),
             's_lshl_b32 %s, %s, %d' % (S(sT0), S(sT0), self.fg - self.fw), 's_add_u32 %s, %s, %s' % (S(sT0), S(sT0), S(sWave)),
             's_lshl_b32 %s, %s, %d' % (S(sT0), S(sT0), self.fw), 's_add_u32 %s, %s, %d' % (S(sT0), S(sT0), WS_HFLAG),
             'v_min_u32 v250, %d, %s' % (10 if role else 13, L), 'v_lshlrev_b32 v250, 16, v250', 'v_add_u32 v250, %s, v250' % S(sT0)]
        if role == 0:
            o += [
                  's_lshl_b32 %s, %s, 4' % (S(sT0), S(sJ1)), 's_add_u32 %s, %s, %s' % (S(sT0), S(sT0), S(sC1)),
                  's_lshl_b32 %s, %s, 2' % (S(sT0), S(sT0)), 's_add_u32 %s, %s, %s' % (S(sT0), S(sT0), S(sWave)),
                  's_mul_i32 %s, %s, 320' % (S(sT0), S(sT0)), 's_add_u32 %s, %s, %d' % (S(sT0), S(sT0), WS_EBUF),
                  'v_and_b32 v251, 3, %s' % L, 'v_mul_u32_u24 v251, 104, v251', 'v_add_u32 v251, %s, v251' % S(sT0),
                  ['v_cmp_gt_u32 vcc, 16, %s' % L, 'v_cndmask_b32 v250, v251, v250, vcc'],
                  's_lshl_b32 %s, %s, 3' % (S(sT0), S(sC1)), 's_add_u32 %s, %s, %s' % (S(sT0), S(sT0), S(sJ1)),
                  's_lshl_b32 %s, %s, 2' % (S(sT0), S(sT0)), 's_add_u32 %s, %s, %s' % (S(sT0), S(sT0), S(sWave)),
                  's_lshl_b32 %s, %s, 6' % (S(sT0), S(sT0)), 's_add_u32 %s, %s, %d' % (S(sT0), S(sT0), WS_GATE),
                  'v_mov_b32 v251, %s' % S(sT0),
                  ['v_cmp_gt_u32 vcc, 20, %s' % L, 'v_cndmask_b32 v250, v251, v250, vcc']]
        if self.cfg.get('pages', 2):
            def lane(k, expr):
                return expr + ['v_writelane_b32 v250, %s, %d' % (S(sT0), k)]
            o += lane(32, ['s_mul_i32 %s, %s, %d' % (S(sT0), S(sC1), HMS), 's_add_u32 %s, %s, 0x%x' % (S(sT0), S(sT0), WS_H + (0 if role else 48*HKS))])
            o += lane(33, ['s_add_u32 %s, %s, %d' % (S(sT0), S(sT0), (48 if role else 40)*HKS - 128)])
            o += lane(34, ['s_mul_i32 %s, %s, %d' % (S(sT0), S(sJ1), MST), 's_add_u32 %s, %s, 0x%x' % (S(sT0), S(sT0), WS_B2 + (0 if role else 48*KST))])
            o += lane(35, ['s_add_u32 %s, %s, %d' % (S(sT0), S(sT0), (48 if role else 40)*KST - 128)])
            o += lane(36, ['s_mul_i32 %s, %s, 20480' % (S(sT0), S(sIdx)), 's_add_u32 %s, %s, 0x%x' % (S(sT0), S(sT0), WS_X)])
            o += lane(37, ['s_add_u32 %s, %s, %d' % (S(sT0), S(sT0), 128*20480)])
        o.append('buffer_load_dword v251, v250, %s, 0 offen sc1' % S(sWS, 4))
        if self.cfg.get('pages', 2) >= 2:
            o += ['s_mul_i32 %s, %s, %d' % (S(sT0), S(sC1), 128*2560), 's_add_u32 %s, %s, %d' % (S(sT0), S(sT0), (1-role)*64*2560),
                  'v_and_b32 v249, 1, %s' % L, 'v_mul_u32_u24 v249, %d, v249' % (63*2560), 'v_add_u32 v249, %s, v249' % S(sT0),
                  'global_load_dword v248, v249, %s' % S(pOut, 2)]
        return o

    def pack_poll_issue(self, vPp, vD):
        self.g('buffer_load_dword %s, %s, %s, 0 offen sc1' % (V(vD), V(vPp), S(sWS, 4)))
    def pack_poll_check(self, vPp, vD):
        if self.cfg.get('nopoll'): return
        self.poll('pk', lambda: self.pack_poll_issue(vPp, vD), self.check_eq([vD]))

    def x_dma_addr(self, vXd, perm):
        g = self.g
        g('s_lshl_b32 %s, %s, 2' % (S(sT0), S(sC1)))
        g('s_add_u32 %s, %s, %s' % (S(sT0), S(sT0), S(sWave)))
        g('s_mul_i32 %s, %s, %d' % (S(sT0), S(sT0), 32*1280))
        if perm:
            g('v_lshrrev_b32 %s, 5, %s' % (V(vT[3]), V(vLane)))
            g('v_and_b32 %s, 1, %s' % (V(vT[4]), V(vT[0])))
            g('v_lshl_add_u32 %s, %s, 1, %s' % (V(vT[3]), V(vT[3]), V(vT[4])))
            g('v_and_b32 %s, 1, %s' % (V(vT[4]), V(vT[2])))
            g('v_lshl_add_u32 %s, %s, 2, %s' % (V(vT[3]), V(vT[3]), V(vT[4])))
            g('v_mul_u32_u24 %s, 1280, %s' % (V(vT[3]), V(vT[3])))
        else:
            g('v_mul_u32_u24 %s, 1280, %s' % (V(vT[3]), V(vT[0])))
        g('v_xor_b32 %s, %s, %s' % (V(vT[4]), V(vT[1]), V(vT[2])))
        g('v_lshlrev_b32 %s, 4, %s' % (V(vT[4]), V(vT[4])))
        g('v_xor_b32 %s, 64, %s' % (V(vT[5]), V(vT[4])))
        g('v_add3_u32 %s, %s, %s, %s' % (V(vXd[0]), V(vT[4]), V(vT[3]), S(sT0)))
        g('v_add3_u32 %s, %s, %s, %s' % (V(vT[5]), V(vT[5]), V(vT[3]), S(sT0)))
        for q in range(1, 4):
            rows = (16*(q & 1) + 2*(q >> 1)) if perm else 8*q
            g('v_add_u32 %s, %d, %s' % (V(vXd[q]), rows*1280 - 1024*q, V(vT[5] if q & 1 else vXd[0])))

    def ffn(self):
        g = self.g; cfg = self.cfg
        ACC = [16, 48]
        WF = 80; NF = 10
        EP = 120
        PKR = 128
        vXd = [144, 145, 146, 147]; vWd = [148, 149]; vXr = [150, 151, 152, 153]; vWr = [154, 155]; vHs = 156
        vPr, vPs, vPp, vPd = 157, 158, 159, 13
        vWrB = [150, 151]
        def wslot(t):
            if t < 16: return F_WR + (t % 8)*8192
            if t < 24: return (t-16)*8192
            return F_WR + (t-24)*8192
        LA = cfg.get('fla', 7); WE = cfg.get('fwe', 4)
        self.x_dma_addr(vXd, False)
        g('v_and_b32 %s, 1, %s' % (V(vT[3]), V(vT[2])))
        g('v_lshlrev_b32 %s, 2, %s' % (V(vT[3]), V(vT[3])))
        g('v_xor_b32 %s, %s, %s' % (V(vT[3]), V(vT[1]), V(vT[3])))
        g('v_mul_u32_u24 %s, 3072, %s' % (V(vT[4]), V(vT[0])))
        g('v_lshl_add_u32 %s, %s, 4, %s' % (V(vT[3]), V(vT[3]), V(vT[4])))
        g('s_mul_i32 %s, %s, %d' % (S(sT0), S(sWave), 16*3072))
        g('v_add_u32 %s, %s, %s' % (V(vWd[0]), S(sT0), V(vT[3])))
        g('v_add_u32 %s, %d, %s' % (V(vWd[1]), 8*3072 - 1024, V(vWd[0])))
        g('s_mul_i32 %s, %s, 20480' % (S(sMx), S(sWave)))
        g('s_lshl_b32 %s, %s, 11' % (S(sMw), S(sWave)))
        g('s_mul_i32 %s, %s, 384' % (S(sWo), S(sJ1)))
        g.do(self.srd_cst(sW, 640*3072))
        g('s_mov_b32 %s, %s' % (S(sKt), S(sKb[0])))
        tokX = {}; tokW = {}
        def dma_x(s):
            def mk(q):
                def f():
                    tokX[s] = g('buffer_load_dwordx4 %s, %s, %s offen offset:%d%s lds' % (V(vXd[q]), S(sX, 4), S(sKb[s]), 1024*q, (' nt' if s < cfg.get('nt0', 0) else '')))
                return F(f)
            return ['s_add_u32 m0, %s, %d' % (S(sMx), (s % 5)*4096)] + [mk(q) for q in range(4)]
        def dma_w(t):
            o = ['s_add_u32 m0, %s, %d' % (S(sMw), wslot(t))]
            k = sKb[t % 10]
            if t < 10: o += ['s_mul_i32 %s, %s, 1536' % (S(k), S(k)), 's_add_u32 %s, %s, %s' % (S(k), S(k), S(sWo))]
            if t in (10, 20): o += ['v_add_u32 %s, 128, %s' % (V(r), V(r)) for r in vWd]
            nt = ' nt' if t < cfg.get('nt0', 0) else ''
            o.append('buffer_load_dwordx4 %s, %s, %s offen%s lds' % (V(vWd[0]), S(sW, 4), S(k), nt))
            def f():
                tokW[t] = g('buffer_load_dwordx4 %s, %s, %s offen offset:1024%s lds' % (V(vWd[1]), S(sW, 4), S(k), nt))
            return o + [F(f)]
        self.touch_addr()
        self.ptrs_ready()
        g.do(self.srd_ptr(sW, pW1))
        if cfg.get('coop_first', 1): self.touch()
        g.do(dma_x(0) + dma_w(0))
        for s in range(1, 10): g.do(self.kb(s, sKt))
        g.do(dma_x(1) + dma_w(1))
        g.do(self.srd_ptr(sWS, pWs))
        g('s_load_dword %s, %s, 0' % (S(sNonce), S(pWs, 2)))
        g.do(self.warm_flags(1))
        g('v_and_b32 %s, 31, %s' % (V(vT[3]), V(vLane)))
        g('v_bfe_u32 %s, %s, 1, 3' % (V(vT[4]), V(vLane)))
        g('v_lshrrev_b32 %s, 5, %s' % (V(vT[7]), V(vLane)))
        g('v_xor_b32 %s, %s, %s' % (V(vT[4]), V(vT[4]), V(vT[7])))
        g('v_lshlrev_b32 %s, 4, %s' % (V(vT[4]), V(vT[4])))
        g('v_lshl_add_u32 %s, %s, 7, %s' % (V(vT[4]), V(vT[3]), V(vT[4])))
        g('v_add_u32 %s, %s, %s' % (V(vXr[0]), S(sMx), V(vT[4])))
        for ks in range(1, 4):
            g('v_xor_b32 %s, %d, %s' % (V(vXr[ks]), 32*ks, V(vXr[0])))
        g('v_bfe_u32 %s, %s, 2, 2' % (V(vT[4]), V(vLane)))
        g('v_lshl_add_u32 %s, %s, 3, %s' % (V(vT[6]), V(vT[7]), V(vT[4])))
        g('v_lshlrev_b32 %s, 7, %s' % (V(vT[6]), V(vT[6])))
        g('v_lshrrev_b32 %s, 1, %s' % (V(vT[4]), V(vT[4])))
        g('v_lshl_add_u32 %s, %s, 6, %s' % (V(vT[6]), V(vT[4]), V(vT[6])))
        g('v_bfe_u32 %s, %s, 4, 1' % (V(vT[4]), V(vLane)))
        g('v_lshl_add_u32 %s, %s, 5, %s' % (V(vT[6]), V(vT[4]), V(vT[6])))
        g('v_and_b32 %s, 3, %s' % (V(vT[4]), V(vLane)))
        g('v_lshl_add_u32 %s, %s, 3, %s' % (V(vT[6]), V(vT[4]), V(vT[6])))
        g('v_add_u32 %s, %d, %s' % (V(vWr[0]), F_WR, V(vT[6])))
        g('v_xor_b32 %s, 64, %s' % (V(vWr[1]), V(vWr[0])))
        global sWs2
        sWs2 = 43
        CF_ = cfg.get('cpk')
        if CF_:
            g.do(self.pack_addr(0, vPs, vPr, None)); self.pack_load(0, vPs)
        pk0 = cfg.get('pk', (4,))[0] < 2
        if pk0: g.do(self.pack_addr(1, vPs, vPr, None))
        if cfg.get('pk', (4,))[0] < 0: self.pack_load(1, vPs)
        g.do(dma_x(2) + dma_w(2))
        XL = cfg.get('f_xl', 4)
        if XL == 4: g.do(dma_x(3) + dma_w(3))
        self.stamp(1)
        setup = ([] if pk0 else self.pack_addr(1, vPs, vPr, None)) + self.nonce_ops() + self.late_setup(1, vT[0], vT[1], vPp)
        n_late = len(setup)
        setup += self.hbase(6, 0) + [
            'v_bfe_u32 %s, %s, 4, 1' % (V(vT[0]), V(vLane)), 'v_lshlrev_b32 %s, 10, %s' % (V(vT[0]), V(vT[0])),
            'v_lshl_add_u32 %s, %s, 9, %s' % (V(vT[0]), V(vT[7]), V(vT[0])), 'v_and_b32 %s, 15, %s' % (V(vT[1]), V(vLane)),
            'v_lshl_add_u32 %s, %s, 4, %s' % (V(vT[0]), V(vT[1]), V(vT[0])), 'v_add_u32 %s, %s, %s' % (V(vHs), S(sKt), V(vT[0])),
            's_mov_b32 %s, 0x%x' % (S(sNl), NLOG2E)]
        setup += self.ks_table(1)

        mains = []; fixed = []
        tokF = {}; tokXr = {}
        def rd_x(s, ks):
            def f(): tokXr[s] = g('ds_read_b128 %s, %s offset:%d' % (A(16*s + 4*ks, 4), V(vXr[ks]), (s % 5)*4096))
            return F(f)
        def rd_w(n, e):
            sg, ks, u = n // 8, (n % 8)//2, n % 2
            def f():
                tokF[n] = g('ds_read_b64_tr_b16 %s, %s offset:%d' % (V(WF + 4*(n % NF) + 2*e, 2), V(vWrB[u] if 16 <= sg < 24 else vWr[u]), wslot(sg) % F_WR + (16*ks + 4*e)*128))
            return F(f)
        def bar(sg, both):
            def f():
                g.wait(tokX.get(sg), tokW[sg+1 if both else sg], tokXr.get(sg-1) if XL == 4 else None)
                g('s_barrier')
                if sg == 0: self.stamp(2)
                if sg == 10: self.stamp(3)
                if sg == 20: self.stamp(4)
                if sg in (3, 5, 7, 12, 16, 26): self.stamp(20 + (3, 5, 7, 12, 16, 26).index(sg), lvl=3)
            return F(f, 8)
        for n in range(240):
            sg, ks, u = n // 8, (n % 8)//2, n % 2
            grp, s = sg // 10, sg % 10
            acc = ACC[grp % 2] + 16*u
            c = '0' if (s == 0 and ks == 0) else V(acc, 16)
            mains.append(('v_mfma_f32_32x32x16_bf16 %s, %s, %s, %s' % (V(acc, 16), V(WF + 4*(n % NF), 4), A(16*s + 4*ks, 4), c),
                          (lambda n=n: [tokF[min(n+WE-1, 239)]]) if n % WE == 0 else None))
        wsched = {}
        if XL == 3:
            for sg in range(7): wsched[sg] = [sg+3]
            wsched[7] = [10, 11]; wsched[8] = [12, 13]; wsched[9] = [14]; wsched[10] = [15]
        else:
            for sg in range(6): wsched[sg] = [sg+4]
            wsched[6] = [10, 11]; wsched[7] = [12, 13]; wsched[8] = [14]; wsched[9] = [15]
        wsched[12] = [16, 17, 18, 19]; wsched[14] = [20, 21, 22]; wsched[16] = [23, 24, 25]; wsched[18] = [26, 27]; wsched[20] = [28, 29]
        endb = {}
        for sg in range(30):
            if sg >= 10 and sg % 2: continue
            p = 8*sg - LA
            fixed.append((p - 0.5, bar(sg, sg >= 10)))
            d = []
            if sg + XL <= 9: d += dma_x(sg+XL)
            for t in wsched.get(sg, []): d += dma_w(t)
            stp = 0.5 if sg < 10 else 15.0/max(len(d), 1)
            for i, f in enumerate(d): fixed.append((p + 0.6 + i*stp, f))
            endb[sg] = p + 0.6 + len(d)*stp
        for u in range(2): fixed.append((90 + u, 'v_subrev_u32 %s, %d, %s' % (V(vWrB[u]), F_WR, V(vWr[u]))))
        if cfg.get('w1warm', 0):
            fixed.append((endb[cfg.get('w1warm_at', 1)], ['s_lshl_b32 %s, %s, 2' % (S(sT0), S(sC1)), 's_add_u32 %s, %s, %s' % (S(sT0), S(sT0), S(sWave)),
                 's_mul_i32 %s, %s, %d' % (S(sT0), S(sT0), 10*3072), 's_add_u32 %s, %s, %s' % (S(sT0), S(sT0), S(sWo)),
                 'v_min_u32 %s, 19, %s' % (V(vT[8]), V(vLane)), 'v_lshrrev_b32 %s, 1, %s' % (V(vPd), V(vT[8])),
                 'v_mul_u32_u24 %s, 3072, %s' % (V(vPd), V(vPd)), 'v_and_b32 %s, 1, %s' % (V(vT[8]), V(vT[8])),
                 'v_lshl_add_u32 %s, %s, 7, %s' % (V(vPd), V(vT[8]), V(vPd)),
                 'buffer_load_dword %s, %s, %s, %s offen offset:128 sc1' % (V(vT[8]), V(vPd), S(sW, 4), S(sT0))]))
        for n in range(240):
            if n < 80 and n % 2 == 0:
                s, ks = n//8, (n % 8)//2
                fixed.append((8*s - LA + ks if XL == 4 else n - LA, rd_x(s, ks)))
            fixed.append((n - LA, rd_w(n, 0))); fixed.append((n - LA, rd_w(n, 1)))
        cl, cr, cf, pp = cfg.get('pk', (4, 8, 12, 22))
        at = lambda sg: endb[sg] if sg < 10 else 8*sg - LA + 0.2
        s_from = 0
        if CF_:
            ca, cb = self.pack_proc(0, vPr); tC = []
            for i, f in enumerate(ca): fixed.append((endb[CF_[0]] + 0.3*i, f))
            for i, f in enumerate(cb): fixed.append((endb[CF_[0]] + 4 + 0.3*i, f))
            fixed.append((endb[CF_[0]] + 5.5, F(lambda: tC.append(self.tPackSt), 0)))
            s_from = int(endb[CF_[0]]) + 7
            fixed.append((at(CF_[1]), F(lambda: (sA.flush(g), g('v_subrev_u32 v162, %d, %s' % (128 << self.fg, V(vFa))), self.flag_store(tC[0], sPD, 162)), 12)))
            assert not pk0 and CF_[1] <= cr
        if cl >= 0: fixed.append((endb[cl], F(lambda: self.pack_load(1, vPs), 36)))
        pa_, pb_ = self.pack_proc(1, vPr)
        for i, f in enumerate(pa_): fixed.append((at(cr) + 0.5*i, f))
        for i, f in enumerate(pb_): fixed.append((at(cr) + 8 + 0.5*i, f))
        fixed.append((at(cf), F(lambda: self.flag_store(self.tPackSt, sPD), 8)))
        if pp < 30:
            fixed.append((at(pp-2), F(lambda: self.pack_poll_issue(vPp, vPd))))
            fixed.append((at(pp), F(lambda: self.pack_poll_check(vPp, vPd), 20)))
        else:
            fixed.append((228, F(lambda: self.pack_poll_issue(vPp, vPd))))
        b2 = self.b2_loads(1, range(4 if cfg.get('f_nob2') else 12))
        nb_in = 0; p = at(pp) + 2 if pp < 30 else 999
        while nb_in < min(len(b2), cfg.get('f_b2in', 20)):
            st_, nt_ = nb_in // 5, nb_in % 5
            if st_ >= 4: p = max(p, 160 + 8*((20*(st_-4) + 4*nt_ + 3)//16) + 9)
            if p > 238: break
            fixed.append((p, b2[nb_in])); nb_in += 1; p += cfg.get('f_sp', 3.0)
        tU = {}
        def epi(grp):
            ops = []
            for u in range(2):
                acc = ACC[grp % 2] + 16*u
                pk = PKR + 8*u
                def stage(r, k):
                    t = V(EP + (r % 8)); a = V(acc + r)
                    return ['v_mul_f32 %s, %s, %s' % (t, S(sNl), a), 'v_exp_f32 %s, %s' % (t, t), 'v_add_f32 %s, 1.0, %s' % (t, t),
                            'v_rcp_f32 %s, %s' % (t, t), 'v_mul_f32 %s, %s, %s' % (a, a, t)][k]
                for tm in range(16 + 6):
                    for k in (4, 3, 2, 1, 0):
                        r = tm - k
                        if 0 <= r < 16: ops.append(stage(r, k))
                    r = tm - 5
                    if 0 <= r < 16 and r % 2 == 1:
                        ops.append('v_cvt_pk_bf16_f32 %s, %s, %s' % (V(pk + r//2), V(acc + r - 1), V(acc + r)))
                        if r in (7, 15):
                            e = r // 8
                            def st(e=e, pk=pk, un=2*grp+u):
                                tU[un] = g('buffer_store_dwordx4 %s, %s, %s, 0 offen offset:%d%s' % (V(pk + 4*e, 4), V(vHs), S(sH, 4), 256*e, cfg.get('hst', ' sc1')))
                            ops.append(F(st))
                ops.append('v_add_u32 %s, %d, %s' % (V(vHs), HKS, V(vHs)))
            return ops
        pa = 24 if pk0 else min(40 if not CF_ else 99, int(at(cl)) - 1)
        if CF_: pa = min(pa, int(at(CF_[1])) - 1)
        sA = Stream(setup[:n_late], s_from, pa - 1)
        fixed.append((pa - 0.1, F(lambda: sA.flush(g), 0)))
        streams = [sA, Stream(setup[n_late:], pa, 78),
                   Stream(epi(0), 82, 158), Stream(epi(1), 162, 238)]
        if cfg.get('noepi'): streams = streams[:3]
        fixed.append((max(at(cf) + 1, 150), self.line_addr(WS_HFLAG, vFa)))
        fixed.append((cfg.get('f_l0', 232), F(lambda: self.hflag(1, 0, tU[2]), 20)))
        sched(g, mains, 24, fixed, streams, report=self.rep and 'ffn')
        self.stamp(5)
        if pp >= 30: self.pack_poll_check(vPp, vPd)
        e2 = epi(2); k = cfg.get('f_hp0', 60)
        rest = mix(g, e2[:k] + self.hp_addr(1) + [F(lambda: self.hpoll(1, 0), 8)] + e2[k:], b2[nb_in:], every=cfg.get('f_pace', 72))
        self.hflag(1, 1, tU[3])
        jl = cfg.get('f_jl', 0)
        if jl:
            nj = cfg.get('f_jb', 16)
            g.do(rest[:nj]); rest = rest[nj:]
            if jl == 2: self.hflag(1, 2, tU[5])
            self.hpoll(1, jl); self.hcheck(1, jl); self.hpoll(1, 0)
        self.stamp(6)
        self.phase2(1, rest, tU[5])

    def cpow(self, dst, a, th, n, t0, t1):
        if n is None:
            o = ['v_exp_f32 %s, %s' % (V(t0), V(a)), 'v_rndne_f32 %s, %s' % (V(t1), V(th)), 'v_sub_f32 %s, %s, %s' % (V(t1), V(th), V(t1))]
        else:
            o = ['v_mul_f32 %s, %s, %s' % (V(t0), n, V(a)), 'v_mul_f32 %s, %s, %s' % (V(dst), n, V(th)), 'v_exp_f32 %s, %s' % (V(t0), V(t0)),
                 'v_rndne_f32 %s, %s' % (V(t1), V(dst)), 'v_sub_f32 %s, %s, %s' % (V(t1), V(dst), V(t1))]
        return o + ['v_cos_f32 %s, %s' % (V(dst), V(t1)), 'v_sin_f32 %s, %s' % (V(dst+1), V(t1)),
                    'v_mul_f32 %s, %s, %s' % (V(dst), V(t0), V(dst)), 'v_mul_f32 %s, %s, %s' % (V(dst+1), V(t0), V(dst+1))]

    def ssm(self):
        g = self.g; cfg = self.cfg
        ACC = 16
        def acc(u, part, t): return ACC + 16*u + 8*part + t
        L1, CF, L4, L8S = 96, 98, 100, 102
        L8, L128, nL128, LK, vGrp = 136, 157, 139, 214, 216
        def pk(op, d, c, hi, x, y=None, neg=False):
            n = 3 if y is not None else 2
            t = 'v_pk_%s_f32 %s, %s, %s' % (op, V(d, 2), V(c, 2), V(x, 2)) + (', %s' % V(y, 2) if y is not None else '')
            t += ' op_sel:[%d%s] op_sel_hi:[%d%s]' % (hi, ',0'*(n-1), hi, ',1'*(n-1))
            if neg: t += ' neg_lo:[1%s] neg_hi:[1%s]' % (',0'*(n-1), ',0'*(n-1))
            return t
        vXd = [140, 141, 142, 143]; vBd = [144, 145, 146, 147, 148]
        vXr = [149, 150]; vBr = [151, 152, 153, 154]
        vPidx = 155; vHs = 156
        vPr, vPs, vPp, vPd = 217, 218, 159, 13
        BIG = 160
        RAW = 160
        aBF = 0; NF = 14; aXF = 56
        LA = cfg.get('sla', 6); WE = cfg.get('swe', 4); SL = cfg.get('s_sl', 3); RS = 1.4 if SL == 3 else 2.0
        g.label('L_ssm')
        self.x_dma_addr(vXd, True)
        g('s_and_b32 %s, %s, 1' % (S(sT1), S(sWave)))
        g('s_lshl_b32 %s, %s, 1' % (S(sT0), S(sJ1)))
        g('s_add_u32 %s, %s, %s' % (S(sT0), S(sT0), S(sT1)))
        g('s_mul_i32 %s, %s, %d' % (S(sT0), S(sT0), 40*1280))
        g('s_lshl_b32 %s, %s, 6' % (S(sT1), S(sT1)))
        g('v_xor_b32 %s, %s, %s' % (V(vT[4]), S(sT1), V(vT[4])))
        g('v_xor_b32 %s, 64, %s' % (V(vT[5]), V(vT[4])))
        g('v_mul_u32_u24 %s, 1280, %s' % (V(vT[3]), V(vT[0])))
        g('v_add3_u32 %s, %s, %s, %s' % (V(vBd[0]), V(vT[4]), V(vT[3]), S(sT0)))
        g('v_add3_u32 %s, %s, %s, %s' % (V(vT[5]), V(vT[5]), V(vT[3]), S(sT0)))
        for q in range(1, 5):
            g('v_add_u32 %s, %d, %s' % (V(vBd[q]), 8*q*1280 - 1024*(q & 3), V(vT[5] if q & 1 else vBd[0])))
        g('s_lshl_b32 %s, %s, 14' % (S(sMx), S(sWave)))
        g('s_mul_i32 %s, %s, 5120' % (S(sMw), S(sWave)))
        g('s_add_u32 %s, %s, %d' % (S(sMw), S(sMw), S_BR))
        g.do(self.srd_cst(sW, 819200))
        g.do(self.kb(1))
        tokS = {}
        def dma(s):
            o = ['s_add_u32 m0, %s, %d' % (S(sMx), (s % 4)*4096)]
            for q in range(4): o.append('buffer_load_dwordx4 %s, %s, %s offen offset:%d%s lds' % (V(vXd[q]), S(sX, 4), S(sKb[s]), 1024*q, (' nt' if s < cfg.get('nt0', 0) else '')))
            o.append('s_add_u32 m0, %s, %d' % (S(sMw), (s % 4)*20480))
            nt = ' nt' if s < cfg.get('nt0', 0) else ''
            for q in range(4): o.append('buffer_load_dwordx4 %s, %s, %s offen offset:%d%s lds' % (V(vBd[q]), S(sW, 4), S(sKb[s]), 1024*q, nt))
            o.append('s_add_u32 m0, %s, %d' % (S(sMw), (s % 4)*20480 + 4096))
            def f(): tokS[s] = g('buffer_load_dwordx4 %s, %s, %s offen%s lds' % (V(vBd[4]), S(sW, 4), S(sKb[s]), nt))
            return o + [F(f)]
        g('s_mul_i32 %s, %s, 160' % (S(sT0), S(sJ1)))
        g('v_mul_u32_u24 %s, 13, %s' % (V(vGrp), V(vLane)))
        g('v_lshrrev_b32 %s, 8, %s' % (V(vGrp), V(vGrp)))
        g('v_mul_u32_u24 %s, 20, %s' % (V(vPidx), V(vGrp)))
        g('v_sub_u32 %s, %s, %s' % (V(vPidx), V(vLane), V(vPidx)))
        g('s_mul_i32 %s, %s, 20' % (S(sT1), S(sWave)))
        g('v_add_u32 %s, %s, %s' % (V(vPidx), S(sT1), V(vPidx)))
        g('v_lshl_add_u32 %s, %s, 1, %s' % (V(vT[6]), V(vPidx), S(sT0)))
        self.ptrs_ready()
        g('s_cmp_lt_u32 %s, 2' % S(sWave))
        g('s_cselect_b32 %s, %s, %s' % (S(sW), S(pBre), S(pBim)))
        g('s_cselect_b32 %s, %s, %s' % (S(sW+1), S(pBre+1), S(pBim+1)))
        g.do(dma(0))
        for k, p in enumerate((pLre, pLim, pLdt)): g('global_load_ushort %s, %s, %s' % (V(RAW + k), V(vT[6]), S(p, 2)))
        g.do(self.srd_ptr(sWS, pWs))
        g('s_load_dword %s, %s, 0' % (S(sNonce), S(pWs, 2)))
        d1 = dma(1); n1 = cfg.get('s_n1', 5)
        g.do(d1[:n1])
        g('s_branch L_ssm2')
        g.label('L_ssm2')
        for s in range(2, 10): g.do(self.kb(s))
        g.do(self.warm_flags(0))
        global sWs2
        sWs2 = 93
        sl_, sr_, sf_ = cfg.get('spk', (-1, 1, 4))
        own = not cfg.get('cpk')
        if own:
            g.do(self.pack_addr(0, vPs, vPr, None))
            if sl_ < 0: self.pack_load(0, vPs)
        g('v_and_b32 %s, 15, %s' % (V(vT[3]), V(vLane)))
        g('v_bfe_u32 %s, %s, 1, 3' % (V(vT[4]), V(vLane)))
        g('v_xor_b32 %s, %s, %s' % (V(vT[4]), V(vT[4]), V(vT[2])))
        g('v_lshlrev_b32 %s, 4, %s' % (V(vT[4]), V(vT[4])))
        g('v_lshl_add_u32 %s, %s, 7, %s' % (V(vT[4]), V(vT[3]), V(vT[4])))
        g('v_add_u32 %s, %s, %s' % (V(vXr[0]), S(sMx), V(vT[4])))
        g('v_xor_b32 %s, 64, %s' % (V(vXr[1]), V(vXr[0])))
        g('v_add_u32 %s, %d, %s' % (V(vBr[0]), S_BR, V(vT[4])))
        g('v_xor_b32 %s, 64, %s' % (V(vBr[1]), V(vBr[0])))
        g('v_add_u32 %s, 40960, %s' % (V(vBr[2]), V(vBr[0])))
        g('v_add_u32 %s, 40960, %s' % (V(vBr[3]), V(vBr[1])))
        PT = BIG + 20
        L_PAR = L_EX + 11264
        setup = self.late_setup(0, vT[0], vT[1], vPp) + self.hbase(5, 48*HKS) + ['v_add_u32 %s, %s, %s' % (V(vHs), S(sKt), V(vL16))]
        setup += self.ks_table(0)
        setup += ['s_lshl_b32 %s, %s, 2' % (S(sT2), S(sWave)), 'v_add_u32 %s, %s, %s' % (V(vT[2]), S(sT2), V(vT[2])),
               'v_lshlrev_b32 %s, 3, %s' % (V(PT), V(vT[2])), 'v_cvt_f32_u32 %s, %s' % (V(PT), V(PT)),
               'v_mul_u32_u24 %s, 640, %s' % (V(vT[2]), V(vT[2])),
               'v_lshlrev_b32 %s, 5, %s' % (V(vT[7]), V(vT[3])), 'v_add_u32 %s, %d, %s' % (V(vT[7]), L_PAR, V(vT[7])),
               'v_lshlrev_b32 %s, 5, %s' % (V(vT[6]), V(vPidx)), 'v_add_u32 %s, %d, %s' % (V(vT[6]), L_PAR, V(vT[6])),
               'v_lshlrev_b32 %s, 3, %s' % (V(vT[3]), V(vT[3])), 'v_add_u32 %s, %d, %s' % (V(vT[3]), L_EX, V(vT[3])),
               'v_add_u32 %s, %s, %s' % (V(vT[2]), V(vT[2]), V(vT[3])),
               'v_lshlrev_b32 %s, 3, %s' % (V(vT[4]), V(vPidx)), 'v_add_u32 %s, %d, %s' % (V(vT[4]), L_EX, V(vT[4])),
               's_mul_i32 %s, %s, 20480' % (S(sT2), S(sJ1)), 's_add_u32 %s, %s, %d' % (S(sT2), S(sT2), WS_EBUF),
               'v_lshlrev_b32 %s, 4, %s' % (V(vT[5]), V(vPidx)), 'v_add_u32 %s, %s, %s' % (V(vT[5]), S(sT2), V(vT[5])),
               's_mul_i32 %s, %s, 1280' % (S(sCo), S(sC1)),
               'v_mul_u32_u24 %s, 640, %s' % (V(PT+1), V(vGrp)), 'v_cvt_f32_u32 %s, %s' % (V(PT+1), V(PT+1))]
        xdl = self.xd_loads(PT + 5)
        if cfg.get('s_xd', 250) < 0: setup += xdl
        g.do(setup)
        g.do(d1[n1:])
        UP = cfg.get('s_up', 2)
        if UP == 3: g.do(dma(2))
        self.stamp(1)
        lr, li, ld = RAW, RAW + 1, RAW + 2
        Q = RAW + 4; l1, cf, l4, a, th = Q, Q+2, Q+4, Q+6, Q+7
        t0, t1, t2, t3 = PT+2, PT+3, PT+4, RAW+3
        par = ['v_lshlrev_b32 %s, 16, %s' % (V(ld), V(ld)), 'v_mul_f32 %s, 0x%x, %s' % (V(ld), LOG2E, V(ld)),
               'v_exp_f32 %s, %s' % (V(ld), V(ld)), 'v_lshlrev_b32 %s, 16, %s' % (V(lr), V(lr)),
               'v_cvt_pk_bf16_f32 %s, %s, %s' % (V(ld), V(ld), V(ld)), 'v_lshlrev_b32 %s, 16, %s' % (V(li), V(li)),
               'v_lshlrev_b32 %s, 16, %s' % (V(ld), V(ld)),
               'v_mul_f32 %s, %s, %s' % (V(a), V(ld), V(lr)), 'v_mul_f32 %s, %s, %s' % (V(th), V(ld), V(li)),
               'v_mul_f32 %s, 0x%x, %s' % (V(a), LOG2E, V(a)), 'v_mul_f32 %s, 0.15915494, %s' % (V(th), V(th))]
        par += self.cpow(l1, a, th, None, t0, t1)
        par += ['v_mul_f32 %s, %s, %s' % (V(t2), V(lr), V(lr)), 'v_fmac_f32 %s, %s, %s' % (V(t2), V(li), V(li)),
                'v_rcp_f32 %s, %s' % (V(t2), V(t2)), 'v_add_f32 %s, -1.0, %s' % (V(t3), V(l1)),
                'v_mul_f32 %s, %s, %s' % (V(t0), V(l1), V(l1)), 'v_mul_f32 %s, %s, %s' % (V(t1), V(l1), V(l1+1)),
                'v_mul_f32 %s, %s, %s' % (V(cf), V(t3), V(lr)), 'v_add_f32 %s, %s, %s' % (V(t2), V(t2), V(t2)),
                'v_fmac_f32 %s, %s, %s' % (V(cf), V(l1+1), V(li)), 'v_mul_f32 %s, %s, %s' % (V(cf+1), V(l1+1), V(lr)),
                'v_fma_f32 %s, -%s, %s, %s' % (V(cf+1), V(t3), V(li), V(cf+1)),
                'v_mul_f32 %s, %s, %s' % (V(cf), V(cf), V(t2)), 'v_mul_f32 %s, %s, %s' % (V(cf+1), V(cf+1), V(t2)),
                'v_fma_f32 %s, -%s, %s, %s' % (V(t0), V(l1+1), V(l1+1), V(t0)), 'v_add_f32 %s, %s, %s' % (V(t1), V(t1), V(t1)),
                'v_mul_f32 %s, %s, %s' % (V(l4), V(t0), V(t0)), 'v_mul_f32 %s, %s, %s' % (V(l4+1), V(t0), V(t1)),
                'v_fma_f32 %s, -%s, %s, %s' % (V(l4), V(t1), V(t1), V(l4)), 'v_add_f32 %s, %s, %s' % (V(l4+1), V(l4+1), V(l4+1))]
        par += self.cpow(L8, a, th, '0x41000000', t0, t1) + self.cpow(L128, a, th, '0x43000000', t0, t1)
        par += ['v_sub_f32 %s, 0, %s' % (V(L8+2), V(L8+1)), 'v_sub_f32 %s, 0, %s' % (V(nL128), V(L128+1))]
        par += self.cpow(LK, a, th, V(PT+1), t0, t1)
        par_w = ['ds_write_b128 %s, %s' % (V(vT[6]), V(Q, 4)), 'ds_write_b128 %s, %s offset:16' % (V(vT[6]), V(Q+4, 4))]
        par_r = ['ds_read_b128 %s, %s offset:%d' % (V(L1 + 8*u + 4*h, 4), V(vT[7]), 512*u + 16*h) for u in range(5) for h in range(2)]
        par2 = []
        for u in range(5): par2 += self.cpow(L8S + 8*u, L8S + 8*u, L8S + 8*u + 1, V(PT), t0, t1)

        mains = []; fixed = []
        tokF = {}; tokP = {}
        def rd_b(f_):
            sg, s, up = f_ // 20, (f_ % 20)//10, f_ % 10
            u, part = up // 2, up % 2
            def f():
                if cfg.get('s_nord'): tokF[f_] = None; return
                tokF[f_] = g('ds_read_b128 %s, %s offset:%d' % (A(aBF + 4*(f_ % NF), 4), V(vBr[2*((sg % 4)//2) + s]), (sg % 2)*20480 + (part*80 + 16*u)*128))
            return F(f)
        def bar(sg):
            def f():
                g.wait(tokS[sg], tokF.get(20*sg-1) if (SL == 3 and sg + SL <= 9) else None, tokP.get(sg))
                g('s_barrier')
                if sg == 0: self.stamp(2)
                if sg in (2, 4, 6, 8, 9): self.stamp(20 + (2, 4, 6, 8, 9).index(sg), lvl=3)
                if cfg.get('allbar') and sg > 0: self.stamp(19 + sg)
            return F(f, 8)
        for n in range(400):
            f_, m = n // 2, n % 2
            kk, up = f_ // 10, f_ % 10
            u, part = up // 2, up % 2
            d = acc(u, part, 4*m)
            c = '0' if kk == 0 else V(d, 4)
            mains.append(('v_mfma_f32_16x16x32_bf16 %s, %s, %s, %s' % (V(d, 4), A(aXF + 8*(kk % 2) + 4*m, 4), A(aBF + 4*(f_ % NF), 4), c),
                          (lambda f_=f_: [tokF[min(f_+WE-1, 199)]]) if (m == 0 and f_ % WE == 0) else None))
        endb = {}
        for sg in range(10):
            p = 40*sg - 2*LA
            fixed.append((p - 1.5, bar(sg)))
            if sg + SL <= 9:
                d = dma(sg+SL)
                if sg == 0 and UP < SL: d = dma(2) + d
                stp = 36.0/len(d) if len(d) > 12 else 2
                for i, f in enumerate(d): fixed.append((p + 1 + stp*i, f))
                endb[sg] = p + 1 + stp*len(d)
        for f_ in range(200):
            pos = 40*(f_//20) - 2*LA + RS*(f_ % 20)
            if f_ % 10 == 0:
                kk = f_//10; sg, s = kk // 2, kk % 2
                for m in range(2):
                    fixed.append((max(pos - 1, 20*kk - 19) + 0.1*m, 'ds_read_b128 %s, %s offset:%d' % (A(aXF + 8*(kk % 2) + 4*m, 4), V(vXr[s]), (sg % 4)*4096 + 2048*m)))
            fixed.append((pos, rd_b(f_)))
        b2 = [] if cfg.get('s_nob2') else self.b2_loads(0, range(10))
        if own:
            if sl_ >= 0: fixed.append((endb[sl_], F(lambda: self.pack_load(0, vPs), 32)))
            pa_, pb_ = self.pack_proc(0, vPr)
            for i, f in enumerate(pa_): fixed.append((endb[sr_] - 12 + i, f))
            for i, f in enumerate(pb_): fixed.append((endb[sr_] + i, f))
            fixed.append((40*sf_ - 2*LA - 1.4, F(lambda: self.flag_store(self.tPackSt, sPD), 8)))
        pw = max(sr_ + 1, 2)
        sA = Stream(self.nonce_ops() + par, 2, 40*pw - 2*LA - 3)
        def parw():
            sA.flush(g); tokP[pw+1] = g.do(par_w)
        fixed.append((40*pw - 2*LA + 2, F(parw, 8)))
        for i, f in enumerate(par_r): fixed.append((40*(pw+1) - 2*LA + 21 + 1.4*i, f))
        pc = cfg.get('s_pc', 300); nb_in = cfg.get('s_b2in', 30) if pc < 400 else 0
        fixed.append((pc - 40, F(lambda: self.pack_poll_issue(vPp, vPd))))
        if pc < 400: fixed.append((pc, F(lambda: self.pack_poll_check(vPp, vPd), 20)))
        streams = [Stream(b2[:nb_in], pc + 1, 398, paced=True, slack=4), sA,
                   Stream(self.line_addr(WS_HFLAG, vFa), 40*sf_, 40*sf_ + 20), Stream(par2, 40*(pw+2), 390)]
        if cfg.get('s_xd', 250) >= 0: streams.append(Stream(xdl, cfg.get('s_xd', 250), cfg.get('s_xd', 250) + 100))
        if cfg.get('s_ht'):
            streams.append(Stream(['v_lshrrev_b32 v188, 4, %s' % V(vLane), 'v_lshlrev_b32 v188, 13, v188', 'v_and_b32 v189, 15, %s' % V(vLane),
                 'v_lshl_add_u32 v188, v189, 7, v188', 'v_sub_u32 v189, %s, %s' % (V(vHs), V(vL16)), 'v_add_u32 v188, v188, v189',
                 'buffer_load_dword v190, v188, %s, 0 offen' % S(sH, 4), 'v_and_b32 v191, 15, %s' % V(vLane), 'v_lshl_add_u32 v189, v191, 7, v189',
                 'v_add_u32 v189, %d, v189' % (4*HKS), 'buffer_load_dword v191, v189, %s, 0 offen' % S(sH, 4)], cfg['s_ht'], cfg['s_ht'] + 20))
        assert sf_ >= pw
        b2 = b2[nb_in:]
        if cfg.get('s_nomf'): mains = [('s_nop 0', None)]*400; fixed = [f for f in fixed if not (isinstance(f[1], str) and 'ds_read' in f[1])]
        if cfg.get('s_nostream'): streams = [streams[0]]
        sched(g, mains, 8, fixed, streams, report=self.rep and 'ssm')
        self.stamp(3)

        pace = cfg.get('s_pace', 9999)
        II, EB, EM = 160, 180, 200
        pr = lambda u, part, k: ACC + 16*u + 8*part + 2*k
        ops = []
        for k in range(1, 4):
            src = lambda u, part: (pr(u, part, 0) if k == 1 else (II if k == 2 else EB) + 4*u + 2*part)
            dst = lambda u, part: (EB if k == 2 else II) + 4*u + 2*part
            for u in range(5):
                ops += [pk('fma', dst(u, 0), L1+8*u, 0, src(u, 0), pr(u, 0, k)), pk('fma', dst(u, 1), L1+8*u, 0, src(u, 1), pr(u, 1, k))]
            for u in range(5):
                ops += [pk('fma', dst(u, 0), L1+8*u, 1, src(u, 1), dst(u, 0), True), pk('fma', dst(u, 1), L1+8*u, 1, src(u, 0), dst(u, 1))]
        for u in range(5):
            ops += ['v_fma_f32 %s, %s, %s, %s' % (V(EM+2*u), V(L4+8*u), V(II+4*u), V(II+4*u+1)),
                    'v_fma_f32 %s, %s, %s, %s' % (V(EM+2*u+1), V(L4+8*u), V(II+4*u+2), V(II+4*u+3))]
        for u in range(5):
            ops += ['v_fma_f32 %s, -%s, %s, %s' % (V(EM+2*u), V(L4+8*u+1), V(II+4*u+2), V(EM+2*u)),
                    'v_fmac_f32 %s, %s, %s' % (V(EM+2*u+1), V(L4+8*u+1), V(II+4*u)),
                    'ds_write_b64 %s, %s offset:%d' % (V(vT[2]), V(EM + 2*u, 2), 128*u)]
        ops.append(F(lambda: (self.cst(17), g.waitcnt(lg=0), g('s_barrier'), self.cst(18))))
        P = BIG + 20
        for s in range(16): ops.append('ds_read_b64 %s, %s offset:%d' % (V(P + 2*s, 2), V(vT[4]), 640*s))
        ops += ['v_mov_b32 %s, %s' % (V(P+32), S(sNonce)), 'v_mov_b32 %s, %s' % (V(P+33), S(sNonce))]
        for s in range(1, 16):
            a, b = P + 2*s, P + 2*(s-1)
            ops += ['v_fmac_f32 %s, %s, %s' % (V(a), V(L8), V(b)), 'v_fmac_f32 %s, %s, %s' % (V(a+1), V(L8), V(b+1)),
                    'v_fmac_f32 %s, %s, %s' % (V(a), V(L8+2), V(b+1)), 'v_fmac_f32 %s, %s, %s' % (V(a+1), V(L8+1), V(b))]
        ops.append('buffer_store_dwordx4 %s, %s, %s, %s offen sc1' % (V(P+30, 4), V(vT[5]), S(sWS, 4), S(sCo)))
        if pc < 400: b2 = mix(g, ops, b2, every=cfg.get('s_pace1', 9999))
        else: g.do(ops)
        bE, bG, bH = cfg.get('s_burst', (0, 10, 0))
        if pc < 400: g.do(b2[:bE]); b2 = b2[bE:]
        self.stamp(4)
        ops = ['v_mov_b32 %s, 0' % V(vT[6]), 'v_mov_b32 %s, 0' % V(vT[7]), 'ds_write_b64 %s, %s' % (V(vT[4]), V(vT[6], 2)),
               'ds_write_b64 %s, %s offset:10240' % (V(vT[4]), V(vT[6], 2))]
        for s in range(1, 16): ops.append('ds_write_b64 %s, %s offset:%d' % (V(vT[4]), V(P + 2*(s-1), 2), 640*s))
        g.do(ops)
        self.cst(11)
        GQ = [180 + 4*i for i in range(10)]
        GX = lambda i: GQ[i//4] + i % 4
        GW = lambda i: GQ[5 + i//4] + i % 4
        gate_ld = ['s_lshl_b32 %s, %s, 3' % (S(sT0), S(sC1)), 's_add_u32 %s, %s, %s' % (S(sT0), S(sT0), S(sJ1)),
              's_lshl_b32 %s, %s, 4' % (S(sT0), S(sT0)),
              'v_lshrrev_b32 %s, 4, v0' % V(vT[8]), 'v_add_u32 %s, %s, %s' % (V(vT[8]), S(sT0), V(vT[8])),
              'v_and_b32 %s, 15, %s' % (V(vT[0]), V(vLane)), 'v_lshlrev_b32 %s, 4, %s' % (V(vT[0]), V(vT[0])),
              'v_mul_u32_u24 %s, 1280, %s' % (V(vT[1]), V(vT[8])), 'v_add_u32 %s, %s, %s' % (V(vT[1]), V(vT[1]), V(vT[0]))]
        for i in range(5):
            gate_ld.append('buffer_load_dwordx4 %s, %s, %s, 0 offen offset:%d' % (V(GQ[i], 4), V(vT[1]), S(sX, 4), 256*i))
            gate_ld.append('global_load_dwordx4 %s, %s, %s offset:%d' % (V(GQ[5+i], 4), V(vT[0]), S(pGate, 2), 256*i))
        TT = 16
        Z = TT + 8; ONE = TT + 9
        ops = ['v_mov_b32 %s, 0' % V(Z), 'v_mov_b32 %s, 0x3f803f80' % V(ONE), 's_mov_b32 %s, 0xffff0000' % S(sT1)]
        for i in range(20):
            x, w = V(GX(i)), V(GW(i))
            a, b, c, d = (V(TT + k + 4*(i % 2)) for k in range(4))
            ops += ['v_lshlrev_b32 %s, 16, %s' % (a, x), 'v_and_b32 %s, %s, %s' % (b, S(sT1), x),
                    'v_lshlrev_b32 %s, 16, %s' % (c, w), 'v_and_b32 %s, %s, %s' % (d, S(sT1), w),
                    'v_mul_f32 %s, %s, %s' % (a, a, c), 'v_mul_f32 %s, %s, %s' % (b, b, d),
                    'v_cvt_pk_bf16_f32 %s, %s, %s' % (a, a, b),
                    'v_dot2_f32_bf16 %s, %s, %s, %s' % (V(Z), a, V(ONE), V(Z))]
        for k in (8, 4, 2, 1):
            ops.append('v_add_f32_dpp %s, %s, %s row_ror:%d row_mask:0xf bank_mask:0xf' % (V(Z), V(Z), V(Z), k))
        G4 = 32
        ops += ['v_cvt_pk_bf16_f32 %s, %s, %s' % (V(Z), V(Z), V(Z)), 'v_lshlrev_b32 %s, 16, %s' % (V(Z), V(Z)),
                'v_mul_f32 %s, 0x%x, %s' % (V(Z), NLOG2E, V(Z)), 'v_exp_f32 %s, %s' % (V(Z), V(Z)),
                'v_mov_b32 %s, %s' % (V(G4+1), S(sNonce)),
                'v_add_f32 %s, 1.0, %s' % (V(Z), V(Z)), 'v_rcp_f32 %s, %s' % (V(Z), V(Z)),
                'v_mov_b32 %s, %s' % (V(G4+3), S(sNonce)),
                'v_cvt_pk_bf16_f32 %s, %s, %s' % (V(Z), V(Z), V(Z)), 'v_lshlrev_b32 %s, 16, %s' % (V(G4), V(Z)),
                'v_sub_f32 %s, 1.0, %s' % (V(ONE), V(G4)),
                'v_cvt_pk_bf16_f32 %s, %s, %s' % (V(ONE), V(ONE), V(ONE)), 'v_lshlrev_b32 %s, 16, %s' % (V(G4+2), V(ONE)),
                'v_lshlrev_b32 %s, 4, %s' % (V(vT[8]), V(vT[8])), 'v_add_u32 %s, %d, %s' % (V(vT[8]), WS_GATE, V(vT[8])),
                'buffer_store_dwordx4 %s, %s, %s, 0 offen sc1' % (V(G4, 4), V(vT[8]), S(sWS, 4))]
        gate_ops = ops
        ops = []
        TT = 150
        for u in range(5):
            cf = CF + 8*u
            for k0 in (0, 2):
                for k in (k0, k0+1): ops.append(pk('mul', TT + 2*(k % 2), cf, 1, pr(u, 0, k)))
                for k in (k0, k0+1): ops.append(pk('mul', pr(u, 0, k), cf, 0, pr(u, 0, k)))
                for k in (k0, k0+1): ops.append(pk('fma', pr(u, 0, k), cf, 1, pr(u, 1, k), pr(u, 0, k), True))
                for k in (k0, k0+1): ops.append(pk('fma', pr(u, 1, k), cf, 0, pr(u, 1, k), TT + 2*(k % 2)))
            ops += ['v_mul_f32 %s, %s, %s' % (V(II+4*u+1), V(cf), V(II+4*u)), 'v_mul_f32 %s, %s, %s' % (V(II+4*u+3), V(cf), V(II+4*u+2)),
                    'v_fma_f32 %s, -%s, %s, %s' % (V(II+4*u+1), V(cf+1), V(II+4*u+2), V(II+4*u+1)),
                    'v_fmac_f32 %s, %s, %s' % (V(II+4*u+3), V(cf+1), V(II+4*u))]
        coef_ops = ops
        vGa, vTe, GR = 140, 145, 180
        ops = ['v_mul_u32_u24 %s, 5, %s' % (V(vGrp), V(vGrp)), 'v_sub_u32 %s, %s, %s' % (V(vGrp), S(sC1), V(vGrp)),
               ['v_cmp_gt_u32 vcc, 60, %s' % V(vLane), 'v_cndmask_b32 %s, 0, %s, vcc' % (V(vGrp), V(vGrp))],
               'v_mul_i32_i24 %s, 1280, %s' % (V(vT[0]), V(vGrp)), 'v_add_u32 %s, %s, %s' % (V(vT[0]), V(vT[0]), V(vT[5])),
               'v_mov_b32 %s, 0x7f000000' % V(vT[1])]
        for i in range(5):
            ops += ['v_subrev_u32 %s, %d, %s' % (V(vGa+i), 1280*(i+1), V(vT[0])),
                    ['v_cmp_lt_i32 vcc, %d, %s' % (i, V(vGrp)), 'v_cndmask_b32 %s, %s, %s, vcc' % (V(vGa+i), V(vT[1]), V(vGa+i)),
                     'v_cndmask_b32 %s, 0, %s, vcc' % (V(vTe+i), V(vFd))]]
        nc = cfg.get('s_gat', 20)
        g.do(ops + coef_ops[:nc])
        self.stamp(5)
        def gather():
            for i in range(5):
                g('buffer_load_dwordx3 %s, %s, %s, 0 offen sc1' % (V(GR + 4*i, 3), V(vGa+i), S(sWS, 4)))
        def gcheck():
            for i in range(4, -1, -1):
                g('v_xor_b32 %s, %s, %s' % (V(vT[0] if i == 4 else vT[1]), V(vTe+i), V(GR + 4*i + 2)))
                if i < 4: g('v_or_b32 %s, %s, %s' % (V(vT[0]), V(vT[0]), V(vT[1])))
            g('v_cmp_ne_u32 vcc, 0, %s' % V(vT[0]))
            g('s_nop 0')
            g('s_cmp_eq_u64 vcc, 0')
        if pc >= 400: self.pack_poll_check(vPp, vPd)
        gather()
        g.do(b2[:bG]); b2 = b2[bG:]
        b2 = mix(g, coef_ops[nc:], b2, every=cfg.get('s_pace3', 9999))
        g('v_and_b32 %s, 15, %s' % (V(vT[6]), V(vLane)))
        g('v_mul_u32_u24 %s, 80, %s' % (V(vT[6]), V(vT[6])))
        g('v_lshrrev_b32 %s, 4, %s' % (V(vT[7]), V(vLane)))
        g('v_lshl_add_u32 %s, %s, 4, %s' % (V(vT[6]), V(vT[7]), V(vT[6])))
        g('v_add_u32 %s, %s, %s' % (V(vT[6]), S(sMx), V(vT[6])))
        g('v_bfe_u32 %s, %s, 2, 2' % (V(vT[8]), V(vLane)))
        g('v_lshl_add_u32 %s, %s, 3, %s' % (V(vT[7]), V(vT[7]), V(vT[8])))
        g('v_mul_u32_u24 %s, 80, %s' % (V(vT[7]), V(vT[7])))
        g('v_and_b32 %s, 3, %s' % (V(vT[8]), V(vLane)))
        g('v_lshl_add_u32 %s, %s, 3, %s' % (V(vT[7]), V(vT[8]), V(vT[7])))
        g('v_add_u32 %s, %s, %s' % (V(vT[7]), S(sMx), V(vT[7])))
        self.cst(12)
        if not cfg.get('x_noe'): self.poll('carry', gather, gcheck)
        self.stamp(6)
        ops = []
        for d in range(4, 0, -1):
            a, b = GR + 4*(d-1), GR + 4*d
            ops += ['v_fmac_f32 %s, %s, %s' % (V(a), V(L128), V(b)), 'v_fmac_f32 %s, %s, %s' % (V(a+1), V(L128), V(b+1)),
                    'v_fmac_f32 %s, %s, %s' % (V(a), V(nL128), V(b+1)), 'v_fmac_f32 %s, %s, %s' % (V(a+1), V(L128+1), V(b))]
        ops += ['v_mul_f32 %s, %s, %s' % (V(GR+4), V(LK), V(GR)), 'v_mul_f32 %s, %s, %s' % (V(GR+5), V(LK), V(GR+1)),
                'v_fma_f32 %s, -%s, %s, %s' % (V(GR+4), V(LK+1), V(GR+1), V(GR+4)), 'v_fmac_f32 %s, %s, %s' % (V(GR+5), V(LK+1), V(GR)),
                'ds_add_f32 %s, %s offset:10240' % (V(vT[4]), V(GR+4)), 'ds_add_f32 %s, %s offset:10244' % (V(vT[4]), V(GR+5))]
        ops.append(F(lambda: (g.waitcnt(lg=0), g('s_barrier'))))
        SS, PP = 200, 210
        for u in range(5):
            ops.append('ds_read_b64 %s, %s offset:%d' % (V(SS + 2*u, 2), V(vT[3]), 10240 + 128*u))
            ops.append('ds_read_b64 %s, %s offset:%d' % (V(PP + 2*u, 2), V(vT[2]), 128*u))
        b2 = mix(g, ops, b2, every=pace)
        self.cst(13)
        ops = []
        for u in range(5):
            ops += ['v_fmac_f32 %s, %s, %s' % (V(PP+2*u), V(L8S+8*u), V(SS+2*u)), 'v_fmac_f32 %s, %s, %s' % (V(PP+2*u+1), V(L8S+8*u), V(SS+2*u+1))]
        for u in range(5):
            ops += ['v_fma_f32 %s, -%s, %s, %s' % (V(PP+2*u), V(L8S+8*u+1), V(SS+2*u+1), V(PP+2*u)), 'v_fmac_f32 %s, %s, %s' % (V(PP+2*u+1), V(L8S+8*u+1), V(SS+2*u))]
        for u in range(5):
            ops += ['v_mul_f32 %s, %s, %s' % (V(II+4*u), V(CF+8*u), V(PP+2*u)), 'v_mul_f32 %s, %s, %s' % (V(II+4*u+2), V(CF+8*u), V(PP+2*u+1))]
        for u in range(5):
            ops += ['v_fma_f32 %s, -%s, %s, %s' % (V(II+4*u), V(CF+8*u+1), V(PP+2*u+1), V(II+4*u)), 'v_fmac_f32 %s, %s, %s' % (V(II+4*u+2), V(CF+8*u+1), V(PP+2*u))]
        for u in range(5):
            ops += ['v_fmac_f32 %s, %s, %s' % (V(II+4*u+1), V(L4+8*u), V(II+4*u)), 'v_fmac_f32 %s, %s, %s' % (V(II+4*u+3), V(L4+8*u), V(II+4*u+2))]
        for u in range(5):
            ops += ['v_fma_f32 %s, -%s, %s, %s' % (V(II+4*u+1), V(L4+8*u+1), V(II+4*u+2), V(II+4*u+1)), 'v_fmac_f32 %s, %s, %s' % (V(II+4*u+3), V(L4+8*u+1), V(II+4*u))]
        PKB = [104, 140]
        FRB = [148, 96]
        def scan_ops(us):
            o = []
            for k in range(4):
                pv = lambda u, part: (II + 4*u + 2*part if k == 0 else pr(u, part, k-1))
                for u in us:
                    o += [pk('fma', pr(u, 0, k), L1+8*u, 0, pv(u, 0), pr(u, 0, k)), pk('fma', pr(u, 1, k), L1+8*u, 0, pv(u, 1), pr(u, 1, k))]
                for u in us:
                    o += [pk('fma', pr(u, 0, k), L1+8*u, 1, pv(u, 1), pr(u, 0, k), True), pk('fma', pr(u, 1, k), L1+8*u, 1, pv(u, 0), pr(u, 1, k))]
            return o
        tp = lambda i: (0, 4, 1, 5)[i]
        def out_a(u):
            o = []
            pk = PKB[u % 2]
            for i in range(4): o.append('v_cvt_pk_bf16_f32 %s, %s, %s' % (V(pk+i), V(acc(u, 0, tp(i))), V(acc(u, 0, tp(i)+2))))
            o.append('ds_write_b128 %s, %s offset:%d' % (V(vT[6]), V(pk, 4), 2560*u))
            for i in range(4): o.append('v_cvt_pk_bf16_f32 %s, -%s, -%s' % (V(pk+4+i), V(acc(u, 1, tp(i))), V(acc(u, 1, tp(i)+2))))
            o.append('ds_write_b128 %s, %s offset:%d' % (V(vT[6]), V(pk+4, 4), 2560*u + 1280))
            fr = FRB[u % 2]
            for m in range(2):
                for e in range(2):
                    o.append('ds_read_b64_tr_b16 %s, %s offset:%d' % (V(fr + 4*m + 2*e, 2), V(vT[7]), 2560*u + 320*e + 32*m))
            return o
        tU = {}
        def out_b(u):
            fr = FRB[u % 2]
            def f():
                for m in range(2):
                    tU[u] = self.tH = g('buffer_store_dwordx4 %s, %s, %s, 0 offen offset:%d%s' % (V(fr + 4*m, 4), V(vHs), S(sH, 4), 1024*m, cfg.get('s_hst', ' sc1')))
                g('v_add_u32 %s, %d, %s' % (V(vHs), HKS, V(vHs)))
            return F(f, 12)
        def ilv(a, b):
            o = []; k = 0
            for i, x in enumerate(a):
                o.append(x)
                while k < len(b) and k*len(a) < (i+1)*len(b): o.append(b[k]); k += 1
            return o
        ops += scan_ops([0, 1]) + out_a(0) + gate_ld + ilv(scan_ops([2]), out_a(1)) + [out_b(0)] \
            + ilv(scan_ops([3]), out_a(2)) + [out_b(1)] + ilv(scan_ops([4]), out_a(3)) + [out_b(2)] + out_a(4) + [out_b(3)] + self.hp_addr(0) + [out_b(4)]
        rest = mix(g, ops, b2, every=pace)
        tH = self.tH
        g.do(rest[:bH]); rest = rest[bH:]
        self.cst(14)
        SLV = cfg.get('s_lv', 0); k0, k1 = cfg.get('s_lvk', (0, 120))
        if SLV:
            g.do(gate_ops[:k0]); self.hflag(0, 0, tU[2]); g.do(gate_ops[k0:k1]); self.hpoll(0, 0); g.do(gate_ops[k1:])
        else:
            if cfg.get('x_noack'): tH = None
            g.do(gate_ops[-20:] if cfg.get('x_noack') else gate_ops); self.cst(15); self.hflag(0, 0, tH); self.hflag(0, 1, tH); self.hpoll(0, 0)
        self.stamp(7)
        n2 = cfg.get('s_b2post', 0)
        while any(3 + 4*i > 20*min((50 - len(rest) + n2 + i)//5, 8) - 30 for i in range(len(rest) - n2)): n2 += 1
        g.do(rest[:n2])
        self.phase2(0, rest[n2:], tH if SLV else None)

    RD, XD, GA, GB, GV = 160, 192, 212, 217, 166
    RXA, RXB, DS = 222, 232, 242
    vGr, T = 160, 180
    vHp, vHd, vRw, vXf = 4, 5, 6, 252
    vRd = [7, 8, 9, 10, 11]; vOa = [12, 13, 14, 15, 0]
    def hp_addr(self, role):
        vHp, vHd = self.vHp, self.vHd
        return ['s_and_b32 %s, %s, 0x63' % (S(sT0), S(sIdx)), 's_lshl_b32 %s, %s, 3' % (S(sT1), S(sWave)),
                's_add_u32 %s, %s, %s' % (S(sT0), S(sT0), S(sT1)), 's_lshl_b32 %s, %s, %d' % (S(sT0), S(sT0), self.fg),
                's_add_u32 %s, %s, %d' % (S(sT0), S(sT0), WS_HFLAG + role*(128 << self.fg)),
                'v_bfe_u32 %s, %s, 2, 1' % (V(vHp), V(vLane)), 'v_lshlrev_b32 %s, %d, %s' % (V(vHp), self.fg + 2, V(vHp)),
                'v_and_b32 %s, 3, %s' % (V(vHd), V(vLane)), 'v_lshl_add_u32 %s, %s, %d, %s' % (V(vHp), V(vHd), self.fw, V(vHp)),
                'v_add_u32 %s, %s, %s' % (V(vHp), S(sT0), V(vHp))]
    def hp(self, off=0): self.g('buffer_load_dword %s, %s, %s, 0 offen sc1' % (V(self.vHd), V(self.vHp), S(sWS, 4)))
    def gload(self): return 'buffer_load_dwordx2 %s, %s, %s, 0 offen sc1' % (V(self.GV, 2), V(self.vGr + 5), S(sWS, 4))

    def p2_setup(self, role):
        T, vRd, vOa, vGr, vRw, DS, RXA, RXB = self.T, self.vRd, self.vOa, self.vGr, self.vRw, self.DS, self.RXA, self.RXB
        sXo, sXi, sM = sItem, sMx, sMw
        ops = ['s_lshl_b32 %s, %s, 3' % (S(sT0), S(sC1)), 's_add_u32 %s, %s, %s' % (S(sT0), S(sT0), S(sWave)),
               's_lshl_b32 %s, %s, 4' % (S(sT0), S(sT0)),
               's_mul_i32 %s, %s, 160' % (S(sT1), S(sJ1)), 's_mul_i32 %s, %s, 5440' % (S(sT2), S(sWave)),
               's_mov_b32 %s, 0xffff0000' % S(sM), 's_mov_b32 %s, 81920' % S(sT3)]
        ops += ['v_bfe_u32 %s, %s, 4, 1' % (V(T), V(vLane)), 'v_and_b32 %s, 15, %s' % (V(T+1), V(vLane)),
                'v_lshl_add_u32 %s, %s, 6, %s' % (V(T), V(T), V(T+1)), 'v_add_u32 %s, %s, %s' % (V(T), S(sT0), V(T)),
                'v_lshlrev_b32 %s, 4, %s' % (V(T), V(T)), 'v_add_u32 %s, %d, %s' % (V(vGr + 5), WS_GATE + 8*role, V(T))]
        for q in range(5):
            e, row, ch, t3 = V(T), V(T+1), V(T+2), V(T+3)
            ops += ['v_add_u32 %s, %d, %s' % (e, 64*q, V(vLane)),
                    'v_mul_u32_u24 %s, 3277, %s' % (row, e), 'v_lshrrev_b32 %s, 16, %s' % (row, row),
                    'v_mul_u32_u24 %s, 20, %s' % (ch, row), 'v_sub_u32 %s, %s, %s' % (ch, e, ch),
                    'v_lshrrev_b32 %s, 2, %s' % (t3, ch), 'v_mul_u32_u24 %s, 1088, %s' % (V(vRd[q]), t3),
                    'v_and_b32 %s, 3, %s' % (t3, ch), 'v_mul_u32_u24 %s, 272, %s' % (t3, t3),
                    'v_add3_u32 %s, %s, %s, %s' % (V(vRd[q]), V(vRd[q]), t3, S(sT2)),
                    'v_lshl_add_u32 %s, %s, 4, %s' % (V(vRd[q]), row, V(vRd[q])),
                    'v_lshlrev_b32 %s, 2, %s' % (V(vGr + q), row), 'v_add_u32 %s, %s, %s' % (row, S(sT0), row),
                    'v_lshl_add_u32 %s, %s, 3, %s' % (ch, ch, S(sT1)),
                    'v_mul_u32_u24 %s, 1280, %s' % (e, row), 'v_add_u32 %s, %s, %s' % (e, e, ch)]
            if role == 0: ops.append('v_add_u32 %s, %s, %s' % (e, S(sT3), e))
            ops += ['v_lshlrev_b32 %s, 1, %s' % (V(vOa[q]), e)]
        ops += ['s_mul_i32 %s, %s, 21760' % (S(sT0), S(sWave)),
                'v_lshrrev_b32 %s, 4, %s' % (V(vRw), V(vLane)), 'v_mul_u32_u24 %s, 272, %s' % (V(vRw), V(vRw)),
                'v_and_b32 %s, 15, %s' % (V(T+1), V(vLane)), 'v_lshl_add_u32 %s, %s, 4, %s' % (V(vRw), V(T+1), V(vRw)),
                'v_add_u32 %s, %s, %s' % (V(vRw), S(sT0), V(vRw)),
                's_lshl_b32 %s, %s, 2' % (S(sT0), S(sIdx)), 's_add_u32 %s, %s, %s' % (S(sT0), S(sT0), S(sWave)),
                's_mul_i32 %s, %s, 5120' % (S(sT0), S(sT0)),
                's_add_u32 %s, %s, 0x%x' % (S(sXo), S(sT0), WS_X + role*128*20480), 's_add_u32 %s, %s, 0x%x' % (S(sXi), S(sT0), WS_X + (1-role)*128*20480)]
        ops += self.line_addr(WS_XFLAG, self.vXf)
        return ops

    def xd_ops(self, RX):
        T, DS, XD, sM = self.T, self.DS, self.XD, sMw
        o = []
        for q in range(5):
            for h in range(2):
                x, d = V(RX + 2*q + h), V(DS + 2*q + h)
                a, b, c, dd = V(T), V(T+1), V(T+2), V(T+3)
                o += ['v_lshlrev_b32 %s, 16, %s' % (a, x), 'v_and_b32 %s, %s, %s' % (b, S(sM), x),
                      'v_lshlrev_b32 %s, 16, %s' % (c, d), 'v_and_b32 %s, %s, %s' % (dd, S(sM), d),
                      'v_mul_f32 %s, %s, %s' % (a, a, c), 'v_mul_f32 %s, %s, %s' % (b, b, dd),
                      'v_cvt_pk_bf16_f32 %s, %s, %s' % (a, a, b),
                      'v_lshlrev_b32 %s, 16, %s' % (V(XD + 4*q + 2*h), a), 'v_and_b32 %s, %s, %s' % (V(XD + 4*q + 2*h + 1), S(sM), a)]
        return o

    def xd_loads(self, T):
        o = ['s_lshl_b32 %s, %s, 3' % (S(sT3), S(sC1)), 's_add_u32 %s, %s, %s' % (S(sT3), S(sT3), S(sWave)),
             's_lshl_b32 %s, %s, 4' % (S(sT3), S(sT3)), 's_mul_i32 %s, %s, 160' % (S(sT1), S(sJ1)), 's_mov_b32 %s, 81920' % S(sT0)]
        for q in range(5):
            e, row, ch = V(T), V(T+1), V(T+2)
            o += ['v_add_u32 %s, %d, %s' % (e, 64*q, V(vLane)),
                  'v_mul_u32_u24 %s, 3277, %s' % (row, e), 'v_lshrrev_b32 %s, 16, %s' % (row, row),
                  'v_mul_u32_u24 %s, 20, %s' % (ch, row), 'v_sub_u32 %s, %s, %s' % (ch, e, ch),
                  'v_add_u32 %s, %s, %s' % (row, S(sT3), row), 'v_lshl_add_u32 %s, %s, 3, %s' % (ch, ch, S(sT1)),
                  'v_mul_u32_u24 %s, 1280, %s' % (e, row), 'v_add_u32 %s, %s, %s' % (e, e, ch),
                  'global_load_dwordx2 %s, %s, %s' % (V(self.DS + 2*q, 2), ch, S(pDsk, 2)),
                  'buffer_load_dwordx2 %s, %s, %s, 0 offen' % (V(self.RXA + 2*q, 2), e, S(sX, 4)),
                  'buffer_load_dwordx2 %s, %s, %s, %s offen' % (V(self.RXB + 2*q, 2), e, S(sX, 4), S(sT0))]
        return o

    def phase2(self, role, b2rest, tH2):
        g = self.g; cfg = self.cfg
        tb, ta = tabs(role); NS = len(tb)
        hA, hB = (1, 0) if role else (0, 1)
        vHp, vHd, vRw, vRd, vOa, vXf, vXv = self.vHp, self.vHd, self.vRw, self.vRd, self.vOa, self.vXf, vFd
        RD, GA, GB, XD, RXB, DS, vGr, RXA, T = self.RD, self.GA, self.GB, self.XD, self.RXB, self.DS, self.vGr, self.RXA, self.T
        sXo, sXi, sM = sItem, sMx, sMw
        hp = lambda: self.hp(0)
        GV = self.GV
        def a2(n):
            half = hA if n < NS else hB
            return ['buffer_load_dwordx4 %s, %s, %s, %s offen offset:%d%s' % (V(A2R + 16*(n % 4) + 4*rt, 4), V(vL16b if half else vL16), S(sH, 4), S(ta[0 if cfg.get('x_a2same') else n % NS]), 1024*rt, cfg.get('a2sc', ' sc1')) for rt in range(4)]
        mains = []; fixed = []
        def tile(rt, nt): return ACC2 + 4*(rt*5 + nt)
        def mf(n, j):
            rt, nt = j // 5, j % 5
            c = '0' if n % NS == 0 else V(tile(rt, nt), 4)
            return ('v_mfma_f32_16x16x32_bf16 %s, %s, %s, %s' % (V(tile(rt, nt), 4), A(B2slot(role, n % NS) + 4*nt, 4), V(A2R + 16*(n % 4) + 4*rt, 4), c), None)
        TM = cfg.get('tm', 1)
        for n in range(2*NS):
            if TM and n % NS == NS - 2:
                for j in range(0, 20, 2): mains += [mf(n, j), mf(n, j+1), mf(n+1, j), mf(n+1, j+1)]
            elif not (TM and n % NS == NS - 1):
                mains += [mf(n, j) for j in range(20)]
        for n in range(2*NS - 3):
            for i, f in enumerate(a2(n+3)):
                p = 20*n + 1 + 5*i
                if TM and n % NS == NS - 1: p = max(p, 20*(n-1) + 10*i + 12)
                if TM and n % NS == NS - 4: p = 20*n + 1 + 3*i
                if TM and n % NS == NS - 5: p = 20*n + 1 + 4*i
                fixed.append((p, f))
        PA, PE = 20*NS, 40*NS
        for k, p in enumerate((20, 80, 140, PA, PA + 40, PA + 100, PA + 140, PE - 60)): fixed.append((p - 0.1, F(lambda k=k: self.stamp(11+k, lvl=3), 0)))
        self.cst(16)
        self.hcheck(role, 0)
        self.stamp(8)
        for n in range(3): g.do(a2(n))
        ops = self.p2_setup(role)
        if role == 1:
            fixed.append((cfg.get('f_l2', 6), F(lambda: self.hflag(1, 2, tH2), 20)))
            fixed.append((cfg.get('f_p1', 44), F(lambda: self.hpoll(1, 1), 8)))
            fixed.append((60.5, F(lambda: self.hcheck(1, 1), 20)))
            fixed.append((cfg.get('f_p2', 84), F(lambda: self.hpoll(1, 2), 8)))
            fixed.append((100.5, F(lambda: self.hcheck(1, 2), 20)))
        else:
            if tH2 is not None: fixed.append((cfg.get('s_l1', 6), F(lambda: self.hflag(0, 1, tH2), 20)))
            fixed.append((cfg.get('s_p1', 44), F(lambda: self.hpoll(0, 1), 8)))
            fixed.append((60.5, F(lambda: self.hcheck(0, 1), 20)))
        fixed.append((102, 'v_xor_b32 %s, %d, %s' % (V(vHp), 128 << self.fg, V(vXf))))
        fixed.append((cfg.get('p2bar', 150), 's_barrier'))
        nb0 = 5*NS - len(b2rest)
        for i, f in enumerate(b2rest):
            p = 3 + 4*i
            assert p <= 20*min((nb0 + i)//5, NS - 2) - 30 or cfg.get('bad'), (role, i, p)
            fixed.append((p, f))
        xd_ops = self.xd_ops
        s0 = Stream(ops, 2, 99)
        fixed.append((101.5, F(lambda: s0.flush(g), 0)))
        gl, gp = cfg.get('g_at', (104, 150))
        fixed.append((gl, self.gload()))
        fixed.append((gp, F(lambda: self.poll('gt', lambda: g(self.gload()), self.check_eq([GV + 1])), 20)))
        for q in range(5):
            for h in range(2):
                fixed.append((gp + 1 + 2*q + h, 'ds_bpermute_b32 %s, %s, %s offset:%d' % (V((GA if h == hA else GB) + q), V(vGr + q), V(GV), 64*h)))
        streams = [s0]
        if role == 0:
            streams += [Stream(xd_ops(RXA), 102, PA - 44), Stream(xd_ops(RXB), PA + 112, PE - 22)]
        for base in (PA, PE):
            for j in range(20):
                fixed.append(((base - 40 + 4*(j//2) + 9 + 2*(j % 2)) if TM else (base - 15 + (1.65*j if base == PA else j)), 'ds_write_b128 %s, %s offset:%d' % (V(vRw), V(ACC2 + 4*j, 4), 1088*j)))
        XB = cfg.get('xb', 1); vL8 = vFa
        fixed.append((PA, 'v_lshlrev_b32 %s, 3, %s' % (V(vL8), V(vLane))))
        mb = PA + (16 if TM else 24)
        fixed.append((mb - 0.5, F(lambda: (g.waitcnt(lg=0), g('s_barrier')), 8)))
        def rds(q): return ['ds_read_b128 %s, %s offset:%d' % (V(RD + 16*(q % 2) + 4*src, 4), V(vRd[q]), 21760*src) for src in range(4)]
        for i, f in enumerate(rds(0) + rds(1)): fixed.append((mb + i, f))
        for q in range(5):
            p = mb + 12 + 13*q; r0 = RD + 16*(q % 2); o = []
            for src in range(4):
                for r in range(4):
                    if role == 1 and src == 0: continue
                    a = V(r0 + r) if (role == 1 and src == 1) else V(XD + 4*q + r)
                    o.append('v_add_f32 %s, %s, %s' % (V(XD + 4*q + r), a, V(r0 + 4*src + r)))
            nadd = len(o)
            for r in range(4): o.append('v_mul_f32 %s, %s, %s' % (V(XD + 4*q + r), V(GA + q), V(XD + 4*q + r)))
            if XB:
                xr = XD + 8*(q//2) + 2*(q % 2)
                o += ['v_cvt_pk_bf16_f32 %s, %s, %s' % (V(xr + h), V(XD + 4*q + 2*h), V(XD + 4*q + 2*h + 1)) for h in range(2)]
                def st(q=q):
                    n = 2 if q == 4 else 4
                    self.tX = g('buffer_store_dwordx%d %s, %s, %s, %s offen offset:%d sc1' % (n, V(XD + 8*(q//2), n), V(vL16 if q < 4 else vL8), S(sWS, 4), S(sXo), 1024*(q//2)))
                if q % 2 or q == 4: o.append(F(st))
            else:
                def st(q=q):
                    self.tX = g('buffer_store_dwordx4 %s, %s, %s, %s offen offset:%d sc1' % (V(XD + 4*q, 4), V(vL16 if q < 4 else vL16b), S(sWS, 4), S(sXo), 1024*(q & 3)))
                o.append(F(st))
            for i, f in enumerate(o): fixed.append((p + i*0.55, f))
            if q + 2 < 5:
                for i, f in enumerate(rds(q+2)): fixed.append((p + nadd*0.55 + 0.1 + i, f))
        fixed.append((PA + 112, 's_barrier'))
        if 0: fixed.append((cfg['otouch'], 'buffer_load_dword %s, %s, %s, 0 offen' % (V(vFa), V(vOa[0]), S(sOUT, 4))))
        fixed.append((PA + cfg.get('xf_at', 150), F(lambda: (g.wait(self.tX), g('buffer_store_dword %s, %s, %s, 0 offen sc1' % (V(vXv), V(vXf), S(sWS, 4)))), 8)))
        xp = cfg.get('xp_at', (0, 0))[role]
        fixed.append((PE - xp - 30, F(hp)))
        if role == 1:
            U = 232
            def uload():
                for i in range(4):
                    g('s_mov_b32 %s, %d' % (S(sL1), (WS_PFLAG + (128 << self.fg) if i < 2 else WS_HFLAG) + (64 << self.fg)*(i & 1)))
                    g('buffer_load_dword %s, %s, %s, %s offen sc1' % (V(U+2+i), V(U+6), S(sPD, 4), S(sL1)))
            def ucheck():
                self.check_eq([U+2, U+3, U+4, U+5], U, U+1)()
                g('s_cselect_b32 %s, 0, %s' % (S(sL1), S(sPD+2)))
                g('s_cmp_eq_u32 %s, 0' % S(sL1))
            fixed.append((PA + 114, ['s_or_b32 %s, %s, %s' % (S(sL1), S(sWave), S(sIdx)), 's_cselect_b32 %s, 0, 0x%x' % (S(sPD+2), WS_SIZE)]))
            fixed.append((PA + 115, ['v_lshlrev_b32 %s, %d, %s' % (V(U+6), self.fg, V(vLane)), 'v_mov_b32 %s, 0' % V(U+7)]))
            fixed.append((PA + 117, F(uload, 32)))
            fixed.append((PA + 170, F(lambda: (self.poll('up', uload, ucheck), g('buffer_store_dword %s, %s, %s, 0 offen sc1' % (V(vXv), V(U+7), S(sPD, 4)))), 60)))
        def recv():
            self.poll('xf', hp, self.check_eq([vHd]))
            if XB:
                for k in range(3):
                    n = 2 if k == 2 else 4
                    g('buffer_load_dwordx%d %s, %s, %s, %s offen offset:%d sc1' % (n, V(RD + 10 + 4*k, n), V(vL8 if k == 2 else vL16), S(sWS, 4), S(sXi), 1024*k))
            else:
                for q in range(5):
                    g('buffer_load_dwordx4 %s, %s, %s, %s offen offset:%d sc1' % (V(RD + 4*q, 4), V(vL16 if q < 4 else vL16b), S(sWS, 4), S(sXi), 1024*(q & 3)))
        if xp > 0: fixed.append((PE - xp, F(recv, 40)))
        sched(g, mains, 8, fixed, streams, report=self.rep and 'p2')
        if xp <= 0: recv()
        self.stamp(9)
        g.waitcnt(lg=0)
        g('s_barrier')
        for q in range(5):
            for src in range(4):
                g('ds_read_b128 %s, %s offset:%d' % (V(ACC2 + 16*q + 4*src, 4), V(vRd[q]), 21760*src))
        osc = cfg.get('osc', ' nt')
        for q in range(5):
            for src in range(4):
                for r in (0, 2):
                    if role == 1 and src == 0: continue
                    a = V(ACC2 + 16*q + r, 2) if (role == 1 and src == 1) else V(XD + 4*q + r, 2)
                    g('v_pk_add_f32 %s, %s, %s' % (V(XD + 4*q + r, 2), a, V(ACC2 + 16*q + 4*src + r, 2)))
            if XB:
                for h in range(2):
                    g('v_lshlrev_b32 %s, 16, %s' % (V(RD + 4*q + 2*h), V(RD + 10 + 2*q + h)))
                    g('v_and_b32 %s, %s, %s' % (V(RD + 4*q + 2*h + 1), S(sM), V(RD + 10 + 2*q + h)))
            gb = GB + q; hi = gb & 1
            for r in (0, 2):
                g('v_pk_fma_f32 %s, %s, %s, %s op_sel:[%d,0,0] op_sel_hi:[%d,1,1]' % (V(RD + 4*q + r, 2), V(gb - hi, 2), V(XD + 4*q + r, 2), V(RD + 4*q + r, 2), hi, hi))
            g('buffer_store_dwordx4 %s, %s, %s, 0 offen%s' % (V(RD + 4*q, 4), V(vOa[q]), S(sOUT, 4), osc))
        self.finish(role)

    def finish(self, role):
        g = self.g
        if self.cfg.get('stamps'):
            g.waitall()
            self.stamp(10)
            self.stamp(31, 's_memtime')
            g('s_lshl_b32 %s, s2, 2' % S(sT0))
            g('s_add_u32 %s, %s, %s' % (S(sT0), S(sT0), S(sWave)))
            g('s_lshl_b32 %s, %s, 7' % (S(sT0), S(sT0)))
            g('s_add_u32 %s, %s, %d' % (S(sT0), S(sT0), WS_STAMP))
            g('v_lshlrev_b32 v4, 2, %s' % V(vLane))
            g('s_mov_b32 exec_hi, 0')
            g('buffer_store_dword %s, v4, %s, %s offen' % (V(vStamp), S(sWS, 4), S(sT0)))
        if role == 0: g.label('L_exit')
        g('s_endpgm')
        g.hist = []

    def post(self, txt):
        c = self.cfg; out = []
        for l in txt.split('\n'):
            if c.get('x_nox') and ('s[12:15], s90 offen' in l or 's[12:15], s91 offen' in l) and 'dwordx4' in l: l = l.replace('s[12:15]', 's[20:23]')
            if c.get('x_noh') and 'buffer_store_dwordx4' in l and 's[36:39]' in l: l = l.replace('s[36:39]', 's[20:23]')
            if c.get('x_nopk') and 'dwordx4' in l and ('s[24:27]' in l or 's[16:19]' in l or 's[20:23]' in l): l = l.replace('s[24:27]', 's[20:23]').replace('s[16:19]', 's[20:23]')
            if c.get('x_noout') and 's[28:31]' in l and 'store' in l: l = l.replace('s[28:31]', 's[20:23]')
            if (c.get('x_nox') or c.get('x_noh') or c.get('x_nopk') or c.get('x_noout')):
                if 's_mov_b32 s22, s18' in l: l = '    s_mov_b32 s22, 0'
                if l.startswith('L_ssm:'): l += '\n    s_mov_b32 s20, 0\n    s_mov_b32 s21, 0\n    s_mov_b32 s22, 0\n    s_mov_b32 s23, 0x20000'
            out.append(l)
        return '\n'.join(out)

    def build(self):
        g = self.g
        self.prologue()
        st = g.state()
        self.ffn()
        g.vm, g.lg, g.smem = list(st[0]), list(st[1]), list(st[2])
        self.ssm()
        if self.cfg.get('lay', 1):
            L = g.lines
            a = L.index('L_ssm:'); b = L.index('L_ssm2:'); c = L.index('    s_cbranch_scc1 L_ssm')
            g.lines = L[:c] + ['    s_cbranch_scc0 L_ffn'] + L[a:b] + ['L_ffn:'] + L[c+1:a] + L[b:]
        g.raw('L_codeend:')
        for f in self.tail: f()
        hdr = open('gated_mix__ssm_conv_s5__dense_activation_silu__prompt.s.ref').read()
        top = hdr[:hdr.index('; Override launch geometry')]
        txt = top + '; Generated by a hand-written generator script (straight-line schedule, one fused launch).\n'
        txt += '; @launch grid=(256,1,1) block=(256,1,1) lds=163840\n'
        txt += '.amdgcn_target "amdgcn-amd-amdhsa--gfx950"\n.text\n.globl %s\n.p2align 8\n.type %s,@function\n%s:\n' % (KNAME, KNAME, KNAME)
        txt += self.post(g.text())
        txt += '''.section .rodata,"a"
.p2align 6
.amdhsa_kernel %s
  .amdhsa_next_free_vgpr 512
  .amdhsa_next_free_sgpr 102
  .amdhsa_accum_offset 256
  .amdhsa_group_segment_fixed_size 0
  .amdhsa_kernarg_size 128
  .amdhsa_user_sgpr_count 2
  .amdhsa_user_sgpr_kernarg_segment_ptr 1
  .amdhsa_system_sgpr_workgroup_id_x 1
.end_amdhsa_kernel
''' % KNAME
        return txt

def make(cfg=None):
    k = K(cfg or {})
    return k.build(), k

if __name__ == '__main__':
    import json
    cfg = json.loads(sys.argv[2]) if len(sys.argv) > 2 else {}
    cfg['report'] = 1
    txt, k = make(cfg)
    open(sys.argv[1], 'w').write(txt)
    print(k.g.stats, 'nops', k.g.nnop, 'bytes', len(txt))
```

```python
import sys
from asmgen import Gen, weave, sched, Stream, F, mix, cost

KNAME = 'gated_mix__ssm_conv_s5__dense_activation_silu__prompt_kernel'

WS_EPOCH = 0
WS_HFLAG = 0x50000
LVL = 131072
WS_GATE = 65536
WS_EBUF = 131072
WS_PFLAG = 0xb0000
WS_XFLAG = 0xe0000
WS_STAMP = 22 << 20
WS_B2 = 0x130000
WS_H = 5 << 20
WS_X = 16 << 20
WS_SIZE = 23 << 20
KST = 5120
MST = 88*KST
HKS = 8192
HMS = 88*HKS

F_WR = 81920
S_BR = 65536
L_PK = 147456
L_EX = 147456

sX, sW, sWS, sP1, sP2, sPD, sOUT, sB2, sH = 4, 8, 12, 16, 20, 24, 28, 32, 36
pX, pLre, pLim, pBre, pBim, pCre, pCim, pLdt, pDsk, pBx, pW1, pW2, pGate, pOut, pDbg, pWs = range(40, 72, 2)
sWave, sRole, sC1, sJ1, sIdx, sCo, sNonce, sRot = range(72, 80)
sKb = list(range(80, 90))
sItem, sMx, sMw, sWo = 90, 91, 92, 93
sPs = [94, 95, 96, 97]
sT0, sT1, sT2, sT3 = 98, 99, 100, 101
sT4 = 3
sKt = 79
sNl = 42
sWs2 = 93
sL1, sL2 = 64, 65
sKs = [40, 41, 46, 47, 48, 49, 50, 51, 52, 53, 58, 59, 60, 61, 62, 63, 66, 67, 68, 69, 70, 71]

vTid, vLane, vL16, vL16b = 0, 1, 2, 3
vT = list(range(4, 16))
vFa, vFd = 254, 253
ACC2 = 16
A2R = 96
vStamp = 255
def B2slot(role, i):
    if i < 4: return 160 + 20*i
    if role == 1: return 20*(i-4)
    return 80 + 20*(i-4) if i < 8 else 20*(i-8)
def tabs(role):
    if role == 1: return sKs[:12], sKs[12:] + [44, 45]
    return sKs[:10], sKs[10:20]
aPK = 240

def R(kind, base, n):
    return '%s%d' % (kind, base) if n == 1 else '%s[%d:%d]' % (kind, base, base+n-1)
def V(b, n=1): return R('v', b, n)
def A(b, n=1): return R('a', b, n)
def S(b, n=1): return R('s', b, n)

LOG2E = 0x3fb8aa3b
NLOG2E = 0xbfb8aa3b
INV2PI = 0x3e22f983

class K:
    def __init__(self, cfg):
        self.cfg = cfg
        self.g = Gen()
        self.tail = []
        self.rep = cfg.get('report')
        self.XR = cfg.get('xr', 0)
        self.fw, self.fg, self.lv = {0: (2, 7, 16), 1: (7, 9, LVL), 2: (2, 7, LVL)}[cfg.get('fl', 1)]

    def stamp(self, idx, op='s_memrealtime', lvl=2):
        if self.rep and idx < 11: print('  stamp', idx, self.g.cyc)
        if idx in (0, 10, 30, 31): lvl = 1
        if self.cfg.get('stamps', 0) < lvl: return
        g = self.g
        if self.cfg.get('cyc'): op = 's_memtime'
        g(op + ' vcc'); g.waitcnt(lg=0)
        g('v_writelane_b32 %s, vcc_lo, %d' % (V(vStamp), idx))

    def cst(self, idx):
        if self.rep: print('  cst', idx, self.g.cyc)
        if self.cfg.get('chain'): self.stamp(idx)
    def srd_ptr(self, d, ptr): return ['s_mov_b32 %s, %s' % (S(d), S(ptr)), 's_mov_b32 %s, %s' % (S(d+1), S(ptr+1))]
    def srd_cst(self, d, nrec): return ['s_mov_b32 %s, 0x%x' % (S(d+2), nrec), 's_mov_b32 %s, 0x20000' % S(d+3)]

    def poll(self, name, issue, check):
        g = self.g
        lr, lo = g.newlabel(name + '_retry'), g.newlabel(name + '_ok')
        check()
        g('s_cbranch_scc0 %s' % lr)
        g.label(lo)
        def retry():
            g.vm, g.lg, g.smem = [], [], []
            g.label(lr)
            g('s_mov_b32 %s, 0x%x' % (S(sT4), self.cfg.get('spin', 1 << 18)))
            ll = g.newlabel(name + '_loop')
            g.label(ll)
            g('s_sub_u32 %s, %s, 1' % (S(sT4), S(sT4)))
            g('s_cmp_eq_u32 %s, 0' % S(sT4))
            g('s_nop 7')
            g('s_cbranch_scc1 %s' % lo)
            if self.cfg.get('backoff', 0): g('s_sleep %d' % self.cfg['backoff'])
            g('s_waitcnt lgkmcnt(0)')
            issue()
            g.waitall()
            check()
            g('s_nop 7')
            g('s_cbranch_scc1 %s' % lo)
            g('s_branch %s' % ll)
        self.tail.append(retry)

    def check_eq(self, regs, t0=None, t1=None):
        g = self.g
        def f():
            if len(regs) == 1:
                g('v_cmp_ne_u32 vcc, %s, %s' % (S(sNonce), V(regs[0])))
            else:
                g('v_xor_b32 %s, %s, %s' % (V(t0), S(sNonce), V(regs[0])))
                for r in regs[1:]:
                    g('v_xor_b32 %s, %s, %s' % (V(t1), S(sNonce), V(r)))
                    g('v_or_b32 %s, %s, %s' % (V(t0), V(t0), V(t1)))
                g('v_cmp_ne_u32 vcc, 0, %s' % V(t0))
            g('s_nop 0')
            g('s_cmp_eq_u64 vcc, 0')
        return f

    def b2_loads(self, role, steps):
        out = []
        for step in steps:
            base = B2slot(role, step)
            for nt in range(5):
                va, off = (vL16, nt*1024) if nt < 4 else (vL16b, 0)
                out.append('buffer_load_dwordx4 %s, %s, %s, %s offen offset:%d sc1' % (A(base+4*nt, 4), V(va), S(sB2, 4), S(tabs(role)[0][0 if self.cfg.get('x_b2same') else step]), off))
        return out

    def ks_table(self, role):
        tb, ta = tabs(role); ns = len(tb)
        if role == 0 and self.cfg.get('krot', 1):
            r, bs = ta[ns-1], tb[ns-1]
            o = ['s_and_b32 %s, %s, 3' % (S(sKt), S(sC1)), 's_mul_i32 %s, %s, 3' % (S(sKt), S(sKt)),
                 's_add_u32 %s, %s, %s' % (S(sKt), S(sKt), S(sJ1)),
                 's_sub_u32 %s, %s, %d' % (S(r), S(sKt), ns), 's_min_u32 %s, %s, %s' % (S(r), S(r), S(sKt)),
                 's_mul_i32 %s, %s, %d' % (S(bs), S(sWave), ns), 's_add_u32 %s, %s, 48' % (S(bs), S(bs))]
            for n in range(ns):
                if n == 0: o.append('s_add_u32 %s, %s, %s' % (S(ta[n]), S(r), S(bs)))
                else:
                    o += ['s_sub_u32 %s, %s, %d' % (S(sKt), S(r), ns-n), 's_add_u32 %s, %s, %d' % (S(ta[n]), S(r), n),
                          's_min_u32 %s, %s, %s' % (S(ta[n]), S(ta[n]), S(sKt)), 's_add_u32 %s, %s, %s' % (S(ta[n]), S(ta[n]), S(bs))]
                o += ['s_mul_i32 %s, %s, %d' % (S(tb[n]), S(ta[n]), KST), 's_lshl_b32 %s, %s, 13' % (S(ta[n]), S(ta[n]))]
            return o
        nu = 6 if role else 5
        r, bs, r6 = ta[ns-1], tb[ns-1], tb[ns-2]
        o = ['s_add_u32 %s, %s, %s' % (S(r), S(sC1), S(sJ1))]
        if self.cfg.get('frot'):
            o = ['s_and_b32 %s, %s, 3' % (S(r), S(sC1)), 's_mul_i32 %s, %s, 3' % (S(r), S(r)), 's_lshr_b32 %s, %s, 1' % (S(r), S(r)),
                 's_add_u32 %s, %s, %s' % (S(r), S(r), S(sJ1))]
        o += ['s_mul_i32 %s, %s, %d' % (S(bs), S(sWave), ns),
             's_mul_i32 %s, %s, 43' % (S(r6), S(r)), 's_lshr_b32 %s, %s, 8' % (S(r6), S(r6)),
             's_mul_i32 %s, %s, 6' % (S(r6), S(r6)), 's_sub_u32 %s, %s, %s' % (S(r6), S(r), S(r6))]
        if role == 0: o.append('s_add_u32 %s, %s, 48' % (S(bs), S(bs)))
        for n in range(ns):
            if n < 6:
                o += ['s_add_u32 %s, %s, %d' % (S(ta[n]), S(r6), n), 's_sub_u32 %s, %s, 6' % (S(sKt), S(ta[n])),
                      's_min_u32 %s, %s, %s' % (S(ta[n]), S(ta[n]), S(sKt)),
                      's_mul_i32 %s, %s, 11' % (S(sKt), S(ta[n])), 's_lshr_b32 %s, %s, 5' % (S(sKt), S(sKt)),
                      's_mul_i32 %s, %s, %d' % (S(sKt), S(sKt), nu - 3), 's_add_u32 %s, %s, %s' % (S(ta[n]), S(ta[n]), S(sKt))]
            elif n < ns - 4:
                o += ['s_add_u32 %s, %s, %d' % (S(sKt), S(r), n), 's_and_b32 %s, %s, 1' % (S(sKt), S(sKt)),
                      's_mul_i32 %s, %s, 6' % (S(sKt), S(sKt)), 's_add_u32 %s, %s, 3' % (S(ta[n]), S(sKt))]
            else:
                o += ['s_add_u32 %s, %s, %d' % (S(sKt), S(r), n), 's_and_b32 %s, %s, 1' % (S(ta[n]), S(sKt)),
                      's_bfe_u32 %s, %s, 0x10001' % (S(sKt), S(sKt)), 's_mul_i32 %s, %s, %d' % (S(sKt), S(sKt), nu),
                      's_add_u32 %s, %s, %s' % (S(ta[n]), S(ta[n]), S(sKt)), 's_add_u32 %s, %s, %d' % (S(ta[n]), S(ta[n]), nu - 2)]
            o += ['s_add_u32 %s, %s, %s' % (S(ta[n]), S(ta[n]), S(bs)),
                  's_mul_i32 %s, %s, %d' % (S(tb[n]), S(ta[n]), KST), 's_lshl_b32 %s, %s, 13' % (S(ta[n]), S(ta[n]))]
        return o

    def line_addr(self, base, dst):
        return ['s_lshl_b32 %s, %s, 7' % (S(sKt), S(sRole)), 's_add_u32 %s, %s, %s' % (S(sKt), S(sKt), S(sIdx)),
                's_lshl_b32 %s, %s, %d' % (S(sKt), S(sKt), self.fg - self.fw), 's_add_u32 %s, %s, %s' % (S(sKt), S(sKt), S(sWave)),
                's_lshl_b32 %s, %s, %d' % (S(sKt), S(sKt), self.fw), 's_add_u32 %s, %s, %d' % (S(sKt), S(sKt), base),
                'v_mov_b32 %s, %s' % (V(dst), S(sKt))]

    def late_setup(self, role, t0, t1, vPp):
        o = self.srd_ptr(sOUT, pOut) + self.srd_cst(sOUT, 2048*2560)
        for d, idx, base, st in ((sB2, sJ1, WS_B2, MST), (sH, sC1, WS_H, HMS)):
            o += ['s_mul_i32 %s, %s, %d' % (S(sKt), S(idx), st), 's_add_u32 %s, %s, 0x%x' % (S(sKt), S(sKt), base),
                  ['s_add_u32 %s, %s, %s' % (S(d), S(pWs), S(sKt)), 's_addc_u32 %s, %s, 0' % (S(d+1), S(pWs+1))]]
            o += self.srd_cst(d, st)
        if role == 1:
            o += ['s_mul_i32 %s, %s, 5' % (S(sKt), S(sJ1)), 's_lshr_b32 %s, %s, 2' % (S(sKt), S(sKt)),
                  'v_min_u32 %s, 23, %s' % (V(t1), V(vLane)),
                  'v_lshrrev_b32 %s, 1, %s' % (V(t0), V(t1)), 'v_mul_u32_u24 %s, 10, %s' % (V(t0), V(t0)),
                  'v_and_b32 %s, 1, %s' % (V(t1), V(t1)), 'v_add3_u32 %s, %s, %s, %s' % (V(t0), V(t0), V(t1), S(sKt)),
                  's_mul_i32 %s, %s, 120' % (S(sKt), S(sWave)), 'v_add_u32 %s, %s, %s' % (V(t0), S(sKt), V(t0))]
        else:
            o += ['v_min_u32 %s, 14, %s' % (V(t1), V(vLane)),
                  'v_mul_u32_u24 %s, 11, %s' % (V(t0), V(t1)), 'v_lshrrev_b32 %s, 5, %s' % (V(t0), V(t0)),
                  'v_mul_u32_u24 %s, 7, %s' % (V(t0), V(t0)),
                  's_mul_i32 %s, %s, 50' % (S(sKt), S(sJ1)), 'v_add3_u32 %s, %s, %s, %s' % (V(t0), V(t1), V(t0), S(sKt)),
                  's_mul_i32 %s, %s, 10' % (S(sKt), S(sWave)), 's_lshr_b32 %s, %s, 2' % (S(sKt), S(sKt)),
                  'v_add_u32 %s, %s, %s' % (V(t0), S(sKt), V(t0))]
        o += ['v_and_b32 %s, 127, %s' % (V(t1), V(t0)), 'v_lshrrev_b32 %s, 7, %s' % (V(t0), V(t0)),
              'v_lshlrev_b32 %s, %d, %s' % (V(t1), self.fg, V(t1)), 'v_lshl_add_u32 %s, %s, %d, %s' % (V(vPp), V(t0), self.fw, V(t1)),
              'v_add_u32 %s, %d, %s' % (V(vPp), WS_PFLAG + role*(128 << self.fg), V(vPp))]
        o += self.line_addr(WS_PFLAG, vFa)
        return o
    def nonce_ops(self):
        return ['s_mul_i32 %s, %s, 1664525' % (S(sNonce), S(sNonce)), 's_add_u32 %s, %s, 1013904223' % (S(sNonce), S(sNonce)),
                'v_mov_b32 %s, %s' % (V(vFd), S(sNonce))]

    def hbase(self, kmul, extra):
        return ['s_lshl_b32 %s, %s, 11' % (S(sKt), S(sWave)), 's_mul_i32 %s, %s, %d' % (S(sT3), S(sJ1), kmul*HKS),
                's_add_u32 %s, %s, %s' % (S(sKt), S(sKt), S(sT3)), 's_add_u32 %s, %s, 0x%x' % (S(sKt), S(sKt), extra)]

    def flag_store(self, tok, srd, va=None):
        self.g.wait(tok)
        self.g('buffer_store_dword %s, %s, %s, 0 offen sc1' % (V(vFd), V(va or vFa), S(srd, 4)))
    def hoff(self, role, lvl, local):
        if role: return ((0, 0x20000, 0x40000), (0x30000, 0xa0000, 0x70000))[local][lvl]
        return ((0, 0xc0000), (0x20000, 0xd0000))[local][lvl]
    def hflag(self, role, lvl, tok):
        g = self.g
        if self.cfg.get('lfl', 1): g('s_mov_b32 %s, 0x%x' % (S(sL1), self.hoff(role, lvl, 1)))
        g('s_mov_b32 %s, 0x%x' % (S(sL2), self.hoff(role, lvl, 0)))
        g.wait(tok)
        if self.cfg.get('lfl', 1): g('buffer_store_dword %s, %s, %s, %s offen' % (V(vFd), V(vFa), S(sWS, 4), S(sL1)))
        g('buffer_store_dword %s, %s, %s, %s offen sc1' % (V(vFd), V(vFa), S(sWS, 4), S(sL2)))
    def hpoll(self, role, lvl):
        g = self.g
        g('s_mov_b32 %s, 0x%x' % (S(sL1), self.hoff(role, lvl, self.cfg.get('lfl', 1))))
        g('buffer_load_dword %s, %s, %s, %s offen sc1' % (V(self.vHd), V(self.vHp), S(sWS, 4), S(sL1)))
    def hcheck(self, role, lvl):
        g = self.g
        def again():
            g('s_mov_b32 %s, 0x%x' % (S(sL1), self.hoff(role, lvl, self.cfg.get('lfl', 1))))
            g('s_and_b32 %s, %s, 3' % (S(sL2), S(sT4)))
            g('s_cselect_b32 %s, %s, 0x%x' % (S(sL1), S(sL1), self.hoff(role, lvl, 0)))
            g('buffer_load_dword %s, %s, %s, %s offen sc1' % (V(self.vHd), V(self.vHp), S(sWS, 4), S(sL1)))
        self.poll('h%d%d' % (role, lvl), again, self.check_eq([self.vHd]))

    def prologue(self):
        g = self.g
        g('s_cmp_ge_u32 s2, 256')
        g('s_cbranch_scc1 L_exit')
        if self.cfg.get('entry'): g('s_memrealtime s[96:97]')
        g('s_load_dwordx16 s[40:55], s[0:1], 0')
        g('s_load_dwordx16 s[56:71], s[0:1], 64')
        g('v_lshrrev_b32 %s, 6, v0' % V(vT[0]))
        g('v_and_b32 %s, 63, v0' % V(vLane))
        g('v_readfirstlane_b32 %s, %s' % (S(sWave), V(vT[0])))
        g('v_lshlrev_b32 %s, 4, %s' % (V(vL16), V(vLane)))
        g('s_lshr_b32 %s, s2, 3' % S(sT1))
        if self.cfg.get('preload', 1):
            g.raw('    s_getpc_b64 s[28:29]\nL_pc:')
            g('s_lshl_b32 %s, %s, 2' % (S(sT0), S(sT1)))
            g('s_add_u32 %s, %s, %s' % (S(sT0), S(sT0), S(sWave)))
            g('s_and_b32 %s, %s, 63' % (S(sT0), S(sT0)))
            g.raw('    s_min_u32 %s, %s, ((L_codeend-L_pc)>>10)-1' % (S(sT0), S(sT0)))
            g('s_lshl_b32 %s, %s, 10' % (S(sT0), S(sT0)))
            g('s_add_u32 s28, s28, %s' % S(sT0))
            g('s_addc_u32 s29, s29, 0')
            g('global_load_dwordx4 v[244:247], %s, s[28:29]' % V(vL16))
        if self.cfg.get('stamps'):
            g('v_mov_b32 %s, 0' % V(vStamp))
        g('v_add_u32 %s, 0x1000, %s' % (V(vL16b), V(vL16)))
        g('s_bfe_u32 %s, s2, %s' % (S(sT3), '0x20000' if self.cfg.get('rmap') else '0x20001'))
        if self.cfg.get('amap', 1) == 1:
            g('s_lshr_b32 %s, %s, 1' % (S(sT2), S(sT3)))
            g('s_xor_b32 %s, %s, %s' % (S(sT3), S(sT3), S(sT2)))
        if self.cfg.get('amap') == 2: g('s_xor_b32 %s, %s, 2' % (S(sT3), S(sT3)))
        g('s_and_b32 %s, %s, 3' % (S(sT2), S(sT1)))
        if self.cfg.get('mixed'):
            g('s_lshr_b32 %s, %s, 4' % (S(sRole), S(sT1)))
            g('s_bfe_u32 %s, %s, 0x20002' % (S(sJ1), S(sT1)))
            g('s_and_b32 %s, s2, 1' % S(sT0))
            g('s_lshl_b32 %s, %s, 2' % (S(sT0), S(sT0)))
            g('s_add_u32 %s, %s, %s' % (S(sJ1), S(sJ1), S(sT0)))
        else:
            if self.cfg.get('rmap'): g('s_bfe_u32 %s, s2, 0x10002' % S(sRole))
            else: g('s_and_b32 %s, s2, 1' % S(sRole))
            if self.cfg.get('rmap') == 2 or self.cfg.get('rflip'): g('s_xor_b32 %s, %s, 1' % (S(sRole), S(sRole)))
            g('s_lshr_b32 %s, %s, 2' % (S(sJ1), S(sT1)))
        g('s_lshl_b32 %s, %s, 2' % (S(sC1), S(sT3)))
        g('s_add_u32 %s, %s, %s' % (S(sC1), S(sC1), S(sT2)))
        g('s_lshl_b32 %s, %s, 3' % (S(sIdx), S(sT3)))
        g('s_add_u32 %s, %s, %s' % (S(sIdx), S(sIdx), S(sJ1)))
        g('s_lshl_b32 %s, %s, 2' % (S(sIdx), S(sIdx)))
        g('s_add_u32 %s, %s, %s' % (S(sIdx), S(sIdx), S(sT2)))
        g('s_mul_i32 %s, %s, 3' % (S(sT2), S(sT2)))
        g('s_mul_i32 %s, %s, 5' % (S(sT0), S(sRole)))
        g('s_add_u32 %s, %s, %s' % (S(sRot), S(sJ1), S(sT2)))
        g('s_add_u32 %s, %s, %s' % (S(sRot), S(sRot), S(sT0)))
        g('s_add_u32 %s, %s, %s' % (S(sRot), S(sRot), S(sT3)))
        if self.cfg.get('norot'): g('s_mov_b32 %s, 0' % S(sRot))
        rx = self.cfg.get('rotx', 3)
        if rx:
            g('s_mul_i32 %s, %s, 5' % (S(sRot), S(sT3)))
            g('s_add_u32 %s, %s, 1' % (S(sRot), S(sRot)))
            g('s_lshr_b32 %s, %s, 1' % (S(sRot), S(sRot)))
            g('s_add_u32 %s, %s, %s' % (S(sRot), S(sRot), S(sT0)))
            if rx == 2:
                g('s_add_u32 %s, %s, %s' % (S(sT0), S(sC1), S(sJ1)))
                g('s_and_b32 %s, %s, 1' % (S(sT0), S(sT0)))
                g('s_add_u32 %s, %s, %s' % (S(sRot), S(sRot), S(sT0)))
            if rx == 3:
                g('s_add_u32 %s, %s, %s' % (S(sT0), S(sC1), S(sJ1)))
                g('s_and_b32 %s, %s, 3' % (S(sT0), S(sT0)))
                g('s_add_u32 %s, %s, %s' % (S(sRot), S(sRot), S(sT0)))
        for k in range(2):
            g('s_sub_u32 %s, %s, 10' % (S(sT0), S(sRot)))
            g('s_min_u32 %s, %s, %s' % (S(sRot), S(sRot), S(sT0)))
        if self.cfg.get('rotg') == 2:
            g('s_and_b32 %s, %s, 1' % (S(sRot), S(sRot)))
            g('s_mul_i32 %s, %s, 5' % (S(sRot), S(sRot)))
        if self.cfg.get('rotg') == 5:
            g('s_and_b32 %s, %s, 14' % (S(sRot), S(sRot)))
        if self.cfg.get('rotg') == 3:
            g('s_mul_i32 %s, %s, 11' % (S(sT0), S(sRot)))
            g('s_lshr_b32 %s, %s, 5' % (S(sT0), S(sT0)))
            g('s_mul_i32 %s, %s, 3' % (S(sT0), S(sT0)))
            g('s_sub_u32 %s, %s, %s' % (S(sRot), S(sRot), S(sT0)))
            g('s_mul_i32 %s, %s, 7' % (S(sRot), S(sRot)))
            g('s_lshr_b32 %s, %s, 1' % (S(sRot), S(sRot)))
        g('s_lshl_b32 %s, %s, 7' % (S(sKb[0]), S(sRot)))
        g('v_lshrrev_b32 %s, 3, %s' % (V(vT[0]), V(vLane)))
        g('v_and_b32 %s, 7, %s' % (V(vT[1]), V(vLane)))
        g('v_lshrrev_b32 %s, 4, %s' % (V(vT[2]), V(vLane)))
        g.do(self.srd_cst(sX, 2048*1280))
        g.do(self.srd_cst(sWS, WS_SIZE))
        g('s_cmp_eq_u32 %s, 0' % S(sRole))
        g('s_cbranch_scc1 L_ssm')

    def kb(self, s, k0=sKb[0]):
        if self.cfg.get('same'): return ['s_mov_b32 %s, %s' % (S(sKb[s]), S(k0))]
        return ['s_sub_u32 %s, %s, %d' % (S(sT0), S(k0), 128*(10-s)), 's_add_u32 %s, %s, %d' % (S(sKb[s]), S(k0), 128*s),
                's_min_u32 %s, %s, %s' % (S(sKb[s]), S(sKb[s]), S(sT0))]

    def ptrs_ready(self):
        g = self.g
        g.waitcnt(lg=0)
        if self.cfg.get('entry'): g('v_writelane_b32 %s, s96, 29' % V(vStamp))
        self.stamp(0)
        self.stamp(30, 's_memtime')
        g.do(self.srd_ptr(sX, pX))

    def pack_addr(self, role, vPl, vPr, vPw):
        o = ['s_lshl_b32 %s, %s, 7' % (S(sItem), S(sWave)), 's_add_u32 %s, %s, %s' % (S(sItem), S(sItem), S(sIdx))]
        o += self.srd_ptr(sPD, pWs) + self.srd_ptr(sP1, pW2 if role else pCre)
        o += [['s_cmp_lt_u32 %s, %d' % (S(sItem), 480 if role else 400), 's_cselect_b32 %s, 0x%x, 0' % (S(sPD+2), WS_SIZE),
               's_cselect_b32 %s, %d, 0' % (S(sP1+2), 1536*1280 if role else 819200)],
              's_mov_b32 %s, 0x20000' % S(sPD+3), 's_mov_b32 %s, 0x20000' % S(sP1+3),
              's_mul_i32 %s, %s, 6554' % (S(sT1), S(sItem)), 's_lshr_b32 %s, %s, 16' % (S(sT1), S(sT1)),
              's_mul_i32 %s, %s, 10' % (S(sT2), S(sT1)), 's_sub_u32 %s, %s, %s' % (S(sT2), S(sItem), S(sT2)),
              's_lshl_b32 %s, %s, 7' % (S(sT3), S(sT2)),
              's_mul_i32 %s, %s, %d' % (S(sItem), S(sT1), 40960 if role else 20480), 's_add_u32 %s, %s, %s' % (S(sItem), S(sItem), S(sT3))]
        t0, t1 = V(vT[4]), V(vT[5]); L = V(vLane)
        if role:
            o += ['s_mul_i32 %s, %s, 5' % (S(sT1), S(sT1)), 's_lshl_b32 %s, %s, 2' % (S(sT2), S(sT2))]
            for i in range(4):
                o += ['s_add_u32 %s, %s, %d' % (S(sPs[i]), S(sT2), i),
                      's_mul_i32 %s, %s, 52' % (S(sT3), S(sPs[i])), 's_lshr_b32 %s, %s, 8' % (S(sT3), S(sT3)),
                      's_mul_i32 %s, %s, 435' % (S(sT3), S(sT3)), 's_add_u32 %s, %s, %s' % (S(sPs[i]), S(sPs[i]), S(sT3)),
                      's_add_u32 %s, %s, %s' % (S(sPs[i]), S(sPs[i]), S(sT1)), 's_lshl_b32 %s, %s, 10' % (S(sPs[i]), S(sPs[i])),
                      's_add_u32 %s, %s, 0x%x' % (S(sPs[i]), S(sPs[i]), WS_B2)]
            o += ['v_bfe_u32 %s, %s, 4, 1' % (t0, L), 'v_lshlrev_b32 %s, 11, %s' % (t0, t0), 'v_lshrrev_b32 %s, 5, %s' % (t1, L),
                  'v_lshl_add_u32 %s, %s, 9, %s' % (t0, t1, t0), 'v_bfe_u32 %s, %s, 2, 2' % (t1, L), 'v_lshl_add_u32 %s, %s, 7, %s' % (t0, t1, t0),
                  'v_and_b32 %s, 3, %s' % (t1, L), 'v_lshl_add_u32 %s, %s, 3, %s' % (t0, t1, t0)]
        else:
            o += self.srd_ptr(sP2, pCim) + ['s_mov_b32 %s, %s' % (S(sP2+2), S(sP1+2)), 's_mov_b32 %s, 0x20000' % S(sP2+3),
                  's_mul_i32 %s, %s, 52' % (S(sT3), S(sT1)), 's_lshr_b32 %s, %s, 8' % (S(sT3), S(sT3)),
                  's_mul_i32 %s, %s, 435' % (S(sT3), S(sT3)), 's_add_u32 %s, %s, %s' % (S(sT1), S(sT1), S(sT3)),
                  's_mul_i32 %s, %s, 20' % (S(sT3), S(sT2)), 's_add_u32 %s, %s, %s' % (S(sT1), S(sT1), S(sT3)),
                  's_lshl_b32 %s, %s, 10' % (S(sT1), S(sT1))]
            o += ['s_add_u32 %s, %s, 0x%x' % (S(sPs[i]), S(sT1), WS_B2 + 240*1024 + KST*i) for i in range(4)]
            o += ['v_lshrrev_b32 %s, 5, %s' % (t0, L), 'v_lshlrev_b32 %s, 11, %s' % (t0, t0), 'v_and_b32 %s, 15, %s' % (t1, L),
                  'v_lshl_add_u32 %s, %s, 7, %s' % (t0, t1, t0), 'v_bfe_u32 %s, %s, 4, 1' % (t1, L), 'v_lshl_add_u32 %s, %s, 4, %s' % (t0, t1, t0)]
        o += ['s_lshl_b32 %s, %s, 12' % (S(sT3), S(sWave)), 's_add_u32 %s, %s, %d' % (S(sT3), S(sT3), L_PK),
              'v_add_u32 %s, %s, %s' % (V(vPr), S(sT3), t0), 's_mov_b32 %s, %s' % (S(sWs2), S(sT3)),
              'v_lshrrev_b32 %s, 3, %s' % (t0, L), 'v_and_b32 %s, 7, %s' % (t1, L), 'v_mul_u32_u24 %s, 1280, %s' % (t0, t0),
              'v_lshl_add_u32 %s, %s, 4, %s' % (V(vPl), t1, t0)]
        return o

    def pack_load(self, role, vPl):
        g = self.g; nt = self.cfg.get('pknt', ' nt')
        g('s_mov_b32 m0, %s' % S(sWs2))
        for q in range(4):
            if role:
                if q: g('s_add_u32 %s, %s, 9216' % (S(sItem), S(sItem)))
                else: g('s_nop 0')
                self.tPack = g('buffer_load_dwordx4 %s, %s, %s offen offset:%d%s lds' % (V(vPl), S(sP1, 4), S(sItem), 1024*q, nt))
            else:
                if q == 0: g('s_add_u32 %s, %s, 9216' % (S(sT0), S(sItem)))
                if q == 2: g('s_add_u32 m0, %s, 2048' % S(sWs2))
                self.tPack = g('buffer_load_dwordx4 %s, %s, %s offen offset:%d%s lds' % (V(vPl), S(sP2 if q >= 2 else sP1, 4), S(sT0 if q & 1 else sItem), 1024*(q & 1), nt))
    def pack_proc(self, role, vPr):
        g = self.g
        a = [F(lambda: g.wait(self.tPack))]
        if role: a += ['ds_read_b64_tr_b16 %s, %s offset:%d' % (A(aPK+4*i+2*e, 2), V(vPr), e*1024 + i*32) for i in range(4) for e in range(2)]
        else: a += ['ds_read_b128 %s, %s offset:%d' % (A(aPK+4*i, 4), V(vPr), 32*i) for i in range(4)]
        b = []
        for i in range(4):
            def f(i=i): self.tPackSt = g('buffer_store_dwordx4 %s, %s, %s, %s offen sc1' % (A(aPK+4*i, 4), V(vL16), S(sPD, 4), S(sPs[i])))
            b.append(F(f))
        return a, b

    def touch_addr(self):
        if not self.cfg.get('coop', 0): return
        g = self.g; L = V(vLane)
        g('s_lshl_b32 %s, s2, 2' % S(sT0))
        g('s_add_u32 %s, %s, %s' % (S(sT0), S(sT0), S(sWave)))
        g('s_mul_i32 %s, %s, 20' % (S(sT1), S(sT0)))
        g('v_min_u32 v248, 19, %s' % L)
        g('v_add_u32 v248, %s, v248' % S(sT1))
        g('v_lshlrev_b32 v248, 7, v248')
        g('s_mul_i32 %s, %s, 25' % (S(sT1), S(sT0)))
        g('s_lshr_b32 %s, %s, 2' % (S(sT1), S(sT1)))
        g('v_min_u32 v249, 6, %s' % L)
        g('v_add_u32 v249, %s, v249' % S(sT1))
        g('v_min_u32 v249, 6399, v249')
        g('v_lshlrev_b32 v249, 7, v249')
        nw = 5 if self.cfg['coop'] == 1 else 15
        g('s_mul_i32 %s, %s, %d' % (S(sT1), S(sT0), nw))
        g('v_min_u32 v250, %d, %s' % (nw-1, L))
        g('v_add_u32 v250, %s, v250' % S(sT1))
        if nw == 5:
            g('v_lshrrev_b32 v251, 3, v250')
            g('v_and_b32 v250, 7, v250')
            g('v_mul_u32_u24 v251, 3072, v251')
            g('v_mul_u32_u24 v250, 384, v250')
            g('v_add_u32 v250, v250, v251')
        else:
            g('v_lshlrev_b32 v250, 7, v250')
    def touch(self):
        if not self.cfg.get('coop', 0): return
        g = self.g
        g('global_load_dword v240, v248, %s' % S(pX, 2))
        g('global_load_dword v241, v249, %s' % S(pBre, 2))
        g('global_load_dword v242, v249, %s' % S(pBim, 2))
        g('global_load_dword v243, v250, %s' % S(pW1, 2))

    def warm_flags(self, role):
        if not self.cfg.get('warm', 1): return []
        L = V(vLane)
        o = ['s_lshl_b32 %s, %s, 7' % (S(sT0), S(sRole)), 's_add_u32 %s, %s, %s' % (S(sT0), S(sT0), S(sIdx)),
             's_lshl_b32 %s, %s, %d' % (S(sT0), S(sT0), self.fg - self.fw), 's_add_u32 %s, %s, %s' % (S(sT0), S(sT0), S(sWave)),
             's_lshl_b32 %s, %s, %d' % (S(sT0), S(sT0), self.fw), 's_add_u32 %s, %s, %d' % (S(sT0), S(sT0), WS_HFLAG),
             'v_min_u32 v250, %d, %s' % (10 if role else 13, L), 'v_lshlrev_b32 v250, 16, v250', 'v_add_u32 v250, %s, v250' % S(sT0)]
        if role == 0:
            o += [
                  's_lshl_b32 %s, %s, 4' % (S(sT0), S(sJ1)), 's_add_u32 %s, %s, %s' % (S(sT0), S(sT0), S(sC1)),
                  's_lshl_b32 %s, %s, 2' % (S(sT0), S(sT0)), 's_add_u32 %s, %s, %s' % (S(sT0), S(sT0), S(sWave)),
                  's_mul_i32 %s, %s, 320' % (S(sT0), S(sT0)), 's_add_u32 %s, %s, %d' % (S(sT0), S(sT0), WS_EBUF),
                  'v_and_b32 v251, 3, %s' % L, 'v_mul_u32_u24 v251, 104, v251', 'v_add_u32 v251, %s, v251' % S(sT0),
                  ['v_cmp_gt_u32 vcc, 16, %s' % L, 'v_cndmask_b32 v250, v251, v250, vcc'],
                  's_lshl_b32 %s, %s, 3' % (S(sT0), S(sC1)), 's_add_u32 %s, %s, %s' % (S(sT0), S(sT0), S(sJ1)),
                  's_lshl_b32 %s, %s, 2' % (S(sT0), S(sT0)), 's_add_u32 %s, %s, %s' % (S(sT0), S(sT0), S(sWave)),
                  's_lshl_b32 %s, %s, 6' % (S(sT0), S(sT0)), 's_add_u32 %s, %s, %d' % (S(sT0), S(sT0), WS_GATE),
                  'v_mov_b32 v251, %s' % S(sT0),
                  ['v_cmp_gt_u32 vcc, 20, %s' % L, 'v_cndmask_b32 v250, v251, v250, vcc']]
        if self.cfg.get('pages', 2):
            def lane(k, expr):
                return expr + ['v_writelane_b32 v250, %s, %d' % (S(sT0), k)]
            o += lane(32, ['s_mul_i32 %s, %s, %d' % (S(sT0), S(sC1), HMS), 's_add_u32 %s, %s, 0x%x' % (S(sT0), S(sT0), WS_H + (0 if role else 48*HKS))])
            o += lane(33, ['s_add_u32 %s, %s, %d' % (S(sT0), S(sT0), (48 if role else 40)*HKS - 128)])
            o += lane(34, ['s_mul_i32 %s, %s, %d' % (S(sT0), S(sJ1), MST), 's_add_u32 %s, %s, 0x%x' % (S(sT0), S(sT0), WS_B2 + (0 if role else 48*KST))])
            o += lane(35, ['s_add_u32 %s, %s, %d' % (S(sT0), S(sT0), (48 if role else 40)*KST - 128)])
            o += lane(36, ['s_mul_i32 %s, %s, 20480' % (S(sT0), S(sIdx)), 's_add_u32 %s, %s, 0x%x' % (S(sT0), S(sT0), WS_X)])
            o += lane(37, ['s_add_u32 %s, %s, %d' % (S(sT0), S(sT0), 128*20480)])
        o.append('buffer_load_dword v251, v250, %s, 0 offen sc1' % S(sWS, 4))
        if self.cfg.get('pages', 2) >= 2:
            o += ['s_mul_i32 %s, %s, %d' % (S(sT0), S(sC1), 128*2560), 's_add_u32 %s, %s, %d' % (S(sT0), S(sT0), (1-role)*64*2560),
                  'v_and_b32 v249, 1, %s' % L, 'v_mul_u32_u24 v249, %d, v249' % (63*2560), 'v_add_u32 v249, %s, v249' % S(sT0),
                  'global_load_dword v248, v249, %s' % S(pOut, 2)]
        return o

    def pack_poll_issue(self, vPp, vD):
        self.g('buffer_load_dword %s, %s, %s, 0 offen sc1' % (V(vD), V(vPp), S(sWS, 4)))
    def pack_poll_check(self, vPp, vD):
        if self.cfg.get('nopoll'): return
        self.poll('pk', lambda: self.pack_poll_issue(vPp, vD), self.check_eq([vD]))

    def x_dma_addr(self, vXd, perm):
        g = self.g
        g('s_lshl_b32 %s, %s, 2' % (S(sT0), S(sC1)))
        g('s_add_u32 %s, %s, %s' % (S(sT0), S(sT0), S(sWave)))
        g('s_mul_i32 %s, %s, %d' % (S(sT0), S(sT0), 32*1280))
        if perm:
            g('v_lshrrev_b32 %s, 5, %s' % (V(vT[3]), V(vLane)))
            g('v_and_b32 %s, 1, %s' % (V(vT[4]), V(vT[0])))
            g('v_lshl_add_u32 %s, %s, 1, %s' % (V(vT[3]), V(vT[3]), V(vT[4])))
            g('v_and_b32 %s, 1, %s' % (V(vT[4]), V(vT[2])))
            g('v_lshl_add_u32 %s, %s, 2, %s' % (V(vT[3]), V(vT[3]), V(vT[4])))
            g('v_mul_u32_u24 %s, 1280, %s' % (V(vT[3]), V(vT[3])))
        else:
            g('v_mul_u32_u24 %s, 1280, %s' % (V(vT[3]), V(vT[0])))
        g('v_xor_b32 %s, %s, %s' % (V(vT[4]), V(vT[1]), V(vT[2])))
        g('v_lshlrev_b32 %s, 4, %s' % (V(vT[4]), V(vT[4])))
        g('v_xor_b32 %s, 64, %s' % (V(vT[5]), V(vT[4])))
        g('v_add3_u32 %s, %s, %s, %s' % (V(vXd[0]), V(vT[4]), V(vT[3]), S(sT0)))
        g('v_add3_u32 %s, %s, %s, %s' % (V(vT[5]), V(vT[5]), V(vT[3]), S(sT0)))
        for q in range(1, 4):
            rows = (16*(q & 1) + 2*(q >> 1)) if perm else 8*q
            g('v_add_u32 %s, %d, %s' % (V(vXd[q]), rows*1280 - 1024*q, V(vT[5] if q & 1 else vXd[0])))

    def ffn(self):
        g = self.g; cfg = self.cfg
        ACC = [16, 48]
        WF = 80; NF = 10
        EP = 120
        PKR = 128
        vXd = [144, 145, 146, 147]; vWd = [148, 149]; vXr = [150, 151, 152, 153]; vWr = [154, 155]; vHs = 156
        vPr, vPs, vPp, vPd = 157, 158, 159, 13
        vWrB = [150, 151]
        def wslot(t):
            if t < 16: return F_WR + (t % 8)*8192
            if t < 24: return (t-16)*8192
            return F_WR + (t-24)*8192
        LA = cfg.get('fla', 7); WE = cfg.get('fwe', 4)
        self.x_dma_addr(vXd, False)
        g('v_and_b32 %s, 1, %s' % (V(vT[3]), V(vT[2])))
        g('v_lshlrev_b32 %s, 2, %s' % (V(vT[3]), V(vT[3])))
        g('v_xor_b32 %s, %s, %s' % (V(vT[3]), V(vT[1]), V(vT[3])))
        g('v_mul_u32_u24 %s, 3072, %s' % (V(vT[4]), V(vT[0])))
        g('v_lshl_add_u32 %s, %s, 4, %s' % (V(vT[3]), V(vT[3]), V(vT[4])))
        g('s_mul_i32 %s, %s, %d' % (S(sT0), S(sWave), 16*3072))
        g('v_add_u32 %s, %s, %s' % (V(vWd[0]), S(sT0), V(vT[3])))
        g('v_add_u32 %s, %d, %s' % (V(vWd[1]), 8*3072 - 1024, V(vWd[0])))
        g('s_mul_i32 %s, %s, 20480' % (S(sMx), S(sWave)))
        g('s_lshl_b32 %s, %s, 11' % (S(sMw), S(sWave)))
        g('s_mul_i32 %s, %s, 384' % (S(sWo), S(sJ1)))
        g.do(self.srd_cst(sW, 640*3072))
        g('s_mov_b32 %s, %s' % (S(sKt), S(sKb[0])))
        tokX = {}; tokW = {}
        def dma_x(s):
            def mk(q):
                def f():
                    tokX[s] = g('buffer_load_dwordx4 %s, %s, %s offen offset:%d%s lds' % (V(vXd[q]), S(sX, 4), S(sKb[s]), 1024*q, (' nt' if s < cfg.get('nt0', 0) else '')))
                return F(f)
            return ['s_add_u32 m0, %s, %d' % (S(sMx), (s % 5)*4096)] + [mk(q) for q in range(4)]
        def dma_w(t):
            o = ['s_add_u32 m0, %s, %d' % (S(sMw), wslot(t))]
            k = sKb[t % 10]
            if t < 10: o += ['s_mul_i32 %s, %s, 1536' % (S(k), S(k)), 's_add_u32 %s, %s, %s' % (S(k), S(k), S(sWo))]
            if t in (10, 20): o += ['v_add_u32 %s, 128, %s' % (V(r), V(r)) for r in vWd]
            nt = ' nt' if t < cfg.get('nt0', 0) else ''
            o.append('buffer_load_dwordx4 %s, %s, %s offen%s lds' % (V(vWd[0]), S(sW, 4), S(k), nt))
            def f():
                tokW[t] = g('buffer_load_dwordx4 %s, %s, %s offen offset:1024%s lds' % (V(vWd[1]), S(sW, 4), S(k), nt))
            return o + [F(f)]
        self.touch_addr()
        self.ptrs_ready()
        g.do(self.srd_ptr(sW, pW1))
        if cfg.get('coop_first', 1): self.touch()
        g.do(dma_x(0) + dma_w(0))
        for s in range(1, 10): g.do(self.kb(s, sKt))
        g.do(dma_x(1) + dma_w(1))
        g.do(self.srd_ptr(sWS, pWs))
        g('s_load_dword %s, %s, 0' % (S(sNonce), S(pWs, 2)))
        g.do(self.warm_flags(1))
        g('v_and_b32 %s, 31, %s' % (V(vT[3]), V(vLane)))
        g('v_bfe_u32 %s, %s, 1, 3' % (V(vT[4]), V(vLane)))
        g('v_lshrrev_b32 %s, 5, %s' % (V(vT[7]), V(vLane)))
        g('v_xor_b32 %s, %s, %s' % (V(vT[4]), V(vT[4]), V(vT[7])))
        g('v_lshlrev_b32 %s, 4, %s' % (V(vT[4]), V(vT[4])))
        g('v_lshl_add_u32 %s, %s, 7, %s' % (V(vT[4]), V(vT[3]), V(vT[4])))
        g('v_add_u32 %s, %s, %s' % (V(vXr[0]), S(sMx), V(vT[4])))
        for ks in range(1, 4):
            g('v_xor_b32 %s, %d, %s' % (V(vXr[ks]), 32*ks, V(vXr[0])))
        g('v_bfe_u32 %s, %s, 2, 2' % (V(vT[4]), V(vLane)))
        g('v_lshl_add_u32 %s, %s, 3, %s' % (V(vT[6]), V(vT[7]), V(vT[4])))
        g('v_lshlrev_b32 %s, 7, %s' % (V(vT[6]), V(vT[6])))
        g('v_lshrrev_b32 %s, 1, %s' % (V(vT[4]), V(vT[4])))
        g('v_lshl_add_u32 %s, %s, 6, %s' % (V(vT[6]), V(vT[4]), V(vT[6])))
        g('v_bfe_u32 %s, %s, 4, 1' % (V(vT[4]), V(vLane)))
        g('v_lshl_add_u32 %s, %s, 5, %s' % (V(vT[6]), V(vT[4]), V(vT[6])))
        g('v_and_b32 %s, 3, %s' % (V(vT[4]), V(vLane)))
        g('v_lshl_add_u32 %s, %s, 3, %s' % (V(vT[6]), V(vT[4]), V(vT[6])))
        g('v_add_u32 %s, %d, %s' % (V(vWr[0]), F_WR, V(vT[6])))
        g('v_xor_b32 %s, 64, %s' % (V(vWr[1]), V(vWr[0])))
        global sWs2
        sWs2 = 43
        CF_ = cfg.get('cpk')
        if CF_:
            g.do(self.pack_addr(0, vPs, vPr, None))
            if len(CF_) == 2: self.pack_load(0, vPs)
        pk0 = cfg.get('pk', (4,))[0] < 2
        if pk0: g.do(self.pack_addr(1, vPs, vPr, None))
        if cfg.get('pk', (4,))[0] < 0: self.pack_load(1, vPs)
        g.do(dma_x(2) + dma_w(2))
        XL = cfg.get('f_xl', 4)
        if XL == 4: g.do(dma_x(3) + dma_w(3))
        self.stamp(1)
        setup = ([] if pk0 else self.pack_addr(1, vPs, vPr, None)) + self.nonce_ops() + self.late_setup(1, vT[0], vT[1], vPp)
        n_late = len(setup)
        setup += self.hbase(6, 0) + [
            'v_bfe_u32 %s, %s, 4, 1' % (V(vT[0]), V(vLane)), 'v_lshlrev_b32 %s, 10, %s' % (V(vT[0]), V(vT[0])),
            'v_lshl_add_u32 %s, %s, 9, %s' % (V(vT[0]), V(vT[7]), V(vT[0])), 'v_and_b32 %s, 15, %s' % (V(vT[1]), V(vLane)),
            'v_lshl_add_u32 %s, %s, 4, %s' % (V(vT[0]), V(vT[1]), V(vT[0])), 'v_add_u32 %s, %s, %s' % (V(vHs), S(sKt), V(vT[0])),
            's_mov_b32 %s, 0x%x' % (S(sNl), NLOG2E)]
        setup += self.ks_table(1)
        xld = []
        if self.XR:
            xa, xld = self.xd_loads(vT[0], 200); setup += xa

        mains = []; fixed = []
        tokF = {}; tokXr = {}
        def rd_x(s, ks):
            def f(): tokXr[s] = g('ds_read_b128 %s, %s offset:%d' % (A(16*s + 4*ks, 4), V(vXr[ks]), (s % 5)*4096))
            return F(f)
        def rd_w(n, e):
            sg, ks, u = n // 8, (n % 8)//2, n % 2
            def f():
                tokF[n] = g('ds_read_b64_tr_b16 %s, %s offset:%d' % (V(WF + 4*(n % NF) + 2*e, 2), V(vWrB[u] if 16 <= sg < 24 else vWr[u]), wslot(sg) % F_WR + (16*ks + 4*e)*128))
            return F(f)
        def bar(sg, both):
            def f():
                g.wait(tokX.get(sg), tokW[sg+1 if both else sg], tokXr.get(sg-1) if XL == 4 else None)
                g('s_barrier')
                if sg == 0: self.stamp(2)
                if sg == 10: self.stamp(3)
                if sg == 20: self.stamp(4)
                if sg in (3, 5, 7, 12, 16, 26): self.stamp(20 + (3, 5, 7, 12, 16, 26).index(sg), lvl=3)
            return F(f, 8)
        for n in range(240):
            sg, ks, u = n // 8, (n % 8)//2, n % 2
            grp, s = sg // 10, sg % 10
            acc = ACC[grp % 2] + 16*u
            c = '0' if (s == 0 and ks == 0) else V(acc, 16)
            mains.append(('v_mfma_f32_32x32x16_bf16 %s, %s, %s, %s' % (V(acc, 16), V(WF + 4*(n % NF), 4), A(16*s + 4*ks, 4), c),
                          (lambda n=n: [tokF[min(n+WE-1, 239)]]) if n % WE == 0 else None))
        wsched = {}
        if XL == 3:
            for sg in range(7): wsched[sg] = [sg+3]
            wsched[7] = [10, 11]; wsched[8] = [12, 13]; wsched[9] = [14]; wsched[10] = [15]
        else:
            for sg in range(6): wsched[sg] = [sg+4]
            wsched[6] = [10, 11]; wsched[7] = [12, 13]; wsched[8] = [14]; wsched[9] = [15]
        ws_ = cfg.get('wsch', 2) if XL == 4 else 0
        if ws_ == 0: wsched[12] = [16, 17, 18, 19]; wsched[14] = [20, 21, 22]; wsched[16] = [23, 24, 25]; wsched[18] = [26, 27]; wsched[20] = [28, 29]
        if ws_ == 1: wsched[10] = [16, 17, 18, 19]; wsched[12] = [20, 21, 22, 23]; wsched[14] = [24, 25, 26, 27]; wsched[16] = [28, 29]
        if ws_ == 2: wsched[10] = [16, 17, 18]; wsched[12] = [19, 20, 21]; wsched[14] = [22, 23, 24]; wsched[16] = [25, 26, 27]; wsched[18] = [28, 29]
        endb = {}
        for sg in range(30):
            if sg >= 10 and sg % 2: continue
            p = 8*sg - LA
            fixed.append((p - 0.5, bar(sg, sg >= 10)))
            d = []
            if sg + XL <= 9: d += dma_x(sg+XL)
            for t in wsched.get(sg, []): d += dma_w(t)
            stp = 0.5 if sg < 10 else 15.0/max(len(d), 1)
            for i, f in enumerate(d): fixed.append((p + 0.6 + i*stp, f))
            endb[sg] = p + 0.6 + len(d)*stp
        for u in range(2): fixed.append((90 + u, 'v_subrev_u32 %s, %d, %s' % (V(vWrB[u]), F_WR, V(vWr[u]))))
        if cfg.get('w1warm', 0):
            fixed.append((endb[cfg.get('w1warm_at', 1)], ['s_lshl_b32 %s, %s, 2' % (S(sT0), S(sC1)), 's_add_u32 %s, %s, %s' % (S(sT0), S(sT0), S(sWave)),
                 's_mul_i32 %s, %s, %d' % (S(sT0), S(sT0), 10*3072), 's_add_u32 %s, %s, %s' % (S(sT0), S(sT0), S(sWo)),
                 'v_min_u32 %s, 19, %s' % (V(vT[8]), V(vLane)), 'v_lshrrev_b32 %s, 1, %s' % (V(vPd), V(vT[8])),
                 'v_mul_u32_u24 %s, 3072, %s' % (V(vPd), V(vPd)), 'v_and_b32 %s, 1, %s' % (V(vT[8]), V(vT[8])),
                 'v_lshl_add_u32 %s, %s, 7, %s' % (V(vPd), V(vT[8]), V(vPd)),
                 'buffer_load_dword %s, %s, %s, %s offen offset:128 sc1' % (V(vT[8]), V(vPd), S(sW, 4), S(sT0))]))
        for n in range(240):
            if n < 80 and n % 2 == 0:
                s, ks = n//8, (n % 8)//2
                fixed.append((8*s - LA + ks if XL == 4 else n - LA, rd_x(s, ks)))
            fixed.append((n - LA, rd_w(n, 0))); fixed.append((n - LA, rd_w(n, 1)))
        cl, cr, cf, pp = cfg.get('pk', (4, 8, 12, 22))
        at = lambda sg: endb[sg] if sg < 10 else 8*sg - LA + 0.2
        s_from = 0
        if CF_:
            if len(CF_) == 3:
                fixed.append((endb[CF_[0]], F(lambda: self.pack_load(0, vPs), 32))); CF_ = CF_[1:]
            ca, cb = self.pack_proc(0, vPr); tC = []
            for i, f in enumerate(ca): fixed.append((endb[CF_[0]] + 0.3*i, f))
            for i, f in enumerate(cb): fixed.append((endb[CF_[0]] + 4 + 0.3*i, f))
            fixed.append((endb[CF_[0]] + 5.5, F(lambda: tC.append(self.tPackSt), 0)))
            s_from = int(endb[CF_[0]]) + 7
            fixed.append((at(CF_[1]), F(lambda: (sA.flush(g), g('v_subrev_u32 v162, %d, %s' % (128 << self.fg, V(vFa))), self.flag_store(tC[0], sPD, 162)), 12)))
            assert not pk0 and CF_[1] <= cr
        if cl >= 0: fixed.append((endb[cl], F(lambda: self.pack_load(1, vPs), 36)))
        pa_, pb_ = self.pack_proc(1, vPr)
        for i, f in enumerate(pa_): fixed.append((at(cr) + 0.5*i, f))
        for i, f in enumerate(pb_): fixed.append((at(cr) + 8 + 0.5*i, f))
        fixed.append((at(cf), F(lambda: self.flag_store(self.tPackSt, sPD), 8)))
        if pp < 30:
            fixed.append((at(pp-2), F(lambda: self.pack_poll_issue(vPp, vPd))))
            fixed.append((at(pp), F(lambda: self.pack_poll_check(vPp, vPd), 20)))
        else:
            fixed.append((228, F(lambda: self.pack_poll_issue(vPp, vPd))))
        b2 = self.b2_loads(1, range(4 if cfg.get('f_nob2') else 12))
        nb_in = 0; p = at(pp) + 2 if pp < 30 else 999
        while nb_in < min(len(b2), cfg.get('f_b2in', 20)):
            st_, nt_ = nb_in // 5, nb_in % 5
            if st_ >= 4: p = max(p, 160 + 8*((20*(st_-4) + 4*nt_ + 3)//16) + 9)
            if p > 238: break
            fixed.append((p, b2[nb_in])); nb_in += 1; p += cfg.get('f_sp', 3.0)
        tU = {}
        def epi(grp):
            ops = []
            for u in range(2):
                acc = ACC[grp % 2] + 16*u
                pk = PKR + 8*u
                def stage(r, k):
                    t = V(EP + (r % 8)); a = V(acc + r)
                    return ['v_mul_f32 %s, %s, %s' % (t, S(sNl), a), 'v_exp_f32 %s, %s' % (t, t), 'v_add_f32 %s, 1.0, %s' % (t, t),
                            'v_rcp_f32 %s, %s' % (t, t), 'v_mul_f32 %s, %s, %s' % (a, a, t)][k]
                for tm in range(16 + 6):
                    for k in (4, 3, 2, 1, 0):
                        r = tm - k
                        if 0 <= r < 16: ops.append(stage(r, k))
                    r = tm - 5
                    if 0 <= r < 16 and r % 2 == 1:
                        ops.append('v_cvt_pk_bf16_f32 %s, %s, %s' % (V(pk + r//2), V(acc + r - 1), V(acc + r)))
                        if r in (7, 15):
                            e = r // 8
                            def st(e=e, pk=pk, un=2*grp+u):
                                tU[un] = g('buffer_store_dwordx4 %s, %s, %s, 0 offen offset:%d%s' % (V(pk + 4*e, 4), V(vHs), S(sH, 4), 256*e, cfg.get('hst', ' sc1')))
                            ops.append(F(st))
                ops.append('v_add_u32 %s, %d, %s' % (V(vHs), HKS, V(vHs)))
            return ops
        pa = 24 if pk0 else min(40 if not CF_ else 99, int(at(cl)) - 1)
        if CF_: pa = min(pa, int(at(CF_[1])) - 1)
        sA = Stream(setup[:n_late], s_from, pa - 1)
        fixed.append((pa - 0.1, F(lambda: sA.flush(g), 0)))
        streams = [sA, Stream(setup[n_late:], pa, max(78, pa + 30)),
                   Stream(epi(0), 82, 158), Stream(epi(1), 162, 238)]
        if cfg.get('noepi'): streams = streams[:3]
        for i, f in enumerate(xld): fixed.append((cfg.get('f_xd', 150) + 1.6*i, f))
        fixed.append((max(at(cf) + 1, 150), self.line_addr(WS_HFLAG, vFa)))
        fixed.append((cfg.get('f_l0', 232), F(lambda: self.hflag(1, 0, tU[2]), 20)))
        sched(g, mains, 24, fixed, streams, report=self.rep and 'ffn')
        self.stamp(5)
        if pp >= 30: self.pack_poll_check(vPp, vPd)
        e2 = epi(2); k = cfg.get('f_hp0', 60)
        rest = mix(g, e2[:k] + self.hp_addr(1) + [F(lambda: self.hpoll(1, 0), 8)] + e2[k:], b2[nb_in:], every=cfg.get('f_pace', 72))
        self.hflag(1, 1, tU[3])
        jl = cfg.get('f_jl', 0)
        if jl:
            nj = cfg.get('f_jb', 16)
            g.do(rest[:nj]); rest = rest[nj:]
            if jl == 2: self.hflag(1, 2, tU[5])
            self.hpoll(1, jl); self.hcheck(1, jl); self.hpoll(1, 0)
        self.stamp(6)
        self.phase2(1, rest, tU[5])

    def cpow(self, dst, a, th, n, t0, t1):
        if n is None:
            o = ['v_exp_f32 %s, %s' % (V(t0), V(a)), 'v_rndne_f32 %s, %s' % (V(t1), V(th)), 'v_sub_f32 %s, %s, %s' % (V(t1), V(th), V(t1))]
        else:
            o = ['v_mul_f32 %s, %s, %s' % (V(t0), n, V(a)), 'v_mul_f32 %s, %s, %s' % (V(dst), n, V(th)), 'v_exp_f32 %s, %s' % (V(t0), V(t0)),
                 'v_rndne_f32 %s, %s' % (V(t1), V(dst)), 'v_sub_f32 %s, %s, %s' % (V(t1), V(dst), V(t1))]
        return o + ['v_cos_f32 %s, %s' % (V(dst), V(t1)), 'v_sin_f32 %s, %s' % (V(dst+1), V(t1)),
                    'v_mul_f32 %s, %s, %s' % (V(dst), V(t0), V(dst)), 'v_mul_f32 %s, %s, %s' % (V(dst+1), V(t0), V(dst+1))]

    def ssm(self):
        g = self.g; cfg = self.cfg
        ACC = 16
        def acc(u, part, t): return ACC + 16*u + 8*part + t
        L1, CF, L4, L8S = 96, 98, 100, 102
        L8, L128, LK, vGrp = 136, 138, 214, 216
        def pk(op, d, c, hi, x, y=None, neg=False):
            n = 3 if y is not None else 2
            t = 'v_pk_%s_f32 %s, %s, %s' % (op, V(d, 2), V(c, 2), V(x, 2)) + (', %s' % V(y, 2) if y is not None else '')
            t += ' op_sel:[%d%s] op_sel_hi:[%d%s]' % (hi, ',0'*(n-1), hi, ',1'*(n-1))
            if neg: t += ' neg_lo:[1%s] neg_hi:[1%s]' % (',0'*(n-1), ',0'*(n-1))
            return t
        vXd = [140, 141, 142, 143]; vBd = [144, 145, 146, 147, 148]
        vXr = [149, 150]; vBr = [151, 152, 153, 154]
        vPidx = 155; vHs = 156
        vPr, vPs, vPp, vPd = 217, 218, 159, 13
        BIG = 160
        RAW = 160
        aBF = 0; NF = 14; aXF = 56
        LA = cfg.get('sla', 6); WE = cfg.get('swe', 4); SL = cfg.get('s_sl', 3); RS = 1.4 if SL == 3 else 2.0
        g.label('L_ssm')
        self.x_dma_addr(vXd, True)
        g('s_and_b32 %s, %s, 1' % (S(sT1), S(sWave)))
        g('s_lshl_b32 %s, %s, 1' % (S(sT0), S(sJ1)))
        g('s_add_u32 %s, %s, %s' % (S(sT0), S(sT0), S(sT1)))
        g('s_mul_i32 %s, %s, %d' % (S(sT0), S(sT0), 40*1280))
        g('s_lshl_b32 %s, %s, 6' % (S(sT1), S(sT1)))
        g('v_xor_b32 %s, %s, %s' % (V(vT[4]), S(sT1), V(vT[4])))
        g('v_xor_b32 %s, 64, %s' % (V(vT[5]), V(vT[4])))
        g('v_mul_u32_u24 %s, 1280, %s' % (V(vT[3]), V(vT[0])))
        g('v_add3_u32 %s, %s, %s, %s' % (V(vBd[0]), V(vT[4]), V(vT[3]), S(sT0)))
        g('v_add3_u32 %s, %s, %s, %s' % (V(vT[5]), V(vT[5]), V(vT[3]), S(sT0)))
        for q in range(1, 5):
            g('v_add_u32 %s, %d, %s' % (V(vBd[q]), 8*q*1280 - 1024*(q & 3), V(vT[5] if q & 1 else vBd[0])))
        g('s_lshl_b32 %s, %s, 14' % (S(sMx), S(sWave)))
        g('s_mul_i32 %s, %s, 5120' % (S(sMw), S(sWave)))
        g('s_add_u32 %s, %s, %d' % (S(sMw), S(sMw), S_BR))
        g.do(self.srd_cst(sW, 819200))
        g.do(self.kb(1))
        tokS = {}
        def dma(s):
            o = ['s_add_u32 m0, %s, %d' % (S(sMx), (s % 4)*4096)]
            for q in range(4): o.append('buffer_load_dwordx4 %s, %s, %s offen offset:%d%s lds' % (V(vXd[q]), S(sX, 4), S(sKb[s]), 1024*q, (' nt' if s < cfg.get('nt0', 0) else '')))
            o.append('s_add_u32 m0, %s, %d' % (S(sMw), (s % 4)*20480))
            nt = ' nt' if s < cfg.get('nt0', 0) else ''
            for q in range(4): o.append('buffer_load_dwordx4 %s, %s, %s offen offset:%d%s lds' % (V(vBd[q]), S(sW, 4), S(sKb[s]), 1024*q, nt))
            o.append('s_add_u32 m0, %s, %d' % (S(sMw), (s % 4)*20480 + 4096))
            def f(): tokS[s] = g('buffer_load_dwordx4 %s, %s, %s offen%s lds' % (V(vBd[4]), S(sW, 4), S(sKb[s]), nt))
            return o + [F(f)]
        g('s_mul_i32 %s, %s, 160' % (S(sT0), S(sJ1)))
        g('v_mul_u32_u24 %s, 13, %s' % (V(vGrp), V(vLane)))
        g('v_lshrrev_b32 %s, 8, %s' % (V(vGrp), V(vGrp)))
        g('v_mul_u32_u24 %s, 20, %s' % (V(vPidx), V(vGrp)))
        g('v_sub_u32 %s, %s, %s' % (V(vPidx), V(vLane), V(vPidx)))
        g('s_mul_i32 %s, %s, 20' % (S(sT1), S(sWave)))
        g('v_add_u32 %s, %s, %s' % (V(vPidx), S(sT1), V(vPidx)))
        g('v_lshl_add_u32 %s, %s, 1, %s' % (V(vT[6]), V(vPidx), S(sT0)))
        self.ptrs_ready()
        g('s_cmp_lt_u32 %s, 2' % S(sWave))
        g('s_cselect_b32 %s, %s, %s' % (S(sW), S(pBre), S(pBim)))
        g('s_cselect_b32 %s, %s, %s' % (S(sW+1), S(pBre+1), S(pBim+1)))
        g.do(dma(0))
        for k, p in enumerate((pLre, pLim, pLdt)): g('global_load_ushort %s, %s, %s' % (V(RAW + k), V(vT[6]), S(p, 2)))
        g.do(self.srd_ptr(sWS, pWs))
        g('s_load_dword %s, %s, 0' % (S(sNonce), S(pWs, 2)))
        d1 = dma(1); n1 = cfg.get('s_n1', 5)
        g.do(d1[:n1])
        g('s_branch L_ssm2')
        g.label('L_ssm2')
        for s in range(2, 10): g.do(self.kb(s))
        g.do(self.warm_flags(0))
        global sWs2
        sWs2 = 93
        sl_, sr_, sf_ = cfg.get('spk', (-1, 1, 4))
        own = not cfg.get('cpk')
        if own:
            g.do(self.pack_addr(0, vPs, vPr, None))
            if sl_ < 0: self.pack_load(0, vPs)
        g('v_and_b32 %s, 15, %s' % (V(vT[3]), V(vLane)))
        g('v_bfe_u32 %s, %s, 1, 3' % (V(vT[4]), V(vLane)))
        g('v_xor_b32 %s, %s, %s' % (V(vT[4]), V(vT[4]), V(vT[2])))
        g('v_lshlrev_b32 %s, 4, %s' % (V(vT[4]), V(vT[4])))
        g('v_lshl_add_u32 %s, %s, 7, %s' % (V(vT[4]), V(vT[3]), V(vT[4])))
        g('v_add_u32 %s, %s, %s' % (V(vXr[0]), S(sMx), V(vT[4])))
        g('v_xor_b32 %s, 64, %s' % (V(vXr[1]), V(vXr[0])))
        g('v_add_u32 %s, %d, %s' % (V(vBr[0]), S_BR, V(vT[4])))
        g('v_xor_b32 %s, 64, %s' % (V(vBr[1]), V(vBr[0])))
        g('v_add_u32 %s, 40960, %s' % (V(vBr[2]), V(vBr[0])))
        g('v_add_u32 %s, 40960, %s' % (V(vBr[3]), V(vBr[1])))
        PT = BIG + 20
        L_PAR = L_EX + 11264
        setup = self.late_setup(0, vT[0], vT[1], vPp) + self.hbase(5, 48*HKS) + ['v_add_u32 %s, %s, %s' % (V(vHs), S(sKt), V(vL16))]
        setup += self.ks_table(0)
        setup += ['s_lshl_b32 %s, %s, 2' % (S(sT2), S(sWave)), 'v_add_u32 %s, %s, %s' % (V(vT[2]), S(sT2), V(vT[2])),
               'v_lshlrev_b32 %s, 3, %s' % (V(PT), V(vT[2])), 'v_cvt_f32_u32 %s, %s' % (V(PT), V(PT)),
               'v_mul_u32_u24 %s, 640, %s' % (V(vT[2]), V(vT[2])),
               'v_lshlrev_b32 %s, 5, %s' % (V(vT[7]), V(vT[3])), 'v_add_u32 %s, %d, %s' % (V(vT[7]), L_PAR, V(vT[7])),
               'v_lshlrev_b32 %s, 5, %s' % (V(vT[6]), V(vPidx)), 'v_add_u32 %s, %d, %s' % (V(vT[6]), L_PAR, V(vT[6])),
               'v_lshlrev_b32 %s, 3, %s' % (V(vT[3]), V(vT[3])), 'v_add_u32 %s, %d, %s' % (V(vT[3]), L_EX, V(vT[3])),
               'v_add_u32 %s, %s, %s' % (V(vT[2]), V(vT[2]), V(vT[3])),
               'v_lshlrev_b32 %s, 3, %s' % (V(vT[4]), V(vPidx)), 'v_add_u32 %s, %d, %s' % (V(vT[4]), L_EX, V(vT[4])),
               's_mul_i32 %s, %s, 20480' % (S(sT2), S(sJ1)), 's_add_u32 %s, %s, %d' % (S(sT2), S(sT2), WS_EBUF),
               'v_lshlrev_b32 %s, 4, %s' % (V(vT[5]), V(vPidx)), 'v_add_u32 %s, %s, %s' % (V(vT[5]), S(sT2), V(vT[5])),
               's_mul_i32 %s, %s, 1280' % (S(sCo), S(sC1)),
               'v_mul_u32_u24 %s, 640, %s' % (V(PT+1), V(vGrp)), 'v_cvt_f32_u32 %s, %s' % (V(PT+1), V(PT+1))]
        xdl = self.xd_loads(PT + 5)
        if cfg.get('s_xd', 250) < 0 and self.XR == 0: setup += xdl
        g.do(setup)
        g.do(d1[n1:])
        UP = cfg.get('s_up', 2)
        if UP == 3: g.do(dma(2))
        self.stamp(1)
        lr, li, ld = RAW, RAW + 1, RAW + 2
        Q = RAW + 4; l1, cf, l4, a, th = Q, Q+2, Q+4, Q+6, Q+7
        t0, t1, t2, t3 = PT+2, PT+3, PT+4, RAW+3
        par = ['v_lshlrev_b32 %s, 16, %s' % (V(ld), V(ld)), 'v_mul_f32 %s, 0x%x, %s' % (V(ld), LOG2E, V(ld)),
               'v_exp_f32 %s, %s' % (V(ld), V(ld)), 'v_lshlrev_b32 %s, 16, %s' % (V(lr), V(lr)),
               'v_cvt_pk_bf16_f32 %s, %s, %s' % (V(ld), V(ld), V(ld)), 'v_lshlrev_b32 %s, 16, %s' % (V(li), V(li)),
               'v_lshlrev_b32 %s, 16, %s' % (V(ld), V(ld)),
               'v_mul_f32 %s, %s, %s' % (V(a), V(ld), V(lr)), 'v_mul_f32 %s, %s, %s' % (V(th), V(ld), V(li)),
               'v_mul_f32 %s, 0x%x, %s' % (V(a), LOG2E, V(a)), 'v_mul_f32 %s, 0.15915494, %s' % (V(th), V(th))]
        par += self.cpow(l1, a, th, None, t0, t1)
        par += ['v_mul_f32 %s, %s, %s' % (V(t2), V(lr), V(lr)), 'v_fmac_f32 %s, %s, %s' % (V(t2), V(li), V(li)),
                'v_rcp_f32 %s, %s' % (V(t2), V(t2)), 'v_add_f32 %s, -1.0, %s' % (V(t3), V(l1)),
                'v_mul_f32 %s, %s, %s' % (V(t0), V(l1), V(l1)), 'v_mul_f32 %s, %s, %s' % (V(t1), V(l1), V(l1+1)),
                'v_mul_f32 %s, %s, %s' % (V(cf), V(t3), V(lr)), 'v_add_f32 %s, %s, %s' % (V(t2), V(t2), V(t2)),
                'v_fmac_f32 %s, %s, %s' % (V(cf), V(l1+1), V(li)), 'v_mul_f32 %s, %s, %s' % (V(cf+1), V(l1+1), V(lr)),
                'v_fma_f32 %s, -%s, %s, %s' % (V(cf+1), V(t3), V(li), V(cf+1)),
                'v_mul_f32 %s, %s, %s' % (V(cf), V(cf), V(t2)), 'v_mul_f32 %s, %s, %s' % (V(cf+1), V(cf+1), V(t2)),
                'v_fma_f32 %s, -%s, %s, %s' % (V(t0), V(l1+1), V(l1+1), V(t0)), 'v_add_f32 %s, %s, %s' % (V(t1), V(t1), V(t1)),
                'v_mul_f32 %s, %s, %s' % (V(l4), V(t0), V(t0)), 'v_mul_f32 %s, %s, %s' % (V(l4+1), V(t0), V(t1)),
                'v_fma_f32 %s, -%s, %s, %s' % (V(l4), V(t1), V(t1), V(l4)), 'v_add_f32 %s, %s, %s' % (V(l4+1), V(l4+1), V(l4+1))]
        par += self.cpow(L8, a, th, '0x41000000', t0, t1) + self.cpow(L128, a, th, '0x43000000', t0, t1)
        par += self.cpow(LK, a, th, V(PT+1), t0, t1)
        par_w = ['ds_write_b128 %s, %s' % (V(vT[6]), V(Q, 4)), 'ds_write_b128 %s, %s offset:16' % (V(vT[6]), V(Q+4, 4))]
        par_r = ['ds_read_b128 %s, %s offset:%d' % (V(L1 + 8*u + 4*h, 4), V(vT[7]), 512*u + 16*h) for u in range(5) for h in range(2)]
        par2 = []
        for u in range(5): par2 += self.cpow(L8S + 8*u, L8S + 8*u, L8S + 8*u + 1, V(PT), t0, t1)

        mains = []; fixed = []
        tokF = {}; tokP = {}
        def rd_b(f_):
            sg, s, up = f_ // 20, (f_ % 20)//10, f_ % 10
            u, part = up // 2, up % 2
            def f():
                if cfg.get('s_nord'): tokF[f_] = None; return
                tokF[f_] = g('ds_read_b128 %s, %s offset:%d' % (A(aBF + 4*(f_ % NF), 4), V(vBr[2*((sg % 4)//2) + s]), (sg % 2)*20480 + (part*80 + 16*u)*128))
            return F(f)
        def bar(sg):
            def f():
                g.wait(tokS[sg], tokF.get(20*sg-1) if (SL == 3 and sg + SL <= 9) else None, tokP.get(sg))
                g('s_barrier')
                if sg == 0: self.stamp(2)
                if sg in (2, 4, 6, 8, 9): self.stamp(20 + (2, 4, 6, 8, 9).index(sg), lvl=3)
                if cfg.get('allbar') and sg > 0: self.stamp(19 + sg)
            return F(f, 8)
        for n in range(400):
            f_, m = n // 2, n % 2
            kk, up = f_ // 10, f_ % 10
            u, part = up // 2, up % 2
            d = acc(u, part, 4*m)
            c = '0' if kk == 0 else V(d, 4)
            mains.append(('v_mfma_f32_16x16x32_bf16 %s, %s, %s, %s' % (V(d, 4), A(aXF + 8*(kk % 2) + 4*m, 4), A(aBF + 4*(f_ % NF), 4), c),
                          (lambda f_=f_: [tokF[min(f_+WE-1, 199)]]) if (m == 0 and f_ % WE == 0) else None))
        endb = {}
        for sg in range(10):
            p = 40*sg - 2*LA
            fixed.append((p - 1.5, bar(sg)))
            if sg + SL <= 9:
                d = dma(sg+SL)
                if sg == 0 and UP < SL: d = dma(2) + d
                stp = 36.0/len(d) if len(d) > 12 else 2
                for i, f in enumerate(d): fixed.append((p + 1 + stp*i, f))
                endb[sg] = p + 1 + stp*len(d)
        for f_ in range(200):
            pos = 40*(f_//20) - 2*LA + RS*(f_ % 20)
            if f_ % 10 == 0:
                kk = f_//10; sg, s = kk // 2, kk % 2
                for m in range(2):
                    fixed.append((max(pos - 1, 20*kk - 19) + 0.1*m, 'ds_read_b128 %s, %s offset:%d' % (A(aXF + 8*(kk % 2) + 4*m, 4), V(vXr[s]), (sg % 4)*4096 + 2048*m)))
            fixed.append((pos, rd_b(f_)))
        b2 = [] if cfg.get('s_nob2') else self.b2_loads(0, range(10))
        if own:
            if sl_ >= 0: fixed.append((endb[sl_], F(lambda: self.pack_load(0, vPs), 32)))
            pa_, pb_ = self.pack_proc(0, vPr)
            for i, f in enumerate(pa_): fixed.append((endb[sr_] - 12 + i, f))
            for i, f in enumerate(pb_): fixed.append((endb[sr_] + i, f))
            fixed.append((40*sf_ - 2*LA - 1.4, F(lambda: self.flag_store(self.tPackSt, sPD), 8)))
        pw = max(sr_ + 1, 2)
        sA = Stream(self.nonce_ops() + par, 2, 40*pw - 2*LA - 3)
        def parw():
            sA.flush(g); tokP[pw+1] = g.do(par_w)
        fixed.append((40*pw - 2*LA + 2, F(parw, 8)))
        for i, f in enumerate(par_r): fixed.append((40*(pw+1) - 2*LA + 21 + 1.4*i, f))
        pc = cfg.get('s_pc', 300); nb_in = cfg.get('s_b2in', 30) if pc < 400 else 0
        fixed.append((pc - 40, F(lambda: self.pack_poll_issue(vPp, vPd))))
        if pc < 400: fixed.append((pc, F(lambda: self.pack_poll_check(vPp, vPd), 20)))
        streams = [Stream(b2[:nb_in], pc + 1, 398, paced=True, slack=4), sA,
                   Stream(self.line_addr(WS_HFLAG, vFa), 40*sf_, 40*sf_ + 20), Stream(par2, 40*(pw+2), 390)]
        if cfg.get('s_xd', 250) >= 0 and self.XR == 0: streams.append(Stream(xdl, cfg.get('s_xd', 250), cfg.get('s_xd', 250) + 100))
        if cfg.get('s_ht'):
            streams.append(Stream(['v_lshrrev_b32 v188, 4, %s' % V(vLane), 'v_lshlrev_b32 v188, 13, v188', 'v_and_b32 v189, 15, %s' % V(vLane),
                 'v_lshl_add_u32 v188, v189, 7, v188', 'v_sub_u32 v189, %s, %s' % (V(vHs), V(vL16)), 'v_add_u32 v188, v188, v189',
                 'buffer_load_dword v190, v188, %s, 0 offen' % S(sH, 4), 'v_and_b32 v191, 15, %s' % V(vLane), 'v_lshl_add_u32 v189, v191, 7, v189',
                 'v_add_u32 v189, %d, v189' % (4*HKS), 'buffer_load_dword v191, v189, %s, 0 offen' % S(sH, 4)], cfg['s_ht'], cfg['s_ht'] + 20))
        assert sf_ >= pw
        vGa, vTe, GR = 140, 145, 180
        ops = ['v_mul_u32_u24 %s, 5, %s' % (V(vGrp), V(vGrp)), 'v_sub_u32 %s, %s, %s' % (V(vGrp), S(sC1), V(vGrp)),
               ['v_cmp_gt_u32 vcc, 60, %s' % V(vLane), 'v_cndmask_b32 %s, 0, %s, vcc' % (V(vGrp), V(vGrp))],
               'v_mul_i32_i24 %s, 1280, %s' % (V(PT+5), V(vGrp)), 'v_add_u32 %s, %s, %s' % (V(PT+5), V(PT+5), V(vT[5])),
               'v_mov_b32 %s, 0x7f000000' % V(PT+6)]
        for i in range(5):
            ops += ['v_subrev_u32 %s, %d, %s' % (V(vGa+i), 1280*(i+1), V(PT+5)),
                    ['v_cmp_lt_i32 vcc, %d, %s' % (i, V(vGrp)), 'v_cndmask_b32 %s, %s, %s, vcc' % (V(vGa+i), V(PT+6), V(vGa+i)),
                     'v_cndmask_b32 %s, 0, %s, vcc' % (V(vTe+i), V(vFd))]]
        vTw, vTr = 220, 221
        ops += ['v_and_b32 %s, 15, %s' % (V(PT+5), V(vLane)), 'v_mul_u32_u24 %s, 80, %s' % (V(vTw), V(PT+5)),
                'v_lshrrev_b32 %s, 4, %s' % (V(vTr), V(vLane)), 'v_lshl_add_u32 %s, %s, 4, %s' % (V(vTw), V(vTr), V(vTw)),
                'v_add_u32 %s, %s, %s' % (V(vTw), S(sMx), V(vTw)),
                'v_bfe_u32 %s, %s, 2, 2' % (V(PT+6), V(vLane)), 'v_lshl_add_u32 %s, %s, 3, %s' % (V(vTr), V(vTr), V(PT+6)),
                'v_mul_u32_u24 %s, 80, %s' % (V(vTr), V(vTr)), 'v_and_b32 %s, 3, %s' % (V(PT+6), V(vLane)),
                'v_lshl_add_u32 %s, %s, 3, %s' % (V(vTr), V(PT+6), V(vTr)), 'v_add_u32 %s, %s, %s' % (V(vTr), S(sMx), V(vTr)),
                's_lshl_b32 %s, %s, 3' % (S(sT2), S(sC1)), 's_add_u32 %s, %s, %s' % (S(sT2), S(sT2), S(sJ1)), 's_lshl_b32 %s, %s, 4' % (S(sT2), S(sT2)),
                'v_lshrrev_b32 %s, 4, v0' % V(vT[8]), 'v_add_u32 %s, %s, %s' % (V(vT[8]), S(sT2), V(vT[8])),
                'v_lshlrev_b32 %s, 4, %s' % (V(vT[7]), V(PT+5)),
                'v_mul_u32_u24 %s, 1280, %s' % (V(vT[6]), V(vT[8])), 'v_add_u32 %s, %s, %s' % (V(vT[6]), V(vT[6]), V(vT[7]))]
        HS = cfg.get('hsplit', 0)
        if HS:
            ops += ['s_mov_b32 %s, %s' % (S(d+k), S(sH+k)) for d in (sP1, sP2) for k in (0, 1, 3)]
            ops += [['s_cmp_lt_u32 %s, 2' % S(sWave), 's_cselect_b32 %s, %d, 0' % (S(sP1+2), HMS), 's_cselect_b32 %s, 0, %d' % (S(sP2+2), HMS)]]
        streams.append(Stream(ops + self.hp_addr(0, sT2, sKt), 352, 396))
        b2 = b2[nb_in:]
        if cfg.get('s_nomf'): mains = [('s_nop 0', None)]*400; fixed = [f for f in fixed if not (isinstance(f[1], str) and 'ds_read' in f[1])]
        if cfg.get('s_nostream'): streams = [streams[0]]
        sched(g, mains, 8, fixed, streams, report=self.rep and 'ssm')
        self.stamp(3)

        pace = cfg.get('s_pace', 9999)
        II, EB, EM = 160, 180, 200
        pr = lambda u, part, k: ACC + 16*u + 8*part + 2*k
        ops = []
        for k in range(1, 4):
            src = lambda u, part: (pr(u, part, 0) if k == 1 else (II if k == 2 else EB) + 4*u + 2*part)
            dst = lambda u, part: (EB if k == 2 else II) + 4*u + 2*part
            for u in range(5):
                ops += [pk('fma', dst(u, 0), L1+8*u, 0, src(u, 0), pr(u, 0, k)), pk('fma', dst(u, 1), L1+8*u, 0, src(u, 1), pr(u, 1, k))]
            for u in range(5):
                ops += [pk('fma', dst(u, 0), L1+8*u, 1, src(u, 1), dst(u, 0), True), pk('fma', dst(u, 1), L1+8*u, 1, src(u, 0), dst(u, 1))]
        for u in range(5):
            ops += ['v_fma_f32 %s, %s, %s, %s' % (V(EM+2*u), V(L4+8*u), V(II+4*u), V(II+4*u+1)),
                    'v_fma_f32 %s, %s, %s, %s' % (V(EM+2*u+1), V(L4+8*u), V(II+4*u+2), V(II+4*u+3))]
        for u in range(5):
            ops += ['v_fma_f32 %s, -%s, %s, %s' % (V(EM+2*u), V(L4+8*u+1), V(II+4*u+2), V(EM+2*u)),
                    'v_fmac_f32 %s, %s, %s' % (V(EM+2*u+1), V(L4+8*u+1), V(II+4*u)),
                    'ds_write_b64 %s, %s offset:%d' % (V(vT[2]), V(EM + 2*u, 2), 128*u)]
        ops.append(F(lambda: (self.cst(17), g.waitcnt(lg=0), g('s_barrier'), self.cst(18))))
        P = BIG + 20
        for s in range(16): ops.append('ds_read_b64 %s, %s offset:%d' % (V(P + 2*s, 2), V(vT[4]), 640*s))
        ops += ['v_mov_b32 %s, %s' % (V(P+32), S(sNonce)), 'v_mov_b32 %s, %s' % (V(P+33), S(sNonce))]
        def cmad(a, c, b):
            return ['v_pk_fma_f32 %s, %s, %s, %s op_sel:[0,0,0] op_sel_hi:[0,1,1]' % (V(a, 2), V(c, 2), V(b, 2), V(a, 2)),
                    'v_pk_fma_f32 %s, %s, %s, %s op_sel:[1,1,0] op_sel_hi:[1,0,1] neg_lo:[1,0,0]' % (V(a, 2), V(c, 2), V(b, 2), V(a, 2))]
        for s in range(1, 16):
            if s == 1: ops.append(F(lambda: g.waitcnt(lg=10)))
            if s == 6: ops.append(F(lambda: g.waitcnt(lg=0)))
            ops += cmad(P + 2*s, L8, P + 2*(s-1))
        ops.append('buffer_store_dwordx4 %s, %s, %s, %s offen sc1' % (V(P+30, 4), V(vT[5]), S(sWS, 4), S(sCo)))
        if pc < 400: b2 = mix(g, ops, b2, every=cfg.get('s_pace1', 9999))
        else: g.do(ops)
        bE, bG, bH = cfg.get('s_burst', (0, 10, 0))
        if pc < 400: g.do(b2[:bE]); b2 = b2[bE:]
        self.stamp(4)
        ops = ['v_mov_b32 v154, 0', 'v_mov_b32 v155, 0', 'ds_write_b64 %s, v[154:155]' % V(vT[4]),
               'ds_write_b64 %s, v[154:155] offset:10240' % V(vT[4])]
        for s in range(1, 16): ops.append('ds_write_b64 %s, %s offset:%d' % (V(vT[4]), V(P + 2*(s-1), 2), 640*s))
        g.do(ops[:2] + ['s_mov_b64 exec, 0xfffff'] + ops[2:] + ['s_mov_b64 exec, -1'])
        self.cst(11)
        GQ = [180 + 4*i for i in range(10)]
        GX = lambda i: GQ[i//4] + i % 4
        GW = lambda i: GQ[5 + i//4] + i % 4
        gate_ld = []
        for i in range(5):
            gate_ld.append('buffer_load_dwordx4 %s, %s, %s, 0 offen offset:%d' % (V(GQ[i], 4), V(vT[6]), S(sX, 4), 256*i))
            gate_ld.append('global_load_dwordx4 %s, %s, %s offset:%d' % (V(GQ[5+i], 4), V(vT[7]), S(pGate, 2), 256*i))
        TT = 16
        Z = TT + 8; ONE = TT + 9
        ops = ['v_mov_b32 %s, 0' % V(Z), 'v_mov_b32 %s, 0x3f803f80' % V(ONE), 's_mov_b32 %s, 0xffff0000' % S(sT1)]
        for i in range(20):
            x, w = V(GX(i)), V(GW(i))
            a, b, c, d = (V(TT + k + 4*(i % 2)) for k in range(4))
            ops += ['v_lshlrev_b32 %s, 16, %s' % (a, x), 'v_and_b32 %s, %s, %s' % (b, S(sT1), x),
                    'v_lshlrev_b32 %s, 16, %s' % (c, w), 'v_and_b32 %s, %s, %s' % (d, S(sT1), w),
                    'v_mul_f32 %s, %s, %s' % (a, a, c), 'v_mul_f32 %s, %s, %s' % (b, b, d),
                    'v_cvt_pk_bf16_f32 %s, %s, %s' % (a, a, b),
                    'v_dot2_f32_bf16 %s, %s, %s, %s' % (V(Z), a, V(ONE), V(Z))]
        for k in (8, 4, 2, 1):
            ops.append('v_add_f32_dpp %s, %s, %s row_ror:%d row_mask:0xf bank_mask:0xf' % (V(Z), V(Z), V(Z), k))
        G4 = 32
        ops += ['v_cvt_pk_bf16_f32 %s, %s, %s' % (V(Z), V(Z), V(Z)), 'v_lshlrev_b32 %s, 16, %s' % (V(Z), V(Z)),
                'v_mul_f32 %s, 0x%x, %s' % (V(Z), NLOG2E, V(Z)), 'v_exp_f32 %s, %s' % (V(Z), V(Z)),
                'v_mov_b32 %s, %s' % (V(G4+1), S(sNonce)),
                'v_add_f32 %s, 1.0, %s' % (V(Z), V(Z)), 'v_rcp_f32 %s, %s' % (V(Z), V(Z)),
                'v_mov_b32 %s, %s' % (V(G4+3), S(sNonce)),
                'v_cvt_pk_bf16_f32 %s, %s, %s' % (V(Z), V(Z), V(Z)), 'v_lshlrev_b32 %s, 16, %s' % (V(G4), V(Z)),
                'v_sub_f32 %s, 1.0, %s' % (V(ONE), V(G4)),
                'v_cvt_pk_bf16_f32 %s, %s, %s' % (V(ONE), V(ONE), V(ONE)), 'v_lshlrev_b32 %s, 16, %s' % (V(G4+2), V(ONE)),
                'v_lshlrev_b32 %s, 4, %s' % (V(vT[8]), V(vT[8])), 'v_add_u32 %s, %d, %s' % (V(vT[8]), WS_GATE, V(vT[8])),
                'buffer_store_dwordx4 %s, %s, %s, 0 offen sc1' % (V(G4, 4), V(vT[8]), S(sWS, 4))]
        gate_ops = ops
        ops = []
        TT = 150
        for u in range(5):
            cf = CF + 8*u
            for k0 in (0, 2):
                for k in (k0, k0+1): ops.append(pk('mul', TT + 2*(k % 2), cf, 1, pr(u, 0, k)))
                for k in (k0, k0+1): ops.append(pk('mul', pr(u, 0, k), cf, 0, pr(u, 0, k)))
                for k in (k0, k0+1): ops.append(pk('fma', pr(u, 0, k), cf, 1, pr(u, 1, k), pr(u, 0, k), True))
                for k in (k0, k0+1): ops.append(pk('fma', pr(u, 1, k), cf, 0, pr(u, 1, k), TT + 2*(k % 2)))
            ops += ['v_mul_f32 %s, %s, %s' % (V(II+4*u+1), V(cf), V(II+4*u)), 'v_mul_f32 %s, %s, %s' % (V(II+4*u+3), V(cf), V(II+4*u+2)),
                    'v_fma_f32 %s, -%s, %s, %s' % (V(II+4*u+1), V(cf+1), V(II+4*u+2), V(II+4*u+1)),
                    'v_fmac_f32 %s, %s, %s' % (V(II+4*u+3), V(cf+1), V(II+4*u))]
        coef_ops = ops
        nc = cfg.get('s_gat', 20)
        g.do(coef_ops[:nc])
        self.stamp(5)
        def gather():
            for i in range(5):
                g('buffer_load_dwordx3 %s, %s, %s, 0 offen sc1' % (V(GR + 4*i, 3), V(vGa+i), S(sWS, 4)))
        def gcheck():
            for i in range(4, -1, -1):
                g('v_xor_b32 %s, %s, %s' % (V(GR+3 if i == 4 else GR+7), V(vTe+i), V(GR + 4*i + 2)))
                if i < 4: g('v_or_b32 %s, %s, %s' % (V(GR+3), V(GR+3), V(GR+7)))
            g('v_cmp_ne_u32 vcc, 0, %s' % V(GR+3))
            g('s_nop 0')
            g('s_cmp_eq_u64 vcc, 0')
        if pc >= 400: self.pack_poll_check(vPp, vPd)
        gather()
        g.do(b2[:bG]); b2 = b2[bG:]
        b2 = mix(g, coef_ops[nc:], b2, every=cfg.get('s_pace3', 9999))
        self.cst(12)
        if not cfg.get('x_noe'): self.poll('carry', gather, gcheck)
        self.stamp(6)
        ops = []
        for d in range(4, 0, -1): ops += cmad(GR + 4*(d-1), L128, GR + 4*d)
        ops += ['v_mul_f32 %s, %s, %s' % (V(GR+4), V(LK), V(GR)), 'v_mul_f32 %s, %s, %s' % (V(GR+5), V(LK), V(GR+1)),
                'v_fma_f32 %s, -%s, %s, %s' % (V(GR+4), V(LK+1), V(GR+1), V(GR+4)), 'v_fmac_f32 %s, %s, %s' % (V(GR+5), V(LK+1), V(GR)),
                'ds_add_f32 %s, %s offset:10240' % (V(vT[4]), V(GR+4)), 'ds_add_f32 %s, %s offset:10244' % (V(vT[4]), V(GR+5))]
        ops.append(F(lambda: (g.waitcnt(lg=0), g('s_barrier'))))
        SS, PP = 200, 210
        for u in range(5):
            ops.append('ds_read_b64 %s, %s offset:%d' % (V(SS + 2*u, 2), V(vT[3]), 10240 + 128*u))
            ops.append('ds_read_b64 %s, %s offset:%d' % (V(PP + 2*u, 2), V(vT[2]), 128*u))
        b2 = mix(g, ops, b2, every=pace)
        self.cst(13)
        ops = []
        for h in range(2):
            for u in range(5): ops.append(cmad(PP+2*u, L8S+8*u, SS+2*u)[h])
        for u in range(5):
            ops += ['v_mul_f32 %s, %s, %s' % (V(II+4*u), V(CF+8*u), V(PP+2*u)), 'v_mul_f32 %s, %s, %s' % (V(II+4*u+2), V(CF+8*u), V(PP+2*u+1))]
        for u in range(5):
            ops += ['v_fma_f32 %s, -%s, %s, %s' % (V(II+4*u), V(CF+8*u+1), V(PP+2*u+1), V(II+4*u)), 'v_fmac_f32 %s, %s, %s' % (V(II+4*u+2), V(CF+8*u+1), V(PP+2*u))]
        for u in range(5):
            ops += ['v_fmac_f32 %s, %s, %s' % (V(II+4*u+1), V(L4+8*u), V(II+4*u)), 'v_fmac_f32 %s, %s, %s' % (V(II+4*u+3), V(L4+8*u), V(II+4*u+2))]
        for u in range(5):
            ops += ['v_fma_f32 %s, -%s, %s, %s' % (V(II+4*u+1), V(L4+8*u+1), V(II+4*u+2), V(II+4*u+1)), 'v_fmac_f32 %s, %s, %s' % (V(II+4*u+3), V(L4+8*u+1), V(II+4*u))]
        PKB = [104, 140]
        FRB = [148, 96]
        def scan_ops(us):
            o = []
            for k in range(4):
                pv = lambda u, part: (II + 4*u + 2*part if k == 0 else pr(u, part, k-1))
                for u in us:
                    o += [pk('fma', pr(u, 0, k), L1+8*u, 0, pv(u, 0), pr(u, 0, k)), pk('fma', pr(u, 1, k), L1+8*u, 0, pv(u, 1), pr(u, 1, k))]
                for u in us:
                    o += [pk('fma', pr(u, 0, k), L1+8*u, 1, pv(u, 1), pr(u, 0, k), True), pk('fma', pr(u, 1, k), L1+8*u, 1, pv(u, 0), pr(u, 1, k))]
            return o
        tp = lambda i: (0, 4, 1, 5)[i]
        def out_a(u):
            o = []
            pk = PKB[u % 2]
            for i in range(4): o.append('v_cvt_pk_bf16_f32 %s, %s, %s' % (V(pk+i), V(acc(u, 0, tp(i))), V(acc(u, 0, tp(i)+2))))
            o.append('ds_write_b128 %s, %s offset:%d' % (V(vTw), V(pk, 4), 2560*u))
            for i in range(4): o.append('v_cvt_pk_bf16_f32 %s, -%s, -%s' % (V(pk+4+i), V(acc(u, 1, tp(i))), V(acc(u, 1, tp(i)+2))))
            o.append('ds_write_b128 %s, %s offset:%d' % (V(vTw), V(pk+4, 4), 2560*u + 1280))
            fr = FRB[u % 2]
            for m in range(2):
                for e in range(2):
                    o.append('ds_read_b64_tr_b16 %s, %s offset:%d' % (V(fr + 4*m + 2*e, 2), V(vTr), 2560*u + 320*e + 32*m))
            return o
        tU = {}
        def out_b(u):
            fr = FRB[u % 2]
            def f():
                for m in range(2):
                    tU[u] = self.tH = g('buffer_store_dwordx4 %s, %s, %s, 0 offen offset:%d%s' % (V(fr + 4*m, 4), V(vHs), S(sP1 if HS else sH, 4), 1024*m, cfg.get('s_hst', ' sc1')))
                g('v_add_u32 %s, %d, %s' % (V(vHs), HKS, V(vHs)))
            return F(f, 12)
        def ilv(a, b):
            o = []; k = 0
            for i, x in enumerate(a):
                o.append(x)
                while k < len(b) and k*len(a) < (i+1)*len(b): o.append(b[k]); k += 1
            return o
        ops += scan_ops([0, 1]) + out_a(0) + gate_ld + ilv(scan_ops([2]), out_a(1)) + [out_b(0)] \
            + ilv(scan_ops([3]), out_a(2)) + [out_b(1)] + ilv(scan_ops([4]), out_a(3)) + [out_b(2)] + out_a(4) + [out_b(3)] + [out_b(4)]
        rest = mix(g, ops, b2, every=pace)
        tH = self.tH
        g.do(rest[:bH]); rest = rest[bH:]
        self.cst(14)
        SLV = cfg.get('s_lv', 0); k0, k1 = cfg.get('s_lvk', (0, 120))
        if SLV:
            g.do(gate_ops[:k0]); self.hflag(0, 0, tU[2]); g.do(gate_ops[k0:k1]); self.hpoll(0, 0); g.do(gate_ops[k1:])
        else:
            if cfg.get('x_noack'): tH = None
            kg = cfg.get('s_kg', 190)
            g.do(gate_ops[:kg]); self.cst(15); self.hflag(0, 0, tH)
            self.hpoll(0, 0); g.do(gate_ops[kg:])
        late = []
        if HS:
            g('v_subrev_u32 v219, %d, %s' % (5*HKS, V(vHs)))
            for u in range(5):
                rd = ['ds_read_b64_tr_b16 %s, %s offset:%d' % (V(168 + 4*m + 2*e, 2), V(vTr), 2560*u + 320*e + 32*m) for m in range(2) for e in range(2)]
                def st(m):
                    def f(): self.tL = g('buffer_store_dwordx4 %s, v219, %s, 0 offen offset:%d sc1' % (V(168 + 4*m, 4), S(sP2, 4), 1024*m))
                    return F(f)
                late.append((rd, [st(0), st(1), 'v_add_u32 v219, %d, v219' % HKS]))
        self.late = late
        self.stamp(7)
        n2 = cfg.get('s_b2post', 0)
        while any(3 + 4*i > 20*min((50 - len(rest) + n2 + i)//5, 8) - 30 for i in range(len(rest) - n2)): n2 += 1
        g.do(rest[:n2])
        self.phase2(0, rest[n2:], tH if SLV else None)

    RD, XD, GA, GB, GV = 160, 192, 212, 217, 166
    RXA, RXB, DS = 222, 232, 242
    vGr, T = 160, 180
    vHp, vHd, vRw, vXf = 4, 5, 6, 252
    vRd = [7, 8, 9, 10, 11]; vOa = [12, 13, 14, 15, 0]
    def hp_addr(self, role, sT0=sT0, sT1=sT1):
        vHp, vHd = self.vHp, self.vHd
        return ['s_and_b32 %s, %s, 0x63' % (S(sT0), S(sIdx)), 's_lshl_b32 %s, %s, 3' % (S(sT1), S(sWave)),
                's_add_u32 %s, %s, %s' % (S(sT0), S(sT0), S(sT1)), 's_lshl_b32 %s, %s, %d' % (S(sT0), S(sT0), self.fg),
                's_add_u32 %s, %s, %d' % (S(sT0), S(sT0), WS_HFLAG + role*(128 << self.fg)),
                'v_bfe_u32 %s, %s, 2, 1' % (V(vHp), V(vLane)), 'v_lshlrev_b32 %s, %d, %s' % (V(vHp), self.fg + 2, V(vHp)),
                'v_and_b32 %s, 3, %s' % (V(vHd), V(vLane)), 'v_lshl_add_u32 %s, %s, %d, %s' % (V(vHp), V(vHd), self.fw, V(vHp)),
                'v_add_u32 %s, %s, %s' % (V(vHp), S(sT0), V(vHp))]
    def hp(self, off=0): self.g('buffer_load_dword %s, %s, %s, 0 offen sc1' % (V(self.vHd), V(self.vHp), S(sWS, 4)))
    def gload(self): return 'buffer_load_dwordx3 %s, %s, %s, 0 offen sc1' % (V(self.GV, 3), V(self.vGr + 5), S(sWS, 4))

    def p2_setup(self, role):
        T, vRd, vOa, vGr, vRw, DS, RXA, RXB = self.T, self.vRd, self.vOa, self.vGr, self.vRw, self.DS, self.RXA, self.RXB
        sXo, sXi, sM = sItem, sMx, sMw
        ops = ['s_lshl_b32 %s, %s, 3' % (S(sT0), S(sC1)), 's_add_u32 %s, %s, %s' % (S(sT0), S(sT0), S(sWave)),
               's_lshl_b32 %s, %s, 4' % (S(sT0), S(sT0)),
               's_mul_i32 %s, %s, 160' % (S(sT1), S(sJ1)), 's_mul_i32 %s, %s, 5440' % (S(sT2), S(sWave)),
               's_mov_b32 %s, 0xffff0000' % S(sM), 's_mov_b32 %s, 81920' % S(sT3)]
        ops += ['v_bfe_u32 %s, %s, 4, 1' % (V(T), V(vLane)), 'v_and_b32 %s, 15, %s' % (V(T+1), V(vLane)),
                'v_lshl_add_u32 %s, %s, 6, %s' % (V(T), V(T), V(T+1)), 'v_add_u32 %s, %s, %s' % (V(T), S(sT0), V(T)),
                'v_lshlrev_b32 %s, 4, %s' % (V(T), V(T)), 'v_add_u32 %s, %d, %s' % (V(vGr + 5), WS_GATE, V(T))]
        for q in range(5):
            e, row, ch, t3 = V(T), V(T+1), V(T+2), V(T+3)
            ops += ['v_add_u32 %s, %d, %s' % (e, 64*q, V(vLane)),
                    'v_mul_u32_u24 %s, 3277, %s' % (row, e), 'v_lshrrev_b32 %s, 16, %s' % (row, row),
                    'v_mul_u32_u24 %s, 20, %s' % (ch, row), 'v_sub_u32 %s, %s, %s' % (ch, e, ch),
                    'v_lshrrev_b32 %s, 2, %s' % (t3, ch), 'v_mul_u32_u24 %s, 1088, %s' % (V(vRd[q]), t3),
                    'v_and_b32 %s, 3, %s' % (t3, ch), 'v_mul_u32_u24 %s, 272, %s' % (t3, t3),
                    'v_add3_u32 %s, %s, %s, %s' % (V(vRd[q]), V(vRd[q]), t3, S(sT2)),
                    'v_lshl_add_u32 %s, %s, 4, %s' % (V(vRd[q]), row, V(vRd[q])),
                    'v_lshlrev_b32 %s, 2, %s' % (V(vGr + q), row), 'v_add_u32 %s, %s, %s' % (row, S(sT0), row),
                    'v_lshl_add_u32 %s, %s, 3, %s' % (ch, ch, S(sT1)),
                    'v_mul_u32_u24 %s, 1280, %s' % (e, row), 'v_add_u32 %s, %s, %s' % (e, e, ch)]
            if role == 0: ops.append('v_add_u32 %s, %s, %s' % (e, S(sT3), e))
            ops += ['v_lshlrev_b32 %s, 1, %s' % (V(vOa[q]), e)]
        ops += ['s_mul_i32 %s, %s, 21760' % (S(sT0), S(sWave)),
                'v_lshrrev_b32 %s, 4, %s' % (V(vRw), V(vLane)), 'v_mul_u32_u24 %s, 272, %s' % (V(vRw), V(vRw)),
                'v_and_b32 %s, 15, %s' % (V(T+1), V(vLane)), 'v_lshl_add_u32 %s, %s, 4, %s' % (V(vRw), V(T+1), V(vRw)),
                'v_add_u32 %s, %s, %s' % (V(vRw), S(sT0), V(vRw)),
                's_lshl_b32 %s, %s, 2' % (S(sT0), S(sIdx)), 's_add_u32 %s, %s, %s' % (S(sT0), S(sT0), S(sWave)),
                's_mul_i32 %s, %s, 5120' % (S(sT0), S(sT0)),
                's_add_u32 %s, %s, 0x%x' % (S(sXo), S(sT0), WS_X + role*128*20480), 's_add_u32 %s, %s, 0x%x' % (S(sXi), S(sT0), WS_X + (1-role)*128*20480)]
        ops += self.line_addr(WS_XFLAG, self.vXf)
        return ops

    def xd_ops(self, RX, G=None):
        T, DS, XD, sM = self.T, self.DS, self.XD, sMw
        o = []
        for q in range(5):
            for h in range(2):
                x, d = V(RX + 2*q + h), V(DS + 2*q + h)
                a, b, c, dd = V(T), V(T+1), V(T+2), V(T+3)
                o += ['v_lshlrev_b32 %s, 16, %s' % (a, x), 'v_and_b32 %s, %s, %s' % (b, S(sM), x),
                      'v_lshlrev_b32 %s, 16, %s' % (c, d), 'v_and_b32 %s, %s, %s' % (dd, S(sM), d),
                      'v_mul_f32 %s, %s, %s' % (a, a, c), 'v_mul_f32 %s, %s, %s' % (b, b, dd),
                      'v_cvt_pk_bf16_f32 %s, %s, %s' % (a, a, b),
                      'v_lshlrev_b32 %s, 16, %s' % (V(XD + 4*q + 2*h), a), 'v_and_b32 %s, %s, %s' % (V(XD + 4*q + 2*h + 1), S(sM), a)]
                if G is not None: o += ['v_mul_f32 %s, %s, %s' % (V(XD + 4*q + 2*h + k), V(G + q), V(XD + 4*q + 2*h + k)) for k in range(2)]
        return o

    def xd_loads(self, T, AD=None):
        o = ['s_lshl_b32 %s, %s, 3' % (S(sT3), S(sC1)), 's_add_u32 %s, %s, %s' % (S(sT3), S(sT3), S(sWave)),
             's_lshl_b32 %s, %s, 4' % (S(sT3), S(sT3)), 's_mul_i32 %s, %s, 160' % (S(sT1), S(sJ1))]
        sXh = sT0 if AD is None else 54
        o.append('s_mov_b32 %s, 81920' % S(sXh)); ld = []
        for q in range(5):
            e, row, ch = V(T), V(T+1), V(T+2)
            if AD is not None: e, ch = V(AD + 2*q), V(AD + 2*q + 1)
            o += ['v_add_u32 %s, %d, %s' % (e, 64*q, V(vLane)),
                  'v_mul_u32_u24 %s, 3277, %s' % (row, e), 'v_lshrrev_b32 %s, 16, %s' % (row, row),
                  'v_mul_u32_u24 %s, 20, %s' % (ch, row), 'v_sub_u32 %s, %s, %s' % (ch, e, ch),
                  'v_add_u32 %s, %s, %s' % (row, S(sT3), row), 'v_lshl_add_u32 %s, %s, 3, %s' % (ch, ch, S(sT1)),
                  'v_mul_u32_u24 %s, 1280, %s' % (e, row), 'v_add_u32 %s, %s, %s' % (e, e, ch)]
            l = ['global_load_dwordx2 %s, %s, %s' % (V(self.DS + 2*q, 2), ch, S(pDsk, 2)),
                 'buffer_load_dwordx2 %s, %s, %s, 0 offen' % (V(self.RXB + 2*q if self.XR else self.RXA + 2*q, 2), e, S(sX, 4)),
                 'buffer_load_dwordx2 %s, %s, %s, %s offen' % (V(self.RXA + 2*q if self.XR else self.RXB + 2*q, 2), e, S(sX, 4), S(sXh))]
            if AD is None: o += l
            else: ld += l
        return o if AD is None else (o, ld)

    def phase2(self, role, b2rest, tH2):
        g = self.g; cfg = self.cfg
        tb, ta = tabs(role); NS = len(tb)
        hA, hB = (1, 0) if role else (0, 1)
        vHp, vHd, vRw, vRd, vOa, vXf, vXv = self.vHp, self.vHd, self.vRw, self.vRd, self.vOa, self.vXf, vFd
        RD, GA, GB, XD, RXB, DS, vGr, RXA, T = self.RD, self.GA, self.GB, self.XD, self.RXB, self.DS, self.vGr, self.RXA, self.T
        sXo, sXi, sM = sItem, sMx, sMw
        hp = lambda: self.hp(0)
        GV = self.GV
        def a2(n):
            half = hA if n < NS else hB
            return ['buffer_load_dwordx4 %s, %s, %s, %s offen offset:%d%s' % (V(A2R + 16*(n % 4) + 4*rt, 4), V(vL16b if half else vL16), S(sH, 4), S(ta[0 if cfg.get('x_a2same') else n % NS]), 1024*rt, cfg.get('a2sc', ' sc1')) for rt in range(4)]
        mains = []; fixed = []
        def tile(rt, nt): return ACC2 + 4*(rt*5 + nt)
        def mf(n, j):
            rt, nt = j // 5, j % 5
            c = '0' if n % NS == 0 else V(tile(rt, nt), 4)
            return ('v_mfma_f32_16x16x32_bf16 %s, %s, %s, %s' % (V(tile(rt, nt), 4), A(B2slot(role, n % NS) + 4*nt, 4), V(A2R + 16*(n % 4) + 4*rt, 4), c), None)
        TM = cfg.get('tm', 1)
        for n in range(2*NS):
            if TM and n % NS == NS - 2:
                for j in range(0, 20, 2): mains += [mf(n, j), mf(n, j+1), mf(n+1, j), mf(n+1, j+1)]
            elif not (TM and n % NS == NS - 1):
                mains += [mf(n, j) for j in range(20)]
        for n in range(2*NS - 3):
            for i, f in enumerate(a2(n+3)):
                p = 20*n + 1 + 5*i
                if TM and n % NS == NS - 1: p = max(p, 20*(n-1) + 10*i + 12)
                if TM and n % NS == NS - 4: p = 20*n + 1 + 3*i
                if TM and n % NS == NS - 5: p = 20*n + 1 + 4*i
                fixed.append((p, f))
        PA, PE = 20*NS, 40*NS
        for k, p in enumerate((20, 80, 140, PA, PA + 40, PA + 100, PA + 140, PE - 60)): fixed.append((p - 0.1, F(lambda k=k: self.stamp(11+k, lvl=3), 0)))
        self.cst(16)
        self.hcheck(role, 0)
        self.stamp(8)
        for n in range(3): g.do(a2(n))
        ops = self.p2_setup(role)
        if role == 1:
            fixed.append((cfg.get('f_l2', 6), F(lambda: self.hflag(1, 2, tH2), 20)))
            fixed.append((cfg.get('f_p1', 44), F(lambda: self.hpoll(1, 1), 8)))
            fixed.append((60.5, F(lambda: self.hcheck(1, 1), 20)))
            fixed.append((cfg.get('f_p2', 84), F(lambda: self.hpoll(1, 2), 8)))
            fixed.append((100.5, F(lambda: self.hcheck(1, 2), 20)))
        else:
            if self.late:
                p0, dp = cfg.get('s_late', (2, 14))
                for u, (rd, st) in enumerate(self.late):
                    for i, f in enumerate(rd): fixed.append((p0 + dp*u + i, f))
                    for i, f in enumerate(st): fixed.append((p0 + dp*u + dp - 3 + 0.9*i, f))
                fixed.append((cfg.get('s_l1', 112), F(lambda: self.hflag(0, 1, self.tL), 20)))
                fixed.append((cfg.get('s_p1', 128), F(lambda: self.hpoll(0, 1), 8)))
                fixed.append((140.5, F(lambda: self.hcheck(0, 1), 20)))
            elif tH2 is not None:
                if tH2 is not None: fixed.append((cfg.get('s_l1', 6), F(lambda: self.hflag(0, 1, tH2), 20)))
                fixed.append((cfg.get('s_p1', 44), F(lambda: self.hpoll(0, 1), 8)))
                fixed.append((60.5, F(lambda: self.hcheck(0, 1), 20)))
        fixed.append((142, 'v_xor_b32 %s, %d, %s' % (V(vHp), 128 << self.fg, V(vXf))))
        fixed.append((cfg.get('p2bar', 100), 's_barrier'))
        nb0 = 5*NS - len(b2rest)
        for i, f in enumerate(b2rest):
            p = 3 + 4*i
            assert p <= 20*min((nb0 + i)//5, NS - 2) - 30 or cfg.get('bad'), (role, i, p)
            fixed.append((p, f))
        xd_ops = self.xd_ops
        s0 = Stream(ops, 2, 99)
        fixed.append((101.5, F(lambda: s0.flush(g), 0)))
        gl, gp = cfg.get('g_at', (104, 150))
        fixed.append((gl, self.gload()))
        fixed.append((gp, F(lambda: self.poll('gt', lambda: g(self.gload()), self.check_eq([GV + 1])), 20)))
        XD_ = role == self.XR
        for q in range(5):
            for h in range(2):
                fixed.append((gp + 1 + 2*q + h, 'ds_bpermute_b32 %s, %s, %s offset:%d' % (V((GA if h == hA else GB) + q), V(vGr + q), V(GV + 2*role), 64*h)))
        streams = [s0]
        if XD_ and role == 0:
            streams += [Stream(xd_ops(RXA), 102, PA - 44), Stream(xd_ops(RXB), PA + 112, PE - 22)]
        if XD_ and role == 1:
            G2A, G2B = 170, 222
            for q in range(5): fixed.append((gp + 11 + q, 'ds_bpermute_b32 %s, %s, %s offset:%d' % (V(G2A + q), V(vGr + q), V(GV), 64*hA)))
            sxa = Stream(xd_ops(RXA, G2A), gp + 22, PA - 6)
            fixed.append((PA - 4, F(lambda: (sxa.flush(g), g.do(['ds_bpermute_b32 %s, %s, %s offset:%d' % (V(G2B + q), V(vGr + q), V(GV), 64*hB) for q in range(5)])), 20)))
            streams += [sxa, Stream(xd_ops(RXB, G2B), PA + 112, PE - 22)]
        for base in (PA, PE):
            for j in range(20):
                fixed.append(((base - 40 + 4*(j//2) + 9 + 2*(j % 2)) if TM else (base - 15 + (1.65*j if base == PA else j)), 'ds_write_b128 %s, %s offset:%d' % (V(vRw), V(ACC2 + 4*j, 4), 1088*j)))
        XB = cfg.get('xb', 1); vL8 = vFa
        fixed.append((PA, 'v_lshlrev_b32 %s, 3, %s' % (V(vL8), V(vLane))))
        mb = PA + (16 if TM else 24)
        fixed.append((mb - 0.5, F(lambda: (g.waitcnt(lg=0), g('s_barrier')), 8)))
        def rds(q): return ['ds_read_b128 %s, %s offset:%d' % (V(RD + 16*(q % 2) + 4*src, 4), V(vRd[q]), 21760*src) for src in range(4)]
        for i, f in enumerate(rds(0) + rds(1)): fixed.append((mb + i, f))
        for q in range(5):
            QS, OS = cfg.get('mq', (13, 0.55)); p = mb + 12 + QS*q; r0 = RD + 16*(q % 2); o = []
            if XD_ and role == 1:
                for src in range(1, 4):
                    for r in range(4): o.append('v_add_f32 %s, %s, %s' % (V(r0 + r), V(r0 + r), V(r0 + 4*src + r)))
                for r in range(4): o.append('v_fmac_f32 %s, %s, %s' % (V(XD + 4*q + r), V(GA + q), V(r0 + r)))
                nadd = len(o)
            else:
                for src in range(4):
                    for r in range(4):
                        if not XD_ and src == 0: continue
                        a = V(r0 + r) if (not XD_ and src == 1) else V(XD + 4*q + r)
                        o.append('v_add_f32 %s, %s, %s' % (V(XD + 4*q + r), a, V(r0 + 4*src + r)))
                nadd = len(o)
                for r in range(4): o.append('v_mul_f32 %s, %s, %s' % (V(XD + 4*q + r), V(GA + q), V(XD + 4*q + r)))
            if XB:
                xr = XD + 8*(q//2) + 2*(q % 2)
                o += ['v_cvt_pk_bf16_f32 %s, %s, %s' % (V(xr + h), V(XD + 4*q + 2*h), V(XD + 4*q + 2*h + 1)) for h in range(2)]
                def st(q=q):
                    n = 2 if q == 4 else 4
                    self.tX = g('buffer_store_dwordx%d %s, %s, %s, %s offen offset:%d sc1' % (n, V(XD + 8*(q//2), n), V(vL16 if q < 4 else vL8), S(sWS, 4), S(sXo), 1024*(q//2)))
                if q % 2 or q == 4: o.append(F(st))
            else:
                def st(q=q):
                    self.tX = g('buffer_store_dwordx4 %s, %s, %s, %s offen offset:%d sc1' % (V(XD + 4*q, 4), V(vL16 if q < 4 else vL16b), S(sWS, 4), S(sXo), 1024*(q & 3)))
                o.append(F(st))
            for i, f in enumerate(o): fixed.append((p + i*OS, f))
            if q + 2 < 5:
                for i, f in enumerate(rds(q+2)): fixed.append((p + nadd*OS + 0.1 + i*min(1, 2*OS), f))
        fixed.append((PA + 112, 's_barrier'))
        if 0: fixed.append((cfg['otouch'], 'buffer_load_dword %s, %s, %s, 0 offen' % (V(vFa), V(vOa[0]), S(sOUT, 4))))
        fixed.append((PA + (cfg.get('xf_at', (150, 150))[role]), F(lambda: (g.wait(self.tX), g('buffer_store_dword %s, %s, %s, 0 offen sc1' % (V(vXv), V(vXf), S(sWS, 4)))), 8)))
        xp = cfg.get('xp_at', (0, 0))[role]
        fixed.append((PE - cfg.get('xpi', (30, 30))[role] - (xp if 'xpi' not in cfg else 0), F(hp)))
        if role == 1:
            U = 184
            def uload():
                for i in range(4):
                    g('s_mov_b32 %s, %d' % (S(sL1), (WS_PFLAG + (128 << self.fg) if i < 2 else WS_HFLAG) + (64 << self.fg)*(i & 1)))
                    g('buffer_load_dword %s, %s, %s, %s offen sc1' % (V(U+2+i), V(U+6), S(sPD, 4), S(sL1)))
            def ucheck():
                self.check_eq([U+2, U+3, U+4, U+5], U, U+1)()
                g('s_cselect_b32 %s, 0, %s' % (S(sL1), S(sPD+2)))
                g('s_cmp_eq_u32 %s, 0' % S(sL1))
            fixed.append((PA + 114, ['s_or_b32 %s, %s, %s' % (S(sL1), S(sWave), S(sIdx)), 's_cselect_b32 %s, 0, 0x%x' % (S(sPD+2), WS_SIZE)]))
            fixed.append((PA + 115, ['v_lshlrev_b32 %s, %d, %s' % (V(U+6), self.fg, V(vLane)), 'v_mov_b32 %s, 0' % V(U+7)]))
            fixed.append((PA + 117, F(uload, 32)))
            fixed.append((PA + 170, F(lambda: (self.poll('up', uload, ucheck), g('buffer_store_dword %s, %s, %s, 0 offen sc1' % (V(vXv), V(U+7), S(sPD, 4)))), 60)))
        def recv():
            self.poll('xf', hp, self.check_eq([vHd]))
            if XB:
                for k in range(3):
                    n = 2 if k == 2 else 4
                    g('buffer_load_dwordx%d %s, %s, %s, %s offen offset:%d sc1' % (n, V(RD + 10 + 4*k, n), V(vL8 if k == 2 else vL16), S(sWS, 4), S(sXi), 1024*k))
            else:
                for q in range(5):
                    g('buffer_load_dwordx4 %s, %s, %s, %s offen offset:%d sc1' % (V(RD + 4*q, 4), V(vL16 if q < 4 else vL16b), S(sWS, 4), S(sXi), 1024*(q & 3)))
        if xp > 0: fixed.append((PE - xp, F(recv, 40)))
        sched(g, mains, 8, fixed, streams, report=self.rep and 'p2')
        if xp <= 0: recv()
        self.stamp(9)
        g.waitcnt(lg=0)
        g('s_barrier')
        for q in range(5):
            for src in range(4):
                g('ds_read_b128 %s, %s offset:%d' % (V(ACC2 + 16*q + 4*src, 4), V(vRd[q]), 21760*src))
        osc = cfg.get('osc', ' nt')
        for q in range(5):
            SM = ACC2 + 16*q if (XD_ and role == 1) else XD + 4*q
            for src in range(4):
                for r in (0, 2):
                    if (role == 1 or not XD_) and src == 0: continue
                    a = V(ACC2 + 16*q + r, 2) if ((role == 1 or not XD_) and src == 1) else V(SM + r, 2)
                    g('v_pk_add_f32 %s, %s, %s' % (V(SM + r, 2), a, V(ACC2 + 16*q + 4*src + r, 2)))
            if XB:
                for h in range(2):
                    g('v_lshlrev_b32 %s, 16, %s' % (V(RD + 4*q + 2*h), V(RD + 10 + 2*q + h)))
                    g('v_and_b32 %s, %s, %s' % (V(RD + 4*q + 2*h + 1), S(sM), V(RD + 10 + 2*q + h)))
            gb = GB + q; hi = gb & 1
            for r in (0, 2):
                if XD_ and role == 1: g('v_pk_add_f32 %s, %s, %s' % (V(RD + 4*q + r, 2), V(RD + 4*q + r, 2), V(XD + 4*q + r, 2)))
                g('v_pk_fma_f32 %s, %s, %s, %s op_sel:[%d,0,0] op_sel_hi:[%d,1,1]' % (V(RD + 4*q + r, 2), V(gb - hi, 2), V(SM + r, 2), V(RD + 4*q + r, 2), hi, hi))
            g('buffer_store_dwordx4 %s, %s, %s, 0 offen%s' % (V(RD + 4*q, 4), V(vOa[q]), S(sOUT, 4), osc))
        self.finish(role)

    def finish(self, role):
        g = self.g
        if self.cfg.get('stamps'):
            g.waitall()
            self.stamp(10)
            self.stamp(31, 's_memtime')
            g('s_lshl_b32 %s, s2, 2' % S(sT0))
            g('s_add_u32 %s, %s, %s' % (S(sT0), S(sT0), S(sWave)))
            g('s_lshl_b32 %s, %s, 7' % (S(sT0), S(sT0)))
            g('s_add_u32 %s, %s, %d' % (S(sT0), S(sT0), WS_STAMP))
            g('v_lshlrev_b32 v4, 2, %s' % V(vLane))
            g('s_mov_b32 exec_hi, 0')
            g('buffer_store_dword %s, v4, %s, %s offen' % (V(vStamp), S(sWS, 4), S(sT0)))
        if role == 0: g.label('L_exit')
        g('s_endpgm')
        g.hist = []

    def post(self, txt):
        c = self.cfg; out = []
        for l in txt.split('\n'):
            if c.get('x_nox') and ('s[12:15], s90 offen' in l or 's[12:15], s91 offen' in l) and 'dwordx4' in l: l = l.replace('s[12:15]', 's[20:23]')
            if c.get('x_noh') and 'buffer_store_dwordx4' in l and 's[36:39]' in l: l = l.replace('s[36:39]', 's[20:23]')
            if c.get('x_nopk') and 'dwordx4' in l and ('s[24:27]' in l or 's[16:19]' in l or 's[20:23]' in l): l = l.replace('s[24:27]', 's[20:23]').replace('s[16:19]', 's[20:23]')
            if c.get('x_noout') and 's[28:31]' in l and 'store' in l: l = l.replace('s[28:31]', 's[20:23]')
            if (c.get('x_nox') or c.get('x_noh') or c.get('x_nopk') or c.get('x_noout')):
                if 's_mov_b32 s22, s18' in l: l = '    s_mov_b32 s22, 0'
                if l.startswith('L_ssm:'): l += '\n    s_mov_b32 s20, 0\n    s_mov_b32 s21, 0\n    s_mov_b32 s22, 0\n    s_mov_b32 s23, 0x20000'
            out.append(l)
        return '\n'.join(out)

    def build(self):
        g = self.g
        self.prologue()
        st = g.state()
        self.ffn()
        g.vm, g.lg, g.smem = list(st[0]), list(st[1]), list(st[2])
        self.ssm()
        if self.cfg.get('lay', 1):
            L = g.lines
            a = L.index('L_ssm:'); b = L.index('L_ssm2:'); c = L.index('    s_cbranch_scc1 L_ssm')
            g.lines = L[:c] + ['    s_cbranch_scc0 L_ffn'] + L[a:b] + ['L_ffn:'] + L[c+1:a] + L[b:]
        g.raw('L_codeend:')
        for f in self.tail: f()
        hdr = open('gated_mix__ssm_conv_s5__dense_activation_silu__prompt.s.ref').read()
        top = hdr[:hdr.index('; Override launch geometry')]
        txt = top + '; Generated by a hand-written generator script (straight-line schedule, one fused launch).\n'
        txt += '; @launch grid=(256,1,1) block=(256,1,1) lds=163840\n'
        txt += '.amdgcn_target "amdgcn-amd-amdhsa--gfx950"\n.text\n.globl %s\n.p2align 8\n.type %s,@function\n%s:\n' % (KNAME, KNAME, KNAME)
        txt += self.post(g.text())
        txt += '''.section .rodata,"a"
.p2align 6
.amdhsa_kernel %s
  .amdhsa_next_free_vgpr 512
  .amdhsa_next_free_sgpr 102
  .amdhsa_accum_offset 256
  .amdhsa_group_segment_fixed_size 0
  .amdhsa_kernarg_size 128
  .amdhsa_user_sgpr_count 2
  .amdhsa_user_sgpr_kernarg_segment_ptr 1
  .amdhsa_system_sgpr_workgroup_id_x 1
.end_amdhsa_kernel
''' % KNAME
        return txt

def make(cfg=None):
    k = K(cfg or {})
    return k.build(), k

if __name__ == '__main__':
    import json
    cfg = json.loads(sys.argv[2]) if len(sys.argv) > 2 else {}
    cfg['report'] = 1
    txt, k = make(cfg)
    open(sys.argv[1], 'w').write(txt)
    print(k.g.stats, 'nops', k.g.nnop, 'bytes', len(txt))
```

```python
import sys
from asmgen import Gen, weave, sched, Stream, F, mix, cost

KNAME = 'gated_mix__ssm_conv_s5__dense_activation_silu__prompt_kernel'

WS_EPOCH = 0
WS_HFLAG = 0x50000
LVL = 131072
WS_GATE = 65536
WS_EBUF = 131072
WS_PFLAG = 0xb0000
WS_XFLAG = 0xe0000
WS_STAMP = 22 << 20
WS_B2 = 0x130000
WS_H = 5 << 20
WS_X = 16 << 20
WS_SIZE = 23 << 20
KST = 5120
MST = 88*KST
HKS = 8192
HMS = 88*HKS

F_WR = 81920
S_BR = 65536
L_PK = 147456
L_EX = 147456

sX, sW, sWS, sP1, sP2, sPD, sOUT, sB2, sH = 4, 8, 12, 16, 20, 24, 28, 32, 36
pX, pLre, pLim, pBre, pBim, pCre, pCim, pLdt, pDsk, pBx, pW1, pW2, pGate, pOut, pDbg, pWs = range(40, 72, 2)
sWave, sRole, sC1, sJ1, sIdx, sCo, sNonce, sRot = range(72, 80)
sKb = list(range(80, 90))
sItem, sMx, sMw, sWo = 90, 91, 92, 93
sPs = [94, 95, 96, 97]
sT0, sT1, sT2, sT3 = 98, 99, 100, 101
sT4 = 3
sKt = 79
sNl = 42
sWs2 = 93
sPo = 54
sL1, sL2 = 64, 65
sKs = [40, 41, 46, 47, 48, 49, 50, 51, 52, 53, 58, 59, 60, 61, 62, 63, 66, 67, 68, 69, 70, 71]

vTid, vLane, vL16, vL16b = 0, 1, 2, 3
vT = list(range(4, 16))
vFa, vFd = 254, 253
ACC2 = 16
A2R = 96
vStamp = 255
def B2slot(role, i):
    if i < 4: return 160 + 20*i
    if role == 1: return 20*(i-4)
    return 80 + 20*(i-4) if i < 8 else 20*(i-8)
def tabs(role):
    if role == 1: return sKs[:12], sKs[12:] + [44, 45]
    return sKs[:10], sKs[10:20]
aPK = 240

def R(kind, base, n):
    return '%s%d' % (kind, base) if n == 1 else '%s[%d:%d]' % (kind, base, base+n-1)
def V(b, n=1): return R('v', b, n)
def A(b, n=1): return R('a', b, n)
def S(b, n=1): return R('s', b, n)

LOG2E = 0x3fb8aa3b
NLOG2E = 0xbfb8aa3b
INV2PI = 0x3e22f983

class K:
    def __init__(self, cfg):
        self.cfg = cfg
        self.g = Gen()
        self.tail = []
        self.rep = cfg.get('report')
        self.XR = cfg.get('xr', 0)
        self.EW = cfg.get('ew', 384)
        self.fw, self.fg, self.lv = {0: (2, 7, 16), 1: (7, 9, LVL), 2: (2, 7, LVL)}[cfg.get('fl', 1)]

    def stamp(self, idx, op='s_memrealtime', lvl=2):
        if self.rep and idx < 11: print('  stamp', idx, self.g.cyc)
        if idx in (0, 10, 30, 31): lvl = 1
        if self.cfg.get('stamps', 0) < lvl: return
        g = self.g
        if self.cfg.get('cyc'): op = 's_memtime'
        g(op + ' vcc'); g.waitcnt(lg=0)
        g('v_writelane_b32 %s, vcc_lo, %d' % (V(vStamp), idx))

    def cst(self, idx):
        if self.rep: print('  cst', idx, self.g.cyc)
        if self.cfg.get('chain'): self.stamp(idx)
    def srd_ptr(self, d, ptr): return ['s_mov_b32 %s, %s' % (S(d), S(ptr)), 's_mov_b32 %s, %s' % (S(d+1), S(ptr+1))]
    def srd_cst(self, d, nrec): return ['s_mov_b32 %s, 0x%x' % (S(d+2), nrec), 's_mov_b32 %s, 0x20000' % S(d+3)]

    def poll(self, name, issue, check, pre=None):
        g = self.g
        lr, lo = g.newlabel(name + '_retry'), g.newlabel(name + '_ok')
        check()
        g('s_cbranch_scc0 %s' % lr)
        g.label(lo)
        def retry():
            g.vm, g.lg, g.smem = [], [], []
            g.label(lr)
            if pre: pre()
            g('s_mov_b32 %s, 0x%x' % (S(sT4), self.cfg.get('spin', 1 << 18)))
            ll = g.newlabel(name + '_loop')
            g.label(ll)
            g('s_sub_u32 %s, %s, 1' % (S(sT4), S(sT4)))
            g('s_cmp_eq_u32 %s, 0' % S(sT4))
            g('s_nop 7')
            g('s_cbranch_scc1 %s' % lo)
            if self.cfg.get('bo', {}).get(name): g('s_sleep %d' % self.cfg['bo'][name])
            g('s_waitcnt lgkmcnt(0)')
            issue()
            g.waitall()
            check()
            g('s_nop 7')
            g('s_cbranch_scc1 %s' % lo)
            g('s_branch %s' % ll)
        self.tail.append(retry)

    def check_eq(self, regs, t0=None, t1=None):
        g = self.g
        def f():
            if len(regs) == 1:
                g('v_cmp_ne_u32 vcc, %s, %s' % (S(sNonce), V(regs[0])))
            else:
                g('v_xor_b32 %s, %s, %s' % (V(t0), S(sNonce), V(regs[0])))
                for r in regs[1:]:
                    g('v_xor_b32 %s, %s, %s' % (V(t1), S(sNonce), V(r)))
                    g('v_or_b32 %s, %s, %s' % (V(t0), V(t0), V(t1)))
                g('v_cmp_ne_u32 vcc, 0, %s' % V(t0))
            g('s_nop 0')
            g('s_cmp_eq_u64 vcc, 0')
        return f

    def b2_loads(self, role, steps):
        out = []
        for step in steps:
            base = B2slot(role, step)
            for nt in range(5):
                va, off = (vL16, nt*1024) if nt < 4 else (vL16b, 0)
                out.append('buffer_load_dwordx4 %s, %s, %s, %s offen offset:%d sc1' % (A(base+4*nt, 4), V(va), S(sB2, 4), S(tabs(role)[0][0 if self.cfg.get('x_b2same') else step]), off))
        return out

    def ks_table(self, role):
        tb, ta = tabs(role); ns = len(tb)
        if role == 0 and self.cfg.get('krot', 1):
            r, bs = ta[ns-1], tb[ns-1]
            o = ['s_and_b32 %s, %s, 3' % (S(sKt), S(sC1)), 's_mul_i32 %s, %s, 3' % (S(sKt), S(sKt)),
                 's_add_u32 %s, %s, %s' % (S(sKt), S(sKt), S(sJ1)),
                 's_sub_u32 %s, %s, %d' % (S(r), S(sKt), ns), 's_min_u32 %s, %s, %s' % (S(r), S(r), S(sKt)),
                 's_mul_i32 %s, %s, %d' % (S(bs), S(sWave), ns), 's_add_u32 %s, %s, 48' % (S(bs), S(bs))]
            for n in range(ns):
                if n == 0: o.append('s_add_u32 %s, %s, %s' % (S(ta[n]), S(r), S(bs)))
                else:
                    o += ['s_sub_u32 %s, %s, %d' % (S(sKt), S(r), ns-n), 's_add_u32 %s, %s, %d' % (S(ta[n]), S(r), n),
                          's_min_u32 %s, %s, %s' % (S(ta[n]), S(ta[n]), S(sKt)), 's_add_u32 %s, %s, %s' % (S(ta[n]), S(ta[n]), S(bs))]
                o += ['s_mul_i32 %s, %s, %d' % (S(tb[n]), S(ta[n]), KST), 's_lshl_b32 %s, %s, 13' % (S(ta[n]), S(ta[n]))]
            return o
        nu = 6 if role else 5
        r, bs, r6 = ta[ns-1], tb[ns-1], tb[ns-2]
        o = ['s_add_u32 %s, %s, %s' % (S(r), S(sC1), S(sJ1))]
        if self.cfg.get('frot'):
            o = ['s_and_b32 %s, %s, 3' % (S(r), S(sC1)), 's_mul_i32 %s, %s, 3' % (S(r), S(r)), 's_lshr_b32 %s, %s, 1' % (S(r), S(r)),
                 's_add_u32 %s, %s, %s' % (S(r), S(r), S(sJ1))]
        o += ['s_mul_i32 %s, %s, %d' % (S(bs), S(sWave), ns),
             's_mul_i32 %s, %s, 43' % (S(r6), S(r)), 's_lshr_b32 %s, %s, 8' % (S(r6), S(r6)),
             's_mul_i32 %s, %s, 6' % (S(r6), S(r6)), 's_sub_u32 %s, %s, %s' % (S(r6), S(r), S(r6))]
        if role == 0: o.append('s_add_u32 %s, %s, 48' % (S(bs), S(bs)))
        for n in range(ns):
            if n < 6:
                o += ['s_add_u32 %s, %s, %d' % (S(ta[n]), S(r6), n), 's_sub_u32 %s, %s, 6' % (S(sKt), S(ta[n])),
                      's_min_u32 %s, %s, %s' % (S(ta[n]), S(ta[n]), S(sKt)),
                      's_mul_i32 %s, %s, 11' % (S(sKt), S(ta[n])), 's_lshr_b32 %s, %s, 5' % (S(sKt), S(sKt)),
                      's_mul_i32 %s, %s, %d' % (S(sKt), S(sKt), nu - 3), 's_add_u32 %s, %s, %s' % (S(ta[n]), S(ta[n]), S(sKt))]
            elif n < ns - 4:
                o += ['s_add_u32 %s, %s, %d' % (S(sKt), S(r), n), 's_and_b32 %s, %s, 1' % (S(sKt), S(sKt)),
                      's_mul_i32 %s, %s, 6' % (S(sKt), S(sKt)), 's_add_u32 %s, %s, 3' % (S(ta[n]), S(sKt))]
            else:
                o += ['s_add_u32 %s, %s, %d' % (S(sKt), S(r), n), 's_and_b32 %s, %s, 1' % (S(ta[n]), S(sKt)),
                      's_bfe_u32 %s, %s, 0x10001' % (S(sKt), S(sKt)), 's_mul_i32 %s, %s, %d' % (S(sKt), S(sKt), nu),
                      's_add_u32 %s, %s, %s' % (S(ta[n]), S(ta[n]), S(sKt)), 's_add_u32 %s, %s, %d' % (S(ta[n]), S(ta[n]), nu - 2)]
            o += ['s_add_u32 %s, %s, %s' % (S(ta[n]), S(ta[n]), S(bs)),
                  's_mul_i32 %s, %s, %d' % (S(tb[n]), S(ta[n]), KST), 's_lshl_b32 %s, %s, 13' % (S(ta[n]), S(ta[n]))]
        return o

    def line_addr(self, base, dst):
        return ['s_lshl_b32 %s, %s, 7' % (S(sKt), S(sRole)), 's_add_u32 %s, %s, %s' % (S(sKt), S(sKt), S(sIdx)),
                's_lshl_b32 %s, %s, %d' % (S(sKt), S(sKt), self.fg - self.fw), 's_add_u32 %s, %s, %s' % (S(sKt), S(sKt), S(sWave)),
                's_lshl_b32 %s, %s, %d' % (S(sKt), S(sKt), self.fw), 's_add_u32 %s, %s, %d' % (S(sKt), S(sKt), base),
                'v_mov_b32 %s, %s' % (V(dst), S(sKt))]

    def late_setup(self, role, t0, t1, vPp):
        if role == 0 and self.cfg.get('duty', 0): o = self.srd_ptr(sPo, pOut)
        else: o = self.srd_ptr(sOUT, pOut) + self.srd_cst(sOUT, 2048*2560)
        for d, idx, base, st in ((sB2, sJ1, WS_B2, MST), (sH, sC1, WS_H, HMS)):
            o += ['s_mul_i32 %s, %s, %d' % (S(sKt), S(idx), st), 's_add_u32 %s, %s, 0x%x' % (S(sKt), S(sKt), base),
                  ['s_add_u32 %s, %s, %s' % (S(d), S(pWs), S(sKt)), 's_addc_u32 %s, %s, 0' % (S(d+1), S(pWs+1))]]
            o += self.srd_cst(d, st)
        if role == 1:
            o += ['s_mul_i32 %s, %s, 5' % (S(sKt), S(sJ1)), 's_lshr_b32 %s, %s, 2' % (S(sKt), S(sKt)),
                  'v_min_u32 %s, 23, %s' % (V(t1), V(vLane)),
                  'v_lshrrev_b32 %s, 1, %s' % (V(t0), V(t1)), 'v_mul_u32_u24 %s, 10, %s' % (V(t0), V(t0)),
                  'v_and_b32 %s, 1, %s' % (V(t1), V(t1)), 'v_add3_u32 %s, %s, %s, %s' % (V(t0), V(t0), V(t1), S(sKt)),
                  's_mul_i32 %s, %s, 120' % (S(sKt), S(sWave)), 'v_add_u32 %s, %s, %s' % (V(t0), S(sKt), V(t0))]
        else:
            o += ['v_min_u32 %s, 14, %s' % (V(t1), V(vLane)),
                  'v_mul_u32_u24 %s, 11, %s' % (V(t0), V(t1)), 'v_lshrrev_b32 %s, 5, %s' % (V(t0), V(t0)),
                  'v_mul_u32_u24 %s, 7, %s' % (V(t0), V(t0)),
                  's_mul_i32 %s, %s, 50' % (S(sKt), S(sJ1)), 'v_add3_u32 %s, %s, %s, %s' % (V(t0), V(t1), V(t0), S(sKt)),
                  's_mul_i32 %s, %s, 10' % (S(sKt), S(sWave)), 's_lshr_b32 %s, %s, 2' % (S(sKt), S(sKt)),
                  'v_add_u32 %s, %s, %s' % (V(t0), S(sKt), V(t0))]
        o += ['v_and_b32 %s, 127, %s' % (V(t1), V(t0)), 'v_lshrrev_b32 %s, 7, %s' % (V(t0), V(t0)),
              'v_lshlrev_b32 %s, %d, %s' % (V(t1), self.fg, V(t1)), 'v_lshl_add_u32 %s, %s, %d, %s' % (V(vPp), V(t0), self.fw, V(t1)),
              'v_add_u32 %s, %d, %s' % (V(vPp), WS_PFLAG + role*(128 << self.fg), V(vPp))]
        o += self.line_addr(WS_PFLAG, vFa)
        return o
    def nonce_ops(self):
        return ['s_mul_i32 %s, %s, 1664525' % (S(sNonce), S(sNonce)), 's_add_u32 %s, %s, 1013904223' % (S(sNonce), S(sNonce)),
                'v_mov_b32 %s, %s' % (V(vFd), S(sNonce))]

    def hbase(self, kmul, extra):
        return ['s_lshl_b32 %s, %s, 11' % (S(sKt), S(sWave)), 's_mul_i32 %s, %s, %d' % (S(sT3), S(sJ1), kmul*HKS),
                's_add_u32 %s, %s, %s' % (S(sKt), S(sKt), S(sT3)), 's_add_u32 %s, %s, 0x%x' % (S(sKt), S(sKt), extra)]

    def flag_store(self, tok, srd, va=None):
        self.g.wait(tok)
        self.g('buffer_store_dword %s, %s, %s, 0 offen sc1' % (V(vFd), V(va or vFa), S(srd, 4)))
    def hoff(self, role, lvl, local):
        if role: return ((0, 0x20000, 0x40000), (0x30000, 0xa0000, 0x70000))[local][lvl]
        return ((0, 0xc0000), (0x20000, 0xd0000))[local][lvl]
    def hflag(self, role, lvl, tok, which='lg'):
        g = self.g
        if not self.cfg.get('lfl', 1): which = which.replace('l', '')
        if 'l' in which: g('s_mov_b32 %s, 0x%x' % (S(sL1), self.hoff(role, lvl, 1)))
        if 'g' in which: g('s_mov_b32 %s, 0x%x' % (S(sL2), self.hoff(role, lvl, 0)))
        g.wait(tok)
        if 'l' in which: g('buffer_store_dword %s, %s, %s, %s offen' % (V(vFd), V(vFa), S(sWS, 4), S(sL1)))
        if 'g' in which: g('buffer_store_dword %s, %s, %s, %s offen sc1' % (V(vFd), V(vFa), S(sWS, 4), S(sL2)))
    def hpoll(self, role, lvl):
        g = self.g
        g('s_mov_b32 %s, 0x%x' % (S(sL1), self.hoff(role, lvl, self.cfg.get('lfl', 1))))
        g('buffer_load_dword %s, %s, %s, %s offen sc1' % (V(self.vHd), V(self.vHp), S(sWS, 4), S(sL1)))
    def hcheck(self, role, lvl, pre=None):
        g = self.g
        def again():
            l1, l2 = g.newlabel('loc'), g.newlabel('ld')
            g('s_mov_b32 %s, 0x%x' % (S(sL1), self.hoff(role, lvl, self.cfg.get('lfl', 1))))
            g('s_and_b32 %s, %s, %d' % (S(sL2), S(sT4), self.cfg.get('lper', 3)))
            g('s_cbranch_scc1 %s' % l2)
            if pre: pre()
            g('s_mov_b32 %s, 0x%x' % (S(sL1), self.hoff(role, lvl, 0)))
            g.label(l2)
            g('buffer_load_dword %s, %s, %s, %s offen sc1' % (V(self.vHd), V(self.vHp), S(sWS, 4), S(sL1)))
        self.poll('h%d%d' % (role, lvl), again, self.check_eq([self.vHd]))

    def prologue(self):
        g = self.g
        g('s_cmp_ge_u32 s2, 256')
        g('s_cbranch_scc1 L_exit')
        if self.cfg.get('entry'): g('s_memrealtime s[96:97]')
        g('s_load_dwordx16 s[40:55], s[0:1], 0')
        g('s_load_dwordx16 s[56:71], s[0:1], 64')
        g('v_lshrrev_b32 %s, 6, v0' % V(vT[0]))
        g('v_and_b32 %s, 63, v0' % V(vLane))
        g('v_readfirstlane_b32 %s, %s' % (S(sWave), V(vT[0])))
        g('v_lshlrev_b32 %s, 4, %s' % (V(vL16), V(vLane)))
        g('s_lshr_b32 %s, s2, 3' % S(sT1))
        if self.cfg.get('preload', 1):
            g.raw('    s_getpc_b64 s[28:29]\nL_pc:')
            g('s_lshl_b32 %s, %s, 2' % (S(sT0), S(sT1)))
            g('s_add_u32 %s, %s, %s' % (S(sT0), S(sT0), S(sWave)))
            g('s_and_b32 %s, %s, 63' % (S(sT0), S(sT0)))
            g.raw('    s_min_u32 %s, %s, ((L_codeend-L_pc)>>10)-1' % (S(sT0), S(sT0)))
            g('s_lshl_b32 %s, %s, 10' % (S(sT0), S(sT0)))
            g('s_add_u32 s28, s28, %s' % S(sT0))
            g('s_addc_u32 s29, s29, 0')
            g('global_load_dwordx4 v[244:247], %s, s[28:29]' % V(vL16))
        if self.cfg.get('stamps'):
            g('v_mov_b32 %s, 0' % V(vStamp))
        g('v_add_u32 %s, 0x1000, %s' % (V(vL16b), V(vL16)))
        g('s_bfe_u32 %s, s2, %s' % (S(sT3), '0x20000' if self.cfg.get('rmap') else '0x20001'))
        if self.cfg.get('amap', 1) == 1:
            g('s_lshr_b32 %s, %s, 1' % (S(sT2), S(sT3)))
            g('s_xor_b32 %s, %s, %s' % (S(sT3), S(sT3), S(sT2)))
        if self.cfg.get('amap') == 2: g('s_xor_b32 %s, %s, 2' % (S(sT3), S(sT3)))
        g('s_and_b32 %s, %s, 3' % (S(sT2), S(sT1)))
        if self.cfg.get('mixed'):
            g('s_lshr_b32 %s, %s, 4' % (S(sRole), S(sT1)))
            g('s_bfe_u32 %s, %s, 0x20002' % (S(sJ1), S(sT1)))
            g('s_and_b32 %s, s2, 1' % S(sT0))
            g('s_lshl_b32 %s, %s, 2' % (S(sT0), S(sT0)))
            g('s_add_u32 %s, %s, %s' % (S(sJ1), S(sJ1), S(sT0)))
        else:
            if self.cfg.get('rmap'): g('s_bfe_u32 %s, s2, 0x10002' % S(sRole))
            else: g('s_and_b32 %s, s2, 1' % S(sRole))
            if self.cfg.get('rmap') == 2 or self.cfg.get('rflip'): g('s_xor_b32 %s, %s, 1' % (S(sRole), S(sRole)))
            g('s_lshr_b32 %s, %s, 2' % (S(sJ1), S(sT1)))
        g('s_lshl_b32 %s, %s, 2' % (S(sC1), S(sT3)))
        g('s_add_u32 %s, %s, %s' % (S(sC1), S(sC1), S(sT2)))
        g('s_lshl_b32 %s, %s, 3' % (S(sIdx), S(sT3)))
        g('s_add_u32 %s, %s, %s' % (S(sIdx), S(sIdx), S(sJ1)))
        g('s_lshl_b32 %s, %s, 2' % (S(sIdx), S(sIdx)))
        g('s_add_u32 %s, %s, %s' % (S(sIdx), S(sIdx), S(sT2)))
        g('s_mul_i32 %s, %s, 3' % (S(sT2), S(sT2)))
        g('s_mul_i32 %s, %s, 5' % (S(sT0), S(sRole)))
        g('s_add_u32 %s, %s, %s' % (S(sRot), S(sJ1), S(sT2)))
        g('s_add_u32 %s, %s, %s' % (S(sRot), S(sRot), S(sT0)))
        g('s_add_u32 %s, %s, %s' % (S(sRot), S(sRot), S(sT3)))
        if self.cfg.get('norot'): g('s_mov_b32 %s, 0' % S(sRot))
        rx = self.cfg.get('rotx', 3)
        if rx:
            g('s_mul_i32 %s, %s, 5' % (S(sRot), S(sT3)))
            g('s_add_u32 %s, %s, 1' % (S(sRot), S(sRot)))
            g('s_lshr_b32 %s, %s, 1' % (S(sRot), S(sRot)))
            g('s_add_u32 %s, %s, %s' % (S(sRot), S(sRot), S(sT0)))
            if rx == 2:
                g('s_add_u32 %s, %s, %s' % (S(sT0), S(sC1), S(sJ1)))
                g('s_and_b32 %s, %s, 1' % (S(sT0), S(sT0)))
                g('s_add_u32 %s, %s, %s' % (S(sRot), S(sRot), S(sT0)))
            rd = self.cfg.get('rotd')
            if rd:
                g('s_add_u32 %s, %s, %s' % (S(sT0), S(sC1), S(sJ1)))
                g('s_and_b32 %s, %s, 1' % (S(sCo), S(sT0)))
                g('s_cselect_b32 %s, -1, 1' % S(sCo))
                g('s_bfe_u32 %s, %s, 0x%x' % (S(sT0), S(sT0), {1: 0x10001, 2: 0x20001, 3: 0x00001}[rd]))
                g('s_mul_i32 %s, %s, %s' % (S(sT0), S(sT0), S(sCo)))
                g('s_add_u32 %s, %s, %s' % (S(sRot), S(sRot), S(sT0)))
                g('s_min_i32 %s, %s, 0' % (S(sT0), S(sCo)))
                g('s_add_u32 %s, %s, %s' % (S(sRot), S(sRot), S(sT0)))
                g('s_add_u32 %s, %s, 10' % (S(sRot), S(sRot)))
            elif rx == 3:
                g('s_add_u32 %s, %s, %s' % (S(sT0), S(sC1), S(sJ1)))
                g('s_and_b32 %s, %s, 3' % (S(sT0), S(sT0)))
                g('s_add_u32 %s, %s, %s' % (S(sRot), S(sRot), S(sT0)))
            elif rx == 4:
                g('s_and_b32 %s, %s, 3' % (S(sT0), S(sC1)))
                g('s_add_u32 %s, %s, %s' % (S(sRot), S(sRot), S(sT0)))
            elif rx == 5:
                g('s_add_u32 %s, %s, %s' % (S(sT0), S(sC1), S(sJ1)))
                g('s_and_b32 %s, %s, 3' % (S(sT0), S(sT0)))
                g('s_lshl_b32 %s, %s, 1' % (S(sT0), S(sT0)))
                g('s_add_u32 %s, %s, %s' % (S(sRot), S(sRot), S(sT0)))
            elif rx == 6:
                g('s_add_u32 %s, %s, %s' % (S(sT0), S(sC1), S(sJ1)))
                g('s_and_b32 %s, %s, 7' % (S(sT0), S(sT0)))
                g('s_add_u32 %s, %s, %s' % (S(sRot), S(sRot), S(sT0)))
        for k in range(2):
            g('s_sub_u32 %s, %s, 10' % (S(sT0), S(sRot)))
            g('s_min_u32 %s, %s, %s' % (S(sRot), S(sRot), S(sT0)))
        if self.cfg.get('rotg') == 2:
            g('s_and_b32 %s, %s, 1' % (S(sRot), S(sRot)))
            g('s_mul_i32 %s, %s, 5' % (S(sRot), S(sRot)))
        if self.cfg.get('rotg') == 5:
            g('s_and_b32 %s, %s, 14' % (S(sRot), S(sRot)))
        if self.cfg.get('rotg') == 3:
            g('s_mul_i32 %s, %s, 11' % (S(sT0), S(sRot)))
            g('s_lshr_b32 %s, %s, 5' % (S(sT0), S(sT0)))
            g('s_mul_i32 %s, %s, 3' % (S(sT0), S(sT0)))
            g('s_sub_u32 %s, %s, %s' % (S(sRot), S(sRot), S(sT0)))
            g('s_mul_i32 %s, %s, 7' % (S(sRot), S(sRot)))
            g('s_lshr_b32 %s, %s, 1' % (S(sRot), S(sRot)))
        g('s_lshl_b32 %s, %s, 7' % (S(sKb[0]), S(sRot)))
        g('v_lshrrev_b32 %s, 3, %s' % (V(vT[0]), V(vLane)))
        g('v_and_b32 %s, 7, %s' % (V(vT[1]), V(vLane)))
        g('v_lshrrev_b32 %s, 4, %s' % (V(vT[2]), V(vLane)))
        g.do(self.srd_cst(sX, 2048*1280))
        g.do(self.srd_cst(sWS, WS_SIZE))
        g('s_cmp_eq_u32 %s, 0' % S(sRole))
        g('s_cbranch_scc1 L_ssm')

    def kb(self, s, k0=sKb[0]):
        if self.cfg.get('same'): return ['s_mov_b32 %s, %s' % (S(sKb[s]), S(k0))]
        if self.cfg.get('rotd'):
            return ['s_mul_i32 %s, %s, %d' % (S(sKb[s]), S(sCo), 128*s), 's_add_u32 %s, %s, %s' % (S(sKb[s]), S(sKb[s]), S(k0)),
                    's_mul_i32 %s, %s, -1280' % (S(sT0), S(sCo)), 's_add_u32 %s, %s, %s' % (S(sT0), S(sT0), S(sKb[s])),
                    's_min_u32 %s, %s, %s' % (S(sKb[s]), S(sKb[s]), S(sT0))]
        return ['s_sub_u32 %s, %s, %d' % (S(sT0), S(k0), 128*(10-s)), 's_add_u32 %s, %s, %d' % (S(sKb[s]), S(k0), 128*s),
                's_min_u32 %s, %s, %s' % (S(sKb[s]), S(sKb[s]), S(sT0))]

    def ptrs_ready(self):
        g = self.g
        g.waitcnt(lg=0)
        if self.cfg.get('entry'): g('v_writelane_b32 %s, s96, 29' % V(vStamp))
        self.stamp(0)
        self.stamp(30, 's_memtime')
        g.do(self.srd_ptr(sX, pX))

    def pack_addr(self, role, vPl, vPr, vPw):
        o = ['s_lshl_b32 %s, %s, 7' % (S(sItem), S(sWave)), 's_add_u32 %s, %s, %s' % (S(sItem), S(sItem), S(sIdx))]
        o += self.srd_ptr(sPD, pWs) + self.srd_ptr(sP1, pW2 if role else pCre)
        o += [['s_cmp_lt_u32 %s, %d' % (S(sItem), 480 if role else 400), 's_cselect_b32 %s, 0x%x, 0' % (S(sPD+2), WS_SIZE),
               's_cselect_b32 %s, %d, 0' % (S(sP1+2), 1536*1280 if role else 819200)],
              's_mov_b32 %s, 0x20000' % S(sPD+3), 's_mov_b32 %s, 0x20000' % S(sP1+3),
              's_mul_i32 %s, %s, 6554' % (S(sT1), S(sItem)), 's_lshr_b32 %s, %s, 16' % (S(sT1), S(sT1)),
              's_mul_i32 %s, %s, 10' % (S(sT2), S(sT1)), 's_sub_u32 %s, %s, %s' % (S(sT2), S(sItem), S(sT2)),
              's_lshl_b32 %s, %s, 7' % (S(sT3), S(sT2)),
              's_mul_i32 %s, %s, %d' % (S(sItem), S(sT1), 40960 if role else 20480), 's_add_u32 %s, %s, %s' % (S(sItem), S(sItem), S(sT3))]
        t0, t1 = V(vT[4]), V(vT[5]); L = V(vLane)
        if role:
            o += ['s_mul_i32 %s, %s, 5' % (S(sT1), S(sT1)), 's_lshl_b32 %s, %s, 2' % (S(sT2), S(sT2))]
            for i in range(4):
                o += ['s_add_u32 %s, %s, %d' % (S(sPs[i]), S(sT2), i),
                      's_mul_i32 %s, %s, 52' % (S(sT3), S(sPs[i])), 's_lshr_b32 %s, %s, 8' % (S(sT3), S(sT3)),
                      's_mul_i32 %s, %s, 435' % (S(sT3), S(sT3)), 's_add_u32 %s, %s, %s' % (S(sPs[i]), S(sPs[i]), S(sT3)),
                      's_add_u32 %s, %s, %s' % (S(sPs[i]), S(sPs[i]), S(sT1)), 's_lshl_b32 %s, %s, 10' % (S(sPs[i]), S(sPs[i])),
                      's_add_u32 %s, %s, 0x%x' % (S(sPs[i]), S(sPs[i]), WS_B2)]
            o += ['v_bfe_u32 %s, %s, 4, 1' % (t0, L), 'v_lshlrev_b32 %s, 11, %s' % (t0, t0), 'v_lshrrev_b32 %s, 5, %s' % (t1, L),
                  'v_lshl_add_u32 %s, %s, 9, %s' % (t0, t1, t0), 'v_bfe_u32 %s, %s, 2, 2' % (t1, L), 'v_lshl_add_u32 %s, %s, 7, %s' % (t0, t1, t0),
                  'v_and_b32 %s, 3, %s' % (t1, L), 'v_lshl_add_u32 %s, %s, 3, %s' % (t0, t1, t0)]
        else:
            o += self.srd_ptr(sP2, pCim) + ['s_mov_b32 %s, %s' % (S(sP2+2), S(sP1+2)), 's_mov_b32 %s, 0x20000' % S(sP2+3),
                  's_mul_i32 %s, %s, 52' % (S(sT3), S(sT1)), 's_lshr_b32 %s, %s, 8' % (S(sT3), S(sT3)),
                  's_mul_i32 %s, %s, 435' % (S(sT3), S(sT3)), 's_add_u32 %s, %s, %s' % (S(sT1), S(sT1), S(sT3)),
                  's_mul_i32 %s, %s, 20' % (S(sT3), S(sT2)), 's_add_u32 %s, %s, %s' % (S(sT1), S(sT1), S(sT3)),
                  's_lshl_b32 %s, %s, 10' % (S(sT1), S(sT1))]
            o += ['s_add_u32 %s, %s, 0x%x' % (S(sPs[i]), S(sT1), WS_B2 + 240*1024 + KST*i) for i in range(4)]
            o += ['v_lshrrev_b32 %s, 5, %s' % (t0, L), 'v_lshlrev_b32 %s, 11, %s' % (t0, t0), 'v_and_b32 %s, 15, %s' % (t1, L),
                  'v_lshl_add_u32 %s, %s, 7, %s' % (t0, t1, t0), 'v_bfe_u32 %s, %s, 4, 1' % (t1, L), 'v_lshl_add_u32 %s, %s, 4, %s' % (t0, t1, t0)]
        o += ['s_lshl_b32 %s, %s, 12' % (S(sT3), S(sWave)), 's_add_u32 %s, %s, %d' % (S(sT3), S(sT3), L_PK),
              'v_add_u32 %s, %s, %s' % (V(vPr), S(sT3), t0), 's_mov_b32 %s, %s' % (S(sWs2), S(sT3)),
              'v_lshrrev_b32 %s, 3, %s' % (t0, L), 'v_and_b32 %s, 7, %s' % (t1, L), 'v_mul_u32_u24 %s, 1280, %s' % (t0, t0),
              'v_lshl_add_u32 %s, %s, 4, %s' % (V(vPl), t1, t0)]
        return o

    def pack_load(self, role, vPl):
        g = self.g; nt = self.cfg.get('pknt', ' nt')
        g('s_mov_b32 m0, %s' % S(sWs2))
        for q in range(4):
            if role:
                if q: g('s_add_u32 %s, %s, 9216' % (S(sItem), S(sItem)))
                else: g('s_nop 0')
                self.tPack = g('buffer_load_dwordx4 %s, %s, %s offen offset:%d%s lds' % (V(vPl), S(sP1, 4), S(sItem), 1024*q, nt))
            else:
                if q == 0: g('s_add_u32 %s, %s, 9216' % (S(sT0), S(sItem)))
                if q == 2: g('s_add_u32 m0, %s, 2048' % S(sWs2))
                self.tPack = g('buffer_load_dwordx4 %s, %s, %s offen offset:%d%s lds' % (V(vPl), S(sP2 if q >= 2 else sP1, 4), S(sT0 if q & 1 else sItem), 1024*(q & 1), nt))
    def pack_proc(self, role, vPr):
        g = self.g
        a = [F(lambda: g.wait(self.tPack))]
        if role: a += ['ds_read_b64_tr_b16 %s, %s offset:%d' % (A(aPK+4*i+2*e, 2), V(vPr), e*1024 + i*32) for i in range(4) for e in range(2)]
        else: a += ['ds_read_b128 %s, %s offset:%d' % (A(aPK+4*i, 4), V(vPr), 32*i) for i in range(4)]
        b = []
        for i in range(4):
            def f(i=i): self.tPackSt = g('buffer_store_dwordx4 %s, %s, %s, %s offen sc1' % (A(aPK+4*i, 4), V(vL16), S(sPD, 4), S(sPs[i])))
            b.append(F(f))
        return a, b

    def touch_addr(self):
        if not self.cfg.get('coop', 0): return
        g = self.g; L = V(vLane)
        g('s_lshl_b32 %s, s2, 2' % S(sT0))
        g('s_add_u32 %s, %s, %s' % (S(sT0), S(sT0), S(sWave)))
        g('s_mul_i32 %s, %s, 20' % (S(sT1), S(sT0)))
        g('v_min_u32 v248, 19, %s' % L)
        g('v_add_u32 v248, %s, v248' % S(sT1))
        g('v_lshlrev_b32 v248, 7, v248')
        g('s_mul_i32 %s, %s, 25' % (S(sT1), S(sT0)))
        g('s_lshr_b32 %s, %s, 2' % (S(sT1), S(sT1)))
        g('v_min_u32 v249, 6, %s' % L)
        g('v_add_u32 v249, %s, v249' % S(sT1))
        g('v_min_u32 v249, 6399, v249')
        g('v_lshlrev_b32 v249, 7, v249')
        nw = 5 if self.cfg['coop'] == 1 else 15
        g('s_mul_i32 %s, %s, %d' % (S(sT1), S(sT0), nw))
        g('v_min_u32 v250, %d, %s' % (nw-1, L))
        g('v_add_u32 v250, %s, v250' % S(sT1))
        if nw == 5:
            g('v_lshrrev_b32 v251, 3, v250')
            g('v_and_b32 v250, 7, v250')
            g('v_mul_u32_u24 v251, 3072, v251')
            g('v_mul_u32_u24 v250, 384, v250')
            g('v_add_u32 v250, v250, v251')
        else:
            g('v_lshlrev_b32 v250, 7, v250')
    def touch(self):
        if not self.cfg.get('coop', 0): return
        g = self.g
        g('global_load_dword v240, v248, %s' % S(pX, 2))
        g('global_load_dword v241, v249, %s' % S(pBre, 2))
        g('global_load_dword v242, v249, %s' % S(pBim, 2))
        g('global_load_dword v243, v250, %s' % S(pW1, 2))

    def duty_setup(self, role, vD, sD):
        L = V(vLane)
        o = ['s_lshl_b32 %s, %s, 3' % (S(sT0), S(sC1)), 's_add_u32 %s, %s, %s' % (S(sT0), S(sT0), S(sJ1)),
             's_lshl_b32 %s, %s, 1' % (S(sT0), S(sT0)), 's_add_u32 %s, %s, %s' % (S(sT0), S(sT0), S(sWave)),
             's_mul_i32 %s, %s, %d' % (S(sT0), S(sT0), 8*1280), 's_and_b32 %s, %s, 3' % (S(sT1), S(sC1))]
        if role:
            o += ['s_lshl_b32 %s, %s, 1' % (S(sT1), S(sT1)), 's_and_b32 %s, %s, 1' % (S(sT2), S(sWave)), 's_add_u32 %s, %s, %s' % (S(sT1), S(sT1), S(sT2)),
                  's_mul_i32 %s, %s, %d' % (S(sT1), S(sT1), 8*3072)]
        else:
            o += ['s_lshl_b32 %s, %s, 2' % (S(sT2), S(sJ1)), 's_add_u32 %s, %s, %s' % (S(sT1), S(sT1), S(sT2)),
                  's_mul_i32 %s, %s, %d' % (S(sT1), S(sT1), 20*1280)]
        o += ['s_mov_b32 %s, %d' % (S(sT2), 3072 if role else 1280), 's_mov_b32 %s, %d' % (S(sT3), 7 if role else 19),
              ['s_cmp_lt_u32 %s, 2' % S(sWave), 's_cselect_b32 %s, %s, %s' % (S(sT0), S(sT0), S(sT1)),
               's_cselect_b32 %s, 1280, %s' % (S(sT2), S(sT2)), 's_cselect_b32 %s, 7, %s' % (S(sT3), S(sT3))],
              'v_lshrrev_b32 %s, 1, %s' % (V(vD), L), 'v_min_u32 %s, %s, %s' % (V(vD), S(sT3), V(vD)),
              'v_mul_u32_u24 %s, %s, %s' % (V(vD), S(sT2), V(vD)), 'v_add_u32 %s, %s, %s' % (V(vD), S(sT0), V(vD))]
        return o
    def duty_srd(self, role, sD):
        o = [['s_cmp_eq_u32 %s, 3' % S(sWave), 's_cselect_b32 %s, %s, %s' % (S(sD), S(pW1 if role else pBim), S(pW1 if role else pBre)),
              's_cselect_b32 %s, %s, %s' % (S(sD+1), S((pW1 if role else pBim)+1), S((pW1 if role else pBre)+1))],
             's_mov_b32 %s, %d' % (S(sD+2), 640*3072 if role else 819200),
             ['s_cmp_lt_u32 %s, 2' % S(sWave), 's_cselect_b32 %s, %s, %s' % (S(sD), S(pX), S(sD)), 's_cselect_b32 %s, %s, %s' % (S(sD+1), S(pX+1), S(sD+1)),
              's_cselect_b32 %s, %d, %s' % (S(sD+2), 2048*1280, S(sD+2))],
             's_mov_b32 %s, 0x20000' % S(sD+3)]
        return o
    def duty(self, role, s, vD, sD, dst):
        if not role: return ['buffer_load_dword %s, %s, %s, %s offen ; result unused' % (V(dst), V(vD), S(sD, 4), S(sKb[s]))]
        return [['s_mul_i32 %s, %s, 1536' % (S(sT0), S(sKb[s])), 's_add_u32 %s, %s, %s' % (S(sT0), S(sT0), S(sWo)),
                 's_cmp_lt_u32 %s, 2' % S(sWave), 's_cselect_b32 %s, %s, %s' % (S(sT0), S(sKb[s]), S(sT0)),
                 'buffer_load_dword %s, %s, %s, %s offen ; result unused' % (V(dst), V(vD), S(sD, 4), S(sT0))]]

    def warm_flags(self, role):
        if not self.cfg.get('warm', 1): return []
        L = V(vLane)
        o = ['s_lshl_b32 %s, %s, 7' % (S(sT0), S(sRole)), 's_add_u32 %s, %s, %s' % (S(sT0), S(sT0), S(sIdx)),
             's_lshl_b32 %s, %s, %d' % (S(sT0), S(sT0), self.fg - self.fw), 's_add_u32 %s, %s, %s' % (S(sT0), S(sT0), S(sWave)),
             's_lshl_b32 %s, %s, %d' % (S(sT0), S(sT0), self.fw), 's_add_u32 %s, %s, %d' % (S(sT0), S(sT0), WS_HFLAG),
             ]
        if self.cfg.get('wown', 1):
            o.append('v_mov_b32 v250, %s' % S(sT0))
            offs = (0x20000, 0x40000, 0x30000, 0xa0000, 0x70000, 0x60000, 0x90000) if role else (0x20000, 0x60000, 0x90000)
            for k, x in enumerate(offs): o += ['s_add_u32 %s, %s, 0x%x' % (S(sT1), S(sT0), x), 'v_writelane_b32 v250, %s, %d' % (S(sT1), k+1)]
        else: o += ['v_min_u32 v250, %d, %s' % (10 if role else 13, L), 'v_lshlrev_b32 v250, 16, v250', 'v_add_u32 v250, %s, v250' % S(sT0)]
        if role == 0:
            o += [
                  's_lshl_b32 %s, %s, 4' % (S(sT0), S(sJ1)), 's_add_u32 %s, %s, %s' % (S(sT0), S(sT0), S(sC1)),
                  's_lshl_b32 %s, %s, 2' % (S(sT0), S(sT0)), 's_add_u32 %s, %s, %s' % (S(sT0), S(sT0), S(sWave)),
                  's_mul_i32 %s, %s, %d' % (S(sT0), S(sT0), self.EW), 's_add_u32 %s, %s, %d' % (S(sT0), S(sT0), WS_EBUF),
                  'v_and_b32 v251, 3, %s' % L, 'v_mul_u32_u24 v251, 104, v251', 'v_add_u32 v251, %s, v251' % S(sT0),
                  ['v_cmp_gt_u32 vcc, 16, %s' % L, 'v_cndmask_b32 v250, v251, v250, vcc'],
                  's_lshl_b32 %s, %s, 3' % (S(sT0), S(sC1)), 's_add_u32 %s, %s, %s' % (S(sT0), S(sT0), S(sJ1)),
                  's_lshl_b32 %s, %s, 2' % (S(sT0), S(sT0)), 's_add_u32 %s, %s, %s' % (S(sT0), S(sT0), S(sWave)),
                  's_lshl_b32 %s, %s, 6' % (S(sT0), S(sT0)), 's_add_u32 %s, %s, %d' % (S(sT0), S(sT0), WS_GATE),
                  'v_mov_b32 v251, %s' % S(sT0),
                  ['v_cmp_gt_u32 vcc, 20, %s' % L, 'v_cndmask_b32 v250, v251, v250, vcc']]
        if self.cfg.get('pages', 2):
            def lane(k, expr):
                return expr + ['v_writelane_b32 v250, %s, %d' % (S(sT0), k)]
            o += lane(32, ['s_mul_i32 %s, %s, %d' % (S(sT0), S(sC1), HMS), 's_add_u32 %s, %s, 0x%x' % (S(sT0), S(sT0), WS_H + (0 if role else 48*HKS))])
            o += lane(33, ['s_add_u32 %s, %s, %d' % (S(sT0), S(sT0), (48 if role else 40)*HKS - 128)])
            if self.cfg.get('pb2', 1): o += lane(34, ['s_mul_i32 %s, %s, %d' % (S(sT0), S(sJ1), MST), 's_add_u32 %s, %s, 0x%x' % (S(sT0), S(sT0), WS_B2 + (0 if role else 48*KST))])
            if self.cfg.get('pb2', 1): o += lane(35, ['s_add_u32 %s, %s, %d' % (S(sT0), S(sT0), (48 if role else 40)*KST - 128)])
            o += lane(36, ['s_mul_i32 %s, %s, 20480' % (S(sT0), S(sIdx)), 's_add_u32 %s, %s, 0x%x' % (S(sT0), S(sT0), WS_X + 4096)])
            o += lane(37, ['s_add_u32 %s, %s, %d' % (S(sT0), S(sT0), 128*20480)])
        o.append('buffer_load_dword v251, v250, %s, 0 offen sc1' % S(sWS, 4))
        if role == 0 and self.cfg.get('wgd', 0) == 1:
            o += ['v_min_u32 v248, 9, %s' % L, 'v_lshlrev_b32 v248, 7, v248',
                  'global_load_dword v243, v248, %s' % S(pGate, 2), 'global_load_dword v242, v248, %s' % S(pDsk, 2)]
        if self.cfg.get('pages', 2) >= 2:
            o += ['s_mul_i32 %s, %s, %d' % (S(sT0), S(sC1), 128*2560), 's_add_u32 %s, %s, %d' % (S(sT0), S(sT0), (1-role)*64*2560),
                  'v_and_b32 v249, 1, %s' % L, 'v_mul_u32_u24 v249, %d, v249' % (63*2560), 'v_add_u32 v249, %s, v249' % S(sT0),
                  'global_load_dword v241, v249, %s' % S(pOut, 2)]
        return o

    def rewarm(self, role, t):
        offs = [self.hoff(role, l, 1) for l in range(3 if role else 1)]
        o = []
        for k in offs: o.append(['s_mov_b32 %s, 0x%x' % (S(sKt), k), 'buffer_load_dword %s, %s, %s, %s offen sc1 ; result unused' % (V(t), V(vFa), S(sWS, 4), S(sKt))])
        return o

    def pack_poll_issue(self, vPp, vD):
        self.g('buffer_load_dword %s, %s, %s, 0 offen sc1' % (V(vD), V(vPp), S(sWS, 4)))
    def pack_poll_check(self, vPp, vD):
        if self.cfg.get('nopoll'): return
        self.poll('pk', lambda: self.pack_poll_issue(vPp, vD), self.check_eq([vD]))

    def x_dma_addr(self, vXd, perm):
        g = self.g
        g('s_lshl_b32 %s, %s, 2' % (S(sT0), S(sC1)))
        g('s_add_u32 %s, %s, %s' % (S(sT0), S(sT0), S(sWave)))
        g('s_mul_i32 %s, %s, %d' % (S(sT0), S(sT0), 32*1280))
        if perm:
            g('v_lshrrev_b32 %s, 5, %s' % (V(vT[3]), V(vLane)))
            g('v_and_b32 %s, 1, %s' % (V(vT[4]), V(vT[0])))
            g('v_lshl_add_u32 %s, %s, 1, %s' % (V(vT[3]), V(vT[3]), V(vT[4])))
            g('v_and_b32 %s, 1, %s' % (V(vT[4]), V(vT[2])))
            g('v_lshl_add_u32 %s, %s, 2, %s' % (V(vT[3]), V(vT[3]), V(vT[4])))
            g('v_mul_u32_u24 %s, 1280, %s' % (V(vT[3]), V(vT[3])))
        else:
            g('v_mul_u32_u24 %s, 1280, %s' % (V(vT[3]), V(vT[0])))
        g('v_xor_b32 %s, %s, %s' % (V(vT[4]), V(vT[1]), V(vT[2])))
        g('v_lshlrev_b32 %s, 4, %s' % (V(vT[4]), V(vT[4])))
        g('v_xor_b32 %s, 64, %s' % (V(vT[5]), V(vT[4])))
        g('v_add3_u32 %s, %s, %s, %s' % (V(vXd[0]), V(vT[4]), V(vT[3]), S(sT0)))
        g('v_add3_u32 %s, %s, %s, %s' % (V(vT[5]), V(vT[5]), V(vT[3]), S(sT0)))
        for q in range(1, 4):
            rows = (16*(q & 1) + 2*(q >> 1)) if perm else 8*q
            g('v_add_u32 %s, %d, %s' % (V(vXd[q]), rows*1280 - 1024*q, V(vT[5] if q & 1 else vXd[0])))

    def ffn(self):
        g = self.g; cfg = self.cfg
        ACC = [16, 48]
        WF = 80; NF = 10
        EP = 120
        PKR = 128
        vXd = [144, 145, 146, 147]; vWd = [148, 149]; vXr = [150, 151, 152, 153]; vWr = [154, 155]; vHs = 156
        vPr, vPs, vPp, vPd = 157, 158, 159, 13
        vWrB = [150, 151]
        def wslot(t):
            if t < 16: return F_WR + (t % 8)*8192
            if t < 24: return (t-16)*8192
            return F_WR + (t-24)*8192
        LA = cfg.get('fla', 7); WE = cfg.get('fwe', 4); XL0 = cfg.get('f_xl', 4)
        self.x_dma_addr(vXd, False)
        g('v_and_b32 %s, 1, %s' % (V(vT[3]), V(vT[2])))
        g('v_lshlrev_b32 %s, 2, %s' % (V(vT[3]), V(vT[3])))
        g('v_xor_b32 %s, %s, %s' % (V(vT[3]), V(vT[1]), V(vT[3])))
        g('v_mul_u32_u24 %s, 3072, %s' % (V(vT[4]), V(vT[0])))
        g('v_lshl_add_u32 %s, %s, 4, %s' % (V(vT[3]), V(vT[3]), V(vT[4])))
        g('s_mul_i32 %s, %s, %d' % (S(sT0), S(sWave), 16*3072))
        g('v_add_u32 %s, %s, %s' % (V(vWd[0]), S(sT0), V(vT[3])))
        g('v_add_u32 %s, %d, %s' % (V(vWd[1]), 8*3072 - 1024, V(vWd[0])))
        g('s_mul_i32 %s, %s, 20480' % (S(sMx), S(sWave)))
        g('s_lshl_b32 %s, %s, 11' % (S(sMw), S(sWave)))
        g('s_mul_i32 %s, %s, 384' % (S(sWo), S(sJ1)))
        g.do(self.srd_cst(sW, 640*3072))
        g('s_mov_b32 %s, %s' % (S(sKt), S(sKb[0])))
        tokX = {}; tokW = {}
        def dma_x(s):
            def mk(q):
                def f():
                    tokX[s] = g('buffer_load_dwordx4 %s, %s, %s offen offset:%d%s lds' % (V(vXd[q]), S(sX, 4), S(sKb[s]), 1024*q, (' nt' if s < cfg.get('nt0', 0) else '')))
                return F(f)
            return ['s_add_u32 m0, %s, %d' % (S(sMx), (s % 5)*4096)] + [mk(q) for q in range(4)]
        def dma_w(t):
            o = ['s_add_u32 m0, %s, %d' % (S(sMw), wslot(t))]
            k = sKb[t % 10]
            if t < 10: o += ['s_mul_i32 %s, %s, 1536' % (S(k), S(k)), 's_add_u32 %s, %s, %s' % (S(k), S(k), S(sWo))]
            if t in (10, 20): o += ['v_add_u32 %s, 128, %s' % (V(r), V(r)) for r in vWd]
            nt = ' nt' if t < cfg.get('nt0', 0) else ''
            o.append('buffer_load_dwordx4 %s, %s, %s offen%s lds' % (V(vWd[0]), S(sW, 4), S(k), nt))
            def f():
                tokW[t] = g('buffer_load_dwordx4 %s, %s, %s offen offset:1024%s lds' % (V(vWd[1]), S(sW, 4), S(k), nt))
            return o + [F(f)]
        self.touch_addr()
        self.ptrs_ready()
        g.do(self.srd_ptr(sW, pW1))
        if cfg.get('coop_first', 1): self.touch()
        g.do(dma_x(0) + dma_w(0))
        for s in range(1, 10): g.do(self.kb(s, sKt))
        DU = cfg.get('duty', 0); vD, dD = 240, 241
        if DU:
            g.do(self.duty_setup(1, vD, sP2) + self.duty_srd(1, sP2))
            for s in range(cfg.get('du0', 1), min(10, XL0 + DU)): g.do(self.duty(1, s, vD, sP2, dD))
        g.do(dma_x(1) + dma_w(1))
        g.do(self.srd_ptr(sWS, pWs))
        g('s_load_dword %s, %s, 0' % (S(sNonce), S(pWs, 2)))
        WA = cfg.get('wat', (-1, -1))[1]; wf = self.warm_flags(1)
        isld = lambda x: isinstance(x, str) and '_load_' in x
        g.do(wf if WA < 0 else [x for x in wf if not isld(x)])
        g('v_and_b32 %s, 31, %s' % (V(vT[3]), V(vLane)))
        g('v_bfe_u32 %s, %s, 1, 3' % (V(vT[4]), V(vLane)))
        g('v_lshrrev_b32 %s, 5, %s' % (V(vT[7]), V(vLane)))
        g('v_xor_b32 %s, %s, %s' % (V(vT[4]), V(vT[4]), V(vT[7])))
        g('v_lshlrev_b32 %s, 4, %s' % (V(vT[4]), V(vT[4])))
        g('v_lshl_add_u32 %s, %s, 7, %s' % (V(vT[4]), V(vT[3]), V(vT[4])))
        g('v_add_u32 %s, %s, %s' % (V(vXr[0]), S(sMx), V(vT[4])))
        for ks in range(1, 4):
            g('v_xor_b32 %s, %d, %s' % (V(vXr[ks]), 32*ks, V(vXr[0])))
        g('v_bfe_u32 %s, %s, 2, 2' % (V(vT[4]), V(vLane)))
        g('v_lshl_add_u32 %s, %s, 3, %s' % (V(vT[6]), V(vT[7]), V(vT[4])))
        g('v_lshlrev_b32 %s, 7, %s' % (V(vT[6]), V(vT[6])))
        g('v_lshrrev_b32 %s, 1, %s' % (V(vT[4]), V(vT[4])))
        g('v_lshl_add_u32 %s, %s, 6, %s' % (V(vT[6]), V(vT[4]), V(vT[6])))
        g('v_bfe_u32 %s, %s, 4, 1' % (V(vT[4]), V(vLane)))
        g('v_lshl_add_u32 %s, %s, 5, %s' % (V(vT[6]), V(vT[4]), V(vT[6])))
        g('v_and_b32 %s, 3, %s' % (V(vT[4]), V(vLane)))
        g('v_lshl_add_u32 %s, %s, 3, %s' % (V(vT[6]), V(vT[4]), V(vT[6])))
        g('v_add_u32 %s, %d, %s' % (V(vWr[0]), F_WR, V(vT[6])))
        g('v_xor_b32 %s, 64, %s' % (V(vWr[1]), V(vWr[0])))
        global sWs2
        sWs2 = 43
        CF_ = cfg.get('cpk')
        if CF_:
            g.do(self.pack_addr(0, vPs, vPr, None))
            if len(CF_) == 2: self.pack_load(0, vPs)
        pk0 = cfg.get('pk', (4,))[0] < 2
        if pk0: g.do(self.pack_addr(1, vPs, vPr, None))
        if cfg.get('pk', (4,))[0] < 0: self.pack_load(1, vPs)
        XL = cfg.get('f_xl', 4); FU = cfg.get('f_up', XL)
        for s in range(2, FU): g.do(dma_x(s) + dma_w(s))
        self.stamp(1)
        setup = ([] if pk0 else self.pack_addr(1, vPs, vPr, None)) + self.nonce_ops() + self.late_setup(1, vT[0], vT[1], vPp)
        n_late = len(setup)
        setup += self.hbase(6, 0) + [
            'v_bfe_u32 %s, %s, 4, 1' % (V(vT[0]), V(vLane)), 'v_lshlrev_b32 %s, 10, %s' % (V(vT[0]), V(vT[0])),
            'v_lshl_add_u32 %s, %s, 9, %s' % (V(vT[0]), V(vT[7]), V(vT[0])), 'v_and_b32 %s, 15, %s' % (V(vT[1]), V(vLane)),
            'v_lshl_add_u32 %s, %s, 4, %s' % (V(vT[0]), V(vT[1]), V(vT[0])), 'v_add_u32 %s, %s, %s' % (V(vHs), S(sKt), V(vT[0])),
            's_mov_b32 %s, 0x%x' % (S(sNl), NLOG2E)]
        setup += self.ks_table(1)
        xld = []
        if self.XR:
            xa, xld = self.xd_loads(vT[0], 200); setup += xa

        mains = []; fixed = []
        tokF = {}; tokXr = {}
        def rd_x(s, ks):
            def f(): tokXr[s] = g('ds_read_b128 %s, %s offset:%d' % (A(16*s + 4*ks, 4), V(vXr[ks]), (s % 5)*4096))
            return F(f)
        def rd_w(n, e):
            sg, ks, u = n // 8, (n % 8)//2, n % 2
            def f():
                tokF[n] = g('ds_read_b64_tr_b16 %s, %s offset:%d' % (V(WF + 4*(n % NF) + 2*e, 2), V(vWrB[u] if 16 <= sg < 24 else vWr[u]), wslot(sg) % F_WR + (16*ks + 4*e)*128))
            return F(f)
        def bar(sg, both):
            def f():
                g.wait(tokX.get(sg), tokW[sg+1 if both else sg], tokXr.get(sg-1) if XL == 4 else None)
                g('s_barrier')
                if sg == 0: self.stamp(2)
                if sg == 10: self.stamp(3)
                if sg == 20: self.stamp(4)
                if sg in (3, 5, 7, 12, 16, 26): self.stamp(20 + (3, 5, 7, 12, 16, 26).index(sg), lvl=3)
            return F(f, 8)
        for n in range(240):
            sg, ks, u = n // 8, (n % 8)//2, n % 2
            grp, s = sg // 10, sg % 10
            acc = ACC[grp % 2] + 16*u
            c = '0' if (s == 0 and ks == 0) else V(acc, 16)
            mains.append(('v_mfma_f32_32x32x16_bf16 %s, %s, %s, %s' % (V(acc, 16), V(WF + 4*(n % NF), 4), A(16*s + 4*ks, 4), c),
                          (lambda n=n: [tokF[min(n+WE-1, 239)]]) if n % WE == 0 else None))
        wsched = {}
        if XL == 3:
            for sg in range(7): wsched[sg] = [sg+3]
            wsched[7] = [10, 11]; wsched[8] = [12, 13]; wsched[9] = [14]; wsched[10] = [15]
        else:
            for sg in range(6): wsched[sg] = [sg+4]
            wsched[6] = [10, 11]; wsched[7] = [12, 13]; wsched[8] = [14]; wsched[9] = [15]
        ws_ = cfg.get('wsch', 2) if XL == 4 else 0
        if ws_ == 0: wsched[12] = [16, 17, 18, 19]; wsched[14] = [20, 21, 22]; wsched[16] = [23, 24, 25]; wsched[18] = [26, 27]; wsched[20] = [28, 29]
        if ws_ == 1: wsched[10] = [16, 17, 18, 19]; wsched[12] = [20, 21, 22, 23]; wsched[14] = [24, 25, 26, 27]; wsched[16] = [28, 29]
        if ws_ == 2: wsched[10] = [16, 17, 18]; wsched[12] = [19, 20, 21]; wsched[14] = [22, 23, 24]; wsched[16] = [25, 26, 27]; wsched[18] = [28, 29]
        endb = {}
        for sg in range(30):
            if sg >= 10 and sg % 2: continue
            p = 8*sg - LA
            fixed.append((p - 0.5, bar(sg, sg >= 10)))
            d = []
            if DU and sg + XL + DU <= 9: d += self.duty(1, sg + XL + DU, vD, sP2, dD)
            if sg == 0:
                for s in range(max(FU, 2), XL): d += dma_x(s) + dma_w(s)
            if sg + XL <= 9: d += dma_x(sg+XL)
            for t in wsched.get(sg, []): d += dma_w(t)
            stp = min(0.5, 6.5/max(len(d), 1)) if sg < 10 else 15.0/max(len(d), 1)
            for i, f in enumerate(d): fixed.append((p + 0.6 + i*stp, f))
            endb[sg] = p + 0.6 + len(d)*stp
        for u in range(2): fixed.append((90 + u, 'v_subrev_u32 %s, %d, %s' % (V(vWrB[u]), F_WR, V(vWr[u]))))
        if cfg.get('w1warm', 0):
            fixed.append((endb[cfg.get('w1warm_at', 1)], ['s_lshl_b32 %s, %s, 2' % (S(sT0), S(sC1)), 's_add_u32 %s, %s, %s' % (S(sT0), S(sT0), S(sWave)),
                 's_mul_i32 %s, %s, %d' % (S(sT0), S(sT0), 10*3072), 's_add_u32 %s, %s, %s' % (S(sT0), S(sT0), S(sWo)),
                 'v_min_u32 %s, 19, %s' % (V(vT[8]), V(vLane)), 'v_lshrrev_b32 %s, 1, %s' % (V(vPd), V(vT[8])),
                 'v_mul_u32_u24 %s, 3072, %s' % (V(vPd), V(vPd)), 'v_and_b32 %s, 1, %s' % (V(vT[8]), V(vT[8])),
                 'v_lshl_add_u32 %s, %s, 7, %s' % (V(vPd), V(vT[8]), V(vPd)),
                 'buffer_load_dword %s, %s, %s, %s offen offset:128 sc1' % (V(vT[8]), V(vPd), S(sW, 4), S(sT0))]))
        for n in range(240):
            if n < 80 and n % 2 == 0:
                s, ks = n//8, (n % 8)//2
                fixed.append((8*s - LA + ks if XL == 4 else n - LA, rd_x(s, ks)))
            fixed.append((n - LA, rd_w(n, 0))); fixed.append((n - LA, rd_w(n, 1)))
        if WA >= 0: fixed.append((endb[WA], [x for x in wf if isld(x)]))
        cl, cr, cf, pp = cfg.get('pk', (4, 8, 12, 22))
        at = lambda sg: endb[sg] if sg < 10 else 8*sg - LA + 0.2
        s_from = 0
        if CF_:
            if len(CF_) == 3:
                fixed.append((endb[CF_[0]], F(lambda: self.pack_load(0, vPs), 32))); CF_ = CF_[1:]
            ca, cb = self.pack_proc(0, vPr); tC = []
            for i, f in enumerate(ca): fixed.append((endb[CF_[0]] + 0.3*i, f))
            for i, f in enumerate(cb): fixed.append((endb[CF_[0]] + 4 + 0.3*i, f))
            fixed.append((endb[CF_[0]] + 5.5, F(lambda: tC.append(self.tPackSt), 0)))
            s_from = int(endb[CF_[0]]) + 7
            fixed.append((at(CF_[1]), F(lambda: (sA.flush(g), g('v_subrev_u32 v162, %d, %s' % (128 << self.fg, V(vFa))), self.flag_store(tC[0], sPD, 162)), 12)))
            assert not pk0 and CF_[1] <= cr
        if cl >= 0: fixed.append((endb[cl], F(lambda: self.pack_load(1, vPs), 36)))
        pa_, pb_ = self.pack_proc(1, vPr)
        for i, f in enumerate(pa_): fixed.append((at(cr) + 0.5*i, f))
        for i, f in enumerate(pb_): fixed.append((at(cr) + 8 + 0.5*i, f))
        fixed.append((at(cf), F(lambda: self.flag_store(self.tPackSt, sPD), 8)))
        if pp < 30:
            fixed.append((at(pp-2), F(lambda: self.pack_poll_issue(vPp, vPd))))
            fixed.append((at(pp), F(lambda: self.pack_poll_check(vPp, vPd), 20)))
        else:
            fixed.append((228, F(lambda: self.pack_poll_issue(vPp, vPd))))
        b2 = self.b2_loads(1, range(4 if cfg.get('f_nob2') else 12))
        nb_in = 0; p = at(pp) + 2 if pp < 30 else 999
        while nb_in < min(len(b2), cfg.get('f_b2in', 20)):
            st_, nt_ = nb_in // 5, nb_in % 5
            if st_ >= 4: p = max(p, 160 + 8*((20*(st_-4) + 4*nt_ + 3)//16) + 9)
            if p > 238: break
            fixed.append((p, b2[nb_in])); nb_in += 1; p += cfg.get('f_sp', 3.0)
        tU = {}
        def epi(grp):
            ops = []
            for u in range(2):
                acc = ACC[grp % 2] + 16*u
                pk = PKR + 8*u
                def stage(r, k):
                    t = V(EP + (r % 8)); a = V(acc + r)
                    return ['v_mul_f32 %s, %s, %s' % (t, S(sNl), a), 'v_exp_f32 %s, %s' % (t, t), 'v_add_f32 %s, 1.0, %s' % (t, t),
                            'v_rcp_f32 %s, %s' % (t, t), 'v_mul_f32 %s, %s, %s' % (a, a, t)][k]
                for tm in range(16 + 6):
                    for k in (4, 3, 2, 1, 0):
                        r = tm - k
                        if 0 <= r < 16: ops.append(stage(r, k))
                    r = tm - 5
                    if 0 <= r < 16 and r % 2 == 1:
                        ops.append('v_cvt_pk_bf16_f32 %s, %s, %s' % (V(pk + r//2), V(acc + r - 1), V(acc + r)))
                        if r in (7, 15):
                            e = r // 8
                            def st(e=e, pk=pk, un=2*grp+u):
                                tU[un] = g('buffer_store_dwordx4 %s, %s, %s, 0 offen offset:%d%s' % (V(pk + 4*e, 4), V(vHs), S(sH, 4), 256*e, cfg.get('hst', ' sc1')))
                            ops.append(F(st))
                ops.append('v_add_u32 %s, %d, %s' % (V(vHs), HKS, V(vHs)))
            return ops
        pa = 24 if pk0 else min(40 if not CF_ else 99, int(at(cl)) - 1)
        if CF_: pa = min(pa, int(at(CF_[1])) - 1)
        sA = Stream(setup[:n_late], s_from, pa - 1)
        fixed.append((pa - 0.1, F(lambda: sA.flush(g), 0)))
        streams = [sA, Stream(setup[n_late:], pa, max(78, pa + 30)),
                   Stream(epi(0), 82, 158), Stream(epi(1), 162, 238)]
        if cfg.get('noepi'): streams = streams[:3]
        for i, f in enumerate(xld): fixed.append((cfg.get('f_xd', 150) + 1.6*i, f))
        fixed.append((max(at(cf) + 1, 150), self.line_addr(WS_HFLAG, vFa)))
        if cfg.get('rw'):
            for i, f in enumerate(self.rewarm(1, 242)): fixed.append((cfg['rw'][1] + 3*i, f))
        fixed.append((cfg.get('f_l0', 232), F(lambda: self.hflag(1, 0, tU[2]), 20)))
        sched(g, mains, 24, fixed, streams, report=self.rep and 'ffn')
        self.stamp(5)
        if pp >= 30: self.pack_poll_check(vPp, vPd)
        e2 = epi(2); k = cfg.get('f_hp0', 60)
        rest = mix(g, e2[:k] + self.hp_addr(1) + [F(lambda: self.hpoll(1, 0), 8)] + e2[k:], b2[nb_in:], every=cfg.get('f_pace', 72))
        self.hflag(1, 1, tU[3], 'l' if cfg.get('dg', 0) else 'lg')
        jl = cfg.get('f_jl', 0)
        if jl:
            nj = cfg.get('f_jb', 16)
            g.do(rest[:nj]); rest = rest[nj:]
            if jl == 2: self.hflag(1, 2, tU[5])
            self.hpoll(1, jl); self.hcheck(1, jl); self.hpoll(1, 0)
        self.stamp(6)
        self.phase2(1, rest, tU[5])

    def cpow(self, dst, a, th, n, t0, t1):
        if n is None:
            o = ['v_exp_f32 %s, %s' % (V(t0), V(a)), 'v_rndne_f32 %s, %s' % (V(t1), V(th)), 'v_sub_f32 %s, %s, %s' % (V(t1), V(th), V(t1))]
        else:
            o = ['v_mul_f32 %s, %s, %s' % (V(t0), n, V(a)), 'v_mul_f32 %s, %s, %s' % (V(dst), n, V(th)), 'v_exp_f32 %s, %s' % (V(t0), V(t0)),
                 'v_rndne_f32 %s, %s' % (V(t1), V(dst)), 'v_sub_f32 %s, %s, %s' % (V(t1), V(dst), V(t1))]
        return o + ['v_cos_f32 %s, %s' % (V(dst), V(t1)), 'v_sin_f32 %s, %s' % (V(dst+1), V(t1)),
                    'v_mul_f32 %s, %s, %s' % (V(dst), V(t0), V(dst)), 'v_mul_f32 %s, %s, %s' % (V(dst+1), V(t0), V(dst+1))]

    def ssm(self):
        g = self.g; cfg = self.cfg
        ACC = 16
        def acc(u, part, t): return ACC + 16*u + 8*part + t
        L1, CF, L4, L8S = 96, 98, 100, 102
        L8, L128, LK, vGrp = 136, 138, 214, 216
        def pk(op, d, c, hi, x, y=None, neg=False):
            n = 3 if y is not None else 2
            t = 'v_pk_%s_f32 %s, %s, %s' % (op, V(d, 2), V(c, 2), V(x, 2)) + (', %s' % V(y, 2) if y is not None else '')
            t += ' op_sel:[%d%s] op_sel_hi:[%d%s]' % (hi, ',0'*(n-1), hi, ',1'*(n-1))
            if neg: t += ' neg_lo:[1%s] neg_hi:[1%s]' % (',0'*(n-1), ',0'*(n-1))
            return t
        vXd = [140, 141, 142, 143]; vBd = [144, 145, 146, 147, 148]
        vXr = [149, 150]; vBr = [151, 152, 153, 154]
        vPidx = 155; vHs = 156
        vPr, vPs, vPp, vPd = 217, 218, 159, 13
        BIG = 160
        RAW = 160
        CH = cfg.get('s_ch', 0)
        aBF = 0; NF = 12 if CH else 14; aXF = 48 if CH else 56
        LA = cfg.get('sla', 4 if CH else 6); WE = cfg.get('swe', 2 if CH else 4); SL = cfg.get('s_sl', 3); RS = 1.4 if SL == 3 else 2.0
        g.label('L_ssm')
        self.x_dma_addr(vXd, True)
        g('s_and_b32 %s, %s, 1' % (S(sT1), S(sWave)))
        g('s_lshl_b32 %s, %s, 1' % (S(sT0), S(sJ1)))
        g('s_add_u32 %s, %s, %s' % (S(sT0), S(sT0), S(sT1)))
        g('s_mul_i32 %s, %s, %d' % (S(sT0), S(sT0), 40*1280))
        g('s_lshl_b32 %s, %s, 6' % (S(sT1), S(sT1)))
        g('v_xor_b32 %s, %s, %s' % (V(vT[4]), S(sT1), V(vT[4])))
        g('v_xor_b32 %s, 64, %s' % (V(vT[5]), V(vT[4])))
        g('v_mul_u32_u24 %s, 1280, %s' % (V(vT[3]), V(vT[0])))
        g('v_add3_u32 %s, %s, %s, %s' % (V(vBd[0]), V(vT[4]), V(vT[3]), S(sT0)))
        g('v_add3_u32 %s, %s, %s, %s' % (V(vT[5]), V(vT[5]), V(vT[3]), S(sT0)))
        for q in range(1, 5):
            g('v_add_u32 %s, %d, %s' % (V(vBd[q]), 8*q*1280 - 1024*(q & 3), V(vT[5] if q & 1 else vBd[0])))
        g('s_lshl_b32 %s, %s, 14' % (S(sMx), S(sWave)))
        g('s_mul_i32 %s, %s, 5120' % (S(sMw), S(sWave)))
        g('s_add_u32 %s, %s, %d' % (S(sMw), S(sMw), S_BR))
        g.do(self.srd_cst(sW, 819200))
        g.do(self.kb(1))
        tokS = {}
        def dma(s):
            o = ['s_add_u32 m0, %s, %d' % (S(sMx), (s % 4)*4096)]
            for q in range(4): o.append('buffer_load_dwordx4 %s, %s, %s offen offset:%d%s lds' % (V(vXd[q]), S(sX, 4), S(sKb[s]), 1024*q, (' nt' if s < cfg.get('nt0', 0) else '')))
            o.append('s_add_u32 m0, %s, %d' % (S(sMw), (s % 4)*20480))
            nt = ' nt' if s < cfg.get('nt0', 0) else ''
            for q in range(4): o.append('buffer_load_dwordx4 %s, %s, %s offen offset:%d%s lds' % (V(vBd[q]), S(sW, 4), S(sKb[s]), 1024*q, nt))
            o.append('s_add_u32 m0, %s, %d' % (S(sMw), (s % 4)*20480 + 4096))
            def f(): tokS[s] = g('buffer_load_dwordx4 %s, %s, %s offen%s lds' % (V(vBd[4]), S(sW, 4), S(sKb[s]), nt))
            return o + [F(f)]
        g('s_mul_i32 %s, %s, 160' % (S(sT0), S(sJ1)))
        g('v_mul_u32_u24 %s, 13, %s' % (V(vGrp), V(vLane)))
        g('v_lshrrev_b32 %s, 8, %s' % (V(vGrp), V(vGrp)))
        g('v_mul_u32_u24 %s, 20, %s' % (V(vPidx), V(vGrp)))
        g('v_sub_u32 %s, %s, %s' % (V(vPidx), V(vLane), V(vPidx)))
        g('s_mul_i32 %s, %s, 20' % (S(sT1), S(sWave)))
        g('v_add_u32 %s, %s, %s' % (V(vPidx), S(sT1), V(vPidx)))
        g('v_lshl_add_u32 %s, %s, 1, %s' % (V(vT[6]), V(vPidx), S(sT0)))
        self.ptrs_ready()
        g('s_cmp_lt_u32 %s, 2' % S(sWave))
        g('s_cselect_b32 %s, %s, %s' % (S(sW), S(pBre), S(pBim)))
        g('s_cselect_b32 %s, %s, %s' % (S(sW+1), S(pBre+1), S(pBim+1)))
        g.do(dma(0))
        for k, p in enumerate((pLre, pLim, pLdt)): g('global_load_ushort %s, %s, %s' % (V(RAW + k), V(vT[6]), S(p, 2)))
        g.do(self.srd_ptr(sWS, pWs))
        g('s_load_dword %s, %s, 0' % (S(sNonce), S(pWs, 2)))
        d1 = dma(1); n1 = cfg.get('s_n1', 5)
        g.do(d1[:n1])
        g('s_branch L_ssm2')
        g.label('L_ssm2')
        for s in range(2, 10): g.do(self.kb(s))
        DU = cfg.get('duty', 0); vD, dD = 157, 158
        if DU:
            g.do(self.duty_setup(0, vD, sOUT) + self.duty_srd(0, sOUT))
            for s in range(cfg.get('du0', 1), min(10, SL + DU)): g.do(self.duty(0, s, vD, sOUT, dD))
        WA = cfg.get('wat', (-1, -1))[0]; wf = self.warm_flags(0)
        isld = lambda x: isinstance(x, str) and '_load_' in x
        if WA >= 0: wf = [x.replace(S(pOut, 2), S(42, 2)) if isld(x) else x for x in wf] + self.srd_ptr(42, pOut)
        g.do(wf if WA < 0 else [x for x in wf if not isld(x)])
        global sWs2
        sWs2 = 93
        sl_, sr_, sf_ = cfg.get('spk', (-1, 1, 4))
        own = not cfg.get('cpk')
        if own:
            g.do(self.pack_addr(0, vPs, vPr, None))
            if sl_ < 0: self.pack_load(0, vPs)
        g('v_and_b32 %s, 15, %s' % (V(vT[3]), V(vLane)))
        g('v_bfe_u32 %s, %s, 1, 3' % (V(vT[4]), V(vLane)))
        g('v_xor_b32 %s, %s, %s' % (V(vT[4]), V(vT[4]), V(vT[2])))
        g('v_lshlrev_b32 %s, 4, %s' % (V(vT[4]), V(vT[4])))
        g('v_lshl_add_u32 %s, %s, 7, %s' % (V(vT[4]), V(vT[3]), V(vT[4])))
        g('v_add_u32 %s, %s, %s' % (V(vXr[0]), S(sMx), V(vT[4])))
        g('v_xor_b32 %s, 64, %s' % (V(vXr[1]), V(vXr[0])))
        g('v_add_u32 %s, %d, %s' % (V(vBr[0]), S_BR, V(vT[4])))
        g('v_xor_b32 %s, 64, %s' % (V(vBr[1]), V(vBr[0])))
        g('v_add_u32 %s, 40960, %s' % (V(vBr[2]), V(vBr[0])))
        g('v_add_u32 %s, 40960, %s' % (V(vBr[3]), V(vBr[1])))
        PT = BIG + 20
        L_PAR = L_EX + 11264
        setup = self.late_setup(0, vT[0], vT[1], vPp) + self.hbase(5, 48*HKS) + ['v_add_u32 %s, %s, %s' % (V(vHs), S(sKt), V(vL16))]
        setup += self.ks_table(0)
        setup += ['s_lshl_b32 %s, %s, 2' % (S(sT2), S(sWave)), 'v_add_u32 %s, %s, %s' % (V(vT[2]), S(sT2), V(vT[2])),
               'v_lshlrev_b32 %s, 3, %s' % (V(PT), V(vT[2])), 'v_cvt_f32_u32 %s, %s' % (V(PT), V(PT)),
               'v_mul_u32_u24 %s, 640, %s' % (V(vT[2]), V(vT[2])),
               'v_lshlrev_b32 %s, 5, %s' % (V(vT[7]), V(vT[3])), 'v_add_u32 %s, %d, %s' % (V(vT[7]), L_PAR, V(vT[7])),
               'v_lshlrev_b32 %s, 5, %s' % (V(vT[6]), V(vPidx)), 'v_add_u32 %s, %d, %s' % (V(vT[6]), L_PAR, V(vT[6])),
               'v_lshlrev_b32 %s, 3, %s' % (V(vT[3]), V(vT[3])), 'v_add_u32 %s, %d, %s' % (V(vT[3]), L_EX, V(vT[3])),
               'v_add_u32 %s, %s, %s' % (V(vT[2]), V(vT[2]), V(vT[3])),
               'v_lshlrev_b32 %s, 3, %s' % (V(vT[4]), V(vPidx)), 'v_add_u32 %s, %d, %s' % (V(vT[4]), L_EX, V(vT[4])),
               's_mul_i32 %s, %s, %d' % (S(sT2), S(sJ1), 64*self.EW), 's_mul_i32 %s, %s, %d' % (S(sCo), S(sWave), self.EW - 320),
               's_add_u32 %s, %s, %s' % (S(sT2), S(sT2), S(sCo)), 's_add_u32 %s, %s, %d' % (S(sT2), S(sT2), WS_EBUF),
               'v_lshlrev_b32 %s, 4, %s' % (V(vT[5]), V(vPidx)), 'v_add_u32 %s, %s, %s' % (V(vT[5]), S(sT2), V(vT[5])),
               's_mul_i32 %s, %s, %d' % (S(sCo), S(sC1), 4*self.EW),
               'v_mul_u32_u24 %s, 640, %s' % (V(PT+1), V(vGrp)), 'v_cvt_f32_u32 %s, %s' % (V(PT+1), V(PT+1))]
        xdl = self.xd_loads(PT + 5)
        if cfg.get('s_xd', 250) < 0 and self.XR == 0: setup += xdl
        g.do(setup)
        g.do(d1[n1:])
        UP = cfg.get('s_up', 2)
        if UP == 3: g.do(dma(2))
        self.stamp(1)
        lr, li, ld = RAW, RAW + 1, RAW + 2
        Q = RAW + 4; l1, cf, l4, a, th = Q, Q+2, Q+4, Q+6, Q+7
        t0, t1, t2, t3 = PT+2, PT+3, PT+4, RAW+3
        par = ['v_lshlrev_b32 %s, 16, %s' % (V(ld), V(ld)), 'v_mul_f32 %s, 0x%x, %s' % (V(ld), LOG2E, V(ld)),
               'v_exp_f32 %s, %s' % (V(ld), V(ld)), 'v_lshlrev_b32 %s, 16, %s' % (V(lr), V(lr)),
               'v_cvt_pk_bf16_f32 %s, %s, %s' % (V(ld), V(ld), V(ld)), 'v_lshlrev_b32 %s, 16, %s' % (V(li), V(li)),
               'v_lshlrev_b32 %s, 16, %s' % (V(ld), V(ld)),
               'v_mul_f32 %s, %s, %s' % (V(a), V(ld), V(lr)), 'v_mul_f32 %s, %s, %s' % (V(th), V(ld), V(li)),
               'v_mul_f32 %s, 0x%x, %s' % (V(a), LOG2E, V(a)), 'v_mul_f32 %s, 0.15915494, %s' % (V(th), V(th))]
        par += self.cpow(l1, a, th, None, t0, t1)
        par += ['v_mul_f32 %s, %s, %s' % (V(t2), V(lr), V(lr)), 'v_fmac_f32 %s, %s, %s' % (V(t2), V(li), V(li)),
                'v_rcp_f32 %s, %s' % (V(t2), V(t2)), 'v_add_f32 %s, -1.0, %s' % (V(t3), V(l1)),
                'v_mul_f32 %s, %s, %s' % (V(t0), V(l1), V(l1)), 'v_mul_f32 %s, %s, %s' % (V(t1), V(l1), V(l1+1)),
                'v_mul_f32 %s, %s, %s' % (V(cf), V(t3), V(lr)), 'v_add_f32 %s, %s, %s' % (V(t2), V(t2), V(t2)),
                'v_fmac_f32 %s, %s, %s' % (V(cf), V(l1+1), V(li)), 'v_mul_f32 %s, %s, %s' % (V(cf+1), V(l1+1), V(lr)),
                'v_fma_f32 %s, -%s, %s, %s' % (V(cf+1), V(t3), V(li), V(cf+1)),
                'v_mul_f32 %s, %s, %s' % (V(cf), V(cf), V(t2)), 'v_mul_f32 %s, %s, %s' % (V(cf+1), V(cf+1), V(t2)),
                'v_fma_f32 %s, -%s, %s, %s' % (V(t0), V(l1+1), V(l1+1), V(t0)), 'v_add_f32 %s, %s, %s' % (V(t1), V(t1), V(t1)),
                'v_mul_f32 %s, %s, %s' % (V(l4), V(t0), V(t0)), 'v_mul_f32 %s, %s, %s' % (V(l4+1), V(t0), V(t1)),
                'v_fma_f32 %s, -%s, %s, %s' % (V(l4), V(t1), V(t1), V(l4)), 'v_add_f32 %s, %s, %s' % (V(l4+1), V(l4+1), V(l4+1))]
        par += self.cpow(L8, a, th, '0x41000000', t0, t1) + self.cpow(L128, a, th, '0x43000000', t0, t1)
        par += self.cpow(LK, a, th, V(PT+1), t0, t1)
        par_w = ['ds_write_b128 %s, %s' % (V(vT[6]), V(Q, 4)), 'ds_write_b128 %s, %s offset:16' % (V(vT[6]), V(Q+4, 4))]
        par_r = ['ds_read_b128 %s, %s offset:%d' % (V(L1 + 8*u + 4*h, 4), V(vT[7]), 512*u + 16*h) for u in range(5) for h in range(2)]
        par2 = []
        for u in range(5): par2 += self.cpow(L8S + 8*u, L8S + 8*u, L8S + 8*u + 1, V(PT), t0, t1)

        mains = []; fixed = []
        tokF = {}; tokP = {}
        def rd_b(f_):
            sg, s, up = f_ // 20, (f_ % 20)//10, f_ % 10
            if CH: s, up = f_ % 2, (f_ % 20)//2
            u, part = up // 2, up % 2
            def f():
                if cfg.get('s_nord'): tokF[f_] = None; return
                tokF[f_] = g('ds_read_b128 %s, %s offset:%d' % (A(aBF + 4*(f_ % NF), 4), V(vBr[2*((sg % 4)//2) + s]), (sg % 2)*20480 + (part*80 + 16*u)*128))
            return F(f)
        def bar(sg):
            def f():
                g.wait(tokS[sg], tokF.get(20*sg-1) if (SL == 3 and sg + SL <= 9) else None, tokP.get(sg))
                g('s_barrier')
                if sg == 0: self.stamp(2)
                if sg in (2, 4, 6, 8, 9): self.stamp(20 + (2, 4, 6, 8, 9).index(sg), lvl=3)
                if cfg.get('allbar') and sg > 0: self.stamp(19 + sg)
            return F(f, 8)
        for n in range(400 if CH else 0):
            sg, up, m, s = n // 40, (n % 40)//4, (n % 4)//2, n % 2
            f_ = 20*sg + 2*up + s
            d = acc(up // 2, up % 2, 4*m)
            c = '0' if (sg == 0 and s == 0) else V(d, 4)
            mains.append(('v_mfma_f32_16x16x32_bf16 %s, %s, %s, %s' % (V(d, 4), A(aXF + 16*(sg % 2) + 8*s + 4*m, 4), A(aBF + 4*(f_ % NF), 4), c),
                          (lambda f_=f_: [tokF[min(f_+WE-1, 199)]]) if (n % 4 == 0 and f_ % WE == 0) else None))
        for n in range(0 if CH else 400):
            f_, m = n // 2, n % 2
            kk, up = f_ // 10, f_ % 10
            u, part = up // 2, up % 2
            d = acc(u, part, 4*m)
            c = '0' if kk == 0 else V(d, 4)
            mains.append(('v_mfma_f32_16x16x32_bf16 %s, %s, %s, %s' % (V(d, 4), A(aXF + 8*(kk % 2) + 4*m, 4), A(aBF + 4*(f_ % NF), 4), c),
                          (lambda f_=f_: [tokF[min(f_+WE-1, 199)]]) if (m == 0 and f_ % WE == 0) else None))
        endb = {}
        for sg in range(10):
            p = 40*sg - 2*LA
            fixed.append((p - 1.5, bar(sg)))
            if sg + SL <= 9:
                d = dma(sg+SL)
                if sg == 0 and UP < SL: d = dma(2) + d
                if DU and sg + SL + DU <= 9: d = self.duty(0, sg + SL + DU, vD, sOUT, dD) + d
                stp = 36.0/len(d) if len(d) > 12 else 2
                for i, f in enumerate(d): fixed.append((p + 1 + stp*i, f))
                endb[sg] = p + 1 + stp*len(d)
        for f_ in range(200):
            pos = 40*(f_//20) - 2*LA + RS*(f_ % 20)
            if CH and f_ % 20 == 0:
                sg = f_//20
                for s in range(2):
                    for m in range(2):
                        fixed.append((pos - 1 + 0.1*m + 1.2*s, 'ds_read_b128 %s, %s offset:%d' % (A(aXF + 16*(sg % 2) + 8*s + 4*m, 4), V(vXr[s]), (sg % 4)*4096 + 2048*m)))
            if f_ % 10 == 0 and not CH:
                kk = f_//10; sg, s = kk // 2, kk % 2
                for m in range(2):
                    fixed.append((max(pos - 1, 20*kk - 19) + 0.1*m, 'ds_read_b128 %s, %s offset:%d' % (A(aXF + 8*(kk % 2) + 4*m, 4), V(vXr[s]), (sg % 4)*4096 + 2048*m)))
            fixed.append((pos, rd_b(f_)))
        b2 = [] if cfg.get('s_nob2') else self.b2_loads(0, range(10))
        if own:
            if sl_ >= 0: fixed.append((endb[sl_], F(lambda: self.pack_load(0, vPs), 32)))
            pa_, pb_ = self.pack_proc(0, vPr)
            for i, f in enumerate(pa_): fixed.append((endb[sr_] - 12 + i, f))
            for i, f in enumerate(pb_): fixed.append((endb[sr_] + i, f))
            fixed.append((40*sf_ - 2*LA - 1.4, F(lambda: self.flag_store(self.tPackSt, sPD), 8)))
        if WA >= 0: fixed.append((endb[WA], [x for x in wf if isld(x)]))
        pw = max(sr_ + 1, 2)
        sA = Stream(self.nonce_ops() + par, 2, 40*pw - 2*LA - 3)
        def parw():
            sA.flush(g); tokP[pw+1] = g.do(par_w)
        fixed.append((40*pw - 2*LA + 2, F(parw, 8)))
        for i, f in enumerate(par_r): fixed.append((40*(pw+1) - 2*LA + 21 + 1.4*i, f))
        pc = cfg.get('s_pc', 300); nb_in = cfg.get('s_b2in', 30) if pc < 400 else 0
        fixed.append((pc - 40, F(lambda: self.pack_poll_issue(vPp, vPd))))
        if pc < 400: fixed.append((pc, F(lambda: self.pack_poll_check(vPp, vPd), 20)))
        streams = [Stream(b2[:nb_in], pc + 1, 398, paced=True, slack=4), sA,
                   Stream(self.line_addr(WS_HFLAG, vFa), 40*sf_, 40*sf_ + 20), Stream(par2, 40*(pw+2), 390)]
        if cfg.get('s_xd', 250) >= 0 and self.XR == 0: streams.append(Stream(xdl, cfg.get('s_xd', 250), cfg.get('s_xd', 250) + 100))
        if cfg.get('s_ht'):
            streams.append(Stream(['v_lshrrev_b32 v188, 4, %s' % V(vLane), 'v_lshlrev_b32 v188, 13, v188', 'v_and_b32 v189, 15, %s' % V(vLane),
                 'v_lshl_add_u32 v188, v189, 7, v188', 'v_sub_u32 v189, %s, %s' % (V(vHs), V(vL16)), 'v_add_u32 v188, v188, v189',
                 'buffer_load_dword v190, v188, %s, 0 offen' % S(sH, 4), 'v_and_b32 v191, 15, %s' % V(vLane), 'v_lshl_add_u32 v189, v191, 7, v189',
                 'v_add_u32 v189, %d, v189' % (4*HKS), 'buffer_load_dword v191, v189, %s, 0 offen' % S(sH, 4)], cfg['s_ht'], cfg['s_ht'] + 20))
        assert sf_ >= pw
        if cfg.get('rw'): fixed.append((cfg['rw'][0], self.rewarm(0, 158)))
        if cfg.get('wgd', 262) > 1:
            fixed.append((cfg.get('wgd', 262), ['v_min_u32 v157, 9, %s' % V(vLane), 'v_lshlrev_b32 v157, 7, v157']))
            fixed.append((cfg.get('wgd', 262) + 2, 'global_load_dword v158, v157, %s ; result unused' % S(pGate, 2)))
        vGa, vTe, GR = 140, 145, 180
        ops = ['v_mul_u32_u24 %s, 5, %s' % (V(vGrp), V(vGrp)), 'v_sub_u32 %s, %s, %s' % (V(vGrp), S(sC1), V(vGrp)),
               ['v_cmp_gt_u32 vcc, 60, %s' % V(vLane), 'v_cndmask_b32 %s, 0, %s, vcc' % (V(vGrp), V(vGrp))],
               'v_mul_i32_i24 %s, %d, %s' % (V(PT+5), 4*self.EW, V(vGrp)), 'v_add_u32 %s, %s, %s' % (V(PT+5), V(PT+5), V(vT[5])),
               'v_mov_b32 %s, 0x7f000000' % V(PT+6)]
        for i in range(5):
            ops += ['v_subrev_u32 %s, %d, %s' % (V(vGa+i), 4*self.EW*(i+1), V(PT+5)),
                    ['v_cmp_lt_i32 vcc, %d, %s' % (i, V(vGrp)), 'v_cndmask_b32 %s, %s, %s, vcc' % (V(vGa+i), V(PT+6), V(vGa+i)),
                     'v_cndmask_b32 %s, 0, %s, vcc' % (V(vTe+i), V(vFd))]]
        vTw, vTr = 220, 221
        ops += ['v_and_b32 %s, 15, %s' % (V(PT+5), V(vLane)), 'v_mul_u32_u24 %s, 80, %s' % (V(vTw), V(PT+5)),
                'v_lshrrev_b32 %s, 4, %s' % (V(vTr), V(vLane)), 'v_lshl_add_u32 %s, %s, 4, %s' % (V(vTw), V(vTr), V(vTw)),
                'v_add_u32 %s, %s, %s' % (V(vTw), S(sMx), V(vTw)),
                'v_bfe_u32 %s, %s, 2, 2' % (V(PT+6), V(vLane)), 'v_lshl_add_u32 %s, %s, 3, %s' % (V(vTr), V(vTr), V(PT+6)),
                'v_mul_u32_u24 %s, 80, %s' % (V(vTr), V(vTr)), 'v_and_b32 %s, 3, %s' % (V(PT+6), V(vLane)),
                'v_lshl_add_u32 %s, %s, 3, %s' % (V(vTr), V(PT+6), V(vTr)), 'v_add_u32 %s, %s, %s' % (V(vTr), S(sMx), V(vTr)),
                's_lshl_b32 %s, %s, 3' % (S(sT2), S(sC1)), 's_add_u32 %s, %s, %s' % (S(sT2), S(sT2), S(sJ1)), 's_lshl_b32 %s, %s, 4' % (S(sT2), S(sT2)),
                'v_lshrrev_b32 %s, 4, v0' % V(vT[8]), 'v_add_u32 %s, %s, %s' % (V(vT[8]), S(sT2), V(vT[8])),
                'v_lshlrev_b32 %s, 4, %s' % (V(vT[7]), V(PT+5)),
                'v_mul_u32_u24 %s, 1280, %s' % (V(vT[6]), V(vT[8])), 'v_add_u32 %s, %s, %s' % (V(vT[6]), V(vT[6]), V(vT[7]))]
        HS = cfg.get('hsplit', 0)
        if HS:
            ops += ['s_mov_b32 %s, %s' % (S(d+k), S(sH+k)) for d in (sP1, sP2) for k in (0, 1, 3)]
            ops += [['s_cmp_lt_u32 %s, 2' % S(sWave), 's_cselect_b32 %s, %d, 0' % (S(sP1+2), HMS), 's_cselect_b32 %s, 0, %d' % (S(sP2+2), HMS)]]
        if DU: ops += self.srd_ptr(sOUT, sPo) + self.srd_cst(sOUT, 2048*2560)
        streams.append(Stream(ops + self.hp_addr(0, sT2, sKt), 352, 396))
        b2 = b2[nb_in:]
        if cfg.get('s_nomf'): mains = [('s_nop 0', None)]*400; fixed = [f for f in fixed if not (isinstance(f[1], str) and 'ds_read' in f[1])]
        if cfg.get('s_nostream'): streams = [streams[0]]
        sched(g, mains, 8, fixed, streams, report=self.rep and 'ssm')
        self.stamp(3)

        pace = cfg.get('s_pace', 9999)
        II, EB, EM = 160, 180, 200
        pr = lambda u, part, k: ACC + 16*u + 8*part + 2*k
        ops = []
        for k in range(1, 4):
            src = lambda u, part: (pr(u, part, 0) if k == 1 else (II if k == 2 else EB) + 4*u + 2*part)
            dst = lambda u, part: (EB if k == 2 else II) + 4*u + 2*part
            for u in range(5):
                ops += [pk('fma', dst(u, 0), L1+8*u, 0, src(u, 0), pr(u, 0, k)), pk('fma', dst(u, 1), L1+8*u, 0, src(u, 1), pr(u, 1, k))]
            for u in range(5):
                ops += [pk('fma', dst(u, 0), L1+8*u, 1, src(u, 1), dst(u, 0), True), pk('fma', dst(u, 1), L1+8*u, 1, src(u, 0), dst(u, 1))]
        for u in range(5):
            ops += ['v_fma_f32 %s, %s, %s, %s' % (V(EM+2*u), V(L4+8*u), V(II+4*u), V(II+4*u+1)),
                    'v_fma_f32 %s, %s, %s, %s' % (V(EM+2*u+1), V(L4+8*u), V(II+4*u+2), V(II+4*u+3))]
        for u in range(5):
            ops += ['v_fma_f32 %s, -%s, %s, %s' % (V(EM+2*u), V(L4+8*u+1), V(II+4*u+2), V(EM+2*u)),
                    'v_fmac_f32 %s, %s, %s' % (V(EM+2*u+1), V(L4+8*u+1), V(II+4*u)),
                    'ds_write_b64 %s, %s offset:%d' % (V(vT[2]), V(EM + 2*u, 2), 128*u)]
        ops.append(F(lambda: (self.cst(17), g.waitcnt(lg=0), g('s_barrier'), self.cst(18))))
        P = BIG + 20
        for s in range(16): ops.append('ds_read_b64 %s, %s offset:%d' % (V(P + 2*s, 2), V(vT[4]), 640*s))
        ops += ['v_mov_b32 %s, %s' % (V(P+32), S(sNonce)), 'v_mov_b32 %s, %s' % (V(P+33), S(sNonce))]
        def cmad(a, c, b):
            return ['v_pk_fma_f32 %s, %s, %s, %s op_sel:[0,0,0] op_sel_hi:[0,1,1]' % (V(a, 2), V(c, 2), V(b, 2), V(a, 2)),
                    'v_pk_fma_f32 %s, %s, %s, %s op_sel:[1,1,0] op_sel_hi:[1,0,1] neg_lo:[1,0,0]' % (V(a, 2), V(c, 2), V(b, 2), V(a, 2))]
        for s in range(1, 16):
            if s == 1: ops.append(F(lambda: g.waitcnt(lg=10)))
            if s == 6: ops.append(F(lambda: g.waitcnt(lg=0)))
            ops += cmad(P + 2*s, L8, P + 2*(s-1))
        ops.append('buffer_store_dwordx4 %s, %s, %s, %s offen sc1' % (V(P+30, 4), V(vT[5]), S(sWS, 4), S(sCo)))
        if pc < 400: b2 = mix(g, ops, b2, every=cfg.get('s_pace1', 9999))
        else: g.do(ops)
        bE, bG, bH = cfg.get('s_burst', (0, 10, 0))
        if pc < 400: g.do(b2[:bE]); b2 = b2[bE:]
        self.stamp(4)
        ops = ['v_mov_b32 v154, 0', 'v_mov_b32 v155, 0', 'ds_write_b64 %s, v[154:155]' % V(vT[4]),
               'ds_write_b64 %s, v[154:155] offset:10240' % V(vT[4])]
        for s in range(1, 16): ops.append('ds_write_b64 %s, %s offset:%d' % (V(vT[4]), V(P + 2*(s-1), 2), 640*s))
        g.do(ops[:2] + ['s_mov_b64 exec, 0xfffff'] + ops[2:] + ['s_mov_b64 exec, -1'])
        self.cst(11)
        GQ = [180 + 4*i for i in range(10)]
        GX = lambda i: GQ[i//4] + i % 4
        GW = lambda i: GQ[5 + i//4] + i % 4
        gate_ld = []
        for i in range(5):
            gate_ld.append('buffer_load_dwordx4 %s, %s, %s, 0 offen offset:%d' % (V(GQ[i], 4), V(vT[6]), S(sX, 4), 256*i))
            gate_ld.append('global_load_dwordx4 %s, %s, %s offset:%d' % (V(GQ[5+i], 4), V(vT[7]), S(pGate, 2), 256*i))
        TT = 16
        Z = TT + 8; ONE = TT + 9
        ops = ['v_mov_b32 %s, 0' % V(Z), 'v_mov_b32 %s, 0x3f803f80' % V(ONE), 's_mov_b32 %s, 0xffff0000' % S(sT1)]
        for i in range(20):
            x, w = V(GX(i)), V(GW(i))
            a, b, c, d = (V(TT + k + 4*(i % 2)) for k in range(4))
            ops += ['v_lshlrev_b32 %s, 16, %s' % (a, x), 'v_and_b32 %s, %s, %s' % (b, S(sT1), x),
                    'v_lshlrev_b32 %s, 16, %s' % (c, w), 'v_and_b32 %s, %s, %s' % (d, S(sT1), w),
                    'v_mul_f32 %s, %s, %s' % (a, a, c), 'v_mul_f32 %s, %s, %s' % (b, b, d),
                    'v_cvt_pk_bf16_f32 %s, %s, %s' % (a, a, b),
                    'v_dot2_f32_bf16 %s, %s, %s, %s' % (V(Z), a, V(ONE), V(Z))]
        for k in (8, 4, 2, 1):
            ops.append('v_add_f32_dpp %s, %s, %s row_ror:%d row_mask:0xf bank_mask:0xf' % (V(Z), V(Z), V(Z), k))
        G4 = 32
        ops += ['v_cvt_pk_bf16_f32 %s, %s, %s' % (V(Z), V(Z), V(Z)), 'v_lshlrev_b32 %s, 16, %s' % (V(Z), V(Z)),
                'v_mul_f32 %s, 0x%x, %s' % (V(Z), NLOG2E, V(Z)), 'v_exp_f32 %s, %s' % (V(Z), V(Z)),
                'v_mov_b32 %s, %s' % (V(G4+1), S(sNonce)),
                'v_add_f32 %s, 1.0, %s' % (V(Z), V(Z)), 'v_rcp_f32 %s, %s' % (V(Z), V(Z)),
                'v_mov_b32 %s, %s' % (V(G4+3), S(sNonce)),
                'v_cvt_pk_bf16_f32 %s, %s, %s' % (V(Z), V(Z), V(Z)), 'v_lshlrev_b32 %s, 16, %s' % (V(G4), V(Z)),
                'v_sub_f32 %s, 1.0, %s' % (V(ONE), V(G4)),
                'v_cvt_pk_bf16_f32 %s, %s, %s' % (V(ONE), V(ONE), V(ONE)), 'v_lshlrev_b32 %s, 16, %s' % (V(G4+2), V(ONE)),
                'v_lshlrev_b32 %s, 4, %s' % (V(vT[8]), V(vT[8])), 'v_add_u32 %s, %d, %s' % (V(vT[8]), WS_GATE, V(vT[8])),
                'buffer_store_dwordx4 %s, %s, %s, 0 offen sc1' % (V(G4, 4), V(vT[8]), S(sWS, 4))]
        gate_ops = ops
        ops = []
        TT = 150
        for u in range(5):
            cf = CF + 8*u
            for k0 in (0, 2):
                for k in (k0, k0+1): ops.append(pk('mul', TT + 2*(k % 2), cf, 1, pr(u, 0, k)))
                for k in (k0, k0+1): ops.append(pk('mul', pr(u, 0, k), cf, 0, pr(u, 0, k)))
                for k in (k0, k0+1): ops.append(pk('fma', pr(u, 0, k), cf, 1, pr(u, 1, k), pr(u, 0, k), True))
                for k in (k0, k0+1): ops.append(pk('fma', pr(u, 1, k), cf, 0, pr(u, 1, k), TT + 2*(k % 2)))
            ops += ['v_mul_f32 %s, %s, %s' % (V(II+4*u+1), V(cf), V(II+4*u)), 'v_mul_f32 %s, %s, %s' % (V(II+4*u+3), V(cf), V(II+4*u+2)),
                    'v_fma_f32 %s, -%s, %s, %s' % (V(II+4*u+1), V(cf+1), V(II+4*u+2), V(II+4*u+1)),
                    'v_fmac_f32 %s, %s, %s' % (V(II+4*u+3), V(cf+1), V(II+4*u))]
        coef_ops = ops
        nc = cfg.get('s_gat', 20)
        g.do(coef_ops[:nc])
        self.stamp(5)
        def gather():
            for i in range(5):
                g('buffer_load_dwordx3 %s, %s, %s, 0 offen sc1' % (V(GR + 4*i, 3), V(vGa+i), S(sWS, 4)))
        def gcheck():
            for i in range(4, -1, -1):
                g('v_xor_b32 %s, %s, %s' % (V(GR+3 if i == 4 else GR+7), V(vTe+i), V(GR + 4*i + 2)))
                if i < 4: g('v_or_b32 %s, %s, %s' % (V(GR+3), V(GR+3), V(GR+7)))
            g('v_cmp_ne_u32 vcc, 0, %s' % V(GR+3))
            g('s_nop 0')
            g('s_cmp_eq_u64 vcc, 0')
        if pc >= 400: self.pack_poll_check(vPp, vPd)
        gather()
        g.do(b2[:bG]); b2 = b2[bG:]
        b2 = mix(g, coef_ops[nc:], b2, every=cfg.get('s_pace3', 9999))
        self.cst(12)
        if not cfg.get('x_noe'): self.poll('carry', gather, gcheck)
        self.stamp(6)
        ops = []
        for d in range(4, 0, -1): ops += cmad(GR + 4*(d-1), L128, GR + 4*d)
        ops += ['v_mul_f32 %s, %s, %s' % (V(GR+4), V(LK), V(GR)), 'v_mul_f32 %s, %s, %s' % (V(GR+5), V(LK), V(GR+1)),
                'v_fma_f32 %s, -%s, %s, %s' % (V(GR+4), V(LK+1), V(GR+1), V(GR+4)), 'v_fmac_f32 %s, %s, %s' % (V(GR+5), V(LK+1), V(GR)),
                'ds_add_f32 %s, %s offset:10240' % (V(vT[4]), V(GR+4)), 'ds_add_f32 %s, %s offset:10244' % (V(vT[4]), V(GR+5))]
        ops.append(F(lambda: (g.waitcnt(lg=0), g('s_barrier'))))
        SS, PP = 200, 210
        for u in range(5):
            ops.append('ds_read_b64 %s, %s offset:%d' % (V(SS + 2*u, 2), V(vT[3]), 10240 + 128*u))
            ops.append('ds_read_b64 %s, %s offset:%d' % (V(PP + 2*u, 2), V(vT[2]), 128*u))
        b2 = mix(g, ops, b2, every=pace)
        self.cst(13)
        ops = []
        for h in range(2):
            for u in range(5): ops.append(cmad(PP+2*u, L8S+8*u, SS+2*u)[h])
        for u in range(5):
            ops += ['v_mul_f32 %s, %s, %s' % (V(II+4*u), V(CF+8*u), V(PP+2*u)), 'v_mul_f32 %s, %s, %s' % (V(II+4*u+2), V(CF+8*u), V(PP+2*u+1))]
        for u in range(5):
            ops += ['v_fma_f32 %s, -%s, %s, %s' % (V(II+4*u), V(CF+8*u+1), V(PP+2*u+1), V(II+4*u)), 'v_fmac_f32 %s, %s, %s' % (V(II+4*u+2), V(CF+8*u+1), V(PP+2*u))]
        for u in range(5):
            ops += ['v_fmac_f32 %s, %s, %s' % (V(II+4*u+1), V(L4+8*u), V(II+4*u)), 'v_fmac_f32 %s, %s, %s' % (V(II+4*u+3), V(L4+8*u), V(II+4*u+2))]
        for u in range(5):
            ops += ['v_fma_f32 %s, -%s, %s, %s' % (V(II+4*u+1), V(L4+8*u+1), V(II+4*u+2), V(II+4*u+1)), 'v_fmac_f32 %s, %s, %s' % (V(II+4*u+3), V(L4+8*u+1), V(II+4*u))]
        PKB = [104, 140]
        FRB = [148, 96]
        def scan_ops(us):
            o = []
            for k in range(4):
                pv = lambda u, part: (II + 4*u + 2*part if k == 0 else pr(u, part, k-1))
                for u in us:
                    o += [pk('fma', pr(u, 0, k), L1+8*u, 0, pv(u, 0), pr(u, 0, k)), pk('fma', pr(u, 1, k), L1+8*u, 0, pv(u, 1), pr(u, 1, k))]
                for u in us:
                    o += [pk('fma', pr(u, 0, k), L1+8*u, 1, pv(u, 1), pr(u, 0, k), True), pk('fma', pr(u, 1, k), L1+8*u, 1, pv(u, 0), pr(u, 1, k))]
            return o
        tp = lambda i: (0, 4, 1, 5)[i]
        def out_a(u):
            o = []
            pk = PKB[u % 2]
            for i in range(4): o.append('v_cvt_pk_bf16_f32 %s, %s, %s' % (V(pk+i), V(acc(u, 0, tp(i))), V(acc(u, 0, tp(i)+2))))
            o.append('ds_write_b128 %s, %s offset:%d' % (V(vTw), V(pk, 4), 2560*u))
            for i in range(4): o.append('v_cvt_pk_bf16_f32 %s, -%s, -%s' % (V(pk+4+i), V(acc(u, 1, tp(i))), V(acc(u, 1, tp(i)+2))))
            o.append('ds_write_b128 %s, %s offset:%d' % (V(vTw), V(pk+4, 4), 2560*u + 1280))
            fr = FRB[u % 2]
            for m in range(2):
                for e in range(2):
                    o.append('ds_read_b64_tr_b16 %s, %s offset:%d' % (V(fr + 4*m + 2*e, 2), V(vTr), 2560*u + 320*e + 32*m))
            return o
        tU = {}
        def out_b(u):
            fr = FRB[u % 2]
            def f():
                for m in range(2):
                    tU[u] = self.tH = g('buffer_store_dwordx4 %s, %s, %s, 0 offen offset:%d%s' % (V(fr + 4*m, 4), V(vHs), S(sP1 if HS else sH, 4), 1024*m, cfg.get('s_hst', ' sc1')))
                g('v_add_u32 %s, %d, %s' % (V(vHs), HKS, V(vHs)))
            return F(f, 12)
        def ilv(a, b):
            o = []; k = 0
            for i, x in enumerate(a):
                o.append(x)
                while k < len(b) and k*len(a) < (i+1)*len(b): o.append(b[k]); k += 1
            return o
        ops += scan_ops([0, 1]) + out_a(0) + gate_ld + ilv(scan_ops([2]), out_a(1)) + [out_b(0)] \
            + ilv(scan_ops([3]), out_a(2)) + [out_b(1)] + ilv(scan_ops([4]), out_a(3)) + [out_b(2)] + out_a(4) + [out_b(3)] + [out_b(4)]
        rest = mix(g, ops, b2, every=pace)
        tH = self.tH
        g.do(rest[:bH]); rest = rest[bH:]
        self.cst(14)
        SLV = cfg.get('s_lv', 0); k0, k1 = cfg.get('s_lvk', (0, 120))
        if SLV:
            g.do(gate_ops[:k0]); self.hflag(0, 0, tU[2]); g.do(gate_ops[k0:k1]); self.hpoll(0, 0); g.do(gate_ops[k1:])
        else:
            if cfg.get('x_noack'): tH = None
            kg = cfg.get('s_kg', 190)
            g.do(gate_ops[:kg]); self.cst(15); self.hflag(0, 0, tH, 'l' if cfg.get('dg', 0) else 'lg')
            self.hpoll(0, 0); g.do(gate_ops[kg:])
        late = []
        if HS:
            g('v_subrev_u32 v219, %d, %s' % (5*HKS, V(vHs)))
            for u in range(5):
                rd = ['ds_read_b64_tr_b16 %s, %s offset:%d' % (V(168 + 4*m + 2*e, 2), V(vTr), 2560*u + 320*e + 32*m) for m in range(2) for e in range(2)]
                def st(m):
                    def f(): self.tL = g('buffer_store_dwordx4 %s, v219, %s, 0 offen offset:%d sc1' % (V(168 + 4*m, 4), S(sP2, 4), 1024*m))
                    return F(f)
                late.append((rd, [st(0), st(1), 'v_add_u32 v219, %d, v219' % HKS]))
        self.late = late
        self.stamp(7)
        n2 = cfg.get('s_b2post', 0)
        while any(3 + 4*i > 20*min((50 - len(rest) + n2 + i)//5, 8) - 30 for i in range(len(rest) - n2)): n2 += 1
        g.do(rest[:n2])
        self.phase2(0, rest[n2:], tH if SLV else None)

    RD, XD, GA, GB, GV = 160, 192, 212, 217, 166
    RXA, RXB, DS = 222, 232, 242
    vGr, T = 160, 180
    vHp, vHd, vRw, vXf = 4, 5, 6, 252
    vRd = [7, 8, 9, 10, 11]; vOa = [12, 13, 14, 15, 0]
    def hp_addr(self, role, sT0=sT0, sT1=sT1):
        vHp, vHd = self.vHp, self.vHd
        return ['s_and_b32 %s, %s, 0x63' % (S(sT0), S(sIdx)), 's_lshl_b32 %s, %s, 3' % (S(sT1), S(sWave)),
                's_add_u32 %s, %s, %s' % (S(sT0), S(sT0), S(sT1)), 's_lshl_b32 %s, %s, %d' % (S(sT0), S(sT0), self.fg),
                's_add_u32 %s, %s, %d' % (S(sT0), S(sT0), WS_HFLAG + role*(128 << self.fg)),
                'v_bfe_u32 %s, %s, 2, 1' % (V(vHp), V(vLane)), 'v_lshlrev_b32 %s, %d, %s' % (V(vHp), self.fg + 2, V(vHp)),
                'v_and_b32 %s, 3, %s' % (V(vHd), V(vLane)), 'v_lshl_add_u32 %s, %s, %d, %s' % (V(vHp), V(vHd), self.fw, V(vHp)),
                'v_add_u32 %s, %s, %s' % (V(vHp), S(sT0), V(vHp))]
    def hp(self, off=0): self.g('buffer_load_dword %s, %s, %s, 0 offen sc1' % (V(self.vHd), V(self.vHp), S(sWS, 4)))
    def gload(self): return 'buffer_load_dwordx3 %s, %s, %s, 0 offen sc1' % (V(self.GV, 3), V(self.vGr + 5), S(sWS, 4))

    def p2_setup(self, role):
        T, vRd, vOa, vGr, vRw, DS, RXA, RXB = self.T, self.vRd, self.vOa, self.vGr, self.vRw, self.DS, self.RXA, self.RXB
        sXo, sXi, sM = sItem, sMx, sMw
        ops = ['s_lshl_b32 %s, %s, 3' % (S(sT0), S(sC1)), 's_add_u32 %s, %s, %s' % (S(sT0), S(sT0), S(sWave)),
               's_lshl_b32 %s, %s, 4' % (S(sT0), S(sT0)),
               's_mul_i32 %s, %s, 160' % (S(sT1), S(sJ1)), 's_mul_i32 %s, %s, 5440' % (S(sT2), S(sWave)),
               's_mov_b32 %s, 0xffff0000' % S(sM), 's_mov_b32 %s, 81920' % S(sT3)]
        ops += ['v_bfe_u32 %s, %s, 4, 1' % (V(T), V(vLane)), 'v_and_b32 %s, 15, %s' % (V(T+1), V(vLane)),
                'v_lshl_add_u32 %s, %s, 6, %s' % (V(T), V(T), V(T+1)), 'v_add_u32 %s, %s, %s' % (V(T), S(sT0), V(T)),
                'v_lshlrev_b32 %s, 4, %s' % (V(T), V(T)), 'v_add_u32 %s, %d, %s' % (V(vGr + 5), WS_GATE, V(T))]
        for q in range(5):
            e, row, ch, t3 = V(T), V(T+1), V(T+2), V(T+3)
            ops += ['v_add_u32 %s, %d, %s' % (e, 64*q, V(vLane)),
                    'v_mul_u32_u24 %s, 3277, %s' % (row, e), 'v_lshrrev_b32 %s, 16, %s' % (row, row),
                    'v_mul_u32_u24 %s, 20, %s' % (ch, row), 'v_sub_u32 %s, %s, %s' % (ch, e, ch),
                    'v_lshrrev_b32 %s, 2, %s' % (t3, ch), 'v_mul_u32_u24 %s, 1088, %s' % (V(vRd[q]), t3),
                    'v_and_b32 %s, 3, %s' % (t3, ch), 'v_mul_u32_u24 %s, 272, %s' % (t3, t3),
                    'v_add3_u32 %s, %s, %s, %s' % (V(vRd[q]), V(vRd[q]), t3, S(sT2)),
                    'v_lshl_add_u32 %s, %s, 4, %s' % (V(vRd[q]), row, V(vRd[q])),
                    'v_lshlrev_b32 %s, 2, %s' % (V(vGr + q), row), 'v_add_u32 %s, %s, %s' % (row, S(sT0), row),
                    'v_lshl_add_u32 %s, %s, 3, %s' % (ch, ch, S(sT1)),
                    'v_mul_u32_u24 %s, 1280, %s' % (e, row), 'v_add_u32 %s, %s, %s' % (e, e, ch)]
            if role == 0: ops.append('v_add_u32 %s, %s, %s' % (e, S(sT3), e))
            ops += ['v_lshlrev_b32 %s, 1, %s' % (V(vOa[q]), e)]
        ops += ['s_mul_i32 %s, %s, 21760' % (S(sT0), S(sWave)),
                'v_lshrrev_b32 %s, 4, %s' % (V(vRw), V(vLane)), 'v_mul_u32_u24 %s, 272, %s' % (V(vRw), V(vRw)),
                'v_and_b32 %s, 15, %s' % (V(T+1), V(vLane)), 'v_lshl_add_u32 %s, %s, 4, %s' % (V(vRw), V(T+1), V(vRw)),
                'v_add_u32 %s, %s, %s' % (V(vRw), S(sT0), V(vRw)),
                's_lshl_b32 %s, %s, 2' % (S(sT0), S(sIdx)), 's_add_u32 %s, %s, %s' % (S(sT0), S(sT0), S(sWave)),
                's_mul_i32 %s, %s, 5120' % (S(sT0), S(sT0)),
                's_add_u32 %s, %s, 0x%x' % (S(sXo), S(sT0), WS_X + role*128*20480), 's_add_u32 %s, %s, 0x%x' % (S(sXi), S(sT0), WS_X + (1-role)*128*20480)]
        ops += self.line_addr(WS_XFLAG, self.vXf)
        return ops

    def xd_ops(self, RX, G=None):
        T, DS, XD, sM = self.T, self.DS, self.XD, sMw
        o = []
        for q in range(5):
            for h in range(2):
                x, d = V(RX + 2*q + h), V(DS + 2*q + h)
                a, b, c, dd = V(T), V(T+1), V(T+2), V(T+3)
                o += ['v_lshlrev_b32 %s, 16, %s' % (a, x), 'v_and_b32 %s, %s, %s' % (b, S(sM), x),
                      'v_lshlrev_b32 %s, 16, %s' % (c, d), 'v_and_b32 %s, %s, %s' % (dd, S(sM), d),
                      'v_mul_f32 %s, %s, %s' % (a, a, c), 'v_mul_f32 %s, %s, %s' % (b, b, dd),
                      'v_cvt_pk_bf16_f32 %s, %s, %s' % (a, a, b),
                      'v_lshlrev_b32 %s, 16, %s' % (V(XD + 4*q + 2*h), a), 'v_and_b32 %s, %s, %s' % (V(XD + 4*q + 2*h + 1), S(sM), a)]
                if G is not None: o += ['v_mul_f32 %s, %s, %s' % (V(XD + 4*q + 2*h + k), V(G + q), V(XD + 4*q + 2*h + k)) for k in range(2)]
        return o

    def xd_loads(self, T, AD=None):
        o = ['s_lshl_b32 %s, %s, 3' % (S(sT3), S(sC1)), 's_add_u32 %s, %s, %s' % (S(sT3), S(sT3), S(sWave)),
             's_lshl_b32 %s, %s, 4' % (S(sT3), S(sT3)), 's_mul_i32 %s, %s, 160' % (S(sT1), S(sJ1))]
        sXh = sT0 if AD is None else 54
        o.append('s_mov_b32 %s, 81920' % S(sXh)); ld = []
        for q in range(5):
            e, row, ch = V(T), V(T+1), V(T+2)
            if AD is not None: e, ch = V(AD + 2*q), V(AD + 2*q + 1)
            o += ['v_add_u32 %s, %d, %s' % (e, 64*q, V(vLane)),
                  'v_mul_u32_u24 %s, 3277, %s' % (row, e), 'v_lshrrev_b32 %s, 16, %s' % (row, row),
                  'v_mul_u32_u24 %s, 20, %s' % (ch, row), 'v_sub_u32 %s, %s, %s' % (ch, e, ch),
                  'v_add_u32 %s, %s, %s' % (row, S(sT3), row), 'v_lshl_add_u32 %s, %s, 3, %s' % (ch, ch, S(sT1)),
                  'v_mul_u32_u24 %s, 1280, %s' % (e, row), 'v_add_u32 %s, %s, %s' % (e, e, ch)]
            l = ['global_load_dwordx2 %s, %s, %s' % (V(self.DS + 2*q, 2), ch, S(pDsk, 2)),
                 'buffer_load_dwordx2 %s, %s, %s, 0 offen' % (V(self.RXB + 2*q if self.XR else self.RXA + 2*q, 2), e, S(sX, 4)),
                 'buffer_load_dwordx2 %s, %s, %s, %s offen' % (V(self.RXA + 2*q if self.XR else self.RXB + 2*q, 2), e, S(sX, 4), S(sXh))]
            if AD is None: o += l
            else: ld += l
        return o if AD is None else (o, ld)

    def phase2(self, role, b2rest, tH2):
        g = self.g; cfg = self.cfg
        tb, ta = tabs(role); NS = len(tb)
        hA, hB = (1, 0) if role else (0, 1)
        vHp, vHd, vRw, vRd, vOa, vXf, vXv = self.vHp, self.vHd, self.vRw, self.vRd, self.vOa, self.vXf, vFd
        RD, GA, GB, XD, RXB, DS, vGr, RXA, T = self.RD, self.GA, self.GB, self.XD, self.RXB, self.DS, self.vGr, self.RXA, self.T
        sXo, sXi, sM = sItem, sMx, sMw
        hp = lambda: self.hp(0)
        GV = self.GV
        def a2(n):
            half = hA if n < NS else hB
            return ['buffer_load_dwordx4 %s, %s, %s, %s offen offset:%d%s' % (V(A2R + 16*(n % 4) + 4*rt, 4), V(vL16b if half else vL16), S(sH, 4), S(ta[0 if cfg.get('x_a2same') else n % NS]), 1024*rt, cfg.get('a2sc', ' sc1')) for rt in range(4)]
        mains = []; fixed = []
        def tile(rt, nt): return ACC2 + 4*(rt*5 + nt)
        def mf(n, j):
            rt, nt = j // 5, j % 5
            c = '0' if n % NS == 0 else V(tile(rt, nt), 4)
            return ('v_mfma_f32_16x16x32_bf16 %s, %s, %s, %s' % (V(tile(rt, nt), 4), A(B2slot(role, n % NS) + 4*nt, 4), V(A2R + 16*(n % 4) + 4*rt, 4), c), None)
        TM = cfg.get('tm', (1, 1))[role]
        for n in range(2*NS):
            if TM == 2:
                if n % 2 == 0:
                    for j in range(20): mains += [mf(n, j), mf(n+1, j)]
            elif TM and n % NS == NS - 2:
                for j in range(0, 20, 2): mains += [mf(n, j), mf(n+1, j), mf(n, j+1), mf(n+1, j+1)] if cfg.get('tmb', 0) else [mf(n, j), mf(n, j+1), mf(n+1, j), mf(n+1, j+1)]
            elif not (TM and n % NS == NS - 1):
                mains += [mf(n, j) for j in range(20)]
        if TM == 2:
            for i, f in enumerate(a2(3)): fixed.append((1 + 3*i, f))
            for n in range(4, 2*NS):
                for i, f in enumerate(a2(n)): fixed.append((20*(n - 4 - n % 2) + 10*i + 11 + 4*(n % 2), f))
        for n in range(0 if TM == 2 else 2*NS - 3):
            for i, f in enumerate(a2(n+3)):
                p = 20*n + 1 + 5*i
                if TM and n % NS == NS - 1: p = max(p, 20*(n-1) + 10*i + 12)
                if TM and n % NS == NS - 4: p = 20*n + 1 + 3*i
                if TM and n % NS == NS - 5: p = 20*n + 1 + 4*i
                fixed.append((p, f))
        PA, PE = 20*NS, 40*NS
        for k, p in enumerate((20, 80, 140, PA, PA + 40, PA + 100, PA + 140, PE - 60)): fixed.append((p - 0.1, F(lambda k=k: self.stamp(11+k, lvl=3), 0)))
        self.cst(16)
        DG = cfg.get('dg', 0)
        self.hcheck(role, 0, (lambda: self.hflag(0, 0, None, 'g')) if (role == 0 and DG) else None)
        if role == 0 and DG: fixed.append((cfg.get('dg0', 22), F(lambda: self.hflag(0, 0, None, 'g'), 8)))
        if role == 1 and DG:
            fixed.append((cfg.get('dg1', 22), F(lambda: self.hflag(1, 1, None, 'g'), 8)))
            fixed.append((cfg.get('dg2', 47), F(lambda: self.hflag(1, 2, None, 'g'), 8)))
        self.stamp(8)
        for n in range(3): g.do(a2(n))
        ops = self.p2_setup(role)
        if role == 1:
            fixed.append((cfg.get('f_l2', 6), F(lambda: self.hflag(1, 2, tH2, 'l' if DG else 'lg'), 20)))
            dq = 10 if TM == 2 else 0
            fixed.append((cfg.get('f_p1', 44) - dq, F(lambda: self.hpoll(1, 1), 8)))
            fixed.append((60.5 - dq, F(lambda: self.hcheck(1, 1), 20)))
            fixed.append((cfg.get('f_p2', 84) - dq, F(lambda: self.hpoll(1, 2), 8)))
            fixed.append((100.5 - dq, F(lambda: self.hcheck(1, 2), 20)))
        else:
            if self.late:
                p0, dp = cfg.get('s_late', (2, 14))
                for u, (rd, st) in enumerate(self.late):
                    for i, f in enumerate(rd): fixed.append((p0 + dp*u + i, f))
                    for i, f in enumerate(st): fixed.append((p0 + dp*u + dp - 3 + 0.9*i, f))
                fixed.append((cfg.get('s_l1', 112), F(lambda: self.hflag(0, 1, self.tL), 20)))
                fixed.append((cfg.get('s_p1', 128), F(lambda: self.hpoll(0, 1), 8)))
                fixed.append((140.5, F(lambda: self.hcheck(0, 1), 20)))
            elif tH2 is not None:
                if tH2 is not None: fixed.append((cfg.get('s_l1', 6), F(lambda: self.hflag(0, 1, tH2), 20)))
                fixed.append((cfg.get('s_p1', 44), F(lambda: self.hpoll(0, 1), 8)))
                fixed.append((60.5, F(lambda: self.hcheck(0, 1), 20)))
        fixed.append((142, 'v_xor_b32 %s, %d, %s' % (V(vHp), 128 << self.fg, V(vXf))))
        fixed.append((cfg.get('p2bar', 100), 's_barrier'))
        nb0 = 5*NS - len(b2rest)
        for i, f in enumerate(b2rest):
            p = 3 + 4*i
            assert p <= 20*min((nb0 + i)//5, NS - 2) - 30 or cfg.get('bad'), (role, i, p)
            fixed.append((p, f))
        xd_ops = self.xd_ops
        s0 = Stream(ops, 2, 99)
        fixed.append((101.5, F(lambda: s0.flush(g), 0)))
        gl, gp = cfg.get('g_at', (104, 150))
        fixed.append((gl, self.gload()))
        fixed.append((gp, F(lambda: self.poll('gt', lambda: g(self.gload()), self.check_eq([GV + 1])), 20)))
        XD_ = role == self.XR
        for q in range(5):
            for h in range(2):
                fixed.append((gp + 1 + 2*q + h, 'ds_bpermute_b32 %s, %s, %s offset:%d' % (V((GA if h == hA else GB) + q), V(vGr + q), V(GV + 2*role), 64*h)))
        streams = [s0]
        if XD_ and role == 0:
            streams += [Stream(xd_ops(RXA), 102, PA - 44), Stream(xd_ops(RXB), PA + 112, PE - 22)]
        if XD_ and role == 1:
            G2A, G2B = 170, 222
            for q in range(5): fixed.append((gp + 11 + q, 'ds_bpermute_b32 %s, %s, %s offset:%d' % (V(G2A + q), V(vGr + q), V(GV), 64*hA)))
            sxa = Stream(xd_ops(RXA, G2A), gp + 22, PA - 6)
            fixed.append((PA - 4, F(lambda: (sxa.flush(g), g.do(['ds_bpermute_b32 %s, %s, %s offset:%d' % (V(G2B + q), V(vGr + q), V(GV), 64*hB) for q in range(5)])), 20)))
            streams += [sxa, Stream(xd_ops(RXB, G2B), PA + 112, PE - 22)]
        for base in (PA, PE):
            for j in range(20):
                fixed.append(((base - 40 + 2*j + 9) if TM else (base - 15 + (1.65*j if base == PA else j)), 'ds_write_b128 %s, %s offset:%d' % (V(vRw), V(ACC2 + 4*j, 4), 1088*j)))
        XB = cfg.get('xb', 1); vL8 = vFa
        fixed.append((PA, 'v_lshlrev_b32 %s, 3, %s' % (V(vL8), V(vLane))))
        mb = PA + (16 if TM else 24)
        fixed.append((mb - 0.5, F(lambda: (g.waitcnt(lg=0), g('s_barrier')), 8)))
        def rds(q): return ['ds_read_b128 %s, %s offset:%d' % (V(RD + 16*(q % 2) + 4*src, 4), V(vRd[q]), 21760*src) for src in range(4)]
        for i, f in enumerate(rds(0) + rds(1)): fixed.append((mb + i, f))
        for q in range(5):
            QS, OS = cfg.get('mq', (13, 0.55)); p = mb + 12 + QS*q; r0 = RD + 16*(q % 2); o = []
            if XD_ and role == 1:
                for src in range(1, 4):
                    for r in range(4): o.append('v_add_f32 %s, %s, %s' % (V(r0 + r), V(r0 + r), V(r0 + 4*src + r)))
                for r in range(4): o.append('v_fmac_f32 %s, %s, %s' % (V(XD + 4*q + r), V(GA + q), V(r0 + r)))
                nadd = len(o)
            else:
                for src in range(4):
                    for r in range(4):
                        if not XD_ and src == 0: continue
                        a = V(r0 + r) if (not XD_ and src == 1) else V(XD + 4*q + r)
                        o.append('v_add_f32 %s, %s, %s' % (V(XD + 4*q + r), a, V(r0 + 4*src + r)))
                nadd = len(o)
                for r in range(4): o.append('v_mul_f32 %s, %s, %s' % (V(XD + 4*q + r), V(GA + q), V(XD + 4*q + r)))
            if XB:
                xr = XD + 8*(q//2) + 2*(q % 2)
                o += ['v_cvt_pk_bf16_f32 %s, %s, %s' % (V(xr + h), V(XD + 4*q + 2*h), V(XD + 4*q + 2*h + 1)) for h in range(2)]
                def st(q=q):
                    n = 2 if q == 4 else 4
                    self.tX = g('buffer_store_dwordx%d %s, %s, %s, %s offen offset:%d sc1' % (n, V(XD + 8*(q//2), n), V(vL16 if q < 4 else vL8), S(sWS, 4), S(sXo), 1024*(q//2)))
                if q % 2 or q == 4: o.append(F(st))
            else:
                def st(q=q):
                    self.tX = g('buffer_store_dwordx4 %s, %s, %s, %s offen offset:%d sc1' % (V(XD + 4*q, 4), V(vL16 if q < 4 else vL16b), S(sWS, 4), S(sXo), 1024*(q & 3)))
                o.append(F(st))
            for i, f in enumerate(o): fixed.append((p + i*OS, f))
            if q + 2 < 5:
                for i, f in enumerate(rds(q+2)): fixed.append((p + nadd*OS + 0.1 + i*min(1, 2*OS), f))
        fixed.append((PA + 112, 's_barrier'))
        if 0: fixed.append((cfg['otouch'], 'buffer_load_dword %s, %s, %s, 0 offen' % (V(vFa), V(vOa[0]), S(sOUT, 4))))
        fixed.append((PA + (cfg.get('xf_at', (150, 150))[role]), F(lambda: (g.wait(self.tX), g('buffer_store_dword %s, %s, %s, 0 offen sc1' % (V(vXv), V(vXf), S(sWS, 4)))), 8)))
        xp = cfg.get('xp_at', (0, 0))[role]
        fixed.append((PE - cfg.get('xpi', (30, 30))[role] - (xp if 'xpi' not in cfg else 0), F(hp)))
        if role == 1:
            U = 184
            def uload():
                for i in range(4):
                    g('s_mov_b32 %s, %d' % (S(sL1), (WS_PFLAG + (128 << self.fg) if i < 2 else WS_HFLAG) + (64 << self.fg)*(i & 1)))
                    g('buffer_load_dword %s, %s, %s, %s offen sc1' % (V(U+2+i), V(U+6), S(sPD, 4), S(sL1)))
            def ucheck():
                self.check_eq([U+2, U+3, U+4, U+5], U, U+1)()
                g('s_cselect_b32 %s, 0, %s' % (S(sL1), S(sPD+2)))
                g('s_cmp_eq_u32 %s, 0' % S(sL1))
            fixed.append((PA + 114, ['s_or_b32 %s, %s, %s' % (S(sL1), S(sWave), S(sIdx)), 's_cselect_b32 %s, 0, 0x%x' % (S(sPD+2), WS_SIZE)]))
            fixed.append((PA + 115, ['v_lshlrev_b32 %s, %d, %s' % (V(U+6), self.fg, V(vLane)), 'v_mov_b32 %s, 0' % V(U+7)]))
            fixed.append((PA + 117, F(uload, 32)))
            fixed.append((PA + 170, F(lambda: (self.poll('up', uload, ucheck), g('buffer_store_dword %s, %s, %s, 0 offen sc1' % (V(vXv), V(U+7), S(sPD, 4)))), 60)))
        def recv():
            self.poll('xf', hp, self.check_eq([vHd]))
            if XB:
                for k in range(3):
                    n = 2 if k == 2 else 4
                    g('buffer_load_dwordx%d %s, %s, %s, %s offen offset:%d sc1' % (n, V(RD + 10 + 4*k, n), V(vL8 if k == 2 else vL16), S(sWS, 4), S(sXi), 1024*k))
            else:
                for q in range(5):
                    g('buffer_load_dwordx4 %s, %s, %s, %s offen offset:%d sc1' % (V(RD + 4*q, 4), V(vL16 if q < 4 else vL16b), S(sWS, 4), S(sXi), 1024*(q & 3)))
        if xp > 0: fixed.append((PE - xp, F(recv, 40)))
        sched(g, mains, 8, fixed, streams, report=self.rep and 'p2')
        if xp <= 0: recv()
        self.stamp(9)
        g.waitcnt(lg=0)
        g('s_barrier')
        for q in range(5):
            for src in range(4):
                g('ds_read_b128 %s, %s offset:%d' % (V(ACC2 + 16*q + 4*src, 4), V(vRd[q]), 21760*src))
        osc = cfg.get('osc', ' nt')
        for q in range(5):
            SM = ACC2 + 16*q if (XD_ and role == 1) else XD + 4*q
            for src in range(4):
                for r in (0, 2):
                    if (role == 1 or not XD_) and src == 0: continue
                    a = V(ACC2 + 16*q + r, 2) if ((role == 1 or not XD_) and src == 1) else V(SM + r, 2)
                    g('v_pk_add_f32 %s, %s, %s' % (V(SM + r, 2), a, V(ACC2 + 16*q + 4*src + r, 2)))
            if XB:
                for h in range(2):
                    g('v_lshlrev_b32 %s, 16, %s' % (V(RD + 4*q + 2*h), V(RD + 10 + 2*q + h)))
                    g('v_and_b32 %s, %s, %s' % (V(RD + 4*q + 2*h + 1), S(sM), V(RD + 10 + 2*q + h)))
            gb = GB + q; hi = gb & 1
            for r in (0, 2):
                if XD_ and role == 1: g('v_pk_add_f32 %s, %s, %s' % (V(RD + 4*q + r, 2), V(RD + 4*q + r, 2), V(XD + 4*q + r, 2)))
                g('v_pk_fma_f32 %s, %s, %s, %s op_sel:[%d,0,0] op_sel_hi:[%d,1,1]' % (V(RD + 4*q + r, 2), V(gb - hi, 2), V(SM + r, 2), V(RD + 4*q + r, 2), hi, hi))
            g('buffer_store_dwordx4 %s, %s, %s, 0 offen%s' % (V(RD + 4*q, 4), V(vOa[q]), S(sOUT, 4), osc))
        self.finish(role)

    def finish(self, role):
        g = self.g
        if self.cfg.get('stamps'):
            g.waitall()
            self.stamp(10)
            self.stamp(31, 's_memtime')
            g('s_lshl_b32 %s, s2, 2' % S(sT0))
            g('s_add_u32 %s, %s, %s' % (S(sT0), S(sT0), S(sWave)))
            g('s_lshl_b32 %s, %s, 7' % (S(sT0), S(sT0)))
            g('s_add_u32 %s, %s, %d' % (S(sT0), S(sT0), WS_STAMP))
            g('v_lshlrev_b32 v4, 2, %s' % V(vLane))
            g('s_mov_b32 exec_hi, 0')
            g('buffer_store_dword %s, v4, %s, %s offen' % (V(vStamp), S(sWS, 4), S(sT0)))
        if role == 0: g.label('L_exit')
        g('s_endpgm')
        g.hist = []

    def post(self, txt):
        c = self.cfg; out = []
        for l in txt.split('\n'):
            if c.get('x_nox') and ('s[12:15], s90 offen' in l or 's[12:15], s91 offen' in l) and 'dwordx4' in l: l = l.replace('s[12:15]', 's[20:23]')
            if c.get('x_noh') and 'buffer_store_dwordx4' in l and 's[36:39]' in l: l = l.replace('s[36:39]', 's[20:23]')
            if c.get('x_nopk') and 'dwordx4' in l and ('s[24:27]' in l or 's[16:19]' in l or 's[20:23]' in l): l = l.replace('s[24:27]', 's[20:23]').replace('s[16:19]', 's[20:23]')
            if c.get('x_noout') and 's[28:31]' in l and 'store' in l: l = l.replace('s[28:31]', 's[20:23]')
            if (c.get('x_nox') or c.get('x_noh') or c.get('x_nopk') or c.get('x_noout')):
                if 's_mov_b32 s22, s18' in l: l = '    s_mov_b32 s22, 0'
                if l.startswith('L_ssm:'): l += '\n    s_mov_b32 s20, 0\n    s_mov_b32 s21, 0\n    s_mov_b32 s22, 0\n    s_mov_b32 s23, 0x20000'
            out.append(l)
        return '\n'.join(out)

    def build(self):
        g = self.g
        self.prologue()
        st = g.state()
        self.ffn()
        g.vm, g.lg, g.smem = list(st[0]), list(st[1]), list(st[2])
        self.ssm()
        if self.cfg.get('lay', 1):
            L = g.lines
            a = L.index('L_ssm:'); b = L.index('L_ssm2:'); c = L.index('    s_cbranch_scc1 L_ssm')
            g.lines = L[:c] + ['    s_cbranch_scc0 L_ffn'] + L[a:b] + ['L_ffn:'] + L[c+1:a] + L[b:]
        g.raw('L_codeend:')
        for f in self.tail: f()
        hdr = open('gated_mix__ssm_conv_s5__dense_activation_silu__prompt.s.ref').read()
        top = hdr[:hdr.index('; Override launch geometry')]
        txt = top + '; Generated by a hand-written generator script (straight-line schedule, one fused launch).\n'
        txt += '; @launch grid=(256,1,1) block=(256,1,1) lds=163840\n'
        txt += '.amdgcn_target "amdgcn-amd-amdhsa--gfx950"\n.text\n.globl %s\n.p2align 8\n.type %s,@function\n%s:\n' % (KNAME, KNAME, KNAME)
        txt += self.post(g.text())
        txt += '''.section .rodata,"a"
.p2align 6
.amdhsa_kernel %s
  .amdhsa_next_free_vgpr 512
  .amdhsa_next_free_sgpr 102
  .amdhsa_accum_offset 256
  .amdhsa_group_segment_fixed_size 0
  .amdhsa_kernarg_size 128
  .amdhsa_user_sgpr_count 2
  .amdhsa_user_sgpr_kernarg_segment_ptr 1
  .amdhsa_system_sgpr_workgroup_id_x 1
.end_amdhsa_kernel
''' % KNAME
        return txt

def make(cfg=None):
    k = K(cfg or {})
    return k.build(), k

if __name__ == '__main__':
    import json
    cfg = json.loads(sys.argv[2]) if len(sys.argv) > 2 else {}
    cfg['report'] = 1
    txt, k = make(cfg)
    open(sys.argv[1], 'w').write(txt)
    print(k.g.stats, 'nops', k.g.nnop, 'bytes', len(txt))
```

```python
import sys
from asmgen import Gen, weave, sched, Stream, F, mix, cost

KNAME = 'gated_mix__ssm_conv_s5__dense_activation_silu__prompt_kernel'

WS_EPOCH = 0
WS_HFLAG = 0x50000
LVL = 131072
WS_GATE = 65536
WS_EBUF = 131072
WS_PFLAG = 0xb0000
WS_XFLAG = 0xe0000
WS_STAMP = 22 << 20
WS_B2 = 0x130000
WS_H = 5 << 20
WS_X = 16 << 20
WS_SIZE = 23 << 20
KST = 5120
MST = 88*KST
HKS = 8192
HMS = 88*HKS

F_WR = 81920
S_BR = 65536
L_PK = 147456
L_EX = 147456

sX, sW, sWS, sP1, sP2, sPD, sOUT, sB2, sH = 4, 8, 12, 16, 20, 24, 28, 32, 36
pX, pLre, pLim, pBre, pBim, pCre, pCim, pLdt, pDsk, pBx, pW1, pW2, pGate, pOut, pDbg, pWs = range(40, 72, 2)
sWave, sRole, sC1, sJ1, sIdx, sCo, sNonce, sRot = range(72, 80)
sKb = list(range(80, 90))
sItem, sMx, sMw, sWo = 90, 91, 92, 93
sPs = [94, 95, 96, 97]
sT0, sT1, sT2, sT3 = 98, 99, 100, 101
sT4 = 3
sKt = 79
sNl = 42
sWs2 = 93
sPo = 54
sL1, sL2 = 64, 65
sKs = [40, 41, 46, 47, 48, 49, 50, 51, 52, 53, 58, 59, 60, 61, 62, 63, 66, 67, 68, 69, 70, 71]

vTid, vLane, vL16, vL16b = 0, 1, 2, 3
vT = list(range(4, 16))
vFa, vFd = 254, 253
ACC2 = 16
A2R = 96
vStamp = 255
def B2slot(role, i):
    if i < 4: return 160 + 20*i
    if role == 1: return 20*(i-4)
    return 80 + 20*(i-4) if i < 8 else 20*(i-8)
def tabs(role):
    if role == 1: return sKs[:12], sKs[12:] + [44, 45]
    return sKs[:10], sKs[10:20]
aPK = 240

def R(kind, base, n):
    return '%s%d' % (kind, base) if n == 1 else '%s[%d:%d]' % (kind, base, base+n-1)
def V(b, n=1): return R('v', b, n)
def A(b, n=1): return R('a', b, n)
def S(b, n=1): return R('s', b, n)

LOG2E = 0x3fb8aa3b
NLOG2E = 0xbfb8aa3b
INV2PI = 0x3e22f983

class K:
    def __init__(self, cfg):
        self.cfg = cfg
        self.g = Gen()
        self.tail = []
        self.rep = cfg.get('report')
        self.XR = cfg.get('xr', 0)
        self.EA = cfg.get('ea', 0)
        self.EW = cfg.get('ew', 384)
        self.fw, self.fg, self.lv = {0: (2, 7, 16), 1: (7, 9, LVL), 2: (2, 7, LVL)}[cfg.get('fl', 1)]

    def stamp(self, idx, op='s_memrealtime', lvl=2):
        if self.rep and idx < 11: print('  stamp', idx, self.g.cyc)
        if idx in (0, 10, 30, 31): lvl = 1
        if self.cfg.get('stamps', 0) < lvl: return
        g = self.g
        if self.cfg.get('cyc'): op = 's_memtime'
        g(op + ' vcc'); g.waitcnt(lg=0)
        g('v_writelane_b32 %s, vcc_lo, %d' % (V(vStamp), idx))

    def cst(self, idx):
        if self.rep: print('  cst', idx, self.g.cyc)
        if self.cfg.get('chain'): self.stamp(idx)
    def srd_ptr(self, d, ptr): return ['s_mov_b32 %s, %s' % (S(d), S(ptr)), 's_mov_b32 %s, %s' % (S(d+1), S(ptr+1))]
    def srd_cst(self, d, nrec): return ['s_mov_b32 %s, 0x%x' % (S(d+2), nrec), 's_mov_b32 %s, 0x20000' % S(d+3)]

    def poll(self, name, issue, check, pre=None):
        g = self.g
        lr, lo = g.newlabel(name + '_retry'), g.newlabel(name + '_ok')
        check()
        inl = name in self.cfg.get('inl', ())
        if inl:
            g('s_cbranch_scc1 %s' % lo); st = g.state()
        else:
            g('s_cbranch_scc0 %s' % lr)
            g.label(lo)
        def retry():
            g.vm, g.lg, g.smem = [], [], []
            g.label(lr)
            if pre: pre()
            g('s_mov_b32 %s, 0x%x' % (S(sT4), self.cfg.get('spin', 1 << 18)))
            ll = g.newlabel(name + '_loop')
            g.label(ll)
            g('s_sub_u32 %s, %s, 1' % (S(sT4), S(sT4)))
            g('s_cmp_eq_u32 %s, 0' % S(sT4))
            g('s_nop 7')
            g('s_cbranch_scc1 %s' % lo)
            if self.cfg.get('bo', {}).get(name): g('s_sleep %d' % self.cfg['bo'][name])
            g('s_waitcnt lgkmcnt(0)')
            issue()
            g.waitall()
            check()
            g('s_nop 7')
            g('s_cbranch_scc1 %s' % lo)
            g('s_branch %s' % ll)
        if inl:
            retry(); g.vm, g.lg, g.smem = list(st[0]), list(st[1]), list(st[2]); g.label(lo)
        else: self.tail.append(retry)

    def check_eq(self, regs, t0=None, t1=None):
        g = self.g
        def f():
            if len(regs) == 1:
                g('v_cmp_ne_u32 vcc, %s, %s' % (S(sNonce), V(regs[0])))
            else:
                g('v_xor_b32 %s, %s, %s' % (V(t0), S(sNonce), V(regs[0])))
                for r in regs[1:]:
                    g('v_xor_b32 %s, %s, %s' % (V(t1), S(sNonce), V(r)))
                    g('v_or_b32 %s, %s, %s' % (V(t0), V(t0), V(t1)))
                g('v_cmp_ne_u32 vcc, 0, %s' % V(t0))
            g('s_nop 0')
            g('s_cmp_eq_u64 vcc, 0')
        return f

    def b2_loads(self, role, steps):
        out = []
        for step in steps:
            base = B2slot(role, step)
            for nt in range(5):
                va, off = (vL16, nt*1024) if nt < 4 else (vL16b, 0)
                out.append('buffer_load_dwordx4 %s, %s, %s, %s offen offset:%d sc1' % (A(base+4*nt, 4), V(va), S(sB2, 4), S(tabs(role)[0][0 if self.cfg.get('x_b2same') else step]), off))
        return out

    def ks_table(self, role):
        tb, ta = tabs(role); ns = len(tb)
        if role == 0 and self.cfg.get('krot', 1):
            r, bs = ta[ns-1], tb[ns-1]
            o = ['s_and_b32 %s, %s, 3' % (S(sKt), S(sC1)), 's_mul_i32 %s, %s, 3' % (S(sKt), S(sKt)),
                 's_add_u32 %s, %s, %s' % (S(sKt), S(sKt), S(sJ1)),
                 's_sub_u32 %s, %s, %d' % (S(r), S(sKt), ns), 's_min_u32 %s, %s, %s' % (S(r), S(r), S(sKt)),
                 's_mul_i32 %s, %s, %d' % (S(bs), S(sWave), ns), 's_add_u32 %s, %s, 48' % (S(bs), S(bs))]
            for n in range(ns):
                if n == 0: o.append('s_add_u32 %s, %s, %s' % (S(ta[n]), S(r), S(bs)))
                else:
                    o += ['s_sub_u32 %s, %s, %d' % (S(sKt), S(r), ns-n), 's_add_u32 %s, %s, %d' % (S(ta[n]), S(r), n),
                          's_min_u32 %s, %s, %s' % (S(ta[n]), S(ta[n]), S(sKt)), 's_add_u32 %s, %s, %s' % (S(ta[n]), S(ta[n]), S(bs))]
                o += ['s_mul_i32 %s, %s, %d' % (S(tb[n]), S(ta[n]), KST), 's_lshl_b32 %s, %s, 13' % (S(ta[n]), S(ta[n]))]
            return o
        nu = 6 if role else 5
        r, bs, r6 = ta[ns-1], tb[ns-1], tb[ns-2]
        o = ['s_add_u32 %s, %s, %s' % (S(r), S(sC1), S(sJ1))]
        if self.cfg.get('frot'):
            o = ['s_and_b32 %s, %s, 3' % (S(r), S(sC1)), 's_mul_i32 %s, %s, 3' % (S(r), S(r)), 's_lshr_b32 %s, %s, 1' % (S(r), S(r)),
                 's_add_u32 %s, %s, %s' % (S(r), S(r), S(sJ1))]
        o += ['s_mul_i32 %s, %s, %d' % (S(bs), S(sWave), ns),
             's_mul_i32 %s, %s, 43' % (S(r6), S(r)), 's_lshr_b32 %s, %s, 8' % (S(r6), S(r6)),
             's_mul_i32 %s, %s, 6' % (S(r6), S(r6)), 's_sub_u32 %s, %s, %s' % (S(r6), S(r), S(r6))]
        if role == 0: o.append('s_add_u32 %s, %s, 48' % (S(bs), S(bs)))
        for n in range(ns):
            if role and self.EA and n < 4:
                o += ['s_add_u32 %s, %s, %d' % (S(sKt), S(r), n), 's_and_b32 %s, %s, 1' % (S(ta[n]), S(sKt)),
                      's_bfe_u32 %s, %s, 0x10001' % (S(sKt), S(sKt)), 's_mul_i32 %s, %s, %d' % (S(sKt), S(sKt), nu),
                      's_add_u32 %s, %s, %s' % (S(ta[n]), S(ta[n]), S(sKt))]
            elif role and self.EA and n < 6:
                o += ['s_add_u32 %s, %s, %d' % (S(sKt), S(r), n), 's_and_b32 %s, %s, 1' % (S(sKt), S(sKt)),
                      's_mul_i32 %s, %s, 6' % (S(sKt), S(sKt)), 's_add_u32 %s, %s, 2' % (S(ta[n]), S(sKt))]
            elif n < 6:
                o += ['s_add_u32 %s, %s, %d' % (S(ta[n]), S(r6), n), 's_sub_u32 %s, %s, 6' % (S(sKt), S(ta[n])),
                      's_min_u32 %s, %s, %s' % (S(ta[n]), S(ta[n]), S(sKt)),
                      's_mul_i32 %s, %s, 11' % (S(sKt), S(ta[n])), 's_lshr_b32 %s, %s, 5' % (S(sKt), S(sKt)),
                      's_mul_i32 %s, %s, %d' % (S(sKt), S(sKt), nu - 3), 's_add_u32 %s, %s, %s' % (S(ta[n]), S(ta[n]), S(sKt))]
            elif n < ns - 4:
                o += ['s_add_u32 %s, %s, %d' % (S(sKt), S(r), n), 's_and_b32 %s, %s, 1' % (S(sKt), S(sKt)),
                      's_mul_i32 %s, %s, 6' % (S(sKt), S(sKt)), 's_add_u32 %s, %s, 3' % (S(ta[n]), S(sKt))]
            else:
                o += ['s_add_u32 %s, %s, %d' % (S(sKt), S(r), n), 's_and_b32 %s, %s, 1' % (S(ta[n]), S(sKt)),
                      's_bfe_u32 %s, %s, 0x10001' % (S(sKt), S(sKt)), 's_mul_i32 %s, %s, %d' % (S(sKt), S(sKt), nu),
                      's_add_u32 %s, %s, %s' % (S(ta[n]), S(ta[n]), S(sKt)), 's_add_u32 %s, %s, %d' % (S(ta[n]), S(ta[n]), nu - 2)]
            o += ['s_add_u32 %s, %s, %s' % (S(ta[n]), S(ta[n]), S(bs)),
                  's_mul_i32 %s, %s, %d' % (S(tb[n]), S(ta[n]), KST), 's_lshl_b32 %s, %s, 13' % (S(ta[n]), S(ta[n]))]
        return o

    def line_addr(self, base, dst):
        return ['s_lshl_b32 %s, %s, 7' % (S(sKt), S(sRole)), 's_add_u32 %s, %s, %s' % (S(sKt), S(sKt), S(sIdx)),
                's_lshl_b32 %s, %s, %d' % (S(sKt), S(sKt), self.fg - self.fw), 's_add_u32 %s, %s, %s' % (S(sKt), S(sKt), S(sWave)),
                's_lshl_b32 %s, %s, %d' % (S(sKt), S(sKt), self.fw), 's_add_u32 %s, %s, %d' % (S(sKt), S(sKt), base),
                'v_mov_b32 %s, %s' % (V(dst), S(sKt))]

    def late_setup(self, role, t0, t1, vPp):
        if role == 0 and self.cfg.get('duty', 0): o = self.srd_ptr(sPo, pOut)
        else: o = self.srd_ptr(sOUT, pOut) + self.srd_cst(sOUT, 2048*2560)
        for d, idx, base, st in ((sB2, sJ1, WS_B2, MST), (sH, sC1, WS_H, HMS)):
            o += ['s_mul_i32 %s, %s, %d' % (S(sKt), S(idx), st), 's_add_u32 %s, %s, 0x%x' % (S(sKt), S(sKt), base),
                  ['s_add_u32 %s, %s, %s' % (S(d), S(pWs), S(sKt)), 's_addc_u32 %s, %s, 0' % (S(d+1), S(pWs+1))]]
            o += self.srd_cst(d, st)
        if role == 1:
            o += ['s_mul_i32 %s, %s, 5' % (S(sKt), S(sJ1)), 's_lshr_b32 %s, %s, 2' % (S(sKt), S(sKt)),
                  'v_min_u32 %s, 23, %s' % (V(t1), V(vLane)),
                  'v_lshrrev_b32 %s, 1, %s' % (V(t0), V(t1)), 'v_mul_u32_u24 %s, 10, %s' % (V(t0), V(t0)),
                  'v_and_b32 %s, 1, %s' % (V(t1), V(t1)), 'v_add3_u32 %s, %s, %s, %s' % (V(t0), V(t0), V(t1), S(sKt)),
                  's_mul_i32 %s, %s, 120' % (S(sKt), S(sWave)), 'v_add_u32 %s, %s, %s' % (V(t0), S(sKt), V(t0))]
        else:
            o += ['v_min_u32 %s, 14, %s' % (V(t1), V(vLane)),
                  'v_mul_u32_u24 %s, 11, %s' % (V(t0), V(t1)), 'v_lshrrev_b32 %s, 5, %s' % (V(t0), V(t0)),
                  'v_mul_u32_u24 %s, 7, %s' % (V(t0), V(t0)),
                  's_mul_i32 %s, %s, 50' % (S(sKt), S(sJ1)), 'v_add3_u32 %s, %s, %s, %s' % (V(t0), V(t1), V(t0), S(sKt)),
                  's_mul_i32 %s, %s, 10' % (S(sKt), S(sWave)), 's_lshr_b32 %s, %s, 2' % (S(sKt), S(sKt)),
                  'v_add_u32 %s, %s, %s' % (V(t0), S(sKt), V(t0))]
        o += ['v_and_b32 %s, 127, %s' % (V(t1), V(t0)), 'v_lshrrev_b32 %s, 7, %s' % (V(t0), V(t0)),
              'v_lshlrev_b32 %s, %d, %s' % (V(t1), self.fg, V(t1)), 'v_lshl_add_u32 %s, %s, %d, %s' % (V(vPp), V(t0), self.fw, V(t1)),
              'v_add_u32 %s, %d, %s' % (V(vPp), WS_PFLAG + role*(128 << self.fg), V(vPp))]
        o += self.line_addr(WS_PFLAG, vFa)
        return o
    def nonce_ops(self):
        return ['s_mul_i32 %s, %s, 1664525' % (S(sNonce), S(sNonce)), 's_add_u32 %s, %s, 1013904223' % (S(sNonce), S(sNonce)),
                'v_mov_b32 %s, %s' % (V(vFd), S(sNonce))]

    def hbase(self, kmul, extra):
        return ['s_lshl_b32 %s, %s, 11' % (S(sKt), S(sWave)), 's_mul_i32 %s, %s, %d' % (S(sT3), S(sJ1), kmul*HKS),
                's_add_u32 %s, %s, %s' % (S(sKt), S(sKt), S(sT3)), 's_add_u32 %s, %s, 0x%x' % (S(sKt), S(sKt), extra)]

    def flag_store(self, tok, srd, va=None):
        self.g.wait(tok)
        self.g('buffer_store_dword %s, %s, %s, 0 offen sc1' % (V(vFd), V(va or vFa), S(srd, 4)))
    def hoff(self, role, lvl, local):
        if role and self.EA: return ((0, 0xb0000, 0x20000, 0x40000), (0x30000, 0xc0000, 0xa0000, 0x70000))[local][lvl]
        if role: return ((0, 0x20000, 0x40000), (0x30000, 0xa0000, 0x70000))[local][lvl]
        return ((0, 0xc0000), (0x20000, 0xd0000))[local][lvl]
    def hflag(self, role, lvl, tok, which='lg'):
        g = self.g
        if not self.cfg.get('lfl', 1): which = which.replace('l', '')
        if 'l' in which: g('s_mov_b32 %s, 0x%x' % (S(sL1), self.hoff(role, lvl, 1)))
        if 'g' in which: g('s_mov_b32 %s, 0x%x' % (S(sL2), self.hoff(role, lvl, 0)))
        g.wait(tok)
        if 'l' in which: g('buffer_store_dword %s, %s, %s, %s offen' % (V(vFd), V(vFa), S(sWS, 4), S(sL1)))
        if 'g' in which: g('buffer_store_dword %s, %s, %s, %s offen sc1' % (V(vFd), V(vFa), S(sWS, 4), S(sL2)))
    def hpoll(self, role, lvl):
        g = self.g
        g('s_mov_b32 %s, 0x%x' % (S(sL1), self.hoff(role, lvl, self.cfg.get('lfl', 1))))
        g('buffer_load_dword %s, %s, %s, %s offen sc1' % (V(self.vHd), V(self.vHp), S(sWS, 4), S(sL1)))
    def hcheck(self, role, lvl, pre=None):
        g = self.g
        def again():
            l1, l2 = g.newlabel('loc'), g.newlabel('ld')
            g('s_mov_b32 %s, 0x%x' % (S(sL1), self.hoff(role, lvl, self.cfg.get('lfl', 1))))
            g('s_and_b32 %s, %s, %d' % (S(sL2), S(sT4), self.cfg.get('lper', 3)))
            g('s_cbranch_scc1 %s' % l2)
            if pre: pre()
            g('s_mov_b32 %s, 0x%x' % (S(sL1), self.hoff(role, lvl, 0)))
            g.label(l2)
            g('buffer_load_dword %s, %s, %s, %s offen sc1' % (V(self.vHd), V(self.vHp), S(sWS, 4), S(sL1)))
        self.poll('h%d%d' % (role, lvl), again, self.check_eq([self.vHd]))

    def prologue(self):
        g = self.g
        g('s_cmp_ge_u32 s2, 256')
        g('s_cbranch_scc1 L_exit')
        if self.cfg.get('entry'): g('s_memrealtime s[96:97]')
        g('s_load_dwordx16 s[40:55], s[0:1], 0')
        g('s_load_dwordx16 s[56:71], s[0:1], 64')
        g('v_lshrrev_b32 %s, 6, v0' % V(vT[0]))
        g('v_and_b32 %s, 63, v0' % V(vLane))
        g('v_readfirstlane_b32 %s, %s' % (S(sWave), V(vT[0])))
        g('v_lshlrev_b32 %s, 4, %s' % (V(vL16), V(vLane)))
        g('s_lshr_b32 %s, s2, 3' % S(sT1))
        if self.cfg.get('preload', 1):
            g.raw('    s_getpc_b64 s[28:29]\nL_pc:')
            g('s_lshl_b32 %s, %s, 2' % (S(sT0), S(sT1)))
            g('s_add_u32 %s, %s, %s' % (S(sT0), S(sT0), S(sWave)))
            g('s_and_b32 %s, %s, 63' % (S(sT0), S(sT0)))
            g.raw('    s_min_u32 %s, %s, ((L_codeend-L_pc)>>10)-1' % (S(sT0), S(sT0)))
            g('s_lshl_b32 %s, %s, 10' % (S(sT0), S(sT0)))
            g('s_add_u32 s28, s28, %s' % S(sT0))
            g('s_addc_u32 s29, s29, 0')
            g('global_load_dwordx4 v[244:247], %s, s[28:29]' % V(vL16))
        if self.cfg.get('stamps'):
            g('v_mov_b32 %s, 0' % V(vStamp))
        g('v_add_u32 %s, 0x1000, %s' % (V(vL16b), V(vL16)))
        g('s_bfe_u32 %s, s2, %s' % (S(sT3), '0x20000' if self.cfg.get('rmap') else '0x20001'))
        if self.cfg.get('amap', 1) == 1:
            g('s_lshr_b32 %s, %s, 1' % (S(sT2), S(sT3)))
            g('s_xor_b32 %s, %s, %s' % (S(sT3), S(sT3), S(sT2)))
        if self.cfg.get('amap') == 2: g('s_xor_b32 %s, %s, 2' % (S(sT3), S(sT3)))
        g('s_and_b32 %s, %s, 3' % (S(sT2), S(sT1)))
        if self.cfg.get('mixed'):
            g('s_lshr_b32 %s, %s, 4' % (S(sRole), S(sT1)))
            g('s_bfe_u32 %s, %s, 0x20002' % (S(sJ1), S(sT1)))
            g('s_and_b32 %s, s2, 1' % S(sT0))
            g('s_lshl_b32 %s, %s, 2' % (S(sT0), S(sT0)))
            g('s_add_u32 %s, %s, %s' % (S(sJ1), S(sJ1), S(sT0)))
        else:
            if self.cfg.get('rmap'): g('s_bfe_u32 %s, s2, 0x10002' % S(sRole))
            else: g('s_and_b32 %s, s2, 1' % S(sRole))
            if self.cfg.get('rmap') == 2 or self.cfg.get('rflip'): g('s_xor_b32 %s, %s, 1' % (S(sRole), S(sRole)))
            g('s_lshr_b32 %s, %s, 2' % (S(sJ1), S(sT1)))
        g('s_lshl_b32 %s, %s, 2' % (S(sC1), S(sT3)))
        g('s_add_u32 %s, %s, %s' % (S(sC1), S(sC1), S(sT2)))
        g('s_lshl_b32 %s, %s, 3' % (S(sIdx), S(sT3)))
        g('s_add_u32 %s, %s, %s' % (S(sIdx), S(sIdx), S(sJ1)))
        g('s_lshl_b32 %s, %s, 2' % (S(sIdx), S(sIdx)))
        g('s_add_u32 %s, %s, %s' % (S(sIdx), S(sIdx), S(sT2)))
        g('s_mul_i32 %s, %s, 3' % (S(sT2), S(sT2)))
        g('s_mul_i32 %s, %s, 5' % (S(sT0), S(sRole)))
        g('s_add_u32 %s, %s, %s' % (S(sRot), S(sJ1), S(sT2)))
        g('s_add_u32 %s, %s, %s' % (S(sRot), S(sRot), S(sT0)))
        g('s_add_u32 %s, %s, %s' % (S(sRot), S(sRot), S(sT3)))
        if self.cfg.get('norot'): g('s_mov_b32 %s, 0' % S(sRot))
        rx = self.cfg.get('rotx', 3)
        if rx:
            g('s_mul_i32 %s, %s, 5' % (S(sRot), S(sT3)))
            g('s_add_u32 %s, %s, 1' % (S(sRot), S(sRot)))
            g('s_lshr_b32 %s, %s, 1' % (S(sRot), S(sRot)))
            g('s_add_u32 %s, %s, %s' % (S(sRot), S(sRot), S(sT0)))
            if rx == 2:
                g('s_add_u32 %s, %s, %s' % (S(sT0), S(sC1), S(sJ1)))
                g('s_and_b32 %s, %s, 1' % (S(sT0), S(sT0)))
                g('s_add_u32 %s, %s, %s' % (S(sRot), S(sRot), S(sT0)))
            rd = self.cfg.get('rotd')
            if rd:
                g('s_add_u32 %s, %s, %s' % (S(sT0), S(sC1), S(sJ1)))
                g('s_and_b32 %s, %s, 1' % (S(sCo), S(sT0)))
                g('s_cselect_b32 %s, -1, 1' % S(sCo))
                g('s_bfe_u32 %s, %s, 0x%x' % (S(sT0), S(sT0), {1: 0x10001, 2: 0x20001, 3: 0x00001}[rd]))
                g('s_mul_i32 %s, %s, %s' % (S(sT0), S(sT0), S(sCo)))
                g('s_add_u32 %s, %s, %s' % (S(sRot), S(sRot), S(sT0)))
                g('s_min_i32 %s, %s, 0' % (S(sT0), S(sCo)))
                g('s_add_u32 %s, %s, %s' % (S(sRot), S(sRot), S(sT0)))
                g('s_add_u32 %s, %s, 10' % (S(sRot), S(sRot)))
            elif rx == 3:
                g('s_add_u32 %s, %s, %s' % (S(sT0), S(sC1), S(sJ1)))
                g('s_and_b32 %s, %s, 3' % (S(sT0), S(sT0)))
                g('s_add_u32 %s, %s, %s' % (S(sRot), S(sRot), S(sT0)))
            elif rx == 4:
                g('s_and_b32 %s, %s, 3' % (S(sT0), S(sC1)))
                g('s_add_u32 %s, %s, %s' % (S(sRot), S(sRot), S(sT0)))
            elif rx == 5:
                g('s_add_u32 %s, %s, %s' % (S(sT0), S(sC1), S(sJ1)))
                g('s_and_b32 %s, %s, 3' % (S(sT0), S(sT0)))
                g('s_lshl_b32 %s, %s, 1' % (S(sT0), S(sT0)))
                g('s_add_u32 %s, %s, %s' % (S(sRot), S(sRot), S(sT0)))
            elif rx == 6:
                g('s_add_u32 %s, %s, %s' % (S(sT0), S(sC1), S(sJ1)))
                g('s_and_b32 %s, %s, 7' % (S(sT0), S(sT0)))
                g('s_add_u32 %s, %s, %s' % (S(sRot), S(sRot), S(sT0)))
        for k in range(2):
            g('s_sub_u32 %s, %s, 10' % (S(sT0), S(sRot)))
            g('s_min_u32 %s, %s, %s' % (S(sRot), S(sRot), S(sT0)))
        if self.cfg.get('rotg') == 2:
            g('s_and_b32 %s, %s, 1' % (S(sRot), S(sRot)))
            g('s_mul_i32 %s, %s, 5' % (S(sRot), S(sRot)))
        if self.cfg.get('rotg') == 5:
            g('s_and_b32 %s, %s, 14' % (S(sRot), S(sRot)))
        if self.cfg.get('rotg') == 3:
            g('s_mul_i32 %s, %s, 11' % (S(sT0), S(sRot)))
            g('s_lshr_b32 %s, %s, 5' % (S(sT0), S(sT0)))
            g('s_mul_i32 %s, %s, 3' % (S(sT0), S(sT0)))
            g('s_sub_u32 %s, %s, %s' % (S(sRot), S(sRot), S(sT0)))
            g('s_mul_i32 %s, %s, 7' % (S(sRot), S(sRot)))
            g('s_lshr_b32 %s, %s, 1' % (S(sRot), S(sRot)))
        g('s_lshl_b32 %s, %s, 7' % (S(sKb[0]), S(sRot)))
        g('v_lshrrev_b32 %s, 3, %s' % (V(vT[0]), V(vLane)))
        g('v_and_b32 %s, 7, %s' % (V(vT[1]), V(vLane)))
        g('v_lshrrev_b32 %s, 4, %s' % (V(vT[2]), V(vLane)))
        g.do(self.srd_cst(sX, 2048*1280))
        g.do(self.srd_cst(sWS, WS_SIZE))
        g('s_cmp_eq_u32 %s, 0' % S(sRole))
        g('s_cbranch_scc1 L_ssm')

    def kb(self, s, k0=sKb[0]):
        if self.cfg.get('same'): return ['s_mov_b32 %s, %s' % (S(sKb[s]), S(k0))]
        if self.cfg.get('rotd'):
            return ['s_mul_i32 %s, %s, %d' % (S(sKb[s]), S(sCo), 128*s), 's_add_u32 %s, %s, %s' % (S(sKb[s]), S(sKb[s]), S(k0)),
                    's_mul_i32 %s, %s, -1280' % (S(sT0), S(sCo)), 's_add_u32 %s, %s, %s' % (S(sT0), S(sT0), S(sKb[s])),
                    's_min_u32 %s, %s, %s' % (S(sKb[s]), S(sKb[s]), S(sT0))]
        return ['s_sub_u32 %s, %s, %d' % (S(sT0), S(k0), 128*(10-s)), 's_add_u32 %s, %s, %d' % (S(sKb[s]), S(k0), 128*s),
                's_min_u32 %s, %s, %s' % (S(sKb[s]), S(sKb[s]), S(sT0))]

    def ptrs_ready(self):
        g = self.g
        g.waitcnt(lg=0)
        if self.cfg.get('entry'): g('v_writelane_b32 %s, s96, 29' % V(vStamp))
        self.stamp(0)
        self.stamp(30, 's_memtime')
        g.do(self.srd_ptr(sX, pX))

    def pack_addr(self, role, vPl, vPr, vPw):
        o = ['s_lshl_b32 %s, %s, 7' % (S(sItem), S(sWave)), 's_add_u32 %s, %s, %s' % (S(sItem), S(sItem), S(sIdx))]
        o += self.srd_ptr(sPD, pWs) + self.srd_ptr(sP1, pW2 if role else pCre)
        o += [['s_cmp_lt_u32 %s, %d' % (S(sItem), 480 if role else 400), 's_cselect_b32 %s, 0x%x, 0' % (S(sPD+2), WS_SIZE),
               's_cselect_b32 %s, %d, 0' % (S(sP1+2), 1536*1280 if role else 819200)],
              's_mov_b32 %s, 0x20000' % S(sPD+3), 's_mov_b32 %s, 0x20000' % S(sP1+3),
              's_mul_i32 %s, %s, 6554' % (S(sT1), S(sItem)), 's_lshr_b32 %s, %s, 16' % (S(sT1), S(sT1)),
              's_mul_i32 %s, %s, 10' % (S(sT2), S(sT1)), 's_sub_u32 %s, %s, %s' % (S(sT2), S(sItem), S(sT2)),
              's_lshl_b32 %s, %s, 7' % (S(sT3), S(sT2)),
              's_mul_i32 %s, %s, %d' % (S(sItem), S(sT1), 40960 if role else 20480), 's_add_u32 %s, %s, %s' % (S(sItem), S(sItem), S(sT3))]
        t0, t1 = V(vT[4]), V(vT[5]); L = V(vLane)
        if role:
            o += ['s_mul_i32 %s, %s, 5' % (S(sT1), S(sT1)), 's_lshl_b32 %s, %s, 2' % (S(sT2), S(sT2))]
            for i in range(4):
                o += ['s_add_u32 %s, %s, %d' % (S(sPs[i]), S(sT2), i),
                      's_mul_i32 %s, %s, 52' % (S(sT3), S(sPs[i])), 's_lshr_b32 %s, %s, 8' % (S(sT3), S(sT3)),
                      's_mul_i32 %s, %s, 435' % (S(sT3), S(sT3)), 's_add_u32 %s, %s, %s' % (S(sPs[i]), S(sPs[i]), S(sT3)),
                      's_add_u32 %s, %s, %s' % (S(sPs[i]), S(sPs[i]), S(sT1)), 's_lshl_b32 %s, %s, 10' % (S(sPs[i]), S(sPs[i])),
                      's_add_u32 %s, %s, 0x%x' % (S(sPs[i]), S(sPs[i]), WS_B2)]
            o += ['v_bfe_u32 %s, %s, 4, 1' % (t0, L), 'v_lshlrev_b32 %s, 11, %s' % (t0, t0), 'v_lshrrev_b32 %s, 5, %s' % (t1, L),
                  'v_lshl_add_u32 %s, %s, 9, %s' % (t0, t1, t0), 'v_bfe_u32 %s, %s, 2, 2' % (t1, L), 'v_lshl_add_u32 %s, %s, 7, %s' % (t0, t1, t0),
                  'v_and_b32 %s, 3, %s' % (t1, L), 'v_lshl_add_u32 %s, %s, 3, %s' % (t0, t1, t0)]
        else:
            o += self.srd_ptr(sP2, pCim) + ['s_mov_b32 %s, %s' % (S(sP2+2), S(sP1+2)), 's_mov_b32 %s, 0x20000' % S(sP2+3),
                  's_mul_i32 %s, %s, 52' % (S(sT3), S(sT1)), 's_lshr_b32 %s, %s, 8' % (S(sT3), S(sT3)),
                  's_mul_i32 %s, %s, 435' % (S(sT3), S(sT3)), 's_add_u32 %s, %s, %s' % (S(sT1), S(sT1), S(sT3)),
                  's_mul_i32 %s, %s, 20' % (S(sT3), S(sT2)), 's_add_u32 %s, %s, %s' % (S(sT1), S(sT1), S(sT3)),
                  's_lshl_b32 %s, %s, 10' % (S(sT1), S(sT1))]
            o += ['s_add_u32 %s, %s, 0x%x' % (S(sPs[i]), S(sT1), WS_B2 + 240*1024 + KST*i) for i in range(4)]
            o += ['v_lshrrev_b32 %s, 5, %s' % (t0, L), 'v_lshlrev_b32 %s, 11, %s' % (t0, t0), 'v_and_b32 %s, 15, %s' % (t1, L),
                  'v_lshl_add_u32 %s, %s, 7, %s' % (t0, t1, t0), 'v_bfe_u32 %s, %s, 4, 1' % (t1, L), 'v_lshl_add_u32 %s, %s, 4, %s' % (t0, t1, t0)]
        o += ['s_lshl_b32 %s, %s, 12' % (S(sT3), S(sWave)), 's_add_u32 %s, %s, %d' % (S(sT3), S(sT3), L_PK),
              'v_add_u32 %s, %s, %s' % (V(vPr), S(sT3), t0), 's_mov_b32 %s, %s' % (S(sWs2), S(sT3)),
              'v_lshrrev_b32 %s, 3, %s' % (t0, L), 'v_and_b32 %s, 7, %s' % (t1, L), 'v_mul_u32_u24 %s, 1280, %s' % (t0, t0),
              'v_lshl_add_u32 %s, %s, 4, %s' % (V(vPl), t1, t0)]
        return o

    def pack_load(self, role, vPl):
        g = self.g; nt = self.cfg.get('pknt', ' nt')
        g('s_mov_b32 m0, %s' % S(sWs2))
        for q in range(4):
            if role:
                if q: g('s_add_u32 %s, %s, 9216' % (S(sItem), S(sItem)))
                else: g('s_nop 0')
                self.tPack = g('buffer_load_dwordx4 %s, %s, %s offen offset:%d%s lds' % (V(vPl), S(sP1, 4), S(sItem), 1024*q, nt))
            else:
                if q == 0: g('s_add_u32 %s, %s, 9216' % (S(sT0), S(sItem)))
                if q == 2: g('s_add_u32 m0, %s, 2048' % S(sWs2))
                self.tPack = g('buffer_load_dwordx4 %s, %s, %s offen offset:%d%s lds' % (V(vPl), S(sP2 if q >= 2 else sP1, 4), S(sT0 if q & 1 else sItem), 1024*(q & 1), nt))
    def pack_proc(self, role, vPr):
        g = self.g
        a = [F(lambda: g.wait(self.tPack))]
        if role: a += ['ds_read_b64_tr_b16 %s, %s offset:%d' % (A(aPK+4*i+2*e, 2), V(vPr), e*1024 + i*32) for i in range(4) for e in range(2)]
        else: a += ['ds_read_b128 %s, %s offset:%d' % (A(aPK+4*i, 4), V(vPr), 32*i) for i in range(4)]
        b = []
        for i in range(4):
            def f(i=i): self.tPackSt = g('buffer_store_dwordx4 %s, %s, %s, %s offen sc1' % (A(aPK+4*i, 4), V(vL16), S(sPD, 4), S(sPs[i])))
            b.append(F(f))
        return a, b

    def touch_addr(self):
        if not self.cfg.get('coop', 0): return
        g = self.g; L = V(vLane)
        g('s_lshl_b32 %s, s2, 2' % S(sT0))
        g('s_add_u32 %s, %s, %s' % (S(sT0), S(sT0), S(sWave)))
        g('s_mul_i32 %s, %s, 20' % (S(sT1), S(sT0)))
        g('v_min_u32 v248, 19, %s' % L)
        g('v_add_u32 v248, %s, v248' % S(sT1))
        g('v_lshlrev_b32 v248, 7, v248')
        g('s_mul_i32 %s, %s, 25' % (S(sT1), S(sT0)))
        g('s_lshr_b32 %s, %s, 2' % (S(sT1), S(sT1)))
        g('v_min_u32 v249, 6, %s' % L)
        g('v_add_u32 v249, %s, v249' % S(sT1))
        g('v_min_u32 v249, 6399, v249')
        g('v_lshlrev_b32 v249, 7, v249')
        nw = 5 if self.cfg['coop'] == 1 else 15
        g('s_mul_i32 %s, %s, %d' % (S(sT1), S(sT0), nw))
        g('v_min_u32 v250, %d, %s' % (nw-1, L))
        g('v_add_u32 v250, %s, v250' % S(sT1))
        if nw == 5:
            g('v_lshrrev_b32 v251, 3, v250')
            g('v_and_b32 v250, 7, v250')
            g('v_mul_u32_u24 v251, 3072, v251')
            g('v_mul_u32_u24 v250, 384, v250')
            g('v_add_u32 v250, v250, v251')
        else:
            g('v_lshlrev_b32 v250, 7, v250')
    def touch(self):
        if not self.cfg.get('coop', 0): return
        g = self.g
        g('global_load_dword v240, v248, %s' % S(pX, 2))
        g('global_load_dword v241, v249, %s' % S(pBre, 2))
        g('global_load_dword v242, v249, %s' % S(pBim, 2))
        g('global_load_dword v243, v250, %s' % S(pW1, 2))

    def duty_setup(self, role, vD, sD):
        L = V(vLane)
        o = ['s_lshl_b32 %s, %s, 3' % (S(sT0), S(sC1)), 's_add_u32 %s, %s, %s' % (S(sT0), S(sT0), S(sJ1)),
             's_lshl_b32 %s, %s, 1' % (S(sT0), S(sT0)), 's_add_u32 %s, %s, %s' % (S(sT0), S(sT0), S(sWave)),
             's_mul_i32 %s, %s, %d' % (S(sT0), S(sT0), 8*1280), 's_and_b32 %s, %s, 3' % (S(sT1), S(sC1))]
        if role:
            o += ['s_lshl_b32 %s, %s, 1' % (S(sT1), S(sT1)), 's_and_b32 %s, %s, 1' % (S(sT2), S(sWave)), 's_add_u32 %s, %s, %s' % (S(sT1), S(sT1), S(sT2)),
                  's_mul_i32 %s, %s, %d' % (S(sT1), S(sT1), 8*3072)]
        else:
            o += ['s_lshl_b32 %s, %s, 2' % (S(sT2), S(sJ1)), 's_add_u32 %s, %s, %s' % (S(sT1), S(sT1), S(sT2)),
                  's_mul_i32 %s, %s, %d' % (S(sT1), S(sT1), 20*1280)]
        o += ['s_mov_b32 %s, %d' % (S(sT2), 3072 if role else 1280), 's_mov_b32 %s, %d' % (S(sT3), 7 if role else 19),
              ['s_cmp_lt_u32 %s, 2' % S(sWave), 's_cselect_b32 %s, %s, %s' % (S(sT0), S(sT0), S(sT1)),
               's_cselect_b32 %s, 1280, %s' % (S(sT2), S(sT2)), 's_cselect_b32 %s, 7, %s' % (S(sT3), S(sT3))],
              'v_lshrrev_b32 %s, 1, %s' % (V(vD), L), 'v_min_u32 %s, %s, %s' % (V(vD), S(sT3), V(vD)),
              'v_mul_u32_u24 %s, %s, %s' % (V(vD), S(sT2), V(vD)), 'v_add_u32 %s, %s, %s' % (V(vD), S(sT0), V(vD))]
        return o
    def duty_srd(self, role, sD):
        o = [['s_cmp_eq_u32 %s, 3' % S(sWave), 's_cselect_b32 %s, %s, %s' % (S(sD), S(pW1 if role else pBim), S(pW1 if role else pBre)),
              's_cselect_b32 %s, %s, %s' % (S(sD+1), S((pW1 if role else pBim)+1), S((pW1 if role else pBre)+1))],
             's_mov_b32 %s, %d' % (S(sD+2), 640*3072 if role else 819200),
             ['s_cmp_lt_u32 %s, 2' % S(sWave), 's_cselect_b32 %s, %s, %s' % (S(sD), S(pX), S(sD)), 's_cselect_b32 %s, %s, %s' % (S(sD+1), S(pX+1), S(sD+1)),
              's_cselect_b32 %s, %d, %s' % (S(sD+2), 2048*1280, S(sD+2))],
             's_mov_b32 %s, 0x20000' % S(sD+3)]
        return o
    def duty(self, role, s, vD, sD, dst):
        if not role: return ['buffer_load_dword %s, %s, %s, %s offen ; result unused' % (V(dst), V(vD), S(sD, 4), S(sKb[s]))]
        return [['s_mul_i32 %s, %s, 1536' % (S(sT0), S(sKb[s])), 's_add_u32 %s, %s, %s' % (S(sT0), S(sT0), S(sWo)),
                 's_cmp_lt_u32 %s, 2' % S(sWave), 's_cselect_b32 %s, %s, %s' % (S(sT0), S(sKb[s]), S(sT0)),
                 'buffer_load_dword %s, %s, %s, %s offen ; result unused' % (V(dst), V(vD), S(sD, 4), S(sT0))]]

    def warm_flags(self, role):
        if not self.cfg.get('warm', 1): return []
        L = V(vLane)
        o = ['s_lshl_b32 %s, %s, 7' % (S(sT0), S(sRole)), 's_add_u32 %s, %s, %s' % (S(sT0), S(sT0), S(sIdx)),
             's_lshl_b32 %s, %s, %d' % (S(sT0), S(sT0), self.fg - self.fw), 's_add_u32 %s, %s, %s' % (S(sT0), S(sT0), S(sWave)),
             's_lshl_b32 %s, %s, %d' % (S(sT0), S(sT0), self.fw), 's_add_u32 %s, %s, %d' % (S(sT0), S(sT0), WS_HFLAG),
             ]
        if self.cfg.get('wown', 1):
            o.append('v_mov_b32 v250, %s' % S(sT0))
            offs = (0x20000, 0x40000, 0x30000, 0xa0000, 0x70000, 0x60000, 0x90000) + ((0xb0000, 0xc0000) if self.EA else ()) if role else (0x20000, 0x60000, 0x90000)
            for k, x in enumerate(offs): o += ['s_add_u32 %s, %s, 0x%x' % (S(sT1), S(sT0), x), 'v_writelane_b32 v250, %s, %d' % (S(sT1), k+1)]
        else: o += ['v_min_u32 v250, %d, %s' % (10 if role else 13, L), 'v_lshlrev_b32 v250, 16, v250', 'v_add_u32 v250, %s, v250' % S(sT0)]
        if role == 0:
            o += [
                  's_lshl_b32 %s, %s, 4' % (S(sT0), S(sJ1)), 's_add_u32 %s, %s, %s' % (S(sT0), S(sT0), S(sC1)),
                  's_lshl_b32 %s, %s, 2' % (S(sT0), S(sT0)), 's_add_u32 %s, %s, %s' % (S(sT0), S(sT0), S(sWave)),
                  's_mul_i32 %s, %s, %d' % (S(sT0), S(sT0), self.EW), 's_add_u32 %s, %s, %d' % (S(sT0), S(sT0), WS_EBUF),
                  'v_and_b32 v251, 3, %s' % L, 'v_mul_u32_u24 v251, 104, v251', 'v_add_u32 v251, %s, v251' % S(sT0),
                  ['v_cmp_gt_u32 vcc, 16, %s' % L, 'v_cndmask_b32 v250, v251, v250, vcc'],
                  's_lshl_b32 %s, %s, 3' % (S(sT0), S(sC1)), 's_add_u32 %s, %s, %s' % (S(sT0), S(sT0), S(sJ1)),
                  's_lshl_b32 %s, %s, 2' % (S(sT0), S(sT0)), 's_add_u32 %s, %s, %s' % (S(sT0), S(sT0), S(sWave)),
                  's_lshl_b32 %s, %s, 6' % (S(sT0), S(sT0)), 's_add_u32 %s, %s, %d' % (S(sT0), S(sT0), WS_GATE),
                  'v_mov_b32 v251, %s' % S(sT0),
                  ['v_cmp_gt_u32 vcc, 20, %s' % L, 'v_cndmask_b32 v250, v251, v250, vcc']]
        if self.cfg.get('pages', 2):
            def lane(k, expr):
                return expr + ['v_writelane_b32 v250, %s, %d' % (S(sT0), k)]
            o += lane(32, ['s_mul_i32 %s, %s, %d' % (S(sT0), S(sC1), HMS), 's_add_u32 %s, %s, 0x%x' % (S(sT0), S(sT0), WS_H + (0 if role else 48*HKS))])
            o += lane(33, ['s_add_u32 %s, %s, %d' % (S(sT0), S(sT0), (48 if role else 40)*HKS - 128)])
            if self.cfg.get('pb2', 1): o += lane(34, ['s_mul_i32 %s, %s, %d' % (S(sT0), S(sJ1), MST), 's_add_u32 %s, %s, 0x%x' % (S(sT0), S(sT0), WS_B2 + (0 if role else 48*KST))])
            if self.cfg.get('pb2', 1): o += lane(35, ['s_add_u32 %s, %s, %d' % (S(sT0), S(sT0), (48 if role else 40)*KST - 128)])
            o += lane(36, ['s_mul_i32 %s, %s, 20480' % (S(sT0), S(sIdx)), 's_add_u32 %s, %s, 0x%x' % (S(sT0), S(sT0), WS_X + 4096)])
            o += lane(37, ['s_add_u32 %s, %s, %d' % (S(sT0), S(sT0), 128*20480)])
        o.append('buffer_load_dword v251, v250, %s, 0 offen sc1' % S(sWS, 4))
        if role == 0 and self.cfg.get('wgd', 0) == 1:
            o += ['v_min_u32 v248, 9, %s' % L, 'v_lshlrev_b32 v248, 7, v248',
                  'global_load_dword v243, v248, %s' % S(pGate, 2), 'global_load_dword v242, v248, %s' % S(pDsk, 2)]
        if self.cfg.get('pages', 2) >= 2:
            o += ['s_mul_i32 %s, %s, %d' % (S(sT0), S(sC1), 128*2560), 's_add_u32 %s, %s, %d' % (S(sT0), S(sT0), (1-role)*64*2560),
                  'v_and_b32 v249, 1, %s' % L, 'v_mul_u32_u24 v249, %d, v249' % (63*2560), 'v_add_u32 v249, %s, v249' % S(sT0),
                  'global_load_dword v241, v249, %s' % S(pOut, 2)]
        return o

    def rewarm(self, role, t):
        offs = [self.hoff(role, l, 1) for l in range(3 if role else 1)]
        o = []
        for k in offs: o.append(['s_mov_b32 %s, 0x%x' % (S(sKt), k), 'buffer_load_dword %s, %s, %s, %s offen sc1 ; result unused' % (V(t), V(vFa), S(sWS, 4), S(sKt))])
        return o

    def pack_poll_issue(self, vPp, vD):
        self.g('buffer_load_dword %s, %s, %s, 0 offen sc1' % (V(vD), V(vPp), S(sWS, 4)))
    def pack_poll_check(self, vPp, vD):
        if self.cfg.get('nopoll'): return
        self.poll('pk', lambda: self.pack_poll_issue(vPp, vD), self.check_eq([vD]))

    def x_dma_addr(self, vXd, perm):
        g = self.g
        g('s_lshl_b32 %s, %s, 2' % (S(sT0), S(sC1)))
        g('s_add_u32 %s, %s, %s' % (S(sT0), S(sT0), S(sWave)))
        g('s_mul_i32 %s, %s, %d' % (S(sT0), S(sT0), 32*1280))
        if perm:
            g('v_lshrrev_b32 %s, 5, %s' % (V(vT[3]), V(vLane)))
            g('v_and_b32 %s, 1, %s' % (V(vT[4]), V(vT[0])))
            g('v_lshl_add_u32 %s, %s, 1, %s' % (V(vT[3]), V(vT[3]), V(vT[4])))
            g('v_and_b32 %s, 1, %s' % (V(vT[4]), V(vT[2])))
            g('v_lshl_add_u32 %s, %s, 2, %s' % (V(vT[3]), V(vT[3]), V(vT[4])))
            g('v_mul_u32_u24 %s, 1280, %s' % (V(vT[3]), V(vT[3])))
        else:
            g('v_mul_u32_u24 %s, 1280, %s' % (V(vT[3]), V(vT[0])))
        g('v_xor_b32 %s, %s, %s' % (V(vT[4]), V(vT[1]), V(vT[2])))
        g('v_lshlrev_b32 %s, 4, %s' % (V(vT[4]), V(vT[4])))
        g('v_xor_b32 %s, 64, %s' % (V(vT[5]), V(vT[4])))
        g('v_add3_u32 %s, %s, %s, %s' % (V(vXd[0]), V(vT[4]), V(vT[3]), S(sT0)))
        g('v_add3_u32 %s, %s, %s, %s' % (V(vT[5]), V(vT[5]), V(vT[3]), S(sT0)))
        for q in range(1, 4):
            rows = (16*(q & 1) + 2*(q >> 1)) if perm else 8*q
            g('v_add_u32 %s, %d, %s' % (V(vXd[q]), rows*1280 - 1024*q, V(vT[5] if q & 1 else vXd[0])))

    def ffn(self):
        g = self.g; cfg = self.cfg
        ACC = [16, 48]
        WF = 80; NF = 10
        EP = 160
        PKR = 168
        vXd = [144, 145, 146, 147]; vWd = [148, 149]; vXr = [150, 151, 152, 153]; vWr = [154, 155]; vHs = 184
        vPr, vPs, vPp, vPd = 157, 158, 159, 13
        vWrB = [150, 151]
        def wslot(t):
            if t < 16: return F_WR + (t % 8)*8192
            if t < 24: return (t-16)*8192
            return F_WR + (t-24)*8192
        LA = cfg.get('fla', 7); WE = cfg.get('fwe', 4); XL0 = cfg.get('f_xl', 4)
        self.x_dma_addr(vXd, False)
        g('v_and_b32 %s, 1, %s' % (V(vT[3]), V(vT[2])))
        g('v_lshlrev_b32 %s, 2, %s' % (V(vT[3]), V(vT[3])))
        g('v_xor_b32 %s, %s, %s' % (V(vT[3]), V(vT[1]), V(vT[3])))
        g('v_mul_u32_u24 %s, 3072, %s' % (V(vT[4]), V(vT[0])))
        g('v_lshl_add_u32 %s, %s, 4, %s' % (V(vT[3]), V(vT[3]), V(vT[4])))
        g('s_mul_i32 %s, %s, %d' % (S(sT0), S(sWave), 16*3072))
        g('v_add_u32 %s, %s, %s' % (V(vWd[0]), S(sT0), V(vT[3])))
        g('v_add_u32 %s, %d, %s' % (V(vWd[1]), 8*3072 - 1024, V(vWd[0])))
        g('s_mul_i32 %s, %s, 20480' % (S(sMx), S(sWave)))
        g('s_lshl_b32 %s, %s, 11' % (S(sMw), S(sWave)))
        g('s_mul_i32 %s, %s, 384' % (S(sWo), S(sJ1)))
        g.do(self.srd_cst(sW, 640*3072))
        g('s_mov_b32 %s, %s' % (S(sKt), S(sKb[0])))
        tokX = {}; tokW = {}
        def dma_x(s):
            def mk(q):
                def f():
                    tokX[s] = g('buffer_load_dwordx4 %s, %s, %s offen offset:%d%s lds' % (V(vXd[q]), S(sX, 4), S(sKb[s]), 1024*q, (' nt' if s < cfg.get('nt0', 0) else '')))
                return F(f)
            return ['s_add_u32 m0, %s, %d' % (S(sMx), (s % 5)*4096)] + [mk(q) for q in range(4)]
        def dma_w(t):
            o = ['s_add_u32 m0, %s, %d' % (S(sMw), wslot(t))]
            k = sKb[t % 10]
            if t < 10: o += ['s_mul_i32 %s, %s, 1536' % (S(k), S(k)), 's_add_u32 %s, %s, %s' % (S(k), S(k), S(sWo))]
            if t in (10, 20): o += ['v_add_u32 %s, 128, %s' % (V(r), V(r)) for r in vWd]
            nt = ' nt' if t < cfg.get('nt0', 0) else ''
            o.append('buffer_load_dwordx4 %s, %s, %s offen%s lds' % (V(vWd[0]), S(sW, 4), S(k), nt))
            def f():
                tokW[t] = g('buffer_load_dwordx4 %s, %s, %s offen offset:1024%s lds' % (V(vWd[1]), S(sW, 4), S(k), nt))
            return o + [F(f)]
        self.touch_addr()
        self.ptrs_ready()
        g.do(self.srd_ptr(sW, pW1))
        if cfg.get('coop_first', 1): self.touch()
        g.do(dma_x(0) + dma_w(0))
        for s in range(1, 10): g.do(self.kb(s, sKt))
        DU = cfg.get('duty', 0); vD, dD = 240, 241
        if DU:
            g.do(self.duty_setup(1, vD, sP2) + self.duty_srd(1, sP2))
            for s in range(cfg.get('du0', 1), min(10, XL0 + DU)): g.do(self.duty(1, s, vD, sP2, dD))
        g.do(dma_x(1) + dma_w(1))
        g.do(self.srd_ptr(sWS, pWs))
        g('s_load_dword %s, %s, 0' % (S(sNonce), S(pWs, 2)))
        WA = cfg.get('wat', (-1, -1))[1]; wf = self.warm_flags(1)
        isld = lambda x: isinstance(x, str) and '_load_' in x
        g.do(wf if WA < 0 else [x for x in wf if not isld(x)])
        g('v_and_b32 %s, 31, %s' % (V(vT[3]), V(vLane)))
        g('v_bfe_u32 %s, %s, 1, 3' % (V(vT[4]), V(vLane)))
        g('v_lshrrev_b32 %s, 5, %s' % (V(vT[7]), V(vLane)))
        g('v_xor_b32 %s, %s, %s' % (V(vT[4]), V(vT[4]), V(vT[7])))
        g('v_lshlrev_b32 %s, 4, %s' % (V(vT[4]), V(vT[4])))
        g('v_lshl_add_u32 %s, %s, 7, %s' % (V(vT[4]), V(vT[3]), V(vT[4])))
        g('v_add_u32 %s, %s, %s' % (V(vXr[0]), S(sMx), V(vT[4])))
        for ks in range(1, 4):
            g('v_xor_b32 %s, %d, %s' % (V(vXr[ks]), 32*ks, V(vXr[0])))
        g('v_bfe_u32 %s, %s, 2, 2' % (V(vT[4]), V(vLane)))
        g('v_lshl_add_u32 %s, %s, 3, %s' % (V(vT[6]), V(vT[7]), V(vT[4])))
        g('v_lshlrev_b32 %s, 7, %s' % (V(vT[6]), V(vT[6])))
        g('v_lshrrev_b32 %s, 1, %s' % (V(vT[4]), V(vT[4])))
        g('v_lshl_add_u32 %s, %s, 6, %s' % (V(vT[6]), V(vT[4]), V(vT[6])))
        g('v_bfe_u32 %s, %s, 4, 1' % (V(vT[4]), V(vLane)))
        g('v_lshl_add_u32 %s, %s, 5, %s' % (V(vT[6]), V(vT[4]), V(vT[6])))
        g('v_and_b32 %s, 3, %s' % (V(vT[4]), V(vLane)))
        g('v_lshl_add_u32 %s, %s, 3, %s' % (V(vT[6]), V(vT[4]), V(vT[6])))
        g('v_add_u32 %s, %d, %s' % (V(vWr[0]), F_WR, V(vT[6])))
        g('v_xor_b32 %s, 64, %s' % (V(vWr[1]), V(vWr[0])))
        global sWs2
        sWs2 = 43
        CF_ = cfg.get('cpk')
        if CF_:
            g.do(self.pack_addr(0, vPs, vPr, None))
            if len(CF_) == 2: self.pack_load(0, vPs)
        pk0 = cfg.get('pk', (4,))[0] < 2
        if pk0: g.do(self.pack_addr(1, vPs, vPr, None))
        if cfg.get('pk', (4,))[0] < 0: self.pack_load(1, vPs)
        XL = cfg.get('f_xl', 4); FU = cfg.get('f_up', XL)
        for s in range(2, FU): g.do(dma_x(s) + dma_w(s))
        self.stamp(1)
        setup = ([] if pk0 else self.pack_addr(1, vPs, vPr, None)) + self.nonce_ops() + self.late_setup(1, vT[0], vT[1], vPp)
        n_late = len(setup)
        setup += self.hbase(6, 0) + [
            'v_bfe_u32 %s, %s, 4, 1' % (V(vT[0]), V(vLane)), 'v_lshlrev_b32 %s, 10, %s' % (V(vT[0]), V(vT[0])),
            'v_lshl_add_u32 %s, %s, 9, %s' % (V(vT[0]), V(vT[7]), V(vT[0])), 'v_and_b32 %s, 15, %s' % (V(vT[1]), V(vLane)),
            'v_lshl_add_u32 %s, %s, 4, %s' % (V(vT[0]), V(vT[1]), V(vT[0])), 'v_add_u32 %s, %s, %s' % (V(vHs), S(sKt), V(vT[0])),
            's_mov_b32 %s, 0x%x' % (S(sNl), NLOG2E)]
        setup += self.ks_table(1)
        xld = []
        if self.XR:
            xa, xld = self.xd_loads(vT[0], 200); setup += xa

        mains = []; fixed = []
        tokF = {}; tokXr = {}
        def rd_x(s, ks):
            def f(): tokXr[s] = g('ds_read_b128 %s, %s offset:%d' % (A(16*s + 4*ks, 4), V(vXr[ks]), (s % 5)*4096))
            return F(f)
        def rd_w(n, e):
            sg, ks, u = n // 8, (n % 8)//2, n % 2
            def f():
                tokF[n] = g('ds_read_b64_tr_b16 %s, %s offset:%d' % (V(WF + 4*(n % NF) + 2*e, 2), V(vWrB[u] if 16 <= sg < 24 else vWr[u]), wslot(sg) % F_WR + (16*ks + 4*e)*128))
            return F(f)
        def bar(sg, both):
            def f():
                g.wait(tokX.get(sg), tokW[sg+1 if both else sg], tokXr.get(sg-1) if XL == 4 else None)
                g('s_barrier')
                if sg == 0: self.stamp(2)
                if sg == 10: self.stamp(3)
                if sg == 20: self.stamp(4)
                if sg in (3, 5, 7, 12, 16, 26): self.stamp(20 + (3, 5, 7, 12, 16, 26).index(sg), lvl=3)
            return F(f, 8)
        for n in range(240):
            sg, ks, u = n // 8, (n % 8)//2, n % 2
            grp, s = sg // 10, sg % 10
            acc = ACC[grp % 2] + 16*u
            c = '0' if (s == 0 and ks == 0) else V(acc, 16)
            mains.append(('v_mfma_f32_32x32x16_bf16 %s, %s, %s, %s' % (V(acc, 16), V(WF + 4*(n % NF), 4), A(16*s + 4*ks, 4), c),
                          (lambda n=n: [tokF[min(n+WE-1, 239)]]) if n % WE == 0 else None))
        wsched = {}
        if XL == 3:
            for sg in range(7): wsched[sg] = [sg+3]
            wsched[7] = [10, 11]; wsched[8] = [12, 13]; wsched[9] = [14]; wsched[10] = [15]
        else:
            for sg in range(6): wsched[sg] = [sg+4]
            wsched[6] = [10, 11]; wsched[7] = [12, 13]; wsched[8] = [14]; wsched[9] = [15]
        ws_ = cfg.get('wsch', 2) if XL == 4 else 0
        if ws_ == 0: wsched[12] = [16, 17, 18, 19]; wsched[14] = [20, 21, 22]; wsched[16] = [23, 24, 25]; wsched[18] = [26, 27]; wsched[20] = [28, 29]
        if ws_ == 1: wsched[10] = [16, 17, 18, 19]; wsched[12] = [20, 21, 22, 23]; wsched[14] = [24, 25, 26, 27]; wsched[16] = [28, 29]
        if ws_ == 2: wsched[10] = [16, 17, 18]; wsched[12] = [19, 20, 21]; wsched[14] = [22, 23, 24]; wsched[16] = [25, 26, 27]; wsched[18] = [28, 29]
        endb = {}
        for sg in range(30):
            if sg >= 10 and sg % 2: continue
            p = 8*sg - LA
            fixed.append((p - 0.5, bar(sg, sg >= 10)))
            d = []
            if DU and sg + XL + DU <= 9: d += self.duty(1, sg + XL + DU, vD, sP2, dD)
            if sg == 0:
                for s in range(max(FU, 2), XL): d += dma_x(s) + dma_w(s)
            if sg + XL <= 9: d += dma_x(sg+XL)
            for t in wsched.get(sg, []): d += dma_w(t)
            stp = min(0.5, 6.5/max(len(d), 1)) if sg < 10 else 15.0/max(len(d), 1)
            for i, f in enumerate(d): fixed.append((p + 0.6 + i*stp, f))
            endb[sg] = p + 0.6 + len(d)*stp
        for u in range(2): fixed.append((90 + u, 'v_subrev_u32 %s, %d, %s' % (V(vWrB[u]), F_WR, V(vWr[u]))))
        if cfg.get('w1warm', 0):
            fixed.append((endb[cfg.get('w1warm_at', 1)], ['s_lshl_b32 %s, %s, 2' % (S(sT0), S(sC1)), 's_add_u32 %s, %s, %s' % (S(sT0), S(sT0), S(sWave)),
                 's_mul_i32 %s, %s, %d' % (S(sT0), S(sT0), 10*3072), 's_add_u32 %s, %s, %s' % (S(sT0), S(sT0), S(sWo)),
                 'v_min_u32 %s, 19, %s' % (V(vT[8]), V(vLane)), 'v_lshrrev_b32 %s, 1, %s' % (V(vPd), V(vT[8])),
                 'v_mul_u32_u24 %s, 3072, %s' % (V(vPd), V(vPd)), 'v_and_b32 %s, 1, %s' % (V(vT[8]), V(vT[8])),
                 'v_lshl_add_u32 %s, %s, 7, %s' % (V(vPd), V(vT[8]), V(vPd)),
                 'buffer_load_dword %s, %s, %s, %s offen offset:128 sc1' % (V(vT[8]), V(vPd), S(sW, 4), S(sT0))]))
        for n in range(240):
            if n < 80 and n % 2 == 0:
                s, ks = n//8, (n % 8)//2
                fixed.append((8*s - LA + ks if XL == 4 else n - LA, rd_x(s, ks)))
            fixed.append((n - LA, rd_w(n, 0))); fixed.append((n - LA, rd_w(n, 1)))
        if WA >= 0: fixed.append((endb[WA], [x for x in wf if isld(x)]))
        cl, cr, cf, pp = cfg.get('pk', (4, 8, 12, 22))
        at = lambda sg: endb[sg] if sg < 10 else 8*sg - LA + 0.2
        s_from = 0
        if CF_:
            if len(CF_) == 3:
                fixed.append((endb[CF_[0]], F(lambda: self.pack_load(0, vPs), 32))); CF_ = CF_[1:]
            ca, cb = self.pack_proc(0, vPr); tC = []
            for i, f in enumerate(ca): fixed.append((endb[CF_[0]] + 0.3*i, f))
            for i, f in enumerate(cb): fixed.append((endb[CF_[0]] + 4 + 0.3*i, f))
            fixed.append((endb[CF_[0]] + 5.5, F(lambda: tC.append(self.tPackSt), 0)))
            s_from = int(endb[CF_[0]]) + 7
            fixed.append((at(CF_[1]), F(lambda: (sA.flush(g), g('v_subrev_u32 v186, %d, %s' % (128 << self.fg, V(vFa))), self.flag_store(tC[0], sPD, 186)), 12)))
            assert not pk0 and CF_[1] <= cr
        if cl >= 0: fixed.append((endb[cl], F(lambda: self.pack_load(1, vPs), 36)))
        pa_, pb_ = self.pack_proc(1, vPr)
        for i, f in enumerate(pa_): fixed.append((at(cr) + 0.5*i, f))
        for i, f in enumerate(pb_): fixed.append((at(cr) + 8 + 0.5*i, f))
        fixed.append((at(cf), F(lambda: self.flag_store(self.tPackSt, sPD), 8)))
        if pp < 30:
            fixed.append((at(pp-2), F(lambda: self.pack_poll_issue(vPp, vPd))))
            fixed.append((at(pp), F(lambda: self.pack_poll_check(vPp, vPd), 20)))
        else:
            fixed.append((228, F(lambda: self.pack_poll_issue(vPp, vPd))))
        b2 = self.b2_loads(1, range(4 if cfg.get('f_nob2') else 12))
        nb_in = 0; p = at(pp) + 2 if pp < 30 else 999
        while nb_in < min(len(b2), cfg.get('f_b2in', 20)):
            st_, nt_ = nb_in // 5, nb_in % 5
            if st_ >= 4: p = max(p, 160 + 8*((20*(st_-4) + 4*nt_ + 3)//16) + 9)
            if p > 238: break
            fixed.append((p, b2[nb_in])); nb_in += 1; p += cfg.get('f_sp', 3.0)
        tU = {}
        def epi(grp):
            ops = []
            for u in range(2):
                acc = ACC[grp % 2] + 16*u
                pk = PKR + 8*u
                def stage(r, k):
                    t = V(EP + (r % 8)); a = V(acc + r)
                    return ['v_mul_f32 %s, %s, %s' % (t, S(sNl), a), 'v_exp_f32 %s, %s' % (t, t), 'v_add_f32 %s, 1.0, %s' % (t, t),
                            'v_rcp_f32 %s, %s' % (t, t), 'v_mul_f32 %s, %s, %s' % (a, a, t)][k]
                for tm in range(16 + 6):
                    for k in (4, 3, 2, 1, 0):
                        r = tm - k
                        if 0 <= r < 16: ops.append(stage(r, k))
                    r = tm - 5
                    if 0 <= r < 16 and r % 2 == 1:
                        ops.append('v_cvt_pk_bf16_f32 %s, %s, %s' % (V(pk + r//2), V(acc + r - 1), V(acc + r)))
                        if r in (7, 15):
                            e = r // 8
                            def st(e=e, pk=pk, un=2*grp+u):
                                tU[un] = g('buffer_store_dwordx4 %s, %s, %s, 0 offen offset:%d%s' % (V(pk + 4*e, 4), V(vHs), S(sH, 4), 256*e, cfg.get('hst', ' sc1')))
                            ops.append(F(st))
                ops.append('v_add_u32 %s, %d, %s' % (V(vHs), HKS, V(vHs)))
            return ops
        pa = 24 if pk0 else min(40 if not CF_ else 99, int(at(cl)) - 1)
        if CF_: pa = min(pa, int(at(CF_[1])) - 1)
        sA = Stream(setup[:n_late], s_from, pa - 1)
        fixed.append((pa - 0.1, F(lambda: sA.flush(g), 0)))
        streams = [sA, Stream(setup[n_late:], pa, max(78, pa + 30)),
                   Stream(epi(0), 82, 158), Stream(epi(1), 162, 238)]
        if cfg.get('noepi'): streams = streams[:3]
        assert cfg.get('f_xd', 150) >= max(78, pa + 30) + 4
        for i, f in enumerate(xld): fixed.append((cfg.get('f_xd', 150) + 1.6*i, f))
        fixed.append((max(at(cf) + 1, 150), self.line_addr(WS_HFLAG, vFa)))
        if cfg.get('rw'):
            for i, f in enumerate(self.rewarm(1, 242)): fixed.append((cfg['rw'][1] + 3*i, f))
        EA = self.EA
        fixed.append((cfg.get('f_l0', 232), F(lambda: self.hflag(1, EA, tU[2]), 20)))
        if EA:
            fixed.append((cfg.get('f_la', 192), F(lambda: self.hflag(1, 0, tU[1]), 20)))
            for i, f in enumerate(self.hp_addr(1)): fixed.append((200 + i, f))
            fixed.append((cfg.get('f_pa', 226), F(lambda: self.hpoll(1, 0), 8)))
        sched(g, mains, 24, fixed, streams, report=self.rep and 'ffn')
        self.stamp(5)
        if pp >= 30: self.pack_poll_check(vPp, vPd)
        e2 = epi(2); k = cfg.get('f_hp0', 120 if EA else 60)
        if EA:
            self.hcheck(1, 0)
            for n in range(3): g.do(self.a2(1, n))
            rest = mix(g, e2[:k] + [F(lambda: self.hpoll(1, 1), 8)] + e2[k:], b2[nb_in:], every=cfg.get('f_pace', 72), lead=cfg.get('f_lead', 400))
        else:
            rest = mix(g, e2[:k] + self.hp_addr(1) + [F(lambda: self.hpoll(1, 0), 8)] + e2[k:], b2[nb_in:], every=cfg.get('f_pace', 72))
        self.hflag(1, 1 + EA, tU[3], 'l' if cfg.get('dg', 0) else 'lg')
        jl = cfg.get('f_jl', 0)
        if jl:
            nj = cfg.get('f_jb', 16)
            g.do(rest[:nj]); rest = rest[nj:]
            if jl == 2: self.hflag(1, 2, tU[5])
            self.hpoll(1, jl); self.hcheck(1, jl); self.hpoll(1, 0)
        self.stamp(6)
        self.phase2(1, rest, tU[5])

    def cpow(self, dst, a, th, n, t0, t1):
        if n is None:
            o = ['v_exp_f32 %s, %s' % (V(t0), V(a)), 'v_rndne_f32 %s, %s' % (V(t1), V(th)), 'v_sub_f32 %s, %s, %s' % (V(t1), V(th), V(t1))]
        else:
            o = ['v_mul_f32 %s, %s, %s' % (V(t0), n, V(a)), 'v_mul_f32 %s, %s, %s' % (V(dst), n, V(th)), 'v_exp_f32 %s, %s' % (V(t0), V(t0)),
                 'v_rndne_f32 %s, %s' % (V(t1), V(dst)), 'v_sub_f32 %s, %s, %s' % (V(t1), V(dst), V(t1))]
        return o + ['v_cos_f32 %s, %s' % (V(dst), V(t1)), 'v_sin_f32 %s, %s' % (V(dst+1), V(t1)),
                    'v_mul_f32 %s, %s, %s' % (V(dst), V(t0), V(dst)), 'v_mul_f32 %s, %s, %s' % (V(dst+1), V(t0), V(dst+1))]

    def ssm(self):
        g = self.g; cfg = self.cfg
        ACC = 16
        def acc(u, part, t): return ACC + 16*u + 8*part + t
        L1, CF, L4, L8S = 96, 98, 100, 102
        L8, L128, LK, vGrp = 136, 138, 214, 216
        def pk(op, d, c, hi, x, y=None, neg=False):
            n = 3 if y is not None else 2
            t = 'v_pk_%s_f32 %s, %s, %s' % (op, V(d, 2), V(c, 2), V(x, 2)) + (', %s' % V(y, 2) if y is not None else '')
            t += ' op_sel:[%d%s] op_sel_hi:[%d%s]' % (hi, ',0'*(n-1), hi, ',1'*(n-1))
            if neg: t += ' neg_lo:[1%s] neg_hi:[1%s]' % (',0'*(n-1), ',0'*(n-1))
            return t
        vXd = [140, 141, 142, 143]; vBd = [144, 145, 146, 147, 148]
        vXr = [149, 150]; vBr = [151, 152, 153, 154]
        vPidx = 155; vHs = 156
        vPr, vPs, vPp, vPd = 217, 218, 159, 13
        BIG = 160
        RAW = 160
        CH = cfg.get('s_ch', 0)
        aBF = 0; NF = 12 if CH else 14; aXF = 48 if CH else 56
        LA = cfg.get('sla', 4 if CH else 6); WE = cfg.get('swe', 2 if CH else 4); SL = cfg.get('s_sl', 3); RS = 1.4 if SL == 3 else 2.0
        g.label('L_ssm')
        self.x_dma_addr(vXd, True)
        g('s_and_b32 %s, %s, 1' % (S(sT1), S(sWave)))
        g('s_lshl_b32 %s, %s, 1' % (S(sT0), S(sJ1)))
        g('s_add_u32 %s, %s, %s' % (S(sT0), S(sT0), S(sT1)))
        g('s_mul_i32 %s, %s, %d' % (S(sT0), S(sT0), 40*1280))
        g('s_lshl_b32 %s, %s, 6' % (S(sT1), S(sT1)))
        g('v_xor_b32 %s, %s, %s' % (V(vT[4]), S(sT1), V(vT[4])))
        g('v_xor_b32 %s, 64, %s' % (V(vT[5]), V(vT[4])))
        g('v_mul_u32_u24 %s, 1280, %s' % (V(vT[3]), V(vT[0])))
        g('v_add3_u32 %s, %s, %s, %s' % (V(vBd[0]), V(vT[4]), V(vT[3]), S(sT0)))
        g('v_add3_u32 %s, %s, %s, %s' % (V(vT[5]), V(vT[5]), V(vT[3]), S(sT0)))
        for q in range(1, 5):
            g('v_add_u32 %s, %d, %s' % (V(vBd[q]), 8*q*1280 - 1024*(q & 3), V(vT[5] if q & 1 else vBd[0])))
        g('s_lshl_b32 %s, %s, 14' % (S(sMx), S(sWave)))
        g('s_mul_i32 %s, %s, 5120' % (S(sMw), S(sWave)))
        g('s_add_u32 %s, %s, %d' % (S(sMw), S(sMw), S_BR))
        g.do(self.srd_cst(sW, 819200))
        g.do(self.kb(1))
        tokS = {}
        def dma(s):
            o = ['s_add_u32 m0, %s, %d' % (S(sMx), (s % 4)*4096)]
            for q in range(4): o.append('buffer_load_dwordx4 %s, %s, %s offen offset:%d%s lds' % (V(vXd[q]), S(sX, 4), S(sKb[s]), 1024*q, (' nt' if s < cfg.get('nt0', 0) else '')))
            o.append('s_add_u32 m0, %s, %d' % (S(sMw), (s % 4)*20480))
            nt = ' nt' if s < cfg.get('nt0', 0) else ''
            for q in range(4): o.append('buffer_load_dwordx4 %s, %s, %s offen offset:%d%s lds' % (V(vBd[q]), S(sW, 4), S(sKb[s]), 1024*q, nt))
            o.append('s_add_u32 m0, %s, %d' % (S(sMw), (s % 4)*20480 + 4096))
            def f(): tokS[s] = g('buffer_load_dwordx4 %s, %s, %s offen%s lds' % (V(vBd[4]), S(sW, 4), S(sKb[s]), nt))
            return o + [F(f)]
        g('s_mul_i32 %s, %s, 160' % (S(sT0), S(sJ1)))
        g('v_mul_u32_u24 %s, 13, %s' % (V(vGrp), V(vLane)))
        g('v_lshrrev_b32 %s, 8, %s' % (V(vGrp), V(vGrp)))
        g('v_mul_u32_u24 %s, 20, %s' % (V(vPidx), V(vGrp)))
        g('v_sub_u32 %s, %s, %s' % (V(vPidx), V(vLane), V(vPidx)))
        g('s_mul_i32 %s, %s, 20' % (S(sT1), S(sWave)))
        g('v_add_u32 %s, %s, %s' % (V(vPidx), S(sT1), V(vPidx)))
        g('v_lshl_add_u32 %s, %s, 1, %s' % (V(vT[6]), V(vPidx), S(sT0)))
        self.ptrs_ready()
        g('s_cmp_lt_u32 %s, 2' % S(sWave))
        g('s_cselect_b32 %s, %s, %s' % (S(sW), S(pBre), S(pBim)))
        g('s_cselect_b32 %s, %s, %s' % (S(sW+1), S(pBre+1), S(pBim+1)))
        g.do(dma(0))
        for k, p in enumerate((pLre, pLim, pLdt)): g('global_load_ushort %s, %s, %s' % (V(RAW + k), V(vT[6]), S(p, 2)))
        g.do(self.srd_ptr(sWS, pWs))
        g('s_load_dword %s, %s, 0' % (S(sNonce), S(pWs, 2)))
        d1 = dma(1); n1 = cfg.get('s_n1', 5)
        g.do(d1[:n1])
        g('s_branch L_ssm2')
        g.label('L_ssm2')
        for s in range(2, 10): g.do(self.kb(s))
        DU = cfg.get('duty', 0); vD, dD = 157, 158
        if DU:
            g.do(self.duty_setup(0, vD, sOUT) + self.duty_srd(0, sOUT))
            for s in range(cfg.get('du0', 1), min(10, SL + DU)): g.do(self.duty(0, s, vD, sOUT, dD))
        WA = cfg.get('wat', (-1, -1))[0]; wf = self.warm_flags(0)
        isld = lambda x: isinstance(x, str) and '_load_' in x
        if WA >= 0: wf = [x.replace(S(pOut, 2), S(42, 2)) if isld(x) else x for x in wf] + self.srd_ptr(42, pOut)
        g.do(wf if WA < 0 else [x for x in wf if not isld(x)])
        global sWs2
        sWs2 = 93
        sl_, sr_, sf_ = cfg.get('spk', (-1, 1, 4))
        own = not cfg.get('cpk')
        if own:
            g.do(self.pack_addr(0, vPs, vPr, None))
            if sl_ < 0: self.pack_load(0, vPs)
        g('v_and_b32 %s, 15, %s' % (V(vT[3]), V(vLane)))
        g('v_bfe_u32 %s, %s, 1, 3' % (V(vT[4]), V(vLane)))
        g('v_xor_b32 %s, %s, %s' % (V(vT[4]), V(vT[4]), V(vT[2])))
        g('v_lshlrev_b32 %s, 4, %s' % (V(vT[4]), V(vT[4])))
        g('v_lshl_add_u32 %s, %s, 7, %s' % (V(vT[4]), V(vT[3]), V(vT[4])))
        g('v_add_u32 %s, %s, %s' % (V(vXr[0]), S(sMx), V(vT[4])))
        g('v_xor_b32 %s, 64, %s' % (V(vXr[1]), V(vXr[0])))
        g('v_add_u32 %s, %d, %s' % (V(vBr[0]), S_BR, V(vT[4])))
        g('v_xor_b32 %s, 64, %s' % (V(vBr[1]), V(vBr[0])))
        g('v_add_u32 %s, 40960, %s' % (V(vBr[2]), V(vBr[0])))
        g('v_add_u32 %s, 40960, %s' % (V(vBr[3]), V(vBr[1])))
        PT = BIG + 20
        L_PAR = L_EX + 11264
        setup = self.late_setup(0, vT[0], vT[1], vPp) + self.hbase(5, 48*HKS) + ['v_add_u32 %s, %s, %s' % (V(vHs), S(sKt), V(vL16))]
        setup += self.ks_table(0)
        setup += ['s_lshl_b32 %s, %s, 2' % (S(sT2), S(sWave)), 'v_add_u32 %s, %s, %s' % (V(vT[2]), S(sT2), V(vT[2])),
               'v_lshlrev_b32 %s, 3, %s' % (V(PT), V(vT[2])), 'v_cvt_f32_u32 %s, %s' % (V(PT), V(PT)),
               'v_mul_u32_u24 %s, 640, %s' % (V(vT[2]), V(vT[2])),
               'v_lshlrev_b32 %s, 5, %s' % (V(vT[7]), V(vT[3])), 'v_add_u32 %s, %d, %s' % (V(vT[7]), L_PAR, V(vT[7])),
               'v_lshlrev_b32 %s, 5, %s' % (V(vT[6]), V(vPidx)), 'v_add_u32 %s, %d, %s' % (V(vT[6]), L_PAR, V(vT[6])),
               'v_lshlrev_b32 %s, 3, %s' % (V(vT[3]), V(vT[3])), 'v_add_u32 %s, %d, %s' % (V(vT[3]), L_EX, V(vT[3])),
               'v_add_u32 %s, %s, %s' % (V(vT[2]), V(vT[2]), V(vT[3])),
               'v_lshlrev_b32 %s, 3, %s' % (V(vT[4]), V(vPidx)), 'v_add_u32 %s, %d, %s' % (V(vT[4]), L_EX, V(vT[4])),
               's_mul_i32 %s, %s, %d' % (S(sT2), S(sJ1), 64*self.EW), 's_mul_i32 %s, %s, %d' % (S(sCo), S(sWave), self.EW - 320),
               's_add_u32 %s, %s, %s' % (S(sT2), S(sT2), S(sCo)), 's_add_u32 %s, %s, %d' % (S(sT2), S(sT2), WS_EBUF),
               'v_lshlrev_b32 %s, 4, %s' % (V(vT[5]), V(vPidx)), 'v_add_u32 %s, %s, %s' % (V(vT[5]), S(sT2), V(vT[5])),
               's_mul_i32 %s, %s, %d' % (S(sCo), S(sC1), 4*self.EW),
               'v_mul_u32_u24 %s, 640, %s' % (V(PT+1), V(vGrp)), 'v_cvt_f32_u32 %s, %s' % (V(PT+1), V(PT+1))]
        xdl = self.xd_loads(PT + 5)
        if cfg.get('s_xd', 250) < 0 and self.XR == 0: setup += xdl
        g.do(setup)
        g.do(d1[n1:])
        UP = cfg.get('s_up', 2)
        if UP == 3: g.do(dma(2))
        self.stamp(1)
        lr, li, ld = RAW, RAW + 1, RAW + 2
        Q = RAW + 4; l1, cf, l4, a, th = Q, Q+2, Q+4, Q+6, Q+7
        t0, t1, t2, t3 = PT+2, PT+3, PT+4, RAW+3
        par = ['v_lshlrev_b32 %s, 16, %s' % (V(ld), V(ld)), 'v_mul_f32 %s, 0x%x, %s' % (V(ld), LOG2E, V(ld)),
               'v_exp_f32 %s, %s' % (V(ld), V(ld)), 'v_lshlrev_b32 %s, 16, %s' % (V(lr), V(lr)),
               'v_cvt_pk_bf16_f32 %s, %s, %s' % (V(ld), V(ld), V(ld)), 'v_lshlrev_b32 %s, 16, %s' % (V(li), V(li)),
               'v_lshlrev_b32 %s, 16, %s' % (V(ld), V(ld)),
               'v_mul_f32 %s, %s, %s' % (V(a), V(ld), V(lr)), 'v_mul_f32 %s, %s, %s' % (V(th), V(ld), V(li)),
               'v_mul_f32 %s, 0x%x, %s' % (V(a), LOG2E, V(a)), 'v_mul_f32 %s, 0.15915494, %s' % (V(th), V(th))]
        par += self.cpow(l1, a, th, None, t0, t1)
        par += ['v_mul_f32 %s, %s, %s' % (V(t2), V(lr), V(lr)), 'v_fmac_f32 %s, %s, %s' % (V(t2), V(li), V(li)),
                'v_rcp_f32 %s, %s' % (V(t2), V(t2)), 'v_add_f32 %s, -1.0, %s' % (V(t3), V(l1)),
                'v_mul_f32 %s, %s, %s' % (V(t0), V(l1), V(l1)), 'v_mul_f32 %s, %s, %s' % (V(t1), V(l1), V(l1+1)),
                'v_mul_f32 %s, %s, %s' % (V(cf), V(t3), V(lr)), 'v_add_f32 %s, %s, %s' % (V(t2), V(t2), V(t2)),
                'v_fmac_f32 %s, %s, %s' % (V(cf), V(l1+1), V(li)), 'v_mul_f32 %s, %s, %s' % (V(cf+1), V(l1+1), V(lr)),
                'v_fma_f32 %s, -%s, %s, %s' % (V(cf+1), V(t3), V(li), V(cf+1)),
                'v_mul_f32 %s, %s, %s' % (V(cf), V(cf), V(t2)), 'v_mul_f32 %s, %s, %s' % (V(cf+1), V(cf+1), V(t2)),
                'v_fma_f32 %s, -%s, %s, %s' % (V(t0), V(l1+1), V(l1+1), V(t0)), 'v_add_f32 %s, %s, %s' % (V(t1), V(t1), V(t1)),
                'v_mul_f32 %s, %s, %s' % (V(l4), V(t0), V(t0)), 'v_mul_f32 %s, %s, %s' % (V(l4+1), V(t0), V(t1)),
                'v_fma_f32 %s, -%s, %s, %s' % (V(l4), V(t1), V(t1), V(l4)), 'v_add_f32 %s, %s, %s' % (V(l4+1), V(l4+1), V(l4+1))]
        par += self.cpow(L8, a, th, '0x41000000', t0, t1) + self.cpow(L128, a, th, '0x43000000', t0, t1)
        par += self.cpow(LK, a, th, V(PT+1), t0, t1)
        par_w = ['ds_write_b128 %s, %s' % (V(vT[6]), V(Q, 4)), 'ds_write_b128 %s, %s offset:16' % (V(vT[6]), V(Q+4, 4))]
        par_r = ['ds_read_b128 %s, %s offset:%d' % (V(L1 + 8*u + 4*h, 4), V(vT[7]), 512*u + 16*h) for u in range(5) for h in range(2)]
        par2 = []
        for u in range(5): par2 += self.cpow(L8S + 8*u, L8S + 8*u, L8S + 8*u + 1, V(PT), t0, t1)

        mains = []; fixed = []
        tokF = {}; tokP = {}
        def rd_b(f_):
            sg, s, up = f_ // 20, (f_ % 20)//10, f_ % 10
            if CH: s, up = f_ % 2, (f_ % 20)//2
            u, part = up // 2, up % 2
            def f():
                if cfg.get('s_nord'): tokF[f_] = None; return
                tokF[f_] = g('ds_read_b128 %s, %s offset:%d' % (A(aBF + 4*(f_ % NF), 4), V(vBr[2*((sg % 4)//2) + s]), (sg % 2)*20480 + (part*80 + 16*u)*128))
            return F(f)
        def bar(sg):
            def f():
                g.wait(tokS[sg], tokF.get(20*sg-1) if (SL == 3 and sg + SL <= 9) else None, tokP.get(sg))
                g('s_barrier')
                if sg == 0: self.stamp(2)
                if sg in (2, 4, 6, 8, 9): self.stamp(20 + (2, 4, 6, 8, 9).index(sg), lvl=3)
                if cfg.get('allbar') and sg > 0: self.stamp(19 + sg)
            return F(f, 8)
        for n in range(400 if CH else 0):
            sg, up, m, s = n // 40, (n % 40)//4, (n % 4)//2, n % 2
            f_ = 20*sg + 2*up + s
            d = acc(up // 2, up % 2, 4*m)
            c = '0' if (sg == 0 and s == 0) else V(d, 4)
            mains.append(('v_mfma_f32_16x16x32_bf16 %s, %s, %s, %s' % (V(d, 4), A(aXF + 16*(sg % 2) + 8*s + 4*m, 4), A(aBF + 4*(f_ % NF), 4), c),
                          (lambda f_=f_: [tokF[min(f_+WE-1, 199)]]) if (n % 4 == 0 and f_ % WE == 0) else None))
        for n in range(0 if CH else 400):
            f_, m = n // 2, n % 2
            kk, up = f_ // 10, f_ % 10
            u, part = up // 2, up % 2
            d = acc(u, part, 4*m)
            c = '0' if kk == 0 else V(d, 4)
            mains.append(('v_mfma_f32_16x16x32_bf16 %s, %s, %s, %s' % (V(d, 4), A(aXF + 8*(kk % 2) + 4*m, 4), A(aBF + 4*(f_ % NF), 4), c),
                          (lambda f_=f_: [tokF[min(f_+WE-1, 199)]]) if (m == 0 and f_ % WE == 0) else None))
        endb = {}
        for sg in range(10):
            p = 40*sg - 2*LA
            fixed.append((p - 1.5, bar(sg)))
            if sg + SL <= 9:
                d = dma(sg+SL)
                if sg == 0 and UP < SL: d = dma(2) + d
                if DU and sg + SL + DU <= 9: d = self.duty(0, sg + SL + DU, vD, sOUT, dD) + d
                stp = 36.0/len(d) if len(d) > 12 else 2
                for i, f in enumerate(d): fixed.append((p + 1 + stp*i, f))
                endb[sg] = p + 1 + stp*len(d)
        for f_ in range(200):
            pos = 40*(f_//20) - 2*LA + RS*(f_ % 20)
            if CH and f_ % 20 == 0:
                sg = f_//20
                for s in range(2):
                    for m in range(2):
                        fixed.append((pos - 1 + 0.1*m + 1.2*s, 'ds_read_b128 %s, %s offset:%d' % (A(aXF + 16*(sg % 2) + 8*s + 4*m, 4), V(vXr[s]), (sg % 4)*4096 + 2048*m)))
            if f_ % 10 == 0 and not CH:
                kk = f_//10; sg, s = kk // 2, kk % 2
                for m in range(2):
                    fixed.append((max(pos - 1, 20*kk - 19) + 0.1*m, 'ds_read_b128 %s, %s offset:%d' % (A(aXF + 8*(kk % 2) + 4*m, 4), V(vXr[s]), (sg % 4)*4096 + 2048*m)))
            fixed.append((pos, rd_b(f_)))
        b2 = [] if cfg.get('s_nob2') else self.b2_loads(0, range(10))
        if own:
            if sl_ >= 0: fixed.append((endb[sl_], F(lambda: self.pack_load(0, vPs), 32)))
            pa_, pb_ = self.pack_proc(0, vPr)
            for i, f in enumerate(pa_): fixed.append((endb[sr_] - 12 + i, f))
            for i, f in enumerate(pb_): fixed.append((endb[sr_] + i, f))
            fixed.append((40*sf_ - 2*LA - 1.4, F(lambda: self.flag_store(self.tPackSt, sPD), 8)))
        if WA >= 0: fixed.append((endb[WA], [x for x in wf if isld(x)]))
        pw = max(sr_ + 1, 2)
        sA = Stream(self.nonce_ops() + par, 2, 40*pw - 2*LA - 3)
        def parw():
            sA.flush(g); tokP[pw+1] = g.do(par_w)
        fixed.append((40*pw - 2*LA + 2, F(parw, 8)))
        for i, f in enumerate(par_r): fixed.append((40*(pw+1) - 2*LA + 21 + 1.4*i, f))
        pc = cfg.get('s_pc', 300); nb_in = cfg.get('s_b2in', 30) if pc < 400 else 0
        fixed.append((pc - 40, F(lambda: self.pack_poll_issue(vPp, vPd))))
        if pc < 400: fixed.append((pc, F(lambda: self.pack_poll_check(vPp, vPd), 20)))
        streams = [Stream(b2[:nb_in], pc + 1, 398, paced=True, slack=4), sA,
                   Stream(self.line_addr(WS_HFLAG, vFa), 40*sf_, 40*sf_ + 20), Stream(par2, 40*(pw+2), 390)]
        assert cfg.get('s_xd', 250) <= 250
        if cfg.get('s_xd', 250) >= 0 and self.XR == 0: streams.append(Stream(xdl, cfg.get('s_xd', 250), cfg.get('s_xd', 250) + 100))
        if cfg.get('s_ht'):
            streams.append(Stream(['v_lshrrev_b32 v188, 4, %s' % V(vLane), 'v_lshlrev_b32 v188, 13, v188', 'v_and_b32 v189, 15, %s' % V(vLane),
                 'v_lshl_add_u32 v188, v189, 7, v188', 'v_sub_u32 v189, %s, %s' % (V(vHs), V(vL16)), 'v_add_u32 v188, v188, v189',
                 'buffer_load_dword v190, v188, %s, 0 offen' % S(sH, 4), 'v_and_b32 v191, 15, %s' % V(vLane), 'v_lshl_add_u32 v189, v191, 7, v189',
                 'v_add_u32 v189, %d, v189' % (4*HKS), 'buffer_load_dword v191, v189, %s, 0 offen' % S(sH, 4)], cfg['s_ht'], cfg['s_ht'] + 20))
        assert sf_ >= pw
        if cfg.get('rw'): fixed.append((cfg['rw'][0], self.rewarm(0, 158)))
        if cfg.get('wgd', 262) > 1:
            fixed.append((cfg.get('wgd', 262), ['v_min_u32 v157, 9, %s' % V(vLane), 'v_lshlrev_b32 v157, 7, v157']))
            fixed.append((cfg.get('wgd', 262) + 2, 'global_load_dword v158, v157, %s ; result unused' % S(pGate, 2)))
        vGa, vTe, GR = 140, 145, 180
        ops = ['v_mul_u32_u24 %s, 5, %s' % (V(vGrp), V(vGrp)), 'v_sub_u32 %s, %s, %s' % (V(vGrp), S(sC1), V(vGrp)),
               ['v_cmp_gt_u32 vcc, 60, %s' % V(vLane), 'v_cndmask_b32 %s, 0, %s, vcc' % (V(vGrp), V(vGrp))],
               'v_mul_i32_i24 %s, %d, %s' % (V(PT+5), 4*self.EW, V(vGrp)), 'v_add_u32 %s, %s, %s' % (V(PT+5), V(PT+5), V(vT[5])),
               'v_mov_b32 %s, 0x7f000000' % V(PT+6)]
        for i in range(5):
            ops += ['v_subrev_u32 %s, %d, %s' % (V(vGa+i), 4*self.EW*(i+1), V(PT+5)),
                    ['v_cmp_lt_i32 vcc, %d, %s' % (i, V(vGrp)), 'v_cndmask_b32 %s, %s, %s, vcc' % (V(vGa+i), V(PT+6), V(vGa+i)),
                     'v_cndmask_b32 %s, 0, %s, vcc' % (V(vTe+i), V(vFd))]]
        vTw, vTr = 220, 221
        ops += ['v_and_b32 %s, 15, %s' % (V(PT+5), V(vLane)), 'v_mul_u32_u24 %s, 80, %s' % (V(vTw), V(PT+5)),
                'v_lshrrev_b32 %s, 4, %s' % (V(vTr), V(vLane)), 'v_lshl_add_u32 %s, %s, 4, %s' % (V(vTw), V(vTr), V(vTw)),
                'v_add_u32 %s, %s, %s' % (V(vTw), S(sMx), V(vTw)),
                'v_bfe_u32 %s, %s, 2, 2' % (V(PT+6), V(vLane)), 'v_lshl_add_u32 %s, %s, 3, %s' % (V(vTr), V(vTr), V(PT+6)),
                'v_mul_u32_u24 %s, 80, %s' % (V(vTr), V(vTr)), 'v_and_b32 %s, 3, %s' % (V(PT+6), V(vLane)),
                'v_lshl_add_u32 %s, %s, 3, %s' % (V(vTr), V(PT+6), V(vTr)), 'v_add_u32 %s, %s, %s' % (V(vTr), S(sMx), V(vTr)),
                's_lshl_b32 %s, %s, 3' % (S(sT2), S(sC1)), 's_add_u32 %s, %s, %s' % (S(sT2), S(sT2), S(sJ1)), 's_lshl_b32 %s, %s, 4' % (S(sT2), S(sT2)),
                'v_lshrrev_b32 %s, 4, v0' % V(vT[8]), 'v_add_u32 %s, %s, %s' % (V(vT[8]), S(sT2), V(vT[8])),
                'v_lshlrev_b32 %s, 4, %s' % (V(vT[7]), V(PT+5)),
                'v_mul_u32_u24 %s, 1280, %s' % (V(vT[6]), V(vT[8])), 'v_add_u32 %s, %s, %s' % (V(vT[6]), V(vT[6]), V(vT[7]))]
        HS = cfg.get('hsplit', 0)
        if HS:
            ops += ['s_mov_b32 %s, %s' % (S(d+k), S(sH+k)) for d in (sP1, sP2) for k in (0, 1, 3)]
            ops += [['s_cmp_lt_u32 %s, 2' % S(sWave), 's_cselect_b32 %s, %d, 0' % (S(sP1+2), HMS), 's_cselect_b32 %s, 0, %d' % (S(sP2+2), HMS)]]
        if DU: ops += self.srd_ptr(sOUT, sPo) + self.srd_cst(sOUT, 2048*2560)
        streams.append(Stream(ops + self.hp_addr(0, sT2, sKt), 352, 396))
        b2 = b2[nb_in:]
        if cfg.get('s_nomf'): mains = [('s_nop 0', None)]*400; fixed = [f for f in fixed if not (isinstance(f[1], str) and 'ds_read' in f[1])]
        if cfg.get('s_nostream'): streams = [streams[0]]
        sched(g, mains, 8, fixed, streams, report=self.rep and 'ssm')
        self.stamp(3)

        pace = cfg.get('s_pace', 9999)
        II, EB, EM = 160, 180, 200
        pr = lambda u, part, k: ACC + 16*u + 8*part + 2*k
        ops = []
        for k in range(1, 4):
            src = lambda u, part: (pr(u, part, 0) if k == 1 else (II if k == 2 else EB) + 4*u + 2*part)
            dst = lambda u, part: (EB if k == 2 else II) + 4*u + 2*part
            for u in range(5):
                ops += [pk('fma', dst(u, 0), L1+8*u, 0, src(u, 0), pr(u, 0, k)), pk('fma', dst(u, 1), L1+8*u, 0, src(u, 1), pr(u, 1, k))]
            for u in range(5):
                ops += [pk('fma', dst(u, 0), L1+8*u, 1, src(u, 1), dst(u, 0), True), pk('fma', dst(u, 1), L1+8*u, 1, src(u, 0), dst(u, 1))]
        for u in range(5):
            ops += ['v_fma_f32 %s, %s, %s, %s' % (V(EM+2*u), V(L4+8*u), V(II+4*u), V(II+4*u+1)),
                    'v_fma_f32 %s, %s, %s, %s' % (V(EM+2*u+1), V(L4+8*u), V(II+4*u+2), V(II+4*u+3))]
        for u in range(5):
            ops += ['v_fma_f32 %s, -%s, %s, %s' % (V(EM+2*u), V(L4+8*u+1), V(II+4*u+2), V(EM+2*u)),
                    'v_fmac_f32 %s, %s, %s' % (V(EM+2*u+1), V(L4+8*u+1), V(II+4*u)),
                    'ds_write_b64 %s, %s offset:%d' % (V(vT[2]), V(EM + 2*u, 2), 128*u)]
        ops.append(F(lambda: (self.cst(17), g.waitcnt(lg=0), g('s_barrier'), self.cst(18))))
        P = BIG + 20
        for s in range(16): ops.append('ds_read_b64 %s, %s offset:%d' % (V(P + 2*s, 2), V(vT[4]), 640*s))
        ops += ['v_mov_b32 %s, %s' % (V(P+32), S(sNonce)), 'v_mov_b32 %s, %s' % (V(P+33), S(sNonce))]
        def cmad(a, c, b):
            return ['v_pk_fma_f32 %s, %s, %s, %s op_sel:[0,0,0] op_sel_hi:[0,1,1]' % (V(a, 2), V(c, 2), V(b, 2), V(a, 2)),
                    'v_pk_fma_f32 %s, %s, %s, %s op_sel:[1,1,0] op_sel_hi:[1,0,1] neg_lo:[1,0,0]' % (V(a, 2), V(c, 2), V(b, 2), V(a, 2))]
        for s in range(1, 16):
            if s == 1: ops.append(F(lambda: g.waitcnt(lg=10)))
            if s == 6: ops.append(F(lambda: g.waitcnt(lg=0)))
            ops += cmad(P + 2*s, L8, P + 2*(s-1))
        ops.append('buffer_store_dwordx4 %s, %s, %s, %s offen sc1' % (V(P+30, 4), V(vT[5]), S(sWS, 4), S(sCo)))
        if pc < 400: b2 = mix(g, ops, b2, every=cfg.get('s_pace1', 9999))
        else: g.do(ops)
        bE, bG, bH = cfg.get('s_burst', (0, 10, 0))
        if pc < 400: g.do(b2[:bE]); b2 = b2[bE:]
        self.stamp(4)
        ops = ['v_mov_b32 v154, 0', 'v_mov_b32 v155, 0', 'ds_write_b64 %s, v[154:155]' % V(vT[4]),
               'ds_write_b64 %s, v[154:155] offset:10240' % V(vT[4])]
        for s in range(1, 16): ops.append('ds_write_b64 %s, %s offset:%d' % (V(vT[4]), V(P + 2*(s-1), 2), 640*s))
        g.do(ops[:2] + ['s_mov_b64 exec, 0xfffff'] + ops[2:] + ['s_mov_b64 exec, -1'])
        self.cst(11)
        GQ = [180 + 4*i for i in range(10)]
        GX = lambda i: GQ[i//4] + i % 4
        GW = lambda i: GQ[5 + i//4] + i % 4
        gate_ld = []
        for i in range(5):
            gate_ld.append('buffer_load_dwordx4 %s, %s, %s, 0 offen offset:%d' % (V(GQ[i], 4), V(vT[6]), S(sX, 4), 256*i))
            gate_ld.append('global_load_dwordx4 %s, %s, %s offset:%d' % (V(GQ[5+i], 4), V(vT[7]), S(pGate, 2), 256*i))
        TT = 16
        Z = TT + 8; ONE = TT + 9
        ops = ['v_mov_b32 %s, 0' % V(Z), 'v_mov_b32 %s, 0x3f803f80' % V(ONE), 's_mov_b32 %s, 0xffff0000' % S(sT1)]
        for i in range(20):
            x, w = V(GX(i)), V(GW(i))
            a, b, c, d = (V(TT + k + 4*(i % 2)) for k in range(4))
            ops += ['v_lshlrev_b32 %s, 16, %s' % (a, x), 'v_and_b32 %s, %s, %s' % (b, S(sT1), x),
                    'v_lshlrev_b32 %s, 16, %s' % (c, w), 'v_and_b32 %s, %s, %s' % (d, S(sT1), w),
                    'v_mul_f32 %s, %s, %s' % (a, a, c), 'v_mul_f32 %s, %s, %s' % (b, b, d),
                    'v_cvt_pk_bf16_f32 %s, %s, %s' % (a, a, b),
                    'v_dot2_f32_bf16 %s, %s, %s, %s' % (V(Z), a, V(ONE), V(Z))]
        for k in (8, 4, 2, 1):
            ops.append('v_add_f32_dpp %s, %s, %s row_ror:%d row_mask:0xf bank_mask:0xf' % (V(Z), V(Z), V(Z), k))
        G4 = 32
        ops += ['v_cvt_pk_bf16_f32 %s, %s, %s' % (V(Z), V(Z), V(Z)), 'v_lshlrev_b32 %s, 16, %s' % (V(Z), V(Z)),
                'v_mul_f32 %s, 0x%x, %s' % (V(Z), NLOG2E, V(Z)), 'v_exp_f32 %s, %s' % (V(Z), V(Z)),
                'v_mov_b32 %s, %s' % (V(G4+1), S(sNonce)),
                'v_add_f32 %s, 1.0, %s' % (V(Z), V(Z)), 'v_rcp_f32 %s, %s' % (V(Z), V(Z)),
                'v_mov_b32 %s, %s' % (V(G4+3), S(sNonce)),
                'v_cvt_pk_bf16_f32 %s, %s, %s' % (V(Z), V(Z), V(Z)), 'v_lshlrev_b32 %s, 16, %s' % (V(G4), V(Z)),
                'v_sub_f32 %s, 1.0, %s' % (V(ONE), V(G4)),
                'v_cvt_pk_bf16_f32 %s, %s, %s' % (V(ONE), V(ONE), V(ONE)), 'v_lshlrev_b32 %s, 16, %s' % (V(G4+2), V(ONE)),
                'v_lshlrev_b32 %s, 4, %s' % (V(vT[8]), V(vT[8])), 'v_add_u32 %s, %d, %s' % (V(vT[8]), WS_GATE, V(vT[8])),
                'buffer_store_dwordx4 %s, %s, %s, 0 offen sc1' % (V(G4, 4), V(vT[8]), S(sWS, 4))]
        gate_ops = ops
        ops = []
        TT = 150
        for u in range(5):
            cf = CF + 8*u
            for k0 in (0, 2):
                for k in (k0, k0+1): ops.append(pk('mul', TT + 2*(k % 2), cf, 1, pr(u, 0, k)))
                for k in (k0, k0+1): ops.append(pk('mul', pr(u, 0, k), cf, 0, pr(u, 0, k)))
                for k in (k0, k0+1): ops.append(pk('fma', pr(u, 0, k), cf, 1, pr(u, 1, k), pr(u, 0, k), True))
                for k in (k0, k0+1): ops.append(pk('fma', pr(u, 1, k), cf, 0, pr(u, 1, k), TT + 2*(k % 2)))
            ops += ['v_mul_f32 %s, %s, %s' % (V(II+4*u+1), V(cf), V(II+4*u)), 'v_mul_f32 %s, %s, %s' % (V(II+4*u+3), V(cf), V(II+4*u+2)),
                    'v_fma_f32 %s, -%s, %s, %s' % (V(II+4*u+1), V(cf+1), V(II+4*u+2), V(II+4*u+1)),
                    'v_fmac_f32 %s, %s, %s' % (V(II+4*u+3), V(cf+1), V(II+4*u))]
        coef_ops = ops
        nc = cfg.get('s_gat', 20)
        g.do(coef_ops[:nc])
        self.stamp(5)
        def gather():
            for i in range(5):
                g('buffer_load_dwordx3 %s, %s, %s, 0 offen sc1' % (V(GR + 4*i, 3), V(vGa+i), S(sWS, 4)))
        def gcheck():
            for i in range(4, -1, -1):
                g('v_xor_b32 %s, %s, %s' % (V(GR+3 if i == 4 else GR+7), V(vTe+i), V(GR + 4*i + 2)))
                if i < 4: g('v_or_b32 %s, %s, %s' % (V(GR+3), V(GR+3), V(GR+7)))
            g('v_cmp_ne_u32 vcc, 0, %s' % V(GR+3))
            g('s_nop 0')
            g('s_cmp_eq_u64 vcc, 0')
        if pc >= 400: self.pack_poll_check(vPp, vPd)
        gather()
        g.do(b2[:bG]); b2 = b2[bG:]
        b2 = mix(g, coef_ops[nc:], b2, every=cfg.get('s_pace3', 9999))
        self.cst(12)
        if not cfg.get('x_noe'): self.poll('carry', gather, gcheck)
        self.stamp(6)
        ops = []
        for d in range(4, 0, -1): ops += cmad(GR + 4*(d-1), L128, GR + 4*d)
        ops += ['v_mul_f32 %s, %s, %s' % (V(GR+4), V(LK), V(GR)), 'v_mul_f32 %s, %s, %s' % (V(GR+5), V(LK), V(GR+1)),
                'v_fma_f32 %s, -%s, %s, %s' % (V(GR+4), V(LK+1), V(GR+1), V(GR+4)), 'v_fmac_f32 %s, %s, %s' % (V(GR+5), V(LK+1), V(GR)),
                'ds_add_f32 %s, %s offset:10240' % (V(vT[4]), V(GR+4)), 'ds_add_f32 %s, %s offset:10244' % (V(vT[4]), V(GR+5))]
        ops.append(F(lambda: (g.waitcnt(lg=0), g('s_barrier'))))
        SS, PP = 200, 210
        for u in range(5):
            ops.append('ds_read_b64 %s, %s offset:%d' % (V(SS + 2*u, 2), V(vT[3]), 10240 + 128*u))
            ops.append('ds_read_b64 %s, %s offset:%d' % (V(PP + 2*u, 2), V(vT[2]), 128*u))
        b2 = mix(g, ops, b2, every=pace)
        self.cst(13)
        ops = []
        for h in range(2):
            for u in range(5): ops.append(cmad(PP+2*u, L8S+8*u, SS+2*u)[h])
        for u in range(5):
            ops += ['v_mul_f32 %s, %s, %s' % (V(II+4*u), V(CF+8*u), V(PP+2*u)), 'v_mul_f32 %s, %s, %s' % (V(II+4*u+2), V(CF+8*u), V(PP+2*u+1))]
        for u in range(5):
            ops += ['v_fma_f32 %s, -%s, %s, %s' % (V(II+4*u), V(CF+8*u+1), V(PP+2*u+1), V(II+4*u)), 'v_fmac_f32 %s, %s, %s' % (V(II+4*u+2), V(CF+8*u+1), V(PP+2*u))]
        for u in range(5):
            ops += ['v_fmac_f32 %s, %s, %s' % (V(II+4*u+1), V(L4+8*u), V(II+4*u)), 'v_fmac_f32 %s, %s, %s' % (V(II+4*u+3), V(L4+8*u), V(II+4*u+2))]
        for u in range(5):
            ops += ['v_fma_f32 %s, -%s, %s, %s' % (V(II+4*u+1), V(L4+8*u+1), V(II+4*u+2), V(II+4*u+1)), 'v_fmac_f32 %s, %s, %s' % (V(II+4*u+3), V(L4+8*u+1), V(II+4*u))]
        PKB = [104, 140]
        FRB = [148, 96]
        def scan_ops(us):
            o = []
            for k in range(4):
                pv = lambda u, part: (II + 4*u + 2*part if k == 0 else pr(u, part, k-1))
                for u in us:
                    o += [pk('fma', pr(u, 0, k), L1+8*u, 0, pv(u, 0), pr(u, 0, k)), pk('fma', pr(u, 1, k), L1+8*u, 0, pv(u, 1), pr(u, 1, k))]
                for u in us:
                    o += [pk('fma', pr(u, 0, k), L1+8*u, 1, pv(u, 1), pr(u, 0, k), True), pk('fma', pr(u, 1, k), L1+8*u, 1, pv(u, 0), pr(u, 1, k))]
            return o
        tp = lambda i: (0, 4, 1, 5)[i]
        def out_a(u):
            o = []
            pk = PKB[u % 2]
            for i in range(4): o.append('v_cvt_pk_bf16_f32 %s, %s, %s' % (V(pk+i), V(acc(u, 0, tp(i))), V(acc(u, 0, tp(i)+2))))
            o.append('ds_write_b128 %s, %s offset:%d' % (V(vTw), V(pk, 4), 2560*u))
            for i in range(4): o.append('v_cvt_pk_bf16_f32 %s, -%s, -%s' % (V(pk+4+i), V(acc(u, 1, tp(i))), V(acc(u, 1, tp(i)+2))))
            o.append('ds_write_b128 %s, %s offset:%d' % (V(vTw), V(pk+4, 4), 2560*u + 1280))
            fr = FRB[u % 2]
            for m in range(2):
                for e in range(2):
                    o.append('ds_read_b64_tr_b16 %s, %s offset:%d' % (V(fr + 4*m + 2*e, 2), V(vTr), 2560*u + 320*e + 32*m))
            return o
        tU = {}
        def out_b(u):
            fr = FRB[u % 2]
            def f():
                for m in range(2):
                    tU[u] = self.tH = g('buffer_store_dwordx4 %s, %s, %s, 0 offen offset:%d%s' % (V(fr + 4*m, 4), V(vHs), S(sP1 if HS else sH, 4), 1024*m, cfg.get('s_hst', ' sc1')))
                g('v_add_u32 %s, %d, %s' % (V(vHs), HKS, V(vHs)))
            return F(f, 12)
        def ilv(a, b):
            o = []; k = 0
            for i, x in enumerate(a):
                o.append(x)
                while k < len(b) and k*len(a) < (i+1)*len(b): o.append(b[k]); k += 1
            return o
        ops += scan_ops([0, 1]) + out_a(0) + gate_ld + ilv(scan_ops([2]), out_a(1)) + [out_b(0)] \
            + ilv(scan_ops([3]), out_a(2)) + [out_b(1)] + ilv(scan_ops([4]), out_a(3)) + [out_b(2)] + out_a(4) + [out_b(3)] + [out_b(4)]
        rest = mix(g, ops, b2, every=pace)
        tH = self.tH
        g.do(rest[:bH]); rest = rest[bH:]
        self.cst(14)
        SLV = cfg.get('s_lv', 0); k0, k1 = cfg.get('s_lvk', (0, 120))
        if SLV:
            g.do(gate_ops[:k0]); self.hflag(0, 0, tU[2]); g.do(gate_ops[k0:k1]); self.hpoll(0, 0); g.do(gate_ops[k1:])
        else:
            if cfg.get('x_noack'): tH = None
            kg = cfg.get('s_kg', 190)
            g.do(gate_ops[:kg]); self.cst(15); self.hflag(0, 0, tH, 'l' if cfg.get('dg', 0) else 'lg')
            self.hpoll(0, 0); g.do(gate_ops[kg:])
        late = []
        if HS:
            g('v_subrev_u32 v219, %d, %s' % (5*HKS, V(vHs)))
            for u in range(5):
                rd = ['ds_read_b64_tr_b16 %s, %s offset:%d' % (V(168 + 4*m + 2*e, 2), V(vTr), 2560*u + 320*e + 32*m) for m in range(2) for e in range(2)]
                def st(m):
                    def f(): self.tL = g('buffer_store_dwordx4 %s, v219, %s, 0 offen offset:%d sc1' % (V(168 + 4*m, 4), S(sP2, 4), 1024*m))
                    return F(f)
                late.append((rd, [st(0), st(1), 'v_add_u32 v219, %d, v219' % HKS]))
        self.late = late
        self.stamp(7)
        n2 = cfg.get('s_b2post', 0)
        while any(3 + 4*i > 20*min((50 - len(rest) + n2 + i)//5, 8) - 30 for i in range(len(rest) - n2)): n2 += 1
        g.do(rest[:n2])
        self.phase2(0, rest[n2:], tH if SLV else None)

    RD, XD, GA, GB, GV = 160, 192, 212, 217, 166
    RXA, RXB, DS = 222, 232, 242
    vGr, T = 160, 180
    vHp, vHd, vRw, vXf = 4, 5, 6, 252
    vRd = [7, 8, 9, 10, 11]; vOa = [12, 13, 14, 15, 0]
    def hp_addr(self, role, sT0=sT0, sT1=sT1):
        vHp, vHd = self.vHp, self.vHd
        return ['s_and_b32 %s, %s, 0x63' % (S(sT0), S(sIdx)), 's_lshl_b32 %s, %s, 3' % (S(sT1), S(sWave)),
                's_add_u32 %s, %s, %s' % (S(sT0), S(sT0), S(sT1)), 's_lshl_b32 %s, %s, %d' % (S(sT0), S(sT0), self.fg),
                's_add_u32 %s, %s, %d' % (S(sT0), S(sT0), WS_HFLAG + role*(128 << self.fg)),
                'v_bfe_u32 %s, %s, 2, 1' % (V(vHp), V(vLane)), 'v_lshlrev_b32 %s, %d, %s' % (V(vHp), self.fg + 2, V(vHp)),
                'v_and_b32 %s, 3, %s' % (V(vHd), V(vLane)), 'v_lshl_add_u32 %s, %s, %d, %s' % (V(vHp), V(vHd), self.fw, V(vHp)),
                'v_add_u32 %s, %s, %s' % (V(vHp), S(sT0), V(vHp))]
    def hp(self, off=0): self.g('buffer_load_dword %s, %s, %s, 0 offen sc1' % (V(self.vHd), V(self.vHp), S(sWS, 4)))
    def gload(self): return 'buffer_load_dwordx3 %s, %s, %s, 0 offen sc1' % (V(self.GV, 3), V(self.vGr + 5), S(sWS, 4))

    def p2_setup(self, role):
        T, vRd, vOa, vGr, vRw, DS, RXA, RXB = self.T, self.vRd, self.vOa, self.vGr, self.vRw, self.DS, self.RXA, self.RXB
        sXo, sXi, sM = sItem, sMx, sMw
        ops = ['s_lshl_b32 %s, %s, 3' % (S(sT0), S(sC1)), 's_add_u32 %s, %s, %s' % (S(sT0), S(sT0), S(sWave)),
               's_lshl_b32 %s, %s, 4' % (S(sT0), S(sT0)),
               's_mul_i32 %s, %s, 160' % (S(sT1), S(sJ1)), 's_mul_i32 %s, %s, 5440' % (S(sT2), S(sWave)),
               's_mov_b32 %s, 0xffff0000' % S(sM), 's_mov_b32 %s, 81920' % S(sT3)]
        ops += ['v_bfe_u32 %s, %s, 4, 1' % (V(T), V(vLane)), 'v_and_b32 %s, 15, %s' % (V(T+1), V(vLane)),
                'v_lshl_add_u32 %s, %s, 6, %s' % (V(T), V(T), V(T+1)), 'v_add_u32 %s, %s, %s' % (V(T), S(sT0), V(T)),
                'v_lshlrev_b32 %s, 4, %s' % (V(T), V(T)), 'v_add_u32 %s, %d, %s' % (V(vGr + 5), WS_GATE, V(T))]
        for q in range(5):
            e, row, ch, t3 = V(T), V(T+1), V(T+2), V(T+3)
            ops += ['v_add_u32 %s, %d, %s' % (e, 64*q, V(vLane)),
                    'v_mul_u32_u24 %s, 3277, %s' % (row, e), 'v_lshrrev_b32 %s, 16, %s' % (row, row),
                    'v_mul_u32_u24 %s, 20, %s' % (ch, row), 'v_sub_u32 %s, %s, %s' % (ch, e, ch),
                    'v_lshrrev_b32 %s, 2, %s' % (t3, ch), 'v_mul_u32_u24 %s, 1088, %s' % (V(vRd[q]), t3),
                    'v_and_b32 %s, 3, %s' % (t3, ch), 'v_mul_u32_u24 %s, 272, %s' % (t3, t3),
                    'v_add3_u32 %s, %s, %s, %s' % (V(vRd[q]), V(vRd[q]), t3, S(sT2)),
                    'v_lshl_add_u32 %s, %s, 4, %s' % (V(vRd[q]), row, V(vRd[q])),
                    'v_lshlrev_b32 %s, 2, %s' % (V(vGr + q), row), 'v_add_u32 %s, %s, %s' % (row, S(sT0), row),
                    'v_lshl_add_u32 %s, %s, 3, %s' % (ch, ch, S(sT1)),
                    'v_mul_u32_u24 %s, 1280, %s' % (e, row), 'v_add_u32 %s, %s, %s' % (e, e, ch)]
            if role == 0: ops.append('v_add_u32 %s, %s, %s' % (e, S(sT3), e))
            ops += ['v_lshlrev_b32 %s, 1, %s' % (V(vOa[q]), e)]
        ops += ['s_mul_i32 %s, %s, 21760' % (S(sT0), S(sWave)),
                'v_lshrrev_b32 %s, 4, %s' % (V(vRw), V(vLane)), 'v_mul_u32_u24 %s, 272, %s' % (V(vRw), V(vRw)),
                'v_and_b32 %s, 15, %s' % (V(T+1), V(vLane)), 'v_lshl_add_u32 %s, %s, 4, %s' % (V(vRw), V(T+1), V(vRw)),
                'v_add_u32 %s, %s, %s' % (V(vRw), S(sT0), V(vRw)),
                's_lshl_b32 %s, %s, 2' % (S(sT0), S(sIdx)), 's_add_u32 %s, %s, %s' % (S(sT0), S(sT0), S(sWave)),
                's_mul_i32 %s, %s, 5120' % (S(sT0), S(sT0)),
                's_add_u32 %s, %s, 0x%x' % (S(sXo), S(sT0), WS_X + role*128*20480), 's_add_u32 %s, %s, 0x%x' % (S(sXi), S(sT0), WS_X + (1-role)*128*20480)]
        ops += self.line_addr(WS_XFLAG, self.vXf)
        return ops

    def a2(self, role, n):
        ta = tabs(role)[1]; NS = len(ta); cfg = self.cfg
        half = role if n < NS else 1 - role
        return ['buffer_load_dwordx4 %s, %s, %s, %s offen offset:%d%s' % (V(A2R + 16*(n % 4) + 4*rt, 4), V(vL16b if half else vL16), S(sH, 4), S(ta[0 if cfg.get('x_a2same') else n % NS]), 1024*rt, cfg.get('a2sc', ' sc1')) for rt in range(4)]

    def xd_ops(self, RX, G=None):
        T, DS, XD, sM = self.T, self.DS, self.XD, sMw
        o = []
        for q in range(5):
            for h in range(2):
                x, d = V(RX + 2*q + h), V(DS + 2*q + h)
                a, b, c, dd = V(T), V(T+1), V(T+2), V(T+3)
                o += ['v_lshlrev_b32 %s, 16, %s' % (a, x), 'v_and_b32 %s, %s, %s' % (b, S(sM), x),
                      'v_lshlrev_b32 %s, 16, %s' % (c, d), 'v_and_b32 %s, %s, %s' % (dd, S(sM), d),
                      'v_mul_f32 %s, %s, %s' % (a, a, c), 'v_mul_f32 %s, %s, %s' % (b, b, dd),
                      'v_cvt_pk_bf16_f32 %s, %s, %s' % (a, a, b),
                      'v_lshlrev_b32 %s, 16, %s' % (V(XD + 4*q + 2*h), a), 'v_and_b32 %s, %s, %s' % (V(XD + 4*q + 2*h + 1), S(sM), a)]
                if G is not None: o += ['v_mul_f32 %s, %s, %s' % (V(XD + 4*q + 2*h + k), V(G + q), V(XD + 4*q + 2*h + k)) for k in range(2)]
        return o

    def xd_loads(self, T, AD=None):
        o = ['s_lshl_b32 %s, %s, 3' % (S(sT3), S(sC1)), 's_add_u32 %s, %s, %s' % (S(sT3), S(sT3), S(sWave)),
             's_lshl_b32 %s, %s, 4' % (S(sT3), S(sT3)), 's_mul_i32 %s, %s, 160' % (S(sT1), S(sJ1))]
        sXh = sT0 if AD is None else 54
        o.append('s_mov_b32 %s, 81920' % S(sXh)); ld = []
        for q in range(5):
            e, row, ch = V(T), V(T+1), V(T+2)
            if AD is not None: e, ch = V(AD + 2*q), V(AD + 2*q + 1)
            o += ['v_add_u32 %s, %d, %s' % (e, 64*q, V(vLane)),
                  'v_mul_u32_u24 %s, 3277, %s' % (row, e), 'v_lshrrev_b32 %s, 16, %s' % (row, row),
                  'v_mul_u32_u24 %s, 20, %s' % (ch, row), 'v_sub_u32 %s, %s, %s' % (ch, e, ch),
                  'v_add_u32 %s, %s, %s' % (row, S(sT3), row), 'v_lshl_add_u32 %s, %s, 3, %s' % (ch, ch, S(sT1)),
                  'v_mul_u32_u24 %s, 1280, %s' % (e, row), 'v_add_u32 %s, %s, %s' % (e, e, ch)]
            l = ['global_load_dwordx2 %s, %s, %s' % (V(self.DS + 2*q, 2), ch, S(pDsk, 2)),
                 'buffer_load_dwordx2 %s, %s, %s, 0 offen' % (V(self.RXB + 2*q if self.XR else self.RXA + 2*q, 2), e, S(sX, 4)),
                 'buffer_load_dwordx2 %s, %s, %s, %s offen' % (V(self.RXA + 2*q if self.XR else self.RXB + 2*q, 2), e, S(sX, 4), S(sXh))]
            if AD is None: o += l
            else: ld += l
        return o if AD is None else (o, ld)

    def phase2(self, role, b2rest, tH2):
        g = self.g; cfg = self.cfg
        tb, ta = tabs(role); NS = len(tb)
        hA, hB = (1, 0) if role else (0, 1)
        vHp, vHd, vRw, vRd, vOa, vXf, vXv = self.vHp, self.vHd, self.vRw, self.vRd, self.vOa, self.vXf, vFd
        RD, GA, GB, XD, RXB, DS, vGr, RXA, T = self.RD, self.GA, self.GB, self.XD, self.RXB, self.DS, self.vGr, self.RXA, self.T
        sXo, sXi, sM = sItem, sMx, sMw
        hp = lambda: self.hp(0)
        GV = self.GV
        a2 = lambda n: self.a2(role, n)
        mains = []; fixed = []
        def tile(rt, nt): return ACC2 + 4*(rt*5 + nt)
        def mf(n, j):
            rt, nt = j // 5, j % 5
            c = '0' if n % NS == 0 else V(tile(rt, nt), 4)
            return ('v_mfma_f32_16x16x32_bf16 %s, %s, %s, %s' % (V(tile(rt, nt), 4), A(B2slot(role, n % NS) + 4*nt, 4), V(A2R + 16*(n % 4) + 4*rt, 4), c), None)
        TM = cfg.get('tm', (1, 1))[role]
        for n in range(2*NS):
            if TM == 2:
                if n % 2 == 0:
                    for j in range(20): mains += [mf(n, j), mf(n+1, j)]
            elif TM and n % NS == NS - 2:
                for j in range(0, 20, 2): mains += [mf(n, j), mf(n+1, j), mf(n, j+1), mf(n+1, j+1)] if cfg.get('tmb', 0) else [mf(n, j), mf(n, j+1), mf(n+1, j), mf(n+1, j+1)]
            elif not (TM and n % NS == NS - 1):
                mains += [mf(n, j) for j in range(20)]
        if TM == 2:
            for i, f in enumerate(a2(3)): fixed.append((1 + 3*i, f))
            for n in range(4, 2*NS):
                for i, f in enumerate(a2(n)): fixed.append((20*(n - 4 - n % 2) + 10*i + 11 + 4*(n % 2), f))
        for n in range(0 if TM == 2 else 2*NS - 3):
            for i, f in enumerate(a2(n+3)):
                p = 20*n + 1 + 5*i
                if TM and n % NS == NS - 1: p = max(p, 20*(n-1) + 10*i + 12)
                if TM and n % NS == NS - 4: p = 20*n + 1 + 3*i
                if TM and n % NS == NS - 5: p = 20*n + 1 + 4*i
                fixed.append((p, f))
        PA, PE = 20*NS, 40*NS
        for k, p in enumerate((20, 80, 140, PA, PA + 40, PA + 100, PA + 140, PE - 60)): fixed.append((p - 0.1, F(lambda k=k: self.stamp(11+k, lvl=3), 0)))
        self.cst(16)
        DG = cfg.get('dg', 0)
        EA = self.EA if role else 0
        if not EA: self.hcheck(role, 0, (lambda: self.hflag(0, 0, None, 'g')) if (role == 0 and DG) else None)
        if role == 0 and DG: fixed.append((cfg.get('dg0', 22), F(lambda: self.hflag(0, 0, None, 'g'), 8)))
        if role == 1 and DG:
            fixed.append((cfg.get('dg1', 22), F(lambda: self.hflag(1, 1, None, 'g'), 8)))
            fixed.append((cfg.get('dg2', 47), F(lambda: self.hflag(1, 2, None, 'g'), 8)))
        self.stamp(8)
        if not EA:
            for n in range(3): g.do(a2(n))
        else: fixed.append((20.5, F(lambda: self.hcheck(1, 1), 20)))
        ops = self.p2_setup(role)
        if role == 1:
            fixed.append((cfg.get('f_l2', 40 if EA else 6), F(lambda: self.hflag(1, 2 + EA, tH2, 'l' if DG else 'lg'), 20)))
            dq = 10 if TM == 2 else 0
            fixed.append((cfg.get('f_p1', 44) - dq, F(lambda: self.hpoll(1, 1 + EA), 8)))
            fixed.append((60.5 - dq, F(lambda: self.hcheck(1, 1 + EA), 20)))
            fixed.append((cfg.get('f_p2', 84) - dq, F(lambda: self.hpoll(1, 2 + EA), 8)))
            fixed.append((100.5 - dq, F(lambda: self.hcheck(1, 2 + EA), 20)))
        else:
            if self.late:
                p0, dp = cfg.get('s_late', (2, 14))
                for u, (rd, st) in enumerate(self.late):
                    for i, f in enumerate(rd): fixed.append((p0 + dp*u + i, f))
                    for i, f in enumerate(st): fixed.append((p0 + dp*u + dp - 3 + 0.9*i, f))
                fixed.append((cfg.get('s_l1', 112), F(lambda: self.hflag(0, 1, self.tL), 20)))
                fixed.append((cfg.get('s_p1', 128), F(lambda: self.hpoll(0, 1), 8)))
                fixed.append((140.5, F(lambda: self.hcheck(0, 1), 20)))
            elif tH2 is not None:
                if tH2 is not None: fixed.append((cfg.get('s_l1', 6), F(lambda: self.hflag(0, 1, tH2), 20)))
                fixed.append((cfg.get('s_p1', 44), F(lambda: self.hpoll(0, 1), 8)))
                fixed.append((60.5, F(lambda: self.hcheck(0, 1), 20)))
        fixed.append((142, 'v_xor_b32 %s, %d, %s' % (V(vHp), 128 << self.fg, V(vXf))))
        fixed.append((cfg.get('p2bar', 100), 's_barrier'))
        nb0 = 5*NS - len(b2rest)
        for i, f in enumerate(b2rest):
            p = 3 + 4*i
            assert p <= 20*min((nb0 + i)//5, NS - 2) - 30 or cfg.get('bad'), (role, i, p)
            fixed.append((p, f))
        xd_ops = self.xd_ops
        s0 = Stream(ops, 2, 99)
        fixed.append((101.5, F(lambda: s0.flush(g), 0)))
        gl, gp = cfg.get('g_at', (104, 150))
        fixed.append((gl, self.gload()))
        fixed.append((gp, F(lambda: self.poll('gt', lambda: g(self.gload()), self.check_eq([GV + 1])), 20)))
        XD_ = role == self.XR
        for q in range(5):
            for h in range(2):
                fixed.append((gp + 1 + 2*q + h, 'ds_bpermute_b32 %s, %s, %s offset:%d' % (V((GA if h == hA else GB) + q), V(vGr + q), V(GV + 2*role), 64*h)))
        streams = [s0]
        if XD_ and role == 0:
            streams += [Stream(xd_ops(RXA), 102, PA - 44), Stream(xd_ops(RXB), PA + 112, PE - 22)]
        if XD_ and role == 1:
            G2A, G2B = 170, 222
            for q in range(5): fixed.append((gp + 11 + q, 'ds_bpermute_b32 %s, %s, %s offset:%d' % (V(G2A + q), V(vGr + q), V(GV), 64*hA)))
            sxa = Stream(xd_ops(RXA, G2A), gp + 22, PA - 6)
            fixed.append((PA - 4, F(lambda: (sxa.flush(g), g.do(['ds_bpermute_b32 %s, %s, %s offset:%d' % (V(G2B + q), V(vGr + q), V(GV), 64*hB) for q in range(5)])), 20)))
            streams += [sxa, Stream(xd_ops(RXB, G2B), PA + 112, PE - 22)]
        for base in (PA, PE):
            for j in range(20):
                fixed.append(((base - 40 + 2*j + 9) if TM else (base - 15 + (1.65*j if base == PA else j)), 'ds_write_b128 %s, %s offset:%d' % (V(vRw), V(ACC2 + 4*j, 4), 1088*j)))
        XB = cfg.get('xb', 1); vL8 = vFa
        fixed.append((PA, 'v_lshlrev_b32 %s, 3, %s' % (V(vL8), V(vLane))))
        mb = PA + (16 if TM else 24)
        fixed.append((mb - 0.5, F(lambda: (g.waitcnt(lg=0), g('s_barrier')), 8)))
        def rds(q): return ['ds_read_b128 %s, %s offset:%d' % (V(RD + 16*(q % 2) + 4*src, 4), V(vRd[q]), 21760*src) for src in range(4)]
        for i, f in enumerate(rds(0) + rds(1)): fixed.append((mb + i, f))
        for q in range(5):
            QS, OS = cfg.get('mq', (13, 0.55)); p = mb + 12 + QS*q; r0 = RD + 16*(q % 2); o = []
            if XD_ and role == 1:
                for src in range(1, 4):
                    for r in range(4): o.append('v_add_f32 %s, %s, %s' % (V(r0 + r), V(r0 + r), V(r0 + 4*src + r)))
                for r in range(4): o.append('v_fmac_f32 %s, %s, %s' % (V(XD + 4*q + r), V(GA + q), V(r0 + r)))
                nadd = len(o)
            else:
                for src in range(4):
                    for r in range(4):
                        if not XD_ and src == 0: continue
                        a = V(r0 + r) if (not XD_ and src == 1) else V(XD + 4*q + r)
                        o.append('v_add_f32 %s, %s, %s' % (V(XD + 4*q + r), a, V(r0 + 4*src + r)))
                nadd = len(o)
                for r in range(4): o.append('v_mul_f32 %s, %s, %s' % (V(XD + 4*q + r), V(GA + q), V(XD + 4*q + r)))
            if XB:
                xr = XD + 8*(q//2) + 2*(q % 2)
                o += ['v_cvt_pk_bf16_f32 %s, %s, %s' % (V(xr + h), V(XD + 4*q + 2*h), V(XD + 4*q + 2*h + 1)) for h in range(2)]
                def st(q=q):
                    n = 2 if q == 4 else 4
                    self.tX = g('buffer_store_dwordx%d %s, %s, %s, %s offen offset:%d sc1' % (n, V(XD + 8*(q//2), n), V(vL16 if q < 4 else vL8), S(sWS, 4), S(sXo), 1024*(q//2)))
                if q % 2 or q == 4: o.append(F(st))
            else:
                def st(q=q):
                    self.tX = g('buffer_store_dwordx4 %s, %s, %s, %s offen offset:%d sc1' % (V(XD + 4*q, 4), V(vL16 if q < 4 else vL16b), S(sWS, 4), S(sXo), 1024*(q & 3)))
                o.append(F(st))
            for i, f in enumerate(o): fixed.append((p + i*OS, f))
            if q + 2 < 5:
                for i, f in enumerate(rds(q+2)): fixed.append((p + nadd*OS + 0.1 + i*min(1, 2*OS), f))
        fixed.append((PA + 112, 's_barrier'))
        if 0: fixed.append((cfg['otouch'], 'buffer_load_dword %s, %s, %s, 0 offen' % (V(vFa), V(vOa[0]), S(sOUT, 4))))
        fixed.append((PA + (cfg.get('xf_at', (150, 150))[role]), F(lambda: (g.wait(self.tX), g('buffer_store_dword %s, %s, %s, 0 offen sc1' % (V(vXv), V(vXf), S(sWS, 4)))), 8)))
        xp = cfg.get('xp_at', (0, 0))[role]
        fixed.append((PE - cfg.get('xpi', (30, 30))[role] - (xp if 'xpi' not in cfg else 0), F(hp)))
        if role == 1:
            U = 184
            def uload():
                for i in range(4):
                    g('s_mov_b32 %s, %d' % (S(sL1), (WS_PFLAG + (128 << self.fg) if i < 2 else WS_HFLAG) + (64 << self.fg)*(i & 1)))
                    g('buffer_load_dword %s, %s, %s, %s offen sc1' % (V(U+2+i), V(U+6), S(sPD, 4), S(sL1)))
            def ucheck():
                self.check_eq([U+2, U+3, U+4, U+5], U, U+1)()
                g('s_cselect_b32 %s, 0, %s' % (S(sL1), S(sPD+2)))
                g('s_cmp_eq_u32 %s, 0' % S(sL1))
            fixed.append((PA + 114, ['s_or_b32 %s, %s, %s' % (S(sL1), S(sWave), S(sIdx)), 's_cselect_b32 %s, 0, 0x%x' % (S(sPD+2), WS_SIZE)]))
            fixed.append((PA + 115, ['v_lshlrev_b32 %s, %d, %s' % (V(U+6), self.fg, V(vLane)), 'v_mov_b32 %s, 0' % V(U+7)]))
            fixed.append((PA + 117, F(uload, 32)))
            fixed.append((PA + 170, F(lambda: (self.poll('up', uload, ucheck), g('buffer_store_dword %s, %s, %s, 0 offen sc1' % (V(vXv), V(U+7), S(sPD, 4)))), 60)))
        def recv():
            self.poll('xf', hp, self.check_eq([vHd]))
            if XB:
                for k in range(3):
                    n = 2 if k == 2 else 4
                    g('buffer_load_dwordx%d %s, %s, %s, %s offen offset:%d sc1' % (n, V(RD + 10 + 4*k, n), V(vL8 if k == 2 else vL16), S(sWS, 4), S(sXi), 1024*k))
            else:
                for q in range(5):
                    g('buffer_load_dwordx4 %s, %s, %s, %s offen offset:%d sc1' % (V(RD + 4*q, 4), V(vL16 if q < 4 else vL16b), S(sWS, 4), S(sXi), 1024*(q & 3)))
        if xp > 0: fixed.append((PE - xp, F(recv, 40)))
        sched(g, mains, 8, fixed, streams, report=self.rep and 'p2')
        if xp <= 0: recv()
        self.stamp(9)
        g.waitcnt(lg=0)
        g('s_barrier')
        for q in range(5):
            for src in range(4):
                g('ds_read_b128 %s, %s offset:%d' % (V(ACC2 + 16*q + 4*src, 4), V(vRd[q]), 21760*src))
        osc = cfg.get('osc', ' nt')
        for q in range(5):
            SM = ACC2 + 16*q if (XD_ and role == 1) else XD + 4*q
            for src in range(4):
                for r in (0, 2):
                    if (role == 1 or not XD_) and src == 0: continue
                    a = V(ACC2 + 16*q + r, 2) if ((role == 1 or not XD_) and src == 1) else V(SM + r, 2)
                    g('v_pk_add_f32 %s, %s, %s' % (V(SM + r, 2), a, V(ACC2 + 16*q + 4*src + r, 2)))
            if XB:
                for h in range(2):
                    g('v_lshlrev_b32 %s, 16, %s' % (V(RD + 4*q + 2*h), V(RD + 10 + 2*q + h)))
                    g('v_and_b32 %s, %s, %s' % (V(RD + 4*q + 2*h + 1), S(sM), V(RD + 10 + 2*q + h)))
            gb = GB + q; hi = gb & 1
            for r in (0, 2):
                if XD_ and role == 1: g('v_pk_add_f32 %s, %s, %s' % (V(RD + 4*q + r, 2), V(RD + 4*q + r, 2), V(XD + 4*q + r, 2)))
                g('v_pk_fma_f32 %s, %s, %s, %s op_sel:[%d,0,0] op_sel_hi:[%d,1,1]' % (V(RD + 4*q + r, 2), V(gb - hi, 2), V(SM + r, 2), V(RD + 4*q + r, 2), hi, hi))
            g('buffer_store_dwordx4 %s, %s, %s, 0 offen%s' % (V(RD + 4*q, 4), V(vOa[q]), S(sOUT, 4), osc))
        self.finish(role)

    def finish(self, role):
        g = self.g
        if self.cfg.get('stamps'):
            g.waitall()
            self.stamp(10)
            self.stamp(31, 's_memtime')
            g('s_lshl_b32 %s, s2, 2' % S(sT0))
            g('s_add_u32 %s, %s, %s' % (S(sT0), S(sT0), S(sWave)))
            g('s_lshl_b32 %s, %s, 7' % (S(sT0), S(sT0)))
            g('s_add_u32 %s, %s, %d' % (S(sT0), S(sT0), WS_STAMP))
            g('v_lshlrev_b32 v4, 2, %s' % V(vLane))
            g('s_mov_b32 exec_hi, 0')
            g('buffer_store_dword %s, v4, %s, %s offen' % (V(vStamp), S(sWS, 4), S(sT0)))
        if role == 0: g.label('L_exit')
        g('s_endpgm')
        g.hist = []

    def post(self, txt):
        c = self.cfg; out = []
        for l in txt.split('\n'):
            if c.get('x_nox') and ('s[12:15], s90 offen' in l or 's[12:15], s91 offen' in l) and 'dwordx4' in l: l = l.replace('s[12:15]', 's[20:23]')
            if c.get('x_noh') and 'buffer_store_dwordx4' in l and 's[36:39]' in l: l = l.replace('s[36:39]', 's[20:23]')
            if c.get('x_nopk') and 'dwordx4' in l and ('s[24:27]' in l or 's[16:19]' in l or 's[20:23]' in l): l = l.replace('s[24:27]', 's[20:23]').replace('s[16:19]', 's[20:23]')
            if c.get('x_noout') and 's[28:31]' in l and 'store' in l: l = l.replace('s[28:31]', 's[20:23]')
            if (c.get('x_nox') or c.get('x_noh') or c.get('x_nopk') or c.get('x_noout')):
                if 's_mov_b32 s22, s18' in l: l = '    s_mov_b32 s22, 0'
                if l.startswith('L_ssm:'): l += '\n    s_mov_b32 s20, 0\n    s_mov_b32 s21, 0\n    s_mov_b32 s22, 0\n    s_mov_b32 s23, 0x20000'
            out.append(l)
        return '\n'.join(out)

    def build(self):
        g = self.g
        self.prologue()
        st = g.state()
        self.ffn()
        g.vm, g.lg, g.smem = list(st[0]), list(st[1]), list(st[2])
        self.ssm()
        if self.cfg.get('lay', 1):
            L = g.lines
            a = L.index('L_ssm:'); b = L.index('L_ssm2:'); c = L.index('    s_cbranch_scc1 L_ssm')
            g.lines = L[:c] + ['    s_cbranch_scc0 L_ffn'] + L[a:b] + ['L_ffn:'] + L[c+1:a] + L[b:]
        if not self.cfg.get('pret', 1): g.raw('L_codeend:')
        for f in self.tail: f()
        if self.cfg.get('pret', 1):
            g.raw('\n'.join(['    s_endpgm']*256) + '\nL_codeend:')
        hdr = open('gated_mix__ssm_conv_s5__dense_activation_silu__prompt.s.ref').read()
        top = hdr[:hdr.index('; Override launch geometry')]
        txt = top + '; Generated by a hand-written generator script (straight-line schedule, one fused launch).\n'
        txt += '; @launch grid=(256,1,1) block=(256,1,1) lds=163840\n'
        txt += '.amdgcn_target "amdgcn-amd-amdhsa--gfx950"\n.text\n.globl %s\n.p2align 8\n.type %s,@function\n%s:\n' % (KNAME, KNAME, KNAME)
        txt += self.post(g.text())
        txt += '''.section .rodata,"a"
.p2align 6
.amdhsa_kernel %s
  .amdhsa_next_free_vgpr 512
  .amdhsa_next_free_sgpr 102
  .amdhsa_accum_offset 256
  .amdhsa_group_segment_fixed_size 0
  .amdhsa_kernarg_size 128
  .amdhsa_user_sgpr_count 2
  .amdhsa_user_sgpr_kernarg_segment_ptr 1
  .amdhsa_system_sgpr_workgroup_id_x 1
.end_amdhsa_kernel
''' % KNAME
        return txt

def make(cfg=None):
    k = K(cfg or {})
    return k.build(), k

if __name__ == '__main__':
    import json
    cfg = json.loads(sys.argv[2]) if len(sys.argv) > 2 else {}
    cfg['report'] = 1
    txt, k = make(cfg)
    open(sys.argv[1], 'w').write(txt)
    print(k.g.stats, 'nops', k.g.nnop, 'bytes', len(txt))
```
